```python
import torch

def _softmax(x, axis=-1):
    return torch.softmax(x, dim=axis)
def _gelu(x):
    return torch.nn.functional.gelu(x, approximate="tanh")
def _silu(x):
    return torch.nn.functional.silu(x)
def _sigmoid(x):
    return torch.sigmoid(x)
def _layernorm(x, axis=-1, eps=1e-5):
    m = x.mean(dim=axis, keepdim=True)
    v = x.var(dim=axis, keepdim=True, unbiased=False)
    return (x - m) / torch.sqrt(v + eps)
def _scatter_add(tgt, idx, src, axis=0):
    return tgt.clone().index_add_(axis, idx, src)
def _segment_sum(src, seg, n):
    out = torch.zeros((n,) + src.shape[1:], dtype=src.dtype)
    return out.index_add_(0, seg, src)
def _pad(x, pw):
    flat = tuple(v for pair in reversed(pw) for v in pair)
    return torch.nn.functional.pad(x, flat)

kernel_name = 'parallel_sum__spectral_gfnet__dense_activation_silu__prompt'

def setup_inputs():

    _w = (lambda a: (lambda t: t.to(torch.bfloat16) if t.is_floating_point() else t)(torch.as_tensor(a)))
    def _A_setup():
        B, S, D = 1, 2048, 512
        Df = D // 2 + 1
        return {
            "x": _w((lambda *s: torch.randn(*s, dtype=torch.bfloat16) * 0.05)(B, S, D)),
            "w_r": _w((lambda *s: torch.randn(*s, dtype=torch.bfloat16) * 0.8)(S, Df) * 0.02),
            "w_i": _w((lambda *s: torch.randn(*s, dtype=torch.bfloat16) * 0.8)(S, Df) * 0.02),
        }
    _A_in = _A_setup()

    def _B_setup():
        B, S, D, F = 1, 2048, 512, 1792
        return {
            "x": _w((lambda *s: torch.randn(*s, dtype=torch.bfloat16) * 0.05)(B, S, D)),
            "w1": _w((lambda *s: torch.randn(*s, dtype=torch.bfloat16) * 0.8)(D, F) * (D ** -0.5)),
            "w2": _w((lambda *s: torch.randn(*s, dtype=torch.bfloat16) * 0.1)(F, D) * (F ** -0.5)),
        }
    _B_in = _B_setup()

    return {
        "A_x": _A_in["x"],
        "A_w_r": _A_in["w_r"],
        "A_w_i": _A_in["w_i"],
        "B_x": _B_in["x"],
        "B_w1": _B_in["w1"],
        "B_w2": _B_in["w2"],
    }

def reference(A_x, A_w_r, A_w_i, B_x, B_w1, B_w2):
    def _A_ref(x, w_r, w_i):
        B, S, D = x.shape
        X = (lambda x, axes=(-2,-1): torch.fft.rfft2(x.float(), dim=axes))(x, axes=(-2, -1))
        W = w_r + 1j * w_i
        X = X * W
        y = (lambda x, s, axes=(-2,-1): torch.fft.irfft2(x, s=s, dim=axes).to(torch.bfloat16))(X, (S, D), axes=(-2, -1))
        return y

    def _B_ref(x, w1, w2):
        h = torch.einsum("bsd,df->bsf", x, w1)
        h = _silu(h)
        out = torch.einsum("bsf,fd->bsd", h, w2)
        return out

    x = A_x
    xn = _layernorm(x, axis=-1)
    return x + _A_ref(xn, A_w_r, A_w_i) + _B_ref(xn, B_w1, B_w2)
```

```python
import re, copy

REG_RE = re.compile(r'(?<![\w.])([vsa])(?:(\d+)|\[(\d+):(\d+)\])(?![\w])')
def regs_of(tok):
    out = set()
    for m in REG_RE.finditer(tok):
        k = m.group(1)
        if m.group(2) is not None: out.add((k, int(m.group(2))))
        else: out.update((k, i) for i in range(int(m.group(3)), int(m.group(4)) + 1))
    if re.search(r'\bvcc\b', tok): out.add(('s', 'vcc'))
    if re.search(r'\bm0\b', tok): out.add(('s', 'm0'))
    if re.search(r'\bexec\b', tok): out.add(('s', 'exec'))
    return out

TRANS = ('v_exp_f32', 'v_log_f32', 'v_rcp_f32', 'v_rsq_f32', 'v_sqrt_f32', 'v_sin_f32', 'v_cos_f32')
def split_ops(rest):
    ops, depth, cur = [], 0, ''
    for ch in rest:
        if ch == '[': depth += 1
        if ch == ']': depth -= 1
        if ch == ',' and depth == 0: ops.append(cur.strip()); cur = ''
        else: cur += ch
    if cur.strip(): ops.append(cur.strip())
    return ops

class Ins:
    __slots__ = ('txt', 'op', 'cls', 'dst', 'src', 'passes', 'srcC', 'srcAB', 'stdata', 'states')
    def __init__(self, txt):
        self.txt = txt
        t = txt.split(';')[0].strip()
        parts = t.split(None, 1)
        op = parts[0]; self.op = op
        ops = split_ops(parts[1]) if len(parts) > 1 else []
        self.dst, self.src, self.passes, self.srcC, self.srcAB, self.stdata = set(), set(), 0, set(), set(), set()
        self.states = 1
        R = lambda i: regs_of(ops[i]) if i < len(ops) else set()
        allr = lambda a: set().union(*[regs_of(o) for o in ops[a:]]) if ops[a:] else set()
        if op.startswith('v_mfma'):
            self.cls = 'mfma'; self.dst = R(0); self.srcAB = R(1) | R(2); self.srcC = R(3); self.src = self.srcAB | self.srcC
            self.passes = 8 if '32x32' in op else 4 if '16x16' in op else 2
        elif op.startswith('v_'):
            self.cls = 'valu'
            if op.startswith('v_cmp'): self.dst = R(0); self.src = allr(1)
            elif op.startswith('v_permlane') and 'swap' in op: self.dst = R(0) | R(1); self.src = R(0) | R(1)
            elif op.startswith(('v_add_co', 'v_addc_co', 'v_sub_co')): self.dst = R(0) | R(1); self.src = allr(2)
            elif op == 'v_nop': pass
            else:
                self.dst = R(0); self.src = allr(1)
                if op.startswith(('v_fmac', 'v_pk_fmac', 'v_dot2c', 'v_writelane')) or 'dpp' in op: self.src |= R(0)
        elif op.startswith('ds_'):
            self.cls = 'ds'
            if op.startswith('ds_read'): self.dst = R(0); self.src = allr(1)
            else: self.src = allr(0)
        elif op.startswith(('buffer_', 'global_')):
            self.cls = 'vmem'
            if ' lds' in ' ' + (parts[1] if len(parts) > 1 else ''):
                self.src = allr(0) | {('s', 'm0')}
            elif 'load' in op: self.dst = R(0); self.src = allr(1)
            else:
                self.src = allr(0)
                if op.startswith('buffer_') and ('x4' in op or 'x3' in op): self.stdata = R(0)
                if op.startswith('global_') and ('x4' in op or 'x3' in op): self.stdata = R(1)
        elif op.startswith('s_load') or op.startswith('s_mem'):
            self.cls = 'smem'; self.dst = R(0); self.src = allr(1)
        elif op == 's_nop': self.cls = 'nop'; self.states = int(ops[0]) + 1
        elif op in ('s_waitcnt', 's_barrier', 's_endpgm', 's_setprio', 's_sleep') or op.startswith(('s_cbranch', 's_branch')):
            self.cls = 'ctl'
        elif op.startswith('s_cmp') or op.startswith('s_bitcmp'):
            self.cls = 'salu'; self.src = allr(0)
        elif op.startswith('s_'):
            self.cls = 'salu'; self.dst = R(0); self.src = allr(1)
            if 'saveexec' in op: self.dst |= {('s', 'exec')}
            if op.startswith(('s_addk', 's_mulk')): self.src |= R(0)
        else:
            raise ValueError('unknown op ' + txt)

def need_states(p, c):
    n = 0
    vd = {r for r in p.dst if r[0] in 'va'}
    sd = {r for r in p.dst if r[0] == 's'}
    if p.cls == 'valu':
        if c.cls == 'mfma' and vd & c.src: n = max(n, 2)
        if c.cls == 'valu':
            if p.op.startswith(TRANS) and not c.op.startswith(TRANS) and vd & c.src: n = max(n, 1)
            if p.op.startswith(TRANS) and c.op.startswith(TRANS) and vd & c.src: n = max(n, 1)
            if c.op.startswith(('v_readfirstlane', 'v_readlane')) and vd & c.src: n = max(n, 1)
            if c.op.startswith('v_permlane') and vd & c.src: n = max(n, 2)
            if 'dpp' in c.txt or 'quad_perm' in c.txt or 'row_' in c.txt:
                if vd & c.src: n = max(n, 2)
            if sd & c.src: n = max(n, 2)
            if c.op.startswith(('v_readlane', 'v_writelane')) and sd & c.src: n = max(n, 4)
        if c.cls == 'vmem' and sd & c.src: n = max(n, 5)
        if c.cls == 'salu' and sd & c.src: n = max(n, 1)
        if c.cls == 'mfma' and ('s', 'exec') in sd: n = max(n, 4)
    if p.cls == 'mfma':
        idx = {2: 0, 4: 1, 8: 2}[p.passes]
        if c.cls == 'mfma':
            if vd & c.srcAB: n = max(n, (5, 8, 12)[idx])
            if vd & c.srcC:
                if c.srcC == vd and c.passes == p.passes: n = max(n, (2, 0, 0)[idx])
                else: n = max(n, (4, 6, 10)[idx])
            elif vd & c.dst: n = max(n, (4, 6, 10)[idx])
        elif c.cls in ('valu', 'ds', 'vmem'):
            if vd & (c.src | c.dst): n = max(n, (5, 8, 12)[idx])
            if c.cls == 'valu' and p.srcC & c.dst: n = max(n, (1, 3, 7)[idx])
    if p.cls == 'salu' and ('s', 'm0') in p.dst and c.cls == 'vmem' and ('s', 'm0') in c.src: n = max(n, 1)
    if p.stdata and (p.stdata & c.dst): n = max(n, 2)
    return n

class Asm:
    def __init__(self):
        self.out = []
        self.hist = []
        self.vm = []
        self.lg = []
        self.nops = 0
    def raw(self, s): self.out.append(s)
    def comment(self, s): self.out.append('    ; ' + s)
    def label(self, name):
        self.out.append(name + ':')
    def snapshot(self): return (list(self.hist), list(self.vm), list(self.lg))
    def restore(self, s): self.hist, self.vm, self.lg = list(s[0]), list(s[1]), list(s[2])
    def _push(self, ins):
        self.out.append('    ' + ins.txt); self.hist.append(ins); self.hist = self.hist[-24:]
    def _wait(self, vm=None, lg=None):
        parts = []
        if vm is not None: parts.append(f'vmcnt({vm})'); self.vm = self.vm[max(0, len(self.vm) - vm):] if vm else []
        if lg is not None: parts.append(f'lgkmcnt({lg})'); self.lg = self.lg[max(0, len(self.lg) - lg):] if lg else []
        self._push(Ins('s_waitcnt ' + ' '.join(parts)))
    def _need(self, q, pred):
        last = -1
        for i, e in enumerate(q):
            if pred(e): last = i
        return None if last < 0 else len(q) - 1 - last
    def waitvm(self, tag=None, lg0=False):
        n = 0 if tag is None else self._need(self.vm, lambda e: e[0] == tag)
        lg = 0 if (lg0 and self.lg) else None
        if n is not None and n >= len(self.vm): n = None
        if n is None and lg is None: return
        assert n is None or n <= 63
        self._wait(n, lg)
    def waitlg(self, tag=None):
        n = 0 if tag is None else self._need(self.lg, lambda e: e[0] == tag)
        if n is None or not self.lg: return
        if any(e[2] for e in self.lg): n = 0
        self._wait(None, min(n, 15))
    def __call__(self, txt, tag=None):
        for line in txt.strip().split('\n'):
            line = line.strip()
            if not line or line.startswith(';'): continue
            self.emit(line, tag)
    def emit(self, txt, tag=None):
        ins = Ins(txt)
        touch = ins.src | ins.dst
        nv = self._need(self.vm, lambda e: e[1] & touch)
        nl = self._need(self.lg, lambda e: e[1] & touch)
        if nl is not None and any(e[2] for e in self.lg): nl = 0
        if nl is not None: nl = min(nl, 15)
        if nv is not None or nl is not None: self._wait(nv, nl)
        dist, need = 0, 0
        for p in reversed(self.hist):
            need = max(need, need_states(p, ins) - dist)
            dist += p.states
            if dist >= 20: break
        if need > 0:
            self._push(Ins(f's_nop {need - 1}')); self.nops += need
        self._push(ins)
        if ins.cls == 'vmem':
            self.vm.append((tag, ins.dst)); assert len(self.vm) <= 63, 'vmcnt overflow'
        elif ins.cls == 'ds': self.lg.append((tag, ins.dst, False))
        elif ins.cls == 'smem': self.lg.append((tag, ins.dst, True))
        if ins.op == 's_waitcnt':
            m = re.search(r'vmcnt\((\d+)\)', txt)
            if m: n = int(m.group(1)); self.vm = self.vm[max(0, len(self.vm) - n):] if n else []
            m = re.search(r'lgkmcnt\((\d+)\)', txt)
            if m: n = int(m.group(1)); self.lg = self.lg[max(0, len(self.lg) - n):] if n else []
    def text(self): return '\n'.join(self.out)

class VAlloc:
    def __init__(self, start=0, kind='v'): self.n = start; self.kind = kind; self.hi = start
    def get(self, n=1, align=1):
        align = 2 if n >= 2 else 1
        self.n = (self.n + align - 1) // align * align
        r = self.n; self.n += n; self.hi = max(self.hi, self.n); return r
def v(r, n=1): return f'v{r}' if n == 1 else f'v[{r}:{r+n-1}]'
def s(r, n=1): return f's{r}' if n == 1 else f's[{r}:{r+n-1}]'

import subprocess, tempfile, os
_E64_OK = ('v_mov_b32', 'v_add_u32', 'v_and_b32', 'v_or_b32', 'v_xor_b32', 'v_lshlrev_b32', 'v_lshrrev_b32', 'v_mul_f32', 'v_add_f32', 'v_sub_f32',
           'v_exp_f32', 'v_rcp_f32', 'v_rsq_f32', 'v_sin_f32', 'v_cos_f32', 'v_cvt_f32_u32', 'v_max_f32', 'v_fmac_f32', 'v_subrev_u32', 'v_mul_u32_u24')
def _is_ins(l):
    t = l.split(';')[0].strip()
    return bool(t) and not t.startswith('.') and not t.endswith(':')
def sizes_of(lines, extra):
    with tempfile.TemporaryDirectory() as d:
        p = os.path.join(d, 't.s'); open(p, 'w').write('.amdgcn_target "amdgcn-amd-amdhsa--gfx950"\n.text\n' + '\n'.join(lines) + '\n' + extra)
        r = subprocess.run(['clang', '-x', 'assembler', '-target', 'amdgcn-amd-amdhsa', '-mcpu=gfx950', '-c', p, '-o', p + '.o'], capture_output=True, text=True)
        assert r.returncode == 0, r.stderr[:2000]
        o = subprocess.run(['llvm-objdump', '-d', '--mcpu=gfx950', p + '.o'], capture_output=True, text=True).stdout
    return [len(m.group(1).split()) * 4 for m in re.finditer(r'// [0-9A-F]{12}: ([0-9A-F ]+)', o)]
def align64(text, extra=''):
    lines = text.split('\n')
    idx = [i for i, l in enumerate(lines) if _is_ins(l)]
    sz = sizes_of(lines, extra)[:len(idx)]
    assert len(sz) == len(idx)
    off, fixed, nop = 0, 0, 0
    start = []
    ins_extra = {}
    for k, i in enumerate(idx):
        if sz[k] == 8 and off % 64 == 60 and '@rel32' not in lines[i]:
            j = k - 1; done = False
            while j >= 0 and start[j] >= off - 60:
                op = lines[idx[j]].split()[0]
                if sz[j] == 4 and op in _E64_OK and 'vcc' not in lines[idx[j]]:
                    lines[idx[j]] = lines[idx[j]].replace(op, op + '_e64', 1); sz[j] = 8
                    for m in range(j + 1, k): start[m] += 4
                    done = True; fixed += 1; break
                if sz[j] == 8 and False: break
                j -= 1
            if not done:
                ins_extra[i] = '    s_nop 0'; nop += 1
            off += 4
        start.append(off); off += sz[k]
    out = []
    for i, l in enumerate(lines):
        if i in ins_extra: out.append(ins_extra[i])
        out.append(l)
    return '\n'.join(out), fixed, nop, off
```

```python
from asmfw import Asm, VAlloc, v, s
import __main__ as M
G = M if hasattr(M, "dft_table") else __import__("gen")
OPT = G.OPT; fbits = G.fbits; srd = G.srd; mf32 = G.mf32; mf4 = G.mf4; Stamps = G.Stamps; header = G.header
untracked = G.untracked; interleave = G.interleave; finish_stats = G.finish_stats; LOG2E = G.LOG2E
X1_OFF, WT_OFF, STATS_OFF, CS_OFF, EPOCH_OFF, WS_END = G.X1_OFF, G.WT_OFF, G.STATS_OFF, G.CS_OFF, G.EPOCH_OFF, G.WS_END

def table_srd(a, r):
    a.raw(f"    s_getpc_b64 {s(r,2)}\n    s_add_u32 {s(r)}, {s(r)}, dft_table@rel32@lo+4\n    s_addc_u32 {s(r+1)}, {s(r+1)}, dft_table@rel32@hi+12")
    a(f"s_mov_b32 {s(r+2)}, 0x20000\ns_mov_b32 {s(r+3)}, 0x20000")

def gen_k1():
    a = Asm(); st = Stamps(a, 0)
    header(a, "k1_kernel")
    st.mark()
    SX, SB, SW, SWR, SWI, SPF, SD = 4, 8, 12, 16, 20, 64, 92
    NS = 4
    SCR = 131072; CSF = SCR + 1024; PRS = SCR + 2048; PCS = SCR + 2304
    a("s_cmp_ge_u32 s2, 256\ns_cbranch_scc1 K1_END")
    a("s_load_dwordx4 s[24:27], s[0:1], 0\ns_load_dwordx4 s[28:31], s[0:1], 32\ns_load_dwordx2 s[22:23], s[0:1], 16\ns_load_dwordx4 s[88:91], s[0:1], 56")
    V = VAlloc(0); tid = V.get(); lane = V.get()
    t0, t1, t2, t3, t4, t5 = [V.get() for _ in range(6)]
    pf = V.get()
    if OPT["pf"]: G.code_prefetch(a, SPF, pf, "k1_kernel", "code_end")
    sW, sLO, sCJ, sV, sWR_, sWC, sL, sHF = 34, 35, 36, 37, 38, 39, 51, 55
    a(f"""v_lshrrev_b32 {v(t0)}, 6, v0
          v_and_b32 {v(lane)}, 63, v0
          v_readfirstlane_b32 s56, {v(t0)}
          s_bfe_u32 {s(sW)}, s2, 0x20001
          s_and_b32 {s(sHF)}, s2, 1
          s_lshr_b32 {s(sCJ)}, s2, 5
          s_bfe_u32 {s(sLO)}, s2, 0x20003
          s_and_b32 {s(sV)}, s56, 3
          s_lshl_b32 {s(sL)}, {s(sV)}, 12
          v_lshrrev_b32 {v(t3)}, 5, {v(lane)}
          s_cmp_lt_u32 s56, 4
          s_cbranch_scc1 K1_COMPUTE""")
    snap0 = a.snapshot(); Vbase = V.n

    def x1_out(regs):
        rad = regs.get(4); vo = regs.get(); vo0 = regs.get(); buf = regs.get(32)
        pre = f"""v_and_b32 {v(t0)}, 15, {v(lane)}
              v_xor_b32 {v(t0)}, {v(t0)}, {v(t3)}
              v_bfe_u32 {v(t1)}, {v(lane)}, 4, 2
              s_lshl_b32 s3, s56, 13
              v_lshl_add_u32 {v(t2)}, {v(t1)}, 8, s3\n"""
        for i in range(4): pre += f"v_xor_b32 {v(t4)}, {2*i}, {v(t0)}\nv_lshl_add_u32 {v(rad+i)}, {v(t4)}, 4, {v(t2)}\n"
        pre += f"""s_bfe_u32 s46, s56, 0x10001
              s_lshr_b32 s47, s56, 2
              v_and_b32 {v(t0)}, 15, {v(lane)}
              v_lshlrev_b32 {v(t0)}, 4, {v(t0)}
              v_bfe_u32 {v(t1)}, {v(lane)}, 4, 1
              v_lshl_add_u32 {v(t0)}, {v(t1)}, 12, {v(t0)}
              v_xor_b32 {v(t1)}, s46, {v(t3)}
              v_lshl_add_u32 {v(vo)}, {v(t1)}, 13, {v(t0)}
              s_lshl_b32 s40, {s(sHF)}, 1
              s_and_b32 s41, s56, 1
              s_add_u32 s40, s40, s41
              s_lshl_b32 s40, s40, 4
              s_lshl_b32 s42, s47, 7
              s_add_u32 s41, s40, s42
              s_sub_u32 s41, s41, 1
              s_add_u32 s42, s42, s40
              s_sub_u32 s42, 254, s42
              s_cmp_eq_u32 s46, 0
              s_cselect_b32 s41, s41, s42
              s_movk_i32 s43, 0x4000
              s_cselect_b32 s43, s43, 0xffffc000
              s_lshl_b32 s41, s41, 13
              s_lshr_b32 s42, {s(sLO)}, 1
              s_lshl_b32 s42, s42, 11
              s_add_u32 s41, s41, s42
              s_lshl_b32 s42, {s(sW)}, 9
              s_add_u32 s41, s41, s42
              s_and_b32 s42, {s(sLO)}, 1
              s_lshl_b32 s42, s42, 8
              s_add_u32 s41, s41, s42
              s_add_u32 s41, s41, {X1_OFF}
              s_xor_b32 s42, s46, s47
              s_add_u32 s40, s40, s42
              v_add_u32 {v(t1)}, s40, {v(t3)}
              v_cmp_eq_u32 vcc, 0, {v(t1)}
              v_add_u32 {v(t0)}, {64*8192}, {v(vo)}
              v_cndmask_b32 {v(vo0)}, {v(vo)}, {v(t0)}, vcc"""
        def post():
            a.waitlg(); a("s_barrier")
            for jx in range(8): a(f"ds_read_b128 {v(buf+4*jx,4)}, {v(rad + (jx & 3))} offset:{1024*jx}")
            for jx in range(8):
                a(f"buffer_store_dwordx4 {v(buf+4*jx,4)}, {v(vo0 if jx == 0 else vo)}, {s(SW,4)}, s41 offen {OPT['stH']}")
                if jx < 7: a("s_add_u32 s41, s41, s43")
        return pre, post

    vX = V.get(4); vB = V.get(4)
    wl = V.get(16); vW = V.get(); l16 = V.get(); dmy = V.get(4); gr = V.get(4); gc = V.get(8); gq = V.get(4)
    grow, gad, gz, gn, pad = [V.get() for _ in range(5)]
    Vx = VAlloc(V.n)
    sXb, sBb, sK, sXo, sBo, sCB, sR0 = 48, 49, 50, 52, 53, 57, 58
    a(f"""v_bfe_u32 {v(t0)}, {v(lane)}, 3, 2
          v_lshrrev_b32 {v(t1)}, 4, {v(lane)}
          v_and_b32 {v(t2)}, 7, {v(lane)}
          v_xor_b32 {v(t2)}, {v(t2)}, {v(t1)}
          v_lshlrev_b32 {v(t2)}, 4, {v(t2)}
          s_lshl_b32 {s(sR0)}, {s(sW)}, 1
          s_lshr_b32 s3, {s(sLO)}, 1
          s_add_u32 {s(sR0)}, {s(sR0)}, s3
          s_mov_b32 {s(sK)}, {s(sR0)}
          s_lshl_b32 {s(sXo)}, {s(sK)}, 7
          s_mov_b32 {s(SX+2)}, {0x200000 + 4096}
          s_mov_b32 {s(SX+3)}, 0x20000
          s_mov_b32 m0, {s(sL)}
          s_cmp_eq_u32 {s(sCJ)}, 7
          s_cbranch_scc1 K1_LD""")
    snapL = a.snapshot(); stn = st.n
    def loader(D):
        X = "D" if D else "F"
        if not D:
            a(f"""v_lshl_add_u32 {v(t0)}, {v(t3)}, 4, {v(t0)}
                  v_lshl_add_u32 {v(t0)}, {v(t0)}, 10, {v(t2)}
                  v_add_u32 {v(vX)}, 4096, {v(t0)}
                  v_xor_b32 {v(t0)}, 64, {v(t0)}
                  v_add_u32 {v(vX+1)}, {4096 + 31744}, {v(t0)}
                  v_add_u32 {v(vX+2)}, {2*31744}, {v(vX)}
                  v_add_u32 {v(vX+3)}, {2*31744}, {v(vX+1)}
                  s_lshl_b32 s3, {s(sW)}, 7
                  s_lshl_b32 s40, {s(sV)}, 5
                  s_add_u32 s3, s3, s40
                  s_add_u32 s3, s3, {s(sLO)}
                  s_lshl_b32 {s(sXb)}, s3, 12""")
        else:
            a(f"""v_lshl_add_u32 {v(t0)}, {v(t3)}, 3, {v(t0)}
                  v_lshl_add_u32 {v(t0)}, {v(t0)}, 15, {v(t2)}
                  v_add_u32 {v(vX)}, 4096, {v(t0)}
                  v_add_u32 {v(vX+2)}, {4096 - 1024}, {v(t0)}
                  v_xor_b32 {v(t0)}, 64, {v(t0)}
                  v_add_u32 {v(vX+1)}, {4096 + 131072 - 1024}, {v(t0)}
                  v_add_u32 {v(vX+3)}, {4096 + 131072 + 1024 - 3072}, {v(t0)}
                  s_lshl_b32 s3, {s(sW)}, 8
                  s_lshl_b32 s40, {s(sLO)}, 2
                  s_add_u32 s3, s3, s40
                  s_add_u32 s3, s3, {s(sV)}
                  s_lshl_b32 {s(sXb)}, s3, 11""")
        a(f"s_add_u32 {s(sXo)}, {s(sXo)}, {s(sXb)}")
        a.waitlg()
        a(f"s_sub_u32 {s(SX)}, s24, 4096\ns_subb_u32 {s(SX+1)}, s25, 0")
        def b_setup():
            a(f"v_lshlrev_b32 {v(l16)}, 4, {v(lane)}")
            if not D:
                srd(a, SB, 28, 29, 512 * 3584)
                a(f"""v_and_b32 {v(t0)}, 15, {v(lane)}
                      v_lshlrev_b32 {v(t2)}, 2, {v(t1)}
                      v_xor_b32 {v(t0)}, {v(t0)}, {v(t2)}
                      v_lshlrev_b32 {v(t0)}, 4, {v(t0)}
                      s_movk_i32 s3, 3584
                      v_mad_u32_u24 {v(vB)}, {v(t1)}, s3, {v(t0)}
                      v_add_u32 {v(vB+1)}, 13312, {v(vB)}
                      v_add_u32 {v(vB+2)}, {2*13312}, {v(vB)}
                      v_add_u32 {v(vB+3)}, {3*13312}, {v(vB)}
                      s_mul_i32 {s(sCB)}, {s(sHF)}, 7
                      s_add_u32 {s(sCB)}, {s(sCB)}, {s(sCJ)}
                      s_lshl_b32 s3, {s(sCB)}, 8
                      s_mul_i32 {s(sBb)}, {s(sV)}, {16*3584}
                      s_add_u32 {s(sBb)}, {s(sBb)}, s3""")
            else:
                table_srd(a, SB)
                a(f"""s_lshl_b32 s3, {s(sHF)}, 16
                      s_lshl_b32 s59, {s(sV)}, 11
                      s_add_u32 {s(sBb)}, s3, s59""")
        BSTEP = 8192 if D else 64 * 3584
        def dma(slab, q):
            slot = slab % NS; part, hf = q >> 1, q & 1
            if (slab, q) == (0, 2): b_setup()
            if OPT["nodma"] or (D and q == 3): pass
            elif part == 0:
                if hf == 0 and slab: a(f"s_add_u32 m0, {s(sL)}, {slot*32768}")
                for j in (2*hf, 2*hf + 1): a(f"buffer_load_dwordx4 {v(vX+j)}, {s(SX,4)}, {s(sXo)} offen offset:{1024*j} lds", tag=f"S{slab}")
            else:
                if hf == 0: a(f"s_mul_i32 {s(sBo)}, {s(sK)}, {BSTEP}\ns_add_u32 m0, {'s59' if D else s(sL)}, {slot*32768 + 16384}\ns_add_u32 {s(sBo)}, {s(sBo)}, {s(sBb)}")
                for j in (2*hf, 2*hf + 1): a(f"buffer_load_dwordx4 {v(l16 if D else vB+j)}, {s(SB,4)}, {s(sBo)} offen offset:{1024*j} lds", tag=f"S{slab}")
            if q == 3 and slab < 7:
                a(f"s_add_u32 {s(sK)}, {s(sK)}, 1\ns_and_b32 {s(sK)}, {s(sK)}, 7\ns_lshl_b32 {s(sXo)}, {s(sK)}, 7\ns_add_u32 {s(sXo)}, {s(sXo)}, {s(sXb)}")
        def j_nonce():
            srd(a, SW, 90, 91, WS_END); srd(a, SD, 88, 89, 256)
            a(f"v_mov_b32 {v(gz)}, 0\nbuffer_load_dword {v(gn)}, {v(gz)}, {s(SD,4)}, 0 offen sc1")
        def j_tablepf():
            if D or not OPT["pft"]: return
            table_srd(a, SPF)
            a(f"""s_lshr_b32 s3, s2, 3
                  s_lshl_b32 s3, s3, 2
                  s_add_u32 s3, s3, {s(sV)}
                  s_min_u32 s3, s3, 47
                  s_lshl_b32 s40, {s(sW)}, 4
                  s_add_u32 s3, s3, s40
                  s_add_u32 s3, s3, 24
                  s_and_b32 s3, s3, 63
                  s_lshl_b32 s40, {s(sHF)}, 6
                  s_add_u32 s3, s3, s40
                  s_lshl_b32 s3, s3, 10
                  buffer_load_dwordx4 {v(dmy,4)}, {v(l16)}, {s(SPF,4)}, s3 offen""")
            untracked(a)
        def j_publish():
            a(f"""v_and_b32 {v(t0)}, 15, {v(lane)}
                  v_cmp_gt_u32 vcc, 16, {v(lane)}
                  s_lshl_b32 s3, {s(sV)}, 7
                  s_add_u32 s3, s3, {PCS}
                  s_lshl_b32 s40, {s(sV)}, 4
                  s_add_u32 s40, s40, {PRS}
                  v_mov_b32 {v(t1)}, s3
                  v_mov_b32 {v(t2)}, s40
                  v_cndmask_b32 {v(t1)}, {v(t2)}, {v(t1)}, vcc
                  v_lshl_add_u32 {v(t1)}, {v(t0)}, 3, {v(t1)}
                  ds_read_b64 {v(gq,2)}, {v(t1)}
                  s_lshl_b32 s3, {s(sW)}, 2
                  s_add_u32 s3, s3, {s(sLO)}
                  s_lshl_b32 s3, s3, 1
                  s_add_u32 s3, s3, {s(sHF)}
                  s_lshl_b32 s3, s3, 3
                  s_add_u32 s3, s3, {s(sCJ)}
                  s_lshl_b32 s3, s3, 2
                  s_add_u32 s3, s3, {s(sV)}
                  s_lshl_b32 s3, s3, 5
                  s_add_u32 s3, s3, {STATS_OFF}
                  v_mov_b32 {v(t2)}, s3""")
            if not D:
                a(f"""s_lshl_b32 s3, {s(sCB)}, 3
                      s_add_u32 s3, s3, {s(sR0)}
                      s_lshl_b32 s3, s3, 2
                      s_add_u32 s3, s3, {s(sV)}
                      s_lshl_b32 s3, s3, 8
                      s_add_u32 s3, s3, {CS_OFF}
                      v_mov_b32 {v(t1)}, s3
                      v_cndmask_b32 {v(t2)}, {v(t2)}, {v(t1)}, vcc""")
            a(f"v_lshl_add_u32 {v(pad)}, {v(t0)}, 4, {v(t2)}")
            a(f"v_readfirstlane_b32 s60, {v(gn)}\ns_cmp_lg_u32 s60, 0\ns_cbranch_scc1 K1_PUBOK{X}\ns_mov_b32 s61, 0")
            keep = a.snapshot()
            a.label(f"K1_PUBSPIN{X}")
            a(f"""buffer_load_dword {v(gn)}, {v(gz)}, {s(SD,4)}, 0 offen sc1
                  s_waitcnt vmcnt(0)
                  v_readfirstlane_b32 s60, {v(gn)}
                  s_add_u32 s61, s61, 1
                  s_cmp_gt_u32 s61, 2000
                  s_cbranch_scc1 K1_PUBOK{X}
                  s_cmp_eq_u32 s60, 0
                  s_cbranch_scc1 K1_PUBSPIN{X}""")
            a.label(f"K1_PUBOK{X}")
            a.restore(keep)
            a(f"""v_mov_b32 {v(gq+2)}, s60
                  v_mov_b32 {v(gq+3)}, s60
                  s_mov_b64 exec, {0x30000 if D else 0x3ffff}
                  buffer_store_dwordx4 {v(gq,4)}, {v(pad)}, {s(SW,4)}, 0 offen sc1
                  s_mov_b64 exec, -1""")
        def gather_loads():
            a(f"buffer_load_dwordx4 {v(gr,4)}, {v(gad)}, {s(SW,4)}, s62 offen sc1")
            if not D:
                for j in range(2): a(f"buffer_load_dwordx4 {v(gc+4*j,4)}, {v(pad)}, {s(SW,4)}, s{32+j} offen sc1")
        def j_gather():
            a(f"""v_bfe_u32 {v(t0)}, {v(lane)}, 3, 2
                  v_bfe_u32 {v(t1)}, {v(lane)}, 2, 1
                  v_and_b32 {v(t2)}, 3, {v(lane)}""")
            if not D:
                a(f"""v_lshl_add_u32 {v(t0)}, {v(t0)}, 1, {v(t1)}
                      v_lshl_add_u32 {v(grow)}, {v(t0)}, 4, {v(t2)}
                      s_lshl_b32 s3, {s(sV)}, 7
                      s_lshl_b32 s40, {s(sLO)}, 2
                      v_lshrrev_b32 {v(t0)}, 4, {v(lane)}
                      v_and_b32 {v(t1)}, 15, {v(lane)}
                      v_lshlrev_b32 {v(t1)}, 4, {v(t1)}
                      v_lshl_add_u32 {v(pad)}, {v(t0)}, 10, {v(t1)}
                      s_lshl_b32 s32, {s(sCB)}, 5
                      s_add_u32 s32, s32, {s(sV)}
                      s_lshl_b32 s32, s32, 8
                      s_add_u32 s32, s32, {CS_OFF}
                      s_add_u32 s33, s32, 4096""")
            else:
                a(f"""v_lshl_add_u32 {v(t2)}, {v(t1)}, 3, {v(t2)}
                      v_and_b32 {v(t1)}, 1, {v(t0)}
                      v_lshl_add_u32 {v(t2)}, {v(t1)}, 2, {v(t2)}
                      v_lshrrev_b32 {v(t0)}, 1, {v(t0)}
                      v_lshl_add_u32 {v(grow)}, {v(t2)}, 5, {v(t0)}
                      s_lshl_b32 s3, {s(sV)}, 1
                      s_lshl_b32 s40, {s(sLO)}, 3""")
            a(f"""s_add_u32 s3, s3, s40
                  s_lshl_b32 s40, {s(sW)}, 9
                  s_add_u32 s3, s3, s40
                  v_add_u32 {v(grow)}, s3, {v(grow)}
                  v_lshlrev_b32 {v(gad)}, 4, {v(grow)}
                  s_mov_b32 s62, {STATS_OFF}""")
            gather_loads()
        def j_check():
            tags = [gr + 2, gr + 3] + ([] if D else [gc + 2, gc + 3, gc + 6, gc + 7])
            a("s_mov_b32 s61, 0")
            a(f"v_xor_b32 {v(t0)}, {v(tags[-1])}, {v(gn)}")
            a.label(f"K1_CHECK{X}")
            for t in tags[:-1]: a(f"v_xor_b32 {v(t1)}, {v(t)}, {v(gn)}\nv_or_b32 {v(t0)}, {v(t0)}, {v(t1)}")
            a(f"""v_cmp_ne_u32 vcc, 0, {v(t0)}
                  v_cmp_eq_u32 s[40:41], 0, {v(gn)}
                  s_or_b64 vcc, vcc, s[40:41]
                  {"s_nop 0" if OPT["forcefb"] else "s_cbranch_vccz K1_GOT" + X}
                  s_add_u32 s61, s61, 1
                  s_cmp_gt_u32 s61, {OPT["spin"]}
                  s_cbranch_scc1 K1_FALLBACK{X}""")
            keep = a.snapshot()
            a(f"buffer_load_dword {v(gn)}, {v(gz)}, {s(SD,4)}, 0 offen sc1")
            gather_loads()
            a(f"s_waitcnt vmcnt(0)\nv_xor_b32 {v(t0)}, {v(tags[-1])}, {v(gn)}\ns_branch K1_CHECK{X}")
            a.label(f"K1_FALLBACK{X}")
            a(f"""v_lshl_add_u32 {v(gad)}, {v(grow)}, 10, 0
                  v_add_u32 {v(gad)}, 4096, {v(gad)}
                  v_mov_b32 {v(t0)}, 0
                  v_mov_b32 {v(t1)}, 0
                  v_mov_b32 {v(t2)}, 0x3f803f80
                  s_mov_b32 s61, 0""")
            a.label(f"K1_FBLOOP{X}")
            a(f"buffer_load_dwordx4 {v(gr,4)}, {v(gad)}, {s(SX,4)}, s61 offen\ns_waitcnt vmcnt(0)")
            for i in range(4): a(f"v_dot2_f32_bf16 {v(t0)}, {v(gr+i)}, {v(gr+i)}, {v(t0)}\nv_dot2_f32_bf16 {v(t1)}, {v(gr+i)}, {v(t2)}, {v(t1)}\ns_nop 2")
            a(f"s_add_u32 s61, s61, 16\ns_cmp_lt_u32 s61, 1024\ns_cbranch_scc1 K1_FBLOOP{X}")
            a("s_nop 4")
            for r in finish_stats(t0, t1, t4, t5): a(r)
            a(f"s_nop 1\nv_mov_b32 {v(gr)}, {v(t0)}\nv_mov_b32 {v(gr+1)}, {v(t1)}")
            if not D:
                a(f"""v_and_b32 {v(t0)}, 9, {v(lane)}
                      v_bfe_u32 {v(t1)}, {v(lane)}, 1, 1
                      v_lshl_or_b32 {v(t0)}, {v(t1)}, 2, {v(t0)}
                      v_bfe_u32 {v(t1)}, {v(lane)}, 2, 1
                      v_lshl_or_b32 {v(t0)}, {v(t1)}, 1, {v(t0)}
                      v_lshlrev_b32 {v(t0)}, 2, {v(t0)}
                      v_lshrrev_b32 {v(t1)}, 4, {v(lane)}
                      s_mov_b32 s3, {128*3584}
                      v_mad_u32_u24 {v(t0)}, {v(t1)}, s3, {v(t0)}
                      s_lshl_b32 s61, {s(sCB)}, 2
                      s_add_u32 s61, s61, {s(sV)}
                      s_lshl_b32 s61, s61, 6
                      s_mov_b32 s3, 0
                      v_mov_b32 {v(gc)}, 0
                      v_mov_b32 {v(gc+1)}, 0
                      v_mov_b32 {v(gc+4)}, 0
                      v_mov_b32 {v(gc+5)}, 0""")
                a.label("K1_FBLOOPC")
                a(f"""buffer_load_dword {v(t1)}, {v(t0)}, {s(SB,4)}, s61 offen
                      s_waitcnt vmcnt(0)
                      v_lshlrev_b32 {v(t2)}, 16, {v(t1)}
                      v_and_b32 {v(t1)}, 0xffff0000, {v(t1)}
                      v_add_f32 {v(gc)}, {v(gc)}, {v(t2)}
                      v_add_f32 {v(gc+1)}, {v(gc+1)}, {v(t1)}
                      s_add_u32 s61, s61, 3584
                      s_add_u32 s3, s3, 1
                      s_cmp_lt_u32 s3, 128
                      s_cbranch_scc1 K1_FBLOOPC""")
            a.label(f"K1_GOT{X}")
            a.restore(keep); a.hist = []
            a(f"v_and_b32 {v(t0)}, 31, {v(lane)}")
            if not D:
                a(f"""v_add_f32 {v(gc)}, {v(gc)}, {v(gc+4)}
                      v_add_f32 {v(gc+1)}, {v(gc+1)}, {v(gc+5)}
                      s_lshl_b32 s3, {s(sV)}, 8
                      s_add_u32 s3, s3, {SCR}
                      v_lshl_add_u32 {v(t0)}, {v(t0)}, 3, s3
                      v_mov_b32 {v(gc+2)}, {v(gc)}
                      v_mov_b32 {v(gc+3)}, {v(gc+1)}
                      v_mul_f32 {v(gr)}, {fbits(-LOG2E)}, {v(gr)}
                      v_mul_f32 {v(gr+1)}, {v(gr+1)}, {v(gr)}
                      v_permlane32_swap_b32 {v(gc)}, {v(gc+2)}
                      v_permlane32_swap_b32 {v(gc+1)}, {v(gc+3)}
                      v_sub_f32 {v(gr+1)}, 0, {v(gr+1)}
                      v_add_f32 {v(gc)}, {v(gc)}, {v(gc+2)}
                      v_add_f32 {v(gc+1)}, {v(gc+1)}, {v(gc+3)}
                      ds_write_b64 {v(t0)}, {v(gr,2)}
                      v_mov_b32 {v(gc+2)}, {v(gc)}
                      v_mov_b32 {v(gc+3)}, {v(gc+1)}
                      v_and_b32 {v(t1)}, 15, {v(lane)}
                      s_lshl_b32 s3, {s(sV)}, 7
                      v_permlane16_swap_b32 {v(gc)}, {v(gc+2)}
                      v_permlane16_swap_b32 {v(gc+1)}, {v(gc+3)}
                      s_add_u32 s3, s3, {CSF}
                      v_lshl_add_u32 {v(t1)}, {v(t1)}, 3, s3
                      v_add_f32 {v(gc)}, {v(gc)}, {v(gc+2)}
                      v_add_f32 {v(gc+1)}, {v(gc+1)}, {v(gc+3)}
                      ds_write_b64 {v(t1)}, {v(gc,2)}""")
            else:
                a(f"""s_lshl_b32 s3, {s(sV)}, 7
                      s_add_u32 s3, s3, {SCR}
                      v_lshl_add_u32 {v(t0)}, {v(t0)}, 2, s3
                      ds_write_b32 {v(t0)}, {v(gr)}""")
        def j_wload(part):
            if part == 0:
                srd(a, SWR, 26, 27, 2048 * 514)
                a(f"s_mov_b64 s[44:45], s[22:23]")
                srd(a, SWI, 44, 45, 2048 * 514)
                a(f"""s_and_b32 s54, s2, 3
                      s_lshl_b32 s54, s54, 2
                      s_add_u32 s54, s54, {s(sV)}
                      s_lshl_b32 s41, s54, 4
                      s_add_u32 s41, s41, 1
                      v_and_b32 {v(t0)}, 15, {v(lane)}
                      v_add_lshl_u32 {v(t0)}, {v(t0)}, s41, 1
                      v_lshrrev_b32 {v(t1)}, 4, {v(lane)}
                      s_movk_i32 s41, 514
                      v_mad_u32_u24 {v(vW)}, {v(t1)}, s41, {v(t0)}
                      s_bfe_u32 s41, s2, 0x30002
                      s_lshl_b32 s43, s41, 3
                      s_lshl_b32 s44, {s(sCJ)}, 8
                      s_add_u32 s43, s43, s44
                      s_mul_i32 s44, s43, 514
                      s_add_u32 s45, s44, 32896
                      s_add_u32 s46, s44, 65792
                      s_add_u32 s47, s44, 98688""")
            for r in range(4):
                a(f"buffer_load_ushort {v(wl + part*8 + r)}, {v(vW)}, {s(SWR,4)}, s{44+r} offen offset:{2056*part}", tag="W")
                a(f"buffer_load_ushort {v(wl + part*8 + 4 + r)}, {v(vW)}, {s(SWI,4)}, s{44+r} offen offset:{2056*part}", tag="W")
        def j_wstore():
            a(f"""s_lshl_b32 s54, s54, 17
                  s_lshl_b32 s41, {s(sLO)}, 11
                  s_add_u32 s54, s54, s41
                  s_lshr_b32 s41, s2, 7
                  s_lshl_b32 s41, s41, 10
                  s_add_u32 s54, s54, s41
                  s_bfe_u32 s41, s2, 0x20005
                  s_lshl_b32 s41, s41, 8
                  s_add_u32 s54, s54, s41
                  s_bfe_u32 s41, s2, 0x10002
                  s_lshl_b32 s41, s41, 7
                  s_add_u32 s54, s54, s41
                  s_add_u32 s54, s54, {WT_OFF}
                  s_add_u32 s41, s54, 65536
                  v_and_b32 {v(t0)}, 7, {v(lane)}
                  v_bfe_u32 {v(t1)}, {v(lane)}, 3, 1
                  v_lshrrev_b32 {v(t2)}, 4, {v(lane)}
                  v_lshl_add_u32 {v(t1)}, {v(t1)}, 2, {v(t2)}
                  v_lshlrev_b32 {v(t1)}, 4, {v(t1)}
                  v_lshl_add_u32 {v(vW)}, {v(t0)}, 13, {v(t1)}""")
            for kk in range(2):
                for r in range(4): a(f"v_lshl_or_b32 {v(wl+kk*8+r)}, {v(wl+kk*8+4+r)}, 16, {v(wl+kk*8+r)}")
            for r in range(4): a(f"v_mov_b32 {v(wl+4+r)}, {v(wl+r)}")
            for r in range(4): a(f"v_mov_b32_dpp {v(wl+r)}, {v(wl+8+r)} row_ror:8 row_mask:0xf bank_mask:0xc")
            for r in range(4): a(f"v_mov_b32_dpp {v(wl+8+r)}, {v(wl+4+r)} row_ror:8 row_mask:0xf bank_mask:0x3")
            a(f"buffer_store_dwordx4 {v(wl,4)}, {v(vW)}, {s(SW,4)}, s54 offen {OPT['stW']}")
            a(f"buffer_store_dwordx4 {v(wl+8,4)}, {v(vW)}, {s(SW,4)}, s41 offen {OPT['stW']}")
        def j_pfw2():
            if not OPT["pfw2"]: return
            srd(a, SPF, 30, 31, 1792 * 1024)
            a(f"""s_lshr_b32 s3, s2, 3
                  s_lshl_b32 s3, s3, 2
                  s_add_u32 s3, s3, {s(sV)}
                  s_min_u32 s3, s3, 111
                  s_mul_i32 s41, {s(sW)}, 112
                  s_add_u32 s3, s3, s41
                  s_lshl_b32 s3, s3, 12""")
            for j in range(4):
                a(f"buffer_load_dwordx4 {v(dmy,4)}, {v(l16)}, {s(SPF,4)}, s3 offen offset:{1024*j}"); untracked(a)
        pre, post = {}, {1: [j_tablepf]}
        phG = OPT["phGD"] if D else OPT["phG"]
        for ph, j in ((OPT["phN"], j_nonce), (OPT["phN"] + 2, j_publish), (phG, j_gather)): pre.setdefault(ph, []).append(j)
        for p, ph in enumerate(OPT["phW"]): (post if ph < 8 else pre).setdefault(ph, []).append(lambda p=p: j_wload(p))
        (post if OPT["pfw2"] < 8 else pre).setdefault(OPT["pfw2"], []).append(j_pfw2)
        quarters = [(i >> 2, i & 3) for i in range(32)]; pos = 0
        st.mark()
        for ph, cnt in enumerate(OPT["k1sched"]):
            for j in pre.get(ph, []): j()
            for (sl, q) in quarters[pos:pos+cnt]:
                assert sl < NS or sl - NS <= ph - 2, (sl, ph)
                dma(sl, q)
            pos += cnt
            for j in post.get(ph, []): j()
            a.waitvm(f"S{ph}", lg0=True); a("s_barrier")
            st.mark()
        assert pos == 32
        if phG == 8: pre[8].pop(0)()
        j_check()
        for j in pre.get(8, []): j()
        a.waitlg(); a("s_barrier")
        for j in pre.get(9, []): j()
        j_wstore()
        st.mark()
        if D:
            p, q = x1_out(Vx); a(p); q()
        st.flush(SW, wl, tid, 256, 1)
        a("s_endpgm")
    loader(False)
    a.restore(snapL); st.n = stn
    a.label("K1_LD")
    loader(True)
    a.restore(snap0); V.n = Vbase; st.n = 1 if OPT["stamp"] else 0
    a.label("K1_COMPUTE")
    if OPT["prio"]: a(f"s_setprio {OPT['prio']}")
    ones = V.get(2); gq = V.get(4); gn = V.get(); gz = V.get()
    key = t4
    rw = 200
    a(f"""s_lshl_b32 s3, {s(sW)}, 2
          s_add_u32 s3, s3, {s(sLO)}
          s_lshl_b32 s3, s3, 1
          s_add_u32 s3, s3, {s(sHF)}
          s_lshl_b32 s3, s3, 3
          s_add_u32 s3, s3, {s(sCJ)}
          s_lshl_b32 s3, s3, 2
          s_add_u32 s3, s3, {s(sV)}
          s_lshl_b32 s3, s3, 11
          v_lshlrev_b32 {v(t0)}, 4, {v(lane)}
          s_mov_b32 {s(SX+2)}, 0x200000
          s_mov_b32 {s(SX+3)}, 0x20000""")
    a.waitlg()
    a(f"""s_mov_b64 {s(SX,2)}, s[24:25]
          buffer_load_dwordx4 {v(rw,4)}, {v(t0)}, {s(SX,4)}, s3 offen
          buffer_load_dwordx4 {v(rw+4,4)}, {v(t0)}, {s(SX,4)}, s3 offen offset:1024""")
    srd(a, SW, 90, 91, WS_END)
    a(f"s_or_b32 s3, s2, {s(sV)}\ns_cmp_lg_u32 s3, 0\ns_cbranch_scc1 K1_NOEPOCH")
    keep = a.snapshot()
    srd(a, SD, 88, 89, 256)
    a(f"""v_mov_b32 {v(gz)}, 0
          s_mov_b32 s3, {EPOCH_OFF}
          buffer_load_dword {v(gn)}, {v(gz)}, {s(SW,4)}, s3 offen sc1""")
    a(f"""v_add_u32 {v(gn)}, 1, {v(gn)}
          v_or_b32 {v(gn)}, 1, {v(gn)}
          s_mov_b64 exec, 1
          buffer_store_dword {v(gn)}, {v(gz)}, {s(SD,4)}, 0 offen sc1
          buffer_store_dword {v(gn)}, {v(gz)}, {s(SW,4)}, s3 offen sc1
          s_mov_b64 exec, -1""")
    a.label("K1_NOEPOCH")
    a.restore(keep)
    a(f"""v_mov_b32 {v(ones)}, 0x3f803f80
          v_mov_b32 {v(ones+1)}, 0x3f803f80
          v_and_b32 {v(t1)}, 1, {v(lane)}
          v_cmp_eq_u32 s[58:59], 1, {v(t1)}
          v_bfe_u32 {v(key)}, {v(lane)}, 1, 3
          v_and_b32 {v(t0)}, 31, {v(lane)}
          v_lshlrev_b32 {v(t0)}, 7, {v(t0)}
          v_add_u32 {v(t0)}, {s(sL)}, {v(t0)}""")
    def produce():
        for i in range(4):
            for r in range(2):
                c0 = "0" if i == 0 else None
                a(f"v_dot2_f32_bf16 {v(gq+2*r)}, {v(rw+4*r+i)}, {v(rw+4*r+i)}, {c0 or v(gq+2*r)}\nv_dot2_f32_bf16 {v(gq+2*r+1)}, {v(rw+4*r+i)}, {v(ones)}, {c0 or v(gq+2*r+1)}")
        a("s_nop 2")
        for m in ("row_shr:1 row_mask:0xf", "row_shr:2 row_mask:0xf", "row_shr:4 row_mask:0xf", "row_shr:8 row_mask:0xf", "row_bcast:15 row_mask:0xa", "row_bcast:31 row_mask:0xc"):
            for i in range(4): a(f"v_add_f32_dpp {v(gq+i)}, {v(gq+i)}, {v(gq+i)} {m} bank_mask:0xf bound_ctrl:0")
        for i in range(4): a(f"v_readlane_b32 s{28+i}, {v(gq+i)}, 63")
        a(f"""v_mov_b32 {v(gq)}, s28
              v_mov_b32 {v(gq+1)}, s29
              v_mov_b32 {v(gq+2)}, s30
              v_mov_b32 {v(gq+3)}, s31
              v_cndmask_b32 {v(gq)}, {v(gq)}, {v(gq+2)}, s[58:59]
              v_cndmask_b32 {v(gq+1)}, {v(gq+1)}, {v(gq+3)}, s[58:59]""")
        for r in finish_stats(gq, gq + 1, t4, t5): a(r)
        a(f"""s_lshl_b32 s3, {s(sV)}, 4
              s_add_u32 s3, s3, {PRS}
              v_lshl_add_u32 {v(gq+2)}, {v(lane)}, 3, s3
              s_mov_b64 exec, 3
              ds_write_b64 {v(gq+2)}, {v(gq,2)}
              s_mov_b64 exec, -1""")
    def bar():
        a.waitlg(); a("s_barrier")
    a(f"s_cmp_eq_u32 {s(sCJ)}, 7\ns_cbranch_scc1 K1_DFT")
    snap = a.snapshot(); V0 = V.n
    xa = [[V.get(4), V.get(4)] for _ in range(2)]
    wa = [[V.get(), V.get()] for _ in range(2)]
    ad1, ad2, ad3, ad4, ad5, l16 = [V.get() for _ in range(6)]
    cs = V.get(4)
    a(f"v_xor_b32 {v(t1)}, {v(t3)}, {v(key)}")
    for i in range(4):
        a(f"""v_xor_b32 {v(t2)}, {2*i}, {v(t1)}
              v_lshl_add_u32 {v(xa[0][0]+i)}, {v(t2)}, 4, {v(t0)}
              v_xor_b32 {v(xa[0][1]+i)}, 0x1000, {v(xa[0][0]+i)}
              v_add_u32 {v(xa[1][0]+i)}, 65536, {v(xa[0][0]+i)}
              v_add_u32 {v(xa[1][1]+i)}, 65536, {v(xa[0][1]+i)}""")
    a(f"""s_lshr_b32 {s(sWR_)}, {s(sV)}, 1
          s_and_b32 {s(sWC)}, {s(sV)}, 1
          v_and_b32 {v(t1)}, 2, {v(lane)}
          v_cmp_eq_u32 s[62:63], 2, {v(t1)}
          v_bfe_u32 {v(t0)}, {v(lane)}, 2, 2
          v_lshl_add_u32 {v(t1)}, {v(t3)}, 3, {v(t0)}
          v_lshlrev_b32 {v(t1)}, 8, {v(t1)}
          s_lshl_b32 s3, {s(sWC)}, 1
          s_add_u32 s54, s3, {s(sWR_)}
          v_xor_b32 {v(t0)}, s54, {v(t0)}
          v_lshl_add_u32 {v(t1)}, {v(t0)}, 6, {v(t1)}
          v_bfe_u32 {v(t0)}, {v(lane)}, 4, 1
          v_lshl_add_u32 {v(t1)}, {v(t0)}, 5, {v(t1)}
          v_and_b32 {v(t0)}, 1, {v(lane)}
          v_lshl_add_u32 {v(t1)}, {v(t0)}, 4, {v(t1)}
          v_bfe_u32 {v(t0)}, {v(lane)}, 1, 1
          v_lshl_add_u32 {v(t1)}, {v(t0)}, 3, {v(t1)}
          v_add_u32 {v(wa[0][0])}, 16384, {v(t1)}
          v_xor_b32 {v(wa[0][1])}, 64, {v(wa[0][0])}
          v_add_u32 {v(wa[1][0])}, 65536, {v(wa[0][0])}
          v_add_u32 {v(wa[1][1])}, 65536, {v(wa[0][1])}
          v_and_b32 {v(t0)}, 31, {v(lane)}
          s_lshl_b32 s3, {s(sV)}, 8
          s_add_u32 s3, s3, {SCR}
          v_lshl_add_u32 {v(ad1)}, {v(t0)}, 3, s3
          v_xor_b32 {v(ad3)}, 0x100, {v(ad1)}
          s_lshl_b32 s3, s54, 7
          s_add_u32 s40, s3, {PCS}
          v_lshl_add_u32 {v(ad2)}, {v(t0)}, 2, s40
          s_add_u32 s3, s3, {CSF}
          v_lshl_add_u32 {v(ad4)}, {v(t3)}, 4, s3
          v_xor_b32 {v(ad5)}, 0x80, {v(ad4)}
          s_mov_b32 s60, {fbits(-LOG2E)}
          s_mov_b32 s61, {fbits(-LOG2E)}
          v_lshlrev_b32 {v(l16)}, 4, {v(lane)}
          s_lshl_b32 s3, {s(sW)}, 2
          s_add_u32 s3, s3, {s(sLO)}
          s_lshl_b32 s3, s3, 2
          s_add_u32 s40, s3, {s(sV)}
          s_xor_b32 s41, s40, 1
          s_mul_i32 s40, s40, {112*1024}
          s_mul_i32 s41, s41, {112*1024}
          s_mul_i32 s3, {s(sHF)}, 7
          s_add_u32 s3, s3, {s(sCJ)}
          s_lshl_b32 s3, s3, 13
          s_lshl_b32 s42, s54, 11
          s_add_u32 s42, s42, s3
          s_xor_b32 s43, s42, 0x800
          s_add_u32 s44, s40, s42
          s_add_u32 s45, s41, s42
          s_add_u32 s46, s40, s43
          s_add_u32 s47, s41, s43""")
    acc = [[V.get(16) for _ in range(2)] for _ in range(2)]
    xf = [[V.get(4) for _ in range(2)] for _ in range(3)]
    wf = [[V.get(4) for _ in range(2)] for _ in range(3)]
    a12 = [V.get(2), V.get(2)]; cv = [V.get(16), V.get(16)]
    def reads_ffn(n):
        if n >= 32: return []
        slab, t = divmod(n, 4); slot = slab % NS; se, off = slot >> 1, (slot & 1) * 32768; b = n % 3
        r = []
        for T in range(2):
            r.append(f"ds_read_b128 {v(xf[b][T],4)}, {v(xa[se][T]+t)} offset:{off}")
            r.append(f"ds_read_b64_tr_b16 {v(wf[b][T],2)}, {v(wa[se][T])} offset:{off + t*4096}")
            r.append(f"ds_read_b64_tr_b16 {v(wf[b][T]+2,2)}, {v(wa[se][T])} offset:{off + t*4096 + 1024}")
        return r
    produce()
    bar(); st.mark()
    for r in reads_ffn(0) + reads_ffn(1): a(r)
    for n in range(32):
        b = n % 3; z = "0" if n == 0 else None
        mfs = [(lambda F=F, S=S: mf32(a, acc[F][S], wf[b][F], xf[b][S], z)) for (F, S) in ((0, 0), (1, 0), (0, 1), (1, 1))]
        fill = reads_ffn(n + 2); per = [3, 3, 0, 0]
        if n % 4 == 2 and n < 28: fill = [bar] + fill; per = [3, 2, 2, 0]
        if n == 4:
            fill += [f"v_cndmask_b32 {v(cs)}, {v(cs)}, {v(cs+1)}, s[58:59]", f"v_cndmask_b32 {v(cs+2)}, {v(cs+2)}, {v(cs+3)}, s[58:59]",
                     f"v_cndmask_b32 {v(cs+1)}, {v(cs)}, {v(cs+2)}, s[62:63]", f"v_cndmask_b32 {v(cs)}, {v(cs)}, {v(cs+2)}, s[62:63]"]
            per = [3, 3, 2, 2]
        if n == 5:
            fill += [f"v_permlane32_swap_b32 {v(cs)}, {v(cs+1)}", f"v_add_f32 {v(cs)}, {v(cs)}, {v(cs+1)}", f"ds_write_b32 {v(ad2)}, {v(cs)}"]
            per = [3, 4, 1, 1]
        if n == OPT["e1step"]:
            fill = [bar, f"ds_read_b64 {v(a12[0],2)}, {v(ad1)}", f"ds_read_b64 {v(a12[1],2)}, {v(ad3)}"] + \
                   [f"ds_read_b128 {v(cv[F]+4*jj,4)}, {v(ad)} offset:{32*jj}" for F, ad in ((0, ad4), (1, ad5)) for jj in range(4)]
            per = [4, 4, 3, 0]
        interleave(a, mfs, fill, per)
        if n < 4:
            for h in (0, 2): mf4(a, cs, ones, wf[b][0]+h, "0" if (n == 0 and h == 0) else None)
        if n == 10: st.mark()
    st.mark()
    tmp = xf[0][0]; ee = tmp + 16; pk = [ee + 16, ee + 24]
    assert wf[2][1] + 4 == tmp + 48
    k = 0
    for S in range(2):
        for F in range(2):
            A_ = acc[F][S]; pp = pk[k & 1]; k += 1
            for i in range(0, 16, 2): a(f"v_pk_mul_f32 {v(tmp+i,2)}, {v(cv[F]+i,2)}, {v(a12[S],2)} op_sel:[0,1] op_sel_hi:[1,1]")
            for i in range(0, 16, 2): a(f"v_pk_fma_f32 {v(A_+i,2)}, {v(A_+i,2)}, {v(a12[S],2)}, {v(tmp+i,2)} op_sel:[0,0,0] op_sel_hi:[1,0,1]")
            for i in range(16): a(f"v_exp_f32 {v(ee+i)}, {v(A_+i)}")
            for i in range(0, 16, 2): a(f"v_pk_fma_f32 {v(ee+i,2)}, {v(ee+i,2)}, s[60:61], s[60:61]")
            for i in range(16): a(f"v_rcp_f32 {v(ee+i)}, {v(ee+i)}")
            for i in range(0, 16, 2): a(f"v_pk_mul_f32 {v(A_+i,2)}, {v(A_+i,2)}, {v(ee+i,2)}")
            for u in range(2):
                for i in range(4): a(f"v_cvt_pk_bf16_f32 {v(pp+4*u+i)}, {v(A_+8*u+2*i)}, {v(A_+8*u+2*i+1)}")
                a(f"buffer_store_dwordx4 {v(pp+4*u,4)}, {v(l16)}, {s(SW,4)}, s{44+2*F+S} offen offset:{1024*u} {OPT['stH']}")
    st.mark()
    st.flush(SW, tmp, tid)
    a("s_endpgm")
    vmax = max(V.hi, Vx.hi, rw + 8)
    a.restore(snap); V.n = V0; st.n = 1 if OPT["stamp"] else 0
    a.label("K1_DFT")
    xa = [V.get(4), V.get(4)]; ta = [V.get(), V.get()]; ad2 = V.get(); wad = [V.get(), V.get()]
    Vo = VAlloc(V.get(6))
    acc = [[V.get(16) for _ in range(2)] for _ in range(4)]
    xr = V.get(16); xe = [V.get(4) for _ in range(4)]; tf = [[V.get(4) for _ in range(2)] for _ in range(4)]
    assert rw >= xr
    a(f"v_lshlrev_b32 {v(t1)}, 2, {v(t3)}\nv_xor_b32 {v(t1)}, {v(t1)}, {v(key)}")
    for i in range(4):
        a(f"v_xor_b32 {v(t2)}, {i}, {v(t1)}\nv_lshl_add_u32 {v(xa[0]+i)}, {v(t2)}, 4, {v(t0)}\nv_add_u32 {v(xa[1]+i)}, 65536, {v(xa[0]+i)}")
    a(f"""v_lshlrev_b32 {v(ta[0])}, 4, {v(lane)}
          v_add_u32 {v(ta[0])}, 16384, {v(ta[0])}
          v_add_u32 {v(ta[1])}, 65536, {v(ta[0])}
          s_mov_b32 s62, 0x05040100
          s_mov_b32 s63, 0x07060302
          s_lshl_b32 s3, {s(sV)}, 7
          s_add_u32 s3, s3, {SCR}
          v_lshl_add_u32 {v(ad2)}, {v(t3)}, 4, s3
          v_and_b32 {v(t1)}, 31, {v(lane)}
          v_cmp_eq_u32 s[64:65], 0, {v(t1)}
          v_lshlrev_b32 {v(t5)}, 9, {v(t1)}
          v_and_b32 {v(t1)}, 7, {v(lane)}
          v_xor_b32 {v(t1)}, {v(t1)}, {v(t3)}
          s_lshl_b32 s3, {s(sV)}, 2
          v_xor_b32 {v(t1)}, s3, {v(t1)}
          v_lshl_add_u32 {v(wad[0])}, {v(t1)}, 4, {v(t5)}
          v_xor_b32 {v(wad[1])}, 32, {v(wad[0])}
          s_mov_b32 s60, 2.0
          s_mov_b32 s61, 2.0
          s_mov_b32 s32, 0.5
          s_mov_b32 s33, 0.5""")
    class R2:
        def __init__(s_): s_.k = 0
        def get(s_, n=1):
            return acc[0][0] if n == 32 else Vo.get(n)
    x1pre, x1post = x1_out(R2())
    a(x1pre)
    def loc(sl): slot = sl % NS; return slot >> 1, (slot & 1) * 32768
    def rd_x(sl): se, off = loc(sl); return [f"ds_read_b128 {v(xr+4*b,4)}, {v(xa[se]+b)} offset:{off}" for b in range(4)]
    def rd_t(sl, r): se, off = loc(sl); return [f"ds_read_b128 {v(tf[r][c],4)}, {v(ta[se])} offset:{off + (2*r + c)*1024}" for c in range(2)]
    def perms(r): return [f"v_perm_b32 {v(xe[r]+i)}, {v(xr+4*i+2+(r>>1))}, {v(xr+4*i+(r>>1))}, s{62+(r&1)}" for i in range(4)]
    produce()
    bar(); st.mark()
    for r in rd_x(0) + sum((rd_t(0, r) for r in range(4)), []): a(r)
    for r in range(4):
        for p in perms(r): a(p)
    rs = xr
    for sl in range(8):
        z = "0" if sl == 0 else None
        mfs = [(lambda r=r, c=c: mf32(a, acc[r][c], xe[r], tf[r][c], z)) for r in range(4) for c in range(2)]
        if sl < 7:
            bar()
            fill = rd_x(sl + 1); per = [4]
            for r in range(4):
                nx = rd_t(sl + 1, r) + (perms(r - 1) if r else [])
                fill += nx; per += [len(nx), 0]
            fill += perms(3); per = per[:8]
        else:
            fill = [bar] + [f"ds_read_b128 {v(rs+4*jj,4)}, {v(ad2)} offset:{32*jj}" for jj in range(4)]; per = [0, 0, 0, 0, 0, 3, 2, 0]
        interleave(a, mfs, fill, per)
        if sl == 2: st.mark()
    st.mark()
    tmp = xe[0]; pk = [tf[0][0], tf[0][1]]
    ng = lambda *n: f" neg_lo:[{n[0]},{n[1]},{n[2]}] neg_hi:[{n[0]},{n[1]},{n[2]}]"
    for i in range(0, 16, 2):
        r = v(rs+i, 2); P = lambda q, c: v(acc[q][c]+i, 2)
        for q in range(2):
            for c in range(2): a(f"v_pk_mul_f32 {v(tmp+4*q+2*c,2)}, {P(q,c)}, {r}")
        for q in range(2):
            for c in range(2):
                a(f"v_pk_fma_f32 {P(q,c)}, {P(q+2,c)}, {r}, {v(tmp+4*q+2*c,2)}\nv_pk_fma_f32 {P(q+2,c)}, {P(q+2,c)}, {r}, {v(tmp+4*q+2*c,2)}{ng(1,0,0)}")
        a(f"""v_pk_add_f32 {P(0,0)}, {P(0,0)}, {P(1,0)}
              v_pk_add_f32 {P(0,1)}, {P(0,1)}, {P(1,1)}
              v_pk_add_f32 {P(2,0)}, {P(2,0)}, {P(3,1)}
              v_pk_add_f32 {P(2,1)}, {P(2,1)}, {P(3,0)} neg_lo:[0,1] neg_hi:[0,1]
              v_pk_fma_f32 {P(1,0)}, {P(1,0)}, s[60:61], {P(0,0)}{ng(1,0,0)}
              v_pk_fma_f32 {P(1,1)}, {P(1,1)}, s[60:61], {P(0,1)}{ng(0,0,1)}
              v_pk_fma_f32 {P(3,1)}, {P(3,1)}, s[60:61], {P(2,0)}{ng(1,0,0)}
              v_pk_fma_f32 {P(3,0)}, {P(3,0)}, s[60:61], {P(2,1)}{ng(1,0,1)}""")
    a(f"s_cmp_lg_u32 {s(sHF)}, 0\ns_cbranch_scc1 K1_NOSPEC\ns_mov_b64 exec, s[64:65]")
    for i in range(0, 16, 2):
        P = lambda q, c: v(acc[q][c]+i, 2); T = lambda k: v(tmp+2*k, 2); n2 = " neg_lo:[0,1] neg_hi:[0,1]"
        a(f"""v_pk_add_f32 {T(0)}, {P(2,0)}, {P(3,1)}{n2}
              v_pk_add_f32 {T(1)}, {P(2,1)}, {P(3,0)}{n2}
              v_pk_add_f32 {T(2)}, {P(0,1)}, {P(1,1)}
              v_pk_add_f32 {T(3)}, {P(0,1)}, {P(1,1)}{n2}
              v_pk_add_f32 {P(2,0)}, {P(2,0)}, {P(3,1)}
              v_pk_add_f32 {P(2,1)}, {P(2,1)}, {P(3,0)}
              v_pk_add_f32 {T(4)}, {T(3)}, {T(1)}
              v_pk_add_f32 {T(5)}, {T(3)}, {T(1)}{n2}
              v_pk_mul_f32 {P(2,0)}, {P(2,0)}, s[32:33]
              v_pk_mul_f32 {P(2,1)}, {P(2,1)}, s[32:33]
              v_pk_add_f32 {P(0,0)}, {T(4)}, {T(0)}
              v_pk_add_f32 {P(0,1)}, {T(5)}, {T(2)} neg_lo:[1,1] neg_hi:[1,1]
              v_pk_add_f32 {P(3,1)}, {T(4)}, {T(0)}{n2}
              v_pk_add_f32 {P(3,0)}, {T(5)}, {T(2)}{n2}
              v_mov_b32 {v(acc[1][1]+i)}, 0
              v_mov_b32 {v(acc[1][1]+i+1)}, 0""")
    a("s_mov_b64 exec, -1")
    a.label("K1_NOSPEC")
    k = 0
    for ty in range(4):
        for c in range(2):
            src = acc[ty][c if ty < 3 else 1 - c]
            for u in range(2):
                pp = pk[k & 1]; k += 1
                for i in range(4): a(f"v_cvt_pk_bf16_f32 {v(pp+i)}, {v(src+8*u+2*i)}, {v(src+8*u+2*i+1)}")
                a(f"ds_write_b128 {v(wad[u])}, {v(pp,4)} offset:{ty*16384 + c*256}")
    st.mark()
    x1post()
    st.mark()
    st.flush(SW, tmp, tid)
    a.label("K1_END")
    a("s_endpgm")
    return a, max(vmax, V.hi), (139264, 512)
```

```python
from asmfw import Asm, VAlloc, v, s
import __main__ as M
G = M if hasattr(M, "dft_table") else __import__("gen")
OPT = G.OPT; fbits = G.fbits; srd = G.srd; mf32 = G.mf32; mf16 = G.mf16; Stamps = G.Stamps; header = G.header
H_OFF, X1_OFF, WT_OFF, Y1_OFF, PART_OFF, WS_END = G.H_OFF, G.X1_OFF, G.WT_OFF, G.Y1_OFF, G.PART_OFF, G.WS_END

def gen_k2():
    a = Asm(); st = Stamps(a, 1)
    header(a, "k2_kernel")
    st.mark()
    SW, S2, SPF = 4, 8, 12
    XB, WB, EX = 65536, 73728, 81920
    NS2 = 5
    a("s_cmp_ge_u32 s2, 256\ns_cbranch_scc1 K2_END")
    a("s_load_dwordx2 s[24:25], s[0:1], 64\ns_load_dwordx2 s[26:27], s[0:1], 40\ns_load_dwordx2 s[28:29], s[0:1], 0")
    V = VAlloc(0); tid = V.get(); lane = V.get()
    t0, t1, t2, t3, t4, t5 = [V.get() for _ in range(6)]
    sV, sQ, sRB, sNB, sL, sHo, s2o, sWR_, sWC = 34, 35, 36, 37, 38, 39, 40, 41, 42
    l16 = V.get()
    a(f"""v_lshrrev_b32 {v(t0)}, 6, v0
          v_and_b32 {v(lane)}, 63, v0
          v_readfirstlane_b32 s50, {v(t0)}
          v_lshlrev_b32 {v(l16)}, 4, {v(lane)}
          v_lshrrev_b32 {v(t1)}, 4, {v(lane)}
          s_bfe_u32 {s(sQ)}, s2, 0x20001
          s_and_b32 s3, s2, 1
          s_lshl_b32 s3, s3, 3
          s_lshr_b32 {s(sRB)}, s2, 5
          s_add_u32 {s(sRB)}, {s(sRB)}, s3
          s_bfe_u32 {s(sNB)}, s2, 0x20003
          s_and_b32 {s(sV)}, s50, 3
          s_lshl_b32 s43, s2, 13
          s_lshl_b32 s44, {s(sV)}, 11
          s_add_u32 s43, s43, s44
          s_cmp_lt_u32 s50, 4
          s_cbranch_scc1 K2_COMPUTE""")
    snap0 = a.snapshot(); Vb = V.n
    v2 = V.get(4); pf = V.get(); stmp = V.get(8, 4); stmp2 = V.get(8, 4)
    a(f"""s_add_u32 s47, s43, {X1_OFF}
          s_add_u32 s48, s43, {WT_OFF}
          s_lshl_b32 {s(sL)}, {s(sV)}, 12
          s_lshl_b32 s3, {s(sRB)}, 2
          s_add_u32 s3, s3, {s(sV)}
          s_mul_i32 s3, s3, 112
          s_mul_i32 s43, {s(sQ)}, 28
          s_add_u32 s3, s3, s43
          s_lshl_b32 {s(sHo)}, s3, 10
          s_mul_i32 s3, {s(sQ)}, 448
          s_lshl_b32 s43, {s(sV)}, 4
          s_add_u32 s3, s3, s43
          s_lshl_b32 s3, s3, 10
          s_lshl_b32 s43, {s(sNB)}, 7
          s_add_u32 {s(s2o)}, s3, s43
          v_and_b32 {v(t0)}, 15, {v(lane)}
          v_lshlrev_b32 {v(t2)}, 2, {v(t1)}
          v_xor_b32 {v(t0)}, {v(t0)}, {v(t2)}
          v_lshrrev_b32 {v(t2)}, 3, {v(t0)}
          v_and_b32 {v(t0)}, 7, {v(t0)}
          v_lshlrev_b32 {v(t0)}, 4, {v(t0)}
          v_lshl_add_u32 {v(t0)}, {v(t2)}, 9, {v(t0)}
          v_lshl_add_u32 {v(v2)}, {v(t1)}, 10, {v(t0)}
          v_add_u32 {v(v2+1)}, 3072, {v(v2)}
          v_add_u32 {v(v2+2)}, 6144, {v(v2)}
          v_add_u32 {v(v2+3)}, 9216, {v(v2)}""")
    a.waitlg()
    srd(a, SW, 24, 25, WS_END)
    srd(a, S2, 26, 27, 1792 * 1024)
    if OPT["rot2"]:
        a(f"""s_lshl_b32 s46, {s(sNB)}, 1
              s_lshl_b32 s3, s46, 12
              s_add_u32 {s(sHo)}, {s(sHo)}, s3
              s_lshl_b32 s3, s46, 16
              s_add_u32 {s(s2o)}, {s(s2o)}, s3""")
    def dma(slab, q):
        slot = slab % NS2; part, hf = q >> 1, q & 1
        if hf == 0: a(f"s_add_u32 m0, {s(sL)}, {slot*32768 + part*16384}")
        for j in (2*hf, 2*hf + 1):
            if part == 0: a(f"buffer_load_dwordx4 {v(l16)}, {s(SW,4)}, {s(sHo)} offen offset:{1024*j} lds", tag=f"S{slab}")
            else: a(f"buffer_load_dwordx4 {v(v2+j)}, {s(S2,4)}, {s(s2o)} offen offset:{1024*j} lds", tag=f"S{slab}")
        if hf == 1:
            reg, step = (sHo, 4096) if part == 0 else (s2o, 65536)
            if OPT["rot2"] and slab in (0, 2, 4):
                a(f"s_cmp_eq_u32 s46, {6 - slab}\ns_mov_b32 s3, {step}\ns_cselect_b32 s3, {(-6*step) & 0xffffffff}, s3\ns_add_u32 {s(reg)}, {s(reg)}, s3")
            else: a(f"s_add_u32 {s(reg)}, {s(reg)}, {step}")
    st.mark()
    halves = [(i >> 2, i & 3) for i in range(28)]; pos = 0
    for ph, cnt in enumerate(OPT["k2sched"]):
        for (sl, part) in halves[pos:pos+cnt]:
            assert sl < NS2 or sl - NS2 <= ph - 2, (sl, ph)
            dma(sl, part)
        pos += cnt
        if ph == OPT["phX"]:
            assert ph >= 4
            for base, so in ((XB, 47), (WB, 48)):
                a(f"s_add_u32 m0, s44, {base}")
                for j in range(2): a(f"buffer_load_dwordx4 {v(l16)}, {s(SW,4)}, s{so} offen offset:{1024*j} lds", tag="X")
        a.waitvm(f"S{ph}")
        if ph == 6: a.waitvm("X")
        a("s_barrier")
        st.mark()
    assert pos == 28 and len(OPT["k2sched"]) == 7
    if OPT["pf3"]:
        srd(a, SPF, 28, 29, 0x200000)
        a(f"""s_lshr_b32 s3, s2, 3
              s_lshl_b32 s3, s3, 2
              s_add_u32 s3, s3, {s(sV)}
              s_lshl_b32 s3, s3, 11
              s_and_b32 s44, s2, 7
              s_lshr_b32 s45, s44, 1
              s_lshl_b32 s45, s45, 19
              s_and_b32 s44, s44, 1
              s_lshl_b32 s44, s44, 13
              s_add_u32 s45, s45, s44
              s_lshr_b32 s44, s3, 13
              s_lshl_b32 s44, s44, 14
              s_add_u32 s45, s45, s44
              s_and_b32 s44, s3, 0x1fff
              s_add_u32 s45, s45, s44""")
        for j in range(2):
            a(f"buffer_load_dwordx4 {v(stmp+4,4)}, {v(l16)}, {s(SPF,4)}, s45 offen offset:{1024*j}"); G.untracked(a)
    a("s_barrier")
    st.flush(SW, stmp2, tid, 256, 1)
    a("s_endpgm")
    a.restore(snap0); V.n = Vb; st.n = 1 if OPT["stamp"] else 0
    a.label("K2_COMPUTE")
    if OPT["prio"]: a(f"s_setprio {OPT['prio']}")
    a(f"""s_lshr_b32 {s(sWR_)}, {s(sV)}, 1
          s_and_b32 {s(sWC)}, {s(sV)}, 1""")
    C64 = [V.get(4) for _ in range(2)]; S64 = [V.get(4) for _ in range(2)]; N64 = [V.get(4) for _ in range(2)]
    C32 = [V.get(4) for _ in range(2)]; S32 = [V.get(4) for _ in range(2)]; N32 = [V.get(4) for _ in range(2)]
    c1 = V.get(8); s1 = V.get(8); c2 = V.get(8); s2_ = V.get(8)
    xrd, exw, exr0, exr1, pad, wrd = [V.get() for _ in range(6)]
    ha = [V.get(), V.get(), V.get()]; wa = [[V.get(), V.get()] for _ in range(3)]
    acc = [[V.get(16) for _ in range(2)] for _ in range(2)]
    hf = [[V.get(4) for _ in range(2)] for _ in range(3)]
    wf = [[V.get(4) for _ in range(2)] for _ in range(3)]
    D = [V.get(8), V.get(8)]; wd = V.get(8)
    fr = hf[0][0]; assert wf[2][1] + 4 == fr + 48
    fj, fg, fk, ang = fr, fr + 1, fr + 2, fr + 3; cb = fr + 4; sb = fr + 12
    free = [fr + 8, fr + 12, fr + 16, fr + 20, fr + 32, fr + 36, fr + 40, fr + 44]
    xin = [[[free[(c*2 + m)*2 + t] for t in range(2)] for m in range(2)] for c in range(2)]
    pk = fr
    E = [acc[0][0], acc[0][0] + 8]; P = [acc[0][1], acc[0][1] + 4]; wr = acc[1][0]; wi = acc[1][0] + 8
    a(f"""v_and_b32 {v(t0)}, 15, {v(lane)}
          v_cvt_f32_u32 {v(fj)}, {v(t0)}
          v_cvt_f32_u32 {v(fg)}, {v(t1)}
          s_lshl_b32 s3, {s(sV)}, 4
          v_add_u32 {v(t0)}, s3, {v(t0)}
          v_cvt_f32_u32 {v(fk)}, {v(t0)}
          s_mov_b32 s47, 0x80008000""")
    def frag(step, base, offs, Cd, Sd, Nd):
        for e in range(8):
            a(f"v_mov_b32 {v(t4)}, {fbits(float(offs[e]))}\nv_fma_f32 {v(ang)}, {v(t4)}, {v(step)}, {v(base)}" if offs[e] not in (0, 1, 2, 4) else
              (f"v_mov_b32 {v(ang)}, {v(base)}" if offs[e] == 0 else f"v_fma_f32 {v(ang)}, {float(offs[e])}, {v(step)}, {v(base)}"))
            a(f"v_cos_f32 {v(cb+e)}, {v(ang)}\nv_sin_f32 {v(sb+e)}, {v(ang)}")
        for i in range(4):
            a(f"v_cvt_pk_bf16_f32 {v(Cd+i)}, {v(cb+2*i)}, {v(cb+2*i+1)}\nv_cvt_pk_bf16_f32 {v(Sd+i)}, {v(sb+2*i)}, {v(sb+2*i+1)}\nv_xor_b32 {v(Nd+i)}, s47, {v(Sd+i)}")
    a(f"v_mul_f32 {v(t2)}, {fbits(1/64)}, {v(fk)}\nv_mul_f32 {v(t3)}, {fbits(8.0)}, {v(fg)}\nv_mul_f32 {v(t5)}, {v(t3)}, {v(t2)}")
    frag(t2, t5, list(range(8)), C64[0], S64[0], N64[0])
    a(f"v_add_f32 {v(t3)}, {fbits(32.0)}, {v(t3)}\nv_mul_f32 {v(t5)}, {v(t3)}, {v(t2)}")
    frag(t2, t5, list(range(8)), C64[1], S64[1], N64[1])
    o32 = [0, 1, 2, 3, 16, 17, 18, 19]
    a(f"v_mul_f32 {v(t3)}, 4.0, {v(fg)}")
    for m in range(2):
        a(f"v_mul_f32 {v(t2)}, {fbits(1/32)}, {v(fj)}")
        if m: a(f"v_add_f32 {v(t2)}, 0.5, {v(t2)}")
        a(f"v_mul_f32 {v(t5)}, {v(t3)}, {v(t2)}")
        frag(t2, t5, o32, C32[m], S32[m], N32[m])
    a(f"v_mul_f32 {v(t2)}, {fbits(1/2048)}, {v(fk)}\nv_mul_f32 {v(t5)}, {v(t3)}, {v(t2)}")
    for e in range(8):
        a(f"v_mov_b32 {v(t4)}, {fbits(float(o32[e]))}\nv_fma_f32 {v(ang)}, {v(t4)}, {v(t2)}, {v(t5)}\nv_cos_f32 {v(c1+e)}, {v(ang)}\nv_sin_f32 {v(s1+e)}, {v(ang)}")
    a(f"v_cvt_f32_u32 {v(t4)}, s3\nv_add_f32 {v(t3)}, {v(t3)}, {v(t4)}")
    for m in range(2):
        a(f"v_mul_f32 {v(t2)}, {fbits(1/2048)}, {v(fj)}")
        if m: a(f"v_add_f32 {v(t2)}, {fbits(16/2048)}, {v(t2)}")
        a(f"v_mul_f32 {v(ang)}, {v(t3)}, {v(t2)}")
        for r in range(4):
            if r: a(f"v_add_f32 {v(ang)}, {v(ang)}, {v(t2)}")
            a(f"v_cos_f32 {v(c2+4*m+r)}, {v(ang)}\nv_sin_f32 {v(s2_+4*m+r)}, {v(ang)}")
    a(f"s_mov_b32 s48, {fbits(1/2048)}\ns_mov_b32 s49, {fbits(1/2048)}")
    for i in range(0, 8, 2): a(f"v_pk_mul_f32 {v(c2+i,2)}, {v(c2+i,2)}, s[48:49]\nv_pk_mul_f32 {v(s2_+i,2)}, {v(s2_+i,2)}, s[48:49]")
    a(f"""v_and_b32 {v(t0)}, 15, {v(lane)}
          v_lshrrev_b32 {v(t2)}, 1, {v(t1)}
          v_and_b32 {v(t3)}, 1, {v(t1)}
          v_lshlrev_b32 {v(t4)}, 5, {v(t0)}
          v_lshl_add_u32 {v(t4)}, {v(t2)}, 9, {v(t4)}
          v_lshl_add_u32 {v(t4)}, {v(t3)}, 4, {v(t4)}
          v_add_u32 {v(xrd)}, {XB}, {v(t4)}
          v_lshrrev_b32 {v(t4)}, 1, {v(t0)}
          v_lshlrev_b32 {v(t0)}, 7, {v(t0)}
          v_add_u32 {v(t0)}, {EX}, {v(t0)}
          v_xor_b32 {v(t5)}, {v(t4)}, {v(t1)}
          v_lshl_add_u32 {v(exr0)}, {v(t5)}, 4, {v(t0)}
          v_xor_b32 {v(exr1)}, 64, {v(exr0)}
          s_lshl_b32 s3, {s(sV)}, 1
          v_add_u32 {v(t2)}, s3, {v(t2)}
          v_xor_b32 {v(t2)}, {v(t2)}, {v(t4)}
          v_lshl_add_u32 {v(t2)}, {v(t2)}, 4, {v(t0)}
          v_lshl_add_u32 {v(exw)}, {v(t3)}, 3, {v(t2)}""")
    a(f"s_lshl_b32 s3, {s(sV)}, 11\ns_add_u32 s3, s3, {WB}\nv_add_u32 {v(wrd)}, s3, {v(l16)}")
    a(f"""s_lshl_b32 s3, {s(sWR_)}, 13
          v_add_u32 {v(ha[0])}, s3, {v(l16)}
          v_add_u32 {v(ha[1])}, 65536, {v(ha[0])}
          v_lshrrev_b32 {v(t3)}, 5, {v(lane)}
          v_bfe_u32 {v(t0)}, {v(lane)}, 2, 2
          v_lshl_add_u32 {v(t1)}, {v(t3)}, 3, {v(t0)}
          v_lshlrev_b32 {v(t1)}, 8, {v(t1)}
          s_lshl_b32 s3, {s(sWC)}, 1
          v_xor_b32 {v(t0)}, s3, {v(t0)}
          v_lshl_add_u32 {v(t1)}, {v(t0)}, 6, {v(t1)}
          v_bfe_u32 {v(t0)}, {v(lane)}, 4, 1
          v_lshl_add_u32 {v(t1)}, {v(t0)}, 5, {v(t1)}
          v_and_b32 {v(t0)}, 1, {v(lane)}
          v_lshl_add_u32 {v(t1)}, {v(t0)}, 4, {v(t1)}
          v_bfe_u32 {v(t0)}, {v(lane)}, 1, 1
          v_lshl_add_u32 {v(t1)}, {v(t0)}, 3, {v(t1)}
          v_add_u32 {v(wa[0][0])}, 16384, {v(t1)}
          v_xor_b32 {v(wa[0][1])}, 64, {v(wa[0][0])}
          v_add_u32 {v(wa[1][0])}, 65536, {v(wa[0][0])}
          v_add_u32 {v(wa[1][1])}, 65536, {v(wa[0][1])}
          v_add_u32 {v(ha[2])}, 131072, {v(ha[0])}
          v_add_u32 {v(wa[2][0])}, 131072, {v(wa[0][0])}
          v_add_u32 {v(wa[2][1])}, 131072, {v(wa[0][1])}""")
    a(f"""v_and_b32 {v(t0)}, 15, {v(lane)}
          v_lshlrev_b32 {v(t0)}, 6, {v(t0)}
          v_lshl_add_u32 {v(t0)}, {v(t3)}, 4, {v(t0)}
          v_bfe_u32 {v(t1)}, {v(lane)}, 4, 1
          v_lshl_add_u32 {v(pad)}, {v(t1)}, 5, {v(t0)}
          s_lshl_b32 s3, {s(sRB)}, 2
          s_lshl_b32 s43, {s(sWR_)}, 1
          s_add_u32 s3, s3, s43
          s_lshl_b32 s3, s3, 4
          s_lshl_b32 s43, {s(sWC)}, 3
          s_add_u32 s3, s3, s43
          s_lshl_b32 s43, {s(sNB)}, 1
          s_add_u32 s3, s3, s43
          s_lshl_b32 s3, s3, 11
          s_lshl_b32 s43, {s(sQ)}, 21
          s_add_u32 s3, s3, s43
          s_add_u32 s50, s3, {PART_OFF}
          s_add_u32 s51, s50, 32768""")
    a(f"""s_and_b32 s3, s2, 1
          s_lshl_b32 s3, s3, 7
          s_lshr_b32 s43, s2, 1
          s_add_u32 s3, s3, s43
          s_lshl_b32 s3, s3, 13
          s_lshl_b32 s43, {s(sV)}, 10
          s_add_u32 s3, s3, s43
          s_add_u32 s44, s3, {Y1_OFF}
          s_add_u32 s45, s44, 4096""")
    a.waitlg()
    srd(a, SW, 24, 25, WS_END)
    st.mark()
    def reads(n):
        if n >= 28: return []
        slab, t = divmod(n, 4); slot = slab % NS2; se, off = slot >> 1, (slot & 1) * 32768; b = n % 3
        r = []
        for T in range(2):
            r.append(f"ds_read_b128 {v(hf[b][T],4)}, {v(ha[se])} offset:{off + T*4096 + t*1024}")
            r.append(f"ds_read_b64_tr_b16 {v(wf[b][T],2)}, {v(wa[se][T])} offset:{off + t*4096}")
            r.append(f"ds_read_b64_tr_b16 {v(wf[b][T]+2,2)}, {v(wa[se][T])} offset:{off + t*4096 + 1024}")
        return r
    def bar():
        a.waitlg(); a("s_barrier")
    a("s_barrier")
    st.mark()
    for r in reads(0) + reads(1): a(r)
    for n in range(28):
        b = n % 3; z = "0" if n == 0 else None
        mfs = [(lambda F=F, S=S: mf32(a, acc[F][S], wf[b][F], hf[b][S], z)) for (F, S) in ((0, 0), (1, 0), (0, 1), (1, 1))]
        fill = reads(n + 2); per = [3, 3, 0, 0]
        if n % 4 == 2 and n < 24: fill = [bar] + fill; per = [3, 2, 2, 0]
        if n == 27:
            fill = [f"ds_read_b128 {v(xin[c][m][t],4)}, {v(xrd)} offset:{c*4096 + m*2048 + t*1024}" for m in range(2) for t in range(2) for c in range(2)]
            fill += [f"ds_read_b128 {v(wd+4*j,4)}, {v(wrd)} offset:{1024*j}" for j in range(2)]
            per = [3, 3, 3, 1]
        G.interleave(a, mfs, fill, per)
    st.mark()
    def big(src, Cc, Sre, Sim, fill=()):
        mfs = []
        for m in range(2):
            for t in range(2):
                z = "0" if t == 0 else None
                mfs += [lambda m=m, t=t, z=z: mf16(a, D[0]+4*m, src[0][m][t], Cc[t], z), lambda m=m, t=t, z=z: mf16(a, D[1]+4*m, src[0][m][t], Sim[t], z),
                        lambda m=m, t=t: mf16(a, D[0]+4*m, src[1][m][t], Sre[t]), lambda m=m, t=t: mf16(a, D[1]+4*m, src[1][m][t], Cc[t])]
        G.interleave(a, mfs, fill, [OPT["pper"]] * 16)
    def cmul(cc, ss, nre, nim):
        ng = lambda n: " neg_lo:[0,1,0] neg_hi:[0,1,0]" if n < 0 else ""
        for i in range(0, 8, 2):
            a(f"""v_pk_mul_f32 {v(E[0]+i,2)}, {v(D[0]+i,2)}, {v(cc+i,2)}
                  v_pk_mul_f32 {v(E[1]+i,2)}, {v(D[1]+i,2)}, {v(cc+i,2)}
                  v_pk_fma_f32 {v(E[0]+i,2)}, {v(D[1]+i,2)}, {v(ss+i,2)}, {v(E[0]+i,2)}{ng(nre)}
                  v_pk_fma_f32 {v(E[1]+i,2)}, {v(D[0]+i,2)}, {v(ss+i,2)}, {v(E[1]+i,2)}{ng(nim)}""")
        for c in range(2):
            for i in range(4): a(f"v_cvt_pk_bf16_f32 {v(P[c]+i)}, {v(E[c]+2*i)}, {v(E[c]+2*i+1)}")
    fill = []
    for S in range(2):
        for F in range(2):
            pp = pk + 24 * F
            fill += [f"v_cvt_pk_bf16_f32 {v(pp+i)}, {v(acc[F][S]+2*i)}, {v(acc[F][S]+2*i+1)}" for i in range(8)]
            fill += [f"v_permlane16_swap_b32 {v(pp+i)}, {v(pp+4+i)}" for i in range(4)]
            fill += [f"buffer_store_dwordx4 {v(pp+4*u,4)}, {v(pad)}, {s(SW,4)}, s{50+S} offen offset:{2048*F + 1024*u} {OPT['stP']}" for u in range(2)]
    for f in fill[:OPT["plead"]]: a(f)
    big(xin, C64, S64, N64, fill[OPT["plead"]:])
    st.mark()
    for i in range(8): a(f"v_lshlrev_b32 {v(wr+i)}, 16, {v(wd+i)}\nv_and_b32 {v(wi+i)}, 0xffff0000, {v(wd+i)}")
    cmul(c1, s1, +1, -1)
    for m in range(2):
        mf16(a, D[0]+4*m, C32[m], P[0], "0"); mf16(a, D[1]+4*m, N32[m], P[0], "0")
        mf16(a, D[0]+4*m, S32[m], P[1]); mf16(a, D[1]+4*m, C32[m], P[1])
    cmul(wr, wi, -1, +1)
    for m in range(2):
        mf16(a, D[0]+4*m, P[0], C32[m], "0"); mf16(a, D[1]+4*m, P[0], S32[m], "0")
        mf16(a, D[0]+4*m, P[1], N32[m]); mf16(a, D[1]+4*m, P[1], C32[m])
    cmul(c2, s2_, -1, +1)
    for c in range(2):
        for m in range(2): a(f"ds_write_b64 {v(exw)}, {v(P[c]+2*m,2)} offset:{c*4096 + m*2048}")
    a.waitlg(); a("s_barrier")
    for m in range(2):
        for t in range(2):
            for c in range(2): a(f"ds_read_b128 {v(xin[c][m][t],4)}, {v(exr1 if t else exr0)} offset:{c*4096 + m*2048}")
    big(xin, C64, N64, S64)
    for c in range(2):
        for i in range(4): a(f"v_cvt_pk_bf16_f32 {v(P[c]+i)}, {v(D[c]+2*i)}, {v(D[c]+2*i+1)}")
        a(f"buffer_store_dwordx4 {v(P[c],4)}, {v(l16)}, {s(SW,4)}, s{44+c} offen {OPT['stY']}", tag="st")
    st.mark()
    st.flush(SW, pk, tid)
    a.label("K2_END")
    a("s_endpgm")
    return a, V.hi, (163840, 512)

def gen_k3():
    a = Asm(); st = Stamps(a, 2)
    header(a, "k3_kernel")
    st.mark()
    SW, SX, SO = 4, 8, 12
    RED = 65536
    a("s_cmp_ge_u32 s2, 256\ns_cbranch_scc1 K3_END")
    a("s_load_dwordx2 s[24:25], s[0:1], 64\ns_load_dwordx2 s[26:27], s[0:1], 0\ns_load_dwordx2 s[28:29], s[0:1], 48")
    V = VAlloc(0); tid = V.get(); lane = V.get()
    t0, t1, t2, t3, t4, t5 = [V.get() for _ in range(6)]
    sV, sRT, sCB, sL, sYo = 34, 35, 36, 37, 38
    a(f"""v_lshrrev_b32 {v(t0)}, 6, v0
          v_and_b32 {v(lane)}, 63, v0
          v_readfirstlane_b32 s50, {v(t0)}
          s_and_b32 s3, s2, 7
          s_lshl_b32 s3, s3, 2
          s_bfe_u32 {s(sRT)}, s2, 0x20003
          s_add_u32 {s(sRT)}, {s(sRT)}, s3
          s_lshr_b32 {s(sCB)}, s2, 5
          s_and_b32 {s(sV)}, s50, 3
          v_lshrrev_b32 {v(t3)}, 5, {v(lane)}
          s_mov_b32 {s(SW+2)}, {WS_END}
          s_mov_b32 {s(SW+3)}, 0x20000
          s_cmp_lt_u32 s50, 4
          s_cbranch_scc0 K3_SUM""")
    snap0 = a.snapshot(); Vb = V.n
    vy = V.get(4); df = V.get(32); cs_ = V.get(4); ang, dd, hf_, an0 = V.get(), V.get(), V.get(), V.get()
    if OPT["k3prio"]: a(f"s_setprio {OPT['k3prio']}")
    a(f"""s_lshl_b32 {s(sL)}, {s(sV)}, 14
          v_lshrrev_b32 {v(t1)}, 3, {v(lane)}
          v_bfe_u32 {v(t2)}, {v(lane)}, 4, 1
          v_lshlrev_b32 {v(t2)}, 2, {v(t2)}
          v_and_b32 {v(t0)}, 7, {v(lane)}
          v_xor_b32 {v(t0)}, {v(t0)}, {v(t2)}
          v_lshlrev_b32 {v(t0)}, 4, {v(t0)}
          v_lshl_add_u32 {v(vy)}, {v(t1)}, 12, {v(t0)}
          v_add_u32 {v(vy+1)}, 31744, {v(vy)}
          v_add_u32 {v(vy+2)}, {2*31744}, {v(vy)}
          v_add_u32 {v(vy+3)}, {3*31744}, {v(vy)}
          s_lshl_b32 s3, {s(sV)}, 19
          s_lshl_b32 s40, {s(sRT)}, 7
          s_add_u32 s3, s3, s40
          s_add_u32 {s(sYo)}, s3, {Y1_OFF}
          s_mov_b32 m0, {s(sL)}""")
    R = OPT["rot3"]
    if R: a(f"s_and_b32 s41, {s(sCB)}, 3\ns_lshl_b32 s3, s41, 17\ns_add_u32 {s(sYo)}, {s(sYo)}, s3")
    a.waitlg()
    a(f"s_mov_b64 {s(SW,2)}, s[24:25]")
    gen = [f"v_and_b32 {v(t0)}, 31, {v(lane)}", f"s_lshl_b32 s3, {s(sCB)}, 5", f"v_add_u32 {v(t0)}, s3, {v(t0)}", f"v_cvt_f32_u32 {v(dd)}, {v(t0)}",
           f"s_and_b32 s3, {s(sV)}, 1", f"s_lshl_b32 s3, s3, 7", f"s_lshr_b32 s40, {s(sV)}, 1", f"s_add_u32 s3, s3, s40", f"s_add_u32 s3, s3, 1",
           f"v_lshl_add_u32 {v(t0)}, {v(t3)}, 3, s3", f"v_cvt_f32_u32 {v(ang)}, {v(t0)}", f"v_mul_f32 {v(dd)}, {fbits(1/256)}, {v(dd)}",
           f"v_mul_f32 {v(ang)}, {v(ang)}, {v(dd)}", f"v_mul_f32 {v(ang)}, 0.5, {v(ang)}",
           f"v_cmp_eq_u32 vcc, {256 - 118}, {v(t0)}", f"v_mov_b32 {v(hf_)}, 1.0", f"v_mul_f32 {v(t1)}, {fbits(5.0)}, {v(dd)}", f"v_cndmask_b32 {v(hf_)}, {v(hf_)}, 0.5, vcc"]
    if R: gen += [f"v_mov_b32 {v(an0)}, {v(ang)}"]
    for t in range(8):
        if R and t % 2 == 0:
            gen += [f"s_add_u32 s3, s41, {t // 2}", "s_and_b32 s3, s3, 3", "s_lshl_b32 s40, s3, 4", f"v_cvt_f32_u32 {v(t2)}, s40",
                    "s_cmp_eq_u32 s3, 3", "s_cselect_b64 s[42:43], vcc, 0", f"v_fma_f32 {v(ang)}, {v(t2)}, {v(dd)}, {v(an0)}",
                    f"v_mov_b32 {v(hf_)}, 1.0", f"v_cndmask_b32 {v(hf_)}, {v(hf_)}, 0.5, s[42:43]"]
        for e in range(4):
            c, s_ = cs_ + 2 * (e & 1), cs_ + 2 * (e & 1) + 1
            gen += [f"v_cos_f32 {v(c)}, {v(ang)}", f"v_sin_f32 {v(s_)}, {v(ang)}"]
            if e == 3 and (t == 7 or (R and t % 2)): gen += [f"v_mul_f32 {v(c)}, {v(c)}, {v(hf_)}"]
            else: gen += [f"v_add_f32 {v(ang)}, {v(ang)}, {v(dd if e < 3 else t1)}"]
            gen += [f"v_cvt_pk_bf16_f32 {v(df+4*t+e)}, {v(c)}, -{v(s_)}"]
    per = -(-len(gen) // 16); k = 0
    for g in range(4):
        if g: a(f"s_add_u32 m0, {s(sL)}, {g*4096}")
        for j in range(4):
            a(f"buffer_load_dwordx4 {v(vy+j)}, {s(SW,4)}, {s(sYo)} offen offset:{1024*j} lds", tag=f"Y{g}")
            if OPT["k3mix"]:
                for r in gen[k:k+per]: a(r)
                k += per
        if g < 3 and R: a(f"s_cmp_eq_u32 s41, {3 - g}\ns_mov_b32 s44, 131072\ns_cselect_b32 s44, {(-3*131072) & 0xffffffff}, s44\ns_add_u32 {s(sYo)}, {s(sYo)}, s44")
        elif g < 3: a(f"s_add_u32 {s(sYo)}, {s(sYo)}, 131072")
    for r in gen[k:]: a(r)
    st.mark()
    ya = [V.get(), V.get()]; yf = [[V.get(4) for _ in range(2)] for _ in range(3)]; acc = [V.get(16), V.get(16)]
    rw = V.get(4)
    a(f"""v_bfe_u32 {v(t1)}, {v(lane)}, 2, 2
          v_lshl_add_u32 {v(t0)}, {v(t3)}, 3, {v(t1)}
          v_lshlrev_b32 {v(t0)}, 7, {v(t0)}
          v_lshrrev_b32 {v(t2)}, 1, {v(t1)}
          v_lshl_add_u32 {v(t0)}, {v(t2)}, 6, {v(t0)}
          v_bfe_u32 {v(t2)}, {v(lane)}, 4, 1
          v_lshl_add_u32 {v(t0)}, {v(t2)}, 5, {v(t0)}
          v_and_b32 {v(t2)}, 3, {v(lane)}
          v_lshl_add_u32 {v(t0)}, {v(t2)}, 3, {v(t0)}
          v_add_u32 {v(ya[0])}, {s(sL)}, {v(t0)}
          v_xor_b32 {v(ya[1])}, 64, {v(ya[0])}
          v_and_b32 {v(t0)}, 31, {v(lane)}
          s_lshl_b32 s3, {s(sV)}, 13
          s_add_u32 s3, s3, {RED}
          v_lshl_add_u32 {v(t0)}, {v(t0)}, 7, s3
          v_and_b32 {v(t2)}, 7, {v(lane)}
          v_xor_b32 {v(t2)}, {v(t2)}, {v(t3)}""")
    for jj in range(4): a(f"v_xor_b32 {v(t4)}, {2*jj}, {v(t2)}\nv_lshl_add_u32 {v(rw+jj)}, {v(t4)}, 4, {v(t0)}")
    def reads(t):
        return [f"ds_read_b64_tr_b16 {v(yf[t%3][T]+2*aa,2)}, {v(ya[T])} offset:{t*2048 + aa*512}" for T in range(2) for aa in range(2)]
    a.waitvm("Y0")
    for r in reads(0) + reads(1): a(r)
    for t in range(8):
        if t < 6:
            if t % 2 == 0: a.waitvm(f"Y{(t+2)//2}")
            for r in reads(t + 2): a(r)
        for T in range(2): mf32(a, acc[T], df + 4*t, yf[t % 3][T], "0" if t == 0 else None)
    st.mark()
    for T in range(2):
        for jj in range(4): a(f"ds_write_b128 {v(rw+jj)}, {v(acc[T]+4*jj,4)} offset:{4096*T}")
    a.waitlg(); a("s_barrier")
    st.mark()
    st.flush(SW, df, tid)
    a("s_endpgm")
    vmax = V.hi
    a.restore(snap0); V.n = Vb; st.n = 1 if OPT["stamp"] else 0
    a.label("K3_SUM")
    l16 = V.get(); vxo = V.get(); pt = V.get(32); xv = V.get(8); rr = V.get(2)
    a(f"""v_lshlrev_b32 {v(l16)}, 4, {v(lane)}
          s_lshl_b32 s3, {s(sRT)}, 1
          s_lshr_b32 s40, {s(sV)}, 1
          s_add_u32 s3, s3, s40
          s_lshl_b32 s3, s3, 4
          s_add_u32 s3, s3, {s(sCB)}
          s_lshl_b32 s3, s3, 1
          s_and_b32 s40, {s(sV)}, 1
          s_add_u32 s3, s3, s40
          s_lshl_b32 s3, s3, 10
          s_add_u32 s43, s3, {PART_OFF}""")
    a.waitlg()
    a(f"s_mov_b64 {s(SW,2)}, s[24:25]")
    for q in range(4):
        for lh in range(2):
            if q or lh: a(f"s_add_u32 s43, s43, {16384 if lh else 0x200000 - 16384}")
            a(f"buffer_load_dwordx4 {v(pt + 8*q + 4*lh,4)}, {v(l16)}, {s(SW,4)}, s43 offen", tag="P")
    srd(a, SX, 26, 27, 0x200000); srd(a, SO, 28, 29, 0x200000)
    a(f"""v_bfe_u32 {v(t0)}, {v(lane)}, 4, 1
          v_bfe_u32 {v(t1)}, {v(lane)}, 2, 2
          v_lshl_add_u32 {v(t0)}, {v(t0)}, 4, {v(t1)}
          v_lshl_add_u32 {v(t0)}, {v(t3)}, 5, {v(t0)}
          v_and_b32 {v(t2)}, 3, {v(lane)}
          v_lshlrev_b32 {v(t2)}, 4, {v(t2)}
          v_lshl_add_u32 {v(vxo)}, {v(t0)}, 10, {v(t2)}
          s_lshr_b32 s3, {s(sRT)}, 3
          s_lshl_b32 s3, s3, 9
          s_and_b32 s40, {s(sRT)}, 1
          s_lshl_b32 s40, s40, 8
          s_add_u32 s3, s3, s40
          s_lshl_b32 s40, {s(sV)}, 6
          s_add_u32 s3, s3, s40
          s_bfe_u32 s40, {s(sRT)}, 0x20001
          s_lshl_b32 s40, s40, 2
          s_add_u32 s3, s3, s40
          s_lshl_b32 s3, s3, 10
          s_lshl_b32 s40, {s(sCB)}, 6
          s_add_u32 s45, s3, s40""")
    for lh in range(2): a(f"buffer_load_dwordx4 {v(xv+4*lh,4)}, {v(vxo)}, {s(SX,4)}, s45 offen offset:{512*lh}", tag="P")
    st.mark()
    a(f"""v_lshrrev_b32 {v(t0)}, 2, {v(lane)}
          s_lshl_b32 s3, {s(sV)}, 11
          s_add_u32 s3, s3, {RED}
          v_lshl_add_u32 {v(t2)}, {v(t0)}, 7, s3
          v_and_b32 {v(t0)}, 7, {v(t0)}
          v_and_b32 {v(t4)}, 3, {v(lane)}
          v_lshlrev_b32 {v(t4)}, 1, {v(t4)}
          v_xor_b32 {v(t0)}, {v(t0)}, {v(t4)}
          v_lshl_add_u32 {v(rr)}, {v(t0)}, 4, {v(t2)}
          v_xor_b32 {v(rr+1)}, 16, {v(rr)}
          s_mov_b32 s46, 0xffff0000
          s_mov_b32 s48, {fbits(1/256)}
          s_mov_b32 s49, {fbits(1/256)}""")
    bs = [V.get(8), V.get(8)]; u0 = V.get(8); red = V.get(32); pk = V.get(8)
    for q in range(5):
        for lh in range(2):
            for i in range(4):
                src = (pt + 8*q if q < 4 else xv) + 4*lh + i; dst = bs[lh] if q == 0 else u0
                a(f"v_lshlrev_b32 {v(dst+2*i)}, 16, {v(src)}\nv_and_b32 {v(dst+2*i+1)}, s46, {v(src)}")
            if q:
                for i in range(4): a(f"v_add_f32 {v(bs[lh]+2*i)}, {v(bs[lh]+2*i)}, {v(u0+2*i)}\nv_add_f32 {v(bs[lh]+2*i+1)}, {v(bs[lh]+2*i+1)}, {v(u0+2*i+1)}")
    st.mark()
    a("s_barrier")
    st.mark()
    for b in range(2):
        for w in range(4): a(f"ds_read_b128 {v(red+8*w+4*b,4)}, {v(rr+b)} offset:{8192*w}")
    for i in range(0, 8, 2):
        a(f"""v_pk_add_f32 {v(red+i,2)}, {v(red+i,2)}, {v(red+8+i,2)}
              v_pk_add_f32 {v(red+16+i,2)}, {v(red+16+i,2)}, {v(red+24+i,2)}
              v_pk_fma_f32 {v(bs[0]+i,2)}, {v(red+16+i,2)}, s[48:49], {v(bs[0]+i,2)}
              v_pk_fma_f32 {v(bs[1]+i,2)}, {v(red+16+i,2)}, s[48:49], {v(bs[1]+i,2)}
              v_pk_fma_f32 {v(bs[0]+i,2)}, {v(red+i,2)}, s[48:49], {v(bs[0]+i,2)}
              v_pk_fma_f32 {v(bs[1]+i,2)}, {v(red+i,2)}, s[48:49], {v(bs[1]+i,2)} neg_lo:[1,0,0] neg_hi:[1,0,0]""")
    for lh in range(2):
        for i in range(4): a(f"v_cvt_pk_bf16_f32 {v(pk+4*lh+i)}, {v(bs[lh]+2*i)}, {v(bs[lh]+2*i+1)}")
        a(f"buffer_store_dwordx4 {v(pk+4*lh,4)}, {v(vxo)}, {s(SO,4)}, s45 offen offset:{512*lh} {OPT['stO']}")
    st.mark()
    st.flush(SW, red, tid, 256, 1)
    a.label("K3_END")
    a("s_endpgm")
    return a, max(vmax, V.hi), (98304, 512)
```

```python
import sys, os, math, struct
sys.path.insert(0, os.path.dirname(os.path.abspath(__file__)))
from asmfw import Asm, VAlloc, v, s, align64
import numpy as np

H_OFF, X1_OFF, WT_OFF, Y1_OFF, PART_OFF, CS_OFF, STATS_OFF, EPOCH_OFF, WS_END = 0, 0x700000, 0x900000, 0xB00000, 0xD00000, 0x1500000, 0x1540000, 0x1548000, 0x1548080
STAMP_OFF = 0x1600000
OPT = dict(stamp=False, stH="sc1", stW="sc1", stY="sc1", stP="sc1", stO="", pf=1, pft=0, pfw2=8, pf3=1, prio=0, nodma=0, cyc=0, align=1,
           k1sched=[12,4,4,4,4,4,0,0], phN=1, phG=7, phGD=8, phW=[6,7], e1step=31, spin=4000, forcefb=0,
           k2sched=[12,4,4,4,4,0,0], phX=5, plead=14, pper=2, rot2=0, k3mix=0, k3prio=0, rot3=0)
LOG2E = 1.4426950408889634
def fbits(x): return "0x%08x" % struct.unpack("<I", struct.pack("<f", x))[0]

def srd(a, r, lo, hi, nbytes, bias=0):
    if bias: a(f"s_sub_u32 {s(r)}, {s(lo)}, {bias}\ns_subb_u32 {s(r+1)}, {s(hi)}, 0")
    else: a(f"s_mov_b64 {s(r,2)}, {s(lo,2)}")
    a(f"s_mov_b32 {s(r+2)}, {nbytes + bias}\ns_mov_b32 {s(r+3)}, 0x20000")

class Stamps:
    REG = list(range(70, 88, 2)) + [96, 98, 100]
    def __init__(self, a, kidx): self.a, self.k, self.n = a, kidx, 0
    def mark(self):
        if not OPT["stamp"]: return
        r = self.REG[self.n]
        self.a.raw(f"    {'s_memtime' if OPT['cyc'] else 's_memrealtime'} s[{r}:{r+1}]"); self.n += 1
    def flush(self, ws_srd, vtmp, tid0, who=0, rec=0):
        if not OPT["stamp"]: return
        a = self.a
        a("s_waitcnt lgkmcnt(0)")
        a(f"s_lshl_b32 s3, s2, 7\ns_add_u32 s3, s3, {STAMP_OFF + (self.k * 2 + rec) * 32768}")
        a(f"s_mov_b32 {s(ws_srd+2)}, {STAMP_OFF + 0x100000}")
        a(f"v_cmp_eq_u32 vcc, {who}, {v(tid0)}\ns_and_saveexec_b64 s[68:69], vcc")
        a(f"v_mov_b32 {v(vtmp+4)}, s3")
        for q in range(self.n, 12): a(f"s_mov_b64 s[{self.REG[q]}:{self.REG[q]+1}], 0")
        for q in range(6):
            for j in range(4): a(f"v_mov_b32 {v(vtmp+j)}, s{self.REG[2*q + (j >> 1)] + (j & 1)}")
            a(f"buffer_store_dwordx4 {v(vtmp,4)}, {v(vtmp+4)}, {s(ws_srd,4)}, 0 offen offset:{16*q}")
        a("s_mov_b64 exec, s[68:69]")

def header(a, name): a.raw(f".globl {name}\n.p2align 8\n.type {name},@function\n{name}:")
def mf32(a, d, x, y, c=None): a(f"v_mfma_f32_32x32x16_bf16 {v(d,16)}, {v(x,4)}, {v(y,4)}, {v(d,16) if c is None else c}")
def mf16(a, d, x, y, c=None): a(f"v_mfma_f32_16x16x32_bf16 {v(d,4)}, {v(x,4)}, {v(y,4)}, {v(d,4) if c is None else c}")
def mf4(a, d, x, y, c=None): a(f"v_mfma_f32_4x4x4_16b_bf16 {v(d,4)}, {v(x,2)}, {v(y,2)}, {v(d,4) if c is None else c}")
def untracked(a):
    a.vm[-1] = ("pf", set())

def code_prefetch(a, srdr, vtmp, first, last):
    a.raw(f"    s_getpc_b64 {s(srdr,2)}\n    s_add_u32 {s(srdr)}, {s(srdr)}, {first}@rel32@lo+4\n    s_addc_u32 {s(srdr+1)}, {s(srdr+1)}, {first}@rel32@hi+12")
    a.raw(f"    s_mov_b32 {s(srdr+2)}, {last}-{first}")
    a(f"""s_mov_b32 {s(srdr+3)}, 0x20000
          s_and_b32 s3, s2, 0xf8
          s_lshl_b32 s3, s3, 7
          v_lshlrev_b32 {v(vtmp)}, 1, v0
          v_and_b32 {v(vtmp)}, 0x3fc, {v(vtmp)}
          buffer_load_dword {v(vtmp)}, {v(vtmp)}, {s(srdr,4)}, s3 offen""")
    untracked(a)

def interleave(a, mfs, fill, per=None, lead=0):
    n = len(mfs); fill = list(fill)
    for f in fill[:lead]: a(f)
    fill = fill[lead:]
    per = per or [-(-len(fill) // n)] * n
    k = 0
    for i, m in enumerate(mfs):
        m()
        for f in fill[k:k+per[i]]:
            f() if callable(f) else a(f)
        k += per[i]
    for f in fill[k:]:
        f() if callable(f) else a(f)

def finish_stats(q, m, ta, tb):
    return [f"v_mov_b32 {v(tb)}, {fbits(1/512)}", f"v_mul_f32 {v(m)}, {v(tb)}, {v(m)}", f"v_mul_f32 {v(ta)}, {v(m)}, {v(m)}",
            f"v_fma_f32 {v(q)}, {v(q)}, {v(tb)}, -{v(ta)}", f"v_max_f32 {v(q)}, 0, {v(q)}", f"v_add_f32 {v(q)}, {fbits(1e-5)}, {v(q)}", f"v_rsq_f32 {v(q)}, {v(q)}"]

def dft_table():
    cosb = []
    for i in range(512):
        f = np.float32(math.cos(2 * math.pi * i / 512)) if i % 128 else np.float32([1, 0, -1, 0][i // 128])
        u = int(np.array([f]).view(np.uint32)[0]); cosb.append(((u + 0x7FFF + ((u >> 16) & 1)) >> 16) & 0xFFFF)
    t = [".p2align 8", ".type dft_table,@object", "dft_table:", ".altmacro",
         ".macro E8 a,b,c,d,e,f,g,h", ".short C\\a,C\\b,C\\c,C\\d,C\\e,C\\f,C\\g,C\\h", ".endm"]
    cosb += [0x3e80, 0xbe80, 0x3eb5, 0xbeb5]
    t += [f".set C{i},{cosb[i]:#x}" for i in range(516)]
    t.append(""".set blk,0
.rept 128
.set ln,0
.rept 64
.set cl,(blk>>1)&3
.set kap,32*(blk>>6)+(ln&31)
.set ph,128*(blk&1)+(64*((blk>>3)&7)+32*(ln>>5)+cl)*kap
.if (kap==0)&&(blk&1)
E8 %(512+2*(cl&1)),%(513+2*(cl&1)),%(512+2*(cl&1)),%(513+2*(cl&1)),%(512+2*(cl&1)),%(513+2*(cl&1)),%(512+2*(cl&1)),%(513+2*(cl&1))
.else
E8 %(ph&511),%((ph+4*kap)&511),%((ph+8*kap)&511),%((ph+12*kap)&511),%((ph+16*kap)&511),%((ph+20*kap)&511),%((ph+24*kap)&511),%((ph+28*kap)&511)
.endif
.set ln,ln+1
.endr
.set blk,blk+1
.endr
.noaltmacro
.size dft_table,131072""")
    return "\n".join(t)

def descriptor(name, nv):
    nv = (nv + 7) // 8 * 8
    return f""".p2align 6
.amdhsa_kernel {name}
  .amdhsa_next_free_vgpr {nv}
  .amdhsa_next_free_sgpr 102
  .amdhsa_accum_offset {nv}
  .amdhsa_group_segment_fixed_size 0
  .amdhsa_kernarg_size 72
  .amdhsa_user_sgpr_count 2
  .amdhsa_user_sgpr_kernarg_segment_ptr 1
  .amdhsa_system_sgpr_workgroup_id_x 1
  .amdhsa_float_denorm_mode_32 3
.end_amdhsa_kernel"""

def build(kernels, extra_empty=0):
    out = ["; x + irfft2(rfft2(LN x) * W) + silu(LN x @ w1) @ w2 in three launches (k1map2; written with my own generator script)"]
    for name, _, _, (lds, blk) in kernels: out.append(f"; @launch kernel={name} grid=(256,1,1) block=({blk},1,1) lds={lds}")
    for i in range(extra_empty): out.append("; @launch kernel=kz_kernel grid=(256,1,1) block=(256,1,1) lds=0")
    out.append('.amdgcn_target "amdgcn-amd-amdhsa--gfx950"\n.text')
    info = []
    for name, a, nv, _ in kernels:
        txt = a.text()
        if OPT["align"]:
            ext = "\n".join(f"{l}:" for l in ("k1_kernel", "k2_kernel", "k3_kernel", "code_end", "dft_table") if l != name)
            txt, fx, nn, size = align64(txt, ext + "\n"); info.append((fx, nn, size))
        out.append(txt)
    out.append("code_end:")
    if extra_empty: out.append(".globl kz_kernel\n.p2align 8\n.type kz_kernel,@function\nkz_kernel:\n    s_endpgm")
    out.append('.section .rodata,"a"')
    for name, a, nv, _ in kernels: out.append(descriptor(name, nv))
    if extra_empty: out.append(descriptor("kz_kernel", 8))
    out.append(dft_table())
    return "\n".join(out) + "\n", info

if __name__ == "__main__":
    import argparse, json
    ap = argparse.ArgumentParser(); ap.add_argument("out"); ap.add_argument("--stamp", action="store_true")
    ap.add_argument("--empty", type=int, default=0); ap.add_argument("-o", action="append", default=[])
    args = ap.parse_args(); OPT["stamp"] = args.stamp
    for kv in args.o:
        k, val = kv.split("=", 1); assert k in OPT, k
        OPT[k] = val if isinstance(OPT[k], str) else json.loads(val)
    from gen1 import gen_k1
    from gen23 import gen_k2, gen_k3
    ks = [(n, *g()) for n, g in (("k1_kernel", gen_k1), ("k2_kernel", gen_k2), ("k3_kernel", gen_k3))]
    txt, info = build(ks, args.empty)
    open(args.out, "w").write(txt)
    print("vgprs", [k[2] for k in ks], "nops", [k[1].nops for k in ks], "align(fixed,nop,size)", info)
```

```python
import re, copy

REG_RE = re.compile(r'(?<![\w.])([vsa])(?:(\d+)|\[(\d+):(\d+)\])(?![\w])')
def regs_of(tok):
    out = set()
    for m in REG_RE.finditer(tok):
        k = m.group(1)
        if m.group(2) is not None: out.add((k, int(m.group(2))))
        else: out.update((k, i) for i in range(int(m.group(3)), int(m.group(4)) + 1))
    if re.search(r'\bvcc\b', tok): out.add(('s', 'vcc'))
    if re.search(r'\bm0\b', tok): out.add(('s', 'm0'))
    if re.search(r'\bexec\b', tok): out.add(('s', 'exec'))
    return out

TRANS = ('v_exp_f32', 'v_log_f32', 'v_rcp_f32', 'v_rsq_f32', 'v_sqrt_f32', 'v_sin_f32', 'v_cos_f32')
def split_ops(rest):
    ops, depth, cur = [], 0, ''
    for ch in rest:
        if ch == '[': depth += 1
        if ch == ']': depth -= 1
        if ch == ',' and depth == 0: ops.append(cur.strip()); cur = ''
        else: cur += ch
    if cur.strip(): ops.append(cur.strip())
    return ops

class Ins:
    __slots__ = ('txt', 'op', 'cls', 'dst', 'src', 'passes', 'srcC', 'srcAB', 'stdata', 'states')
    def __init__(self, txt):
        self.txt = txt
        t = txt.split(';')[0].strip()
        parts = t.split(None, 1)
        op = parts[0]; self.op = op
        ops = split_ops(parts[1]) if len(parts) > 1 else []
        self.dst, self.src, self.passes, self.srcC, self.srcAB, self.stdata = set(), set(), 0, set(), set(), set()
        self.states = 1
        R = lambda i: regs_of(ops[i]) if i < len(ops) else set()
        allr = lambda a: set().union(*[regs_of(o) for o in ops[a:]]) if ops[a:] else set()
        if op.startswith('v_mfma'):
            self.cls = 'mfma'; self.dst = R(0); self.srcAB = R(1) | R(2); self.srcC = R(3); self.src = self.srcAB | self.srcC
            self.passes = 8 if '32x32' in op else 4 if '16x16' in op else 2
        elif op.startswith('v_'):
            self.cls = 'valu'
            if op.startswith('v_cmp'): self.dst = R(0); self.src = allr(1)
            elif op.startswith('v_permlane') and 'swap' in op: self.dst = R(0) | R(1); self.src = R(0) | R(1)
            elif op.startswith(('v_add_co', 'v_addc_co', 'v_sub_co')): self.dst = R(0) | R(1); self.src = allr(2)
            elif op == 'v_nop': pass
            else:
                self.dst = R(0); self.src = allr(1)
                if op.startswith(('v_fmac', 'v_pk_fmac', 'v_dot2c', 'v_writelane')) or 'dpp' in op: self.src |= R(0)
        elif op.startswith('ds_'):
            self.cls = 'ds'
            if op.startswith('ds_read') or '_rtn' in op: self.dst = R(0); self.src = allr(1)
            else: self.src = allr(0)
        elif op.startswith(('buffer_', 'global_')):
            self.cls = 'vmem'
            if ' lds' in ' ' + (parts[1] if len(parts) > 1 else ''):
                self.src = allr(0) | {('s', 'm0')}
            elif 'load' in op: self.dst = R(0); self.src = allr(1)
            else:
                self.src = allr(0)
                if op.startswith('buffer_') and ('x4' in op or 'x3' in op): self.stdata = R(0)
                if op.startswith('global_') and ('x4' in op or 'x3' in op): self.stdata = R(1)
        elif op.startswith('s_load') or op.startswith('s_mem'):
            self.cls = 'smem'; self.dst = R(0); self.src = allr(1)
        elif op == 's_nop': self.cls = 'nop'; self.states = int(ops[0]) + 1
        elif op in ('s_waitcnt', 's_barrier', 's_endpgm', 's_setprio', 's_sleep') or op.startswith(('s_cbranch', 's_branch')):
            self.cls = 'ctl'
        elif op.startswith('s_cmp') or op.startswith('s_bitcmp'):
            self.cls = 'salu'; self.src = allr(0)
        elif op.startswith('s_'):
            self.cls = 'salu'; self.dst = R(0); self.src = allr(1)
            if 'saveexec' in op: self.dst |= {('s', 'exec')}
            if op.startswith(('s_addk', 's_mulk')): self.src |= R(0)
        else:
            raise ValueError('unknown op ' + txt)

def need_states(p, c):
    n = 0
    vd = {r for r in p.dst if r[0] in 'va'}
    sd = {r for r in p.dst if r[0] == 's'}
    if p.cls == 'valu':
        if c.cls == 'mfma' and vd & c.src: n = max(n, 2)
        if c.cls == 'valu':
            if p.op.startswith(TRANS) and not c.op.startswith(TRANS) and vd & c.src: n = max(n, 1)
            if p.op.startswith(TRANS) and c.op.startswith(TRANS) and vd & c.src: n = max(n, 1)
            if c.op.startswith(('v_readfirstlane', 'v_readlane')) and vd & c.src: n = max(n, 1)
            if c.op.startswith('v_permlane') and vd & c.src: n = max(n, 2)
            if 'dpp' in c.txt or 'quad_perm' in c.txt or 'row_' in c.txt:
                if vd & c.src: n = max(n, 2)
            if sd & c.src: n = max(n, 2)
            if c.op.startswith(('v_readlane', 'v_writelane')) and sd & c.src: n = max(n, 4)
        if c.cls == 'vmem' and sd & c.src: n = max(n, 5)
        if c.cls == 'salu' and sd & c.src: n = max(n, 1)
        if c.cls == 'mfma' and ('s', 'exec') in sd: n = max(n, 4)
    if p.cls == 'mfma':
        idx = {2: 0, 4: 1, 8: 2}[p.passes]
        if c.cls == 'mfma':
            if vd & c.srcAB: n = max(n, (5, 8, 12)[idx])
            if vd & c.srcC:
                if c.srcC == vd and c.passes == p.passes: n = max(n, (2, 0, 0)[idx])
                else: n = max(n, (4, 6, 10)[idx])
            elif vd & c.dst: n = max(n, (4, 6, 10)[idx])
        elif c.cls in ('valu', 'ds', 'vmem'):
            if vd & (c.src | c.dst): n = max(n, (5, 8, 12)[idx])
            if c.cls == 'valu' and p.srcC & c.dst: n = max(n, (1, 3, 7)[idx])
    if p.cls == 'salu' and ('s', 'm0') in p.dst and c.cls == 'vmem' and ('s', 'm0') in c.src: n = max(n, 1)
    if p.stdata and (p.stdata & c.dst): n = max(n, 2)
    return n

class Asm:
    def __init__(self):
        self.out = []
        self.hist = []
        self.vm = []
        self.lg = []
        self.nops = 0
        self.smem_loose = False
    def raw(self, s): self.out.append(s)
    def comment(self, s): self.out.append('    ; ' + s)
    def label(self, name):
        self.out.append(name + ':')
    def snapshot(self): return (list(self.hist), list(self.vm), list(self.lg))
    def restore(self, s): self.hist, self.vm, self.lg = list(s[0]), list(s[1]), list(s[2])
    def _push(self, ins):
        self.out.append('    ' + ins.txt); self.hist.append(ins); self.hist = self.hist[-24:]
    def _wait(self, vm=None, lg=None):
        parts = []
        if vm is not None: parts.append(f'vmcnt({vm})'); self.vm = self.vm[max(0, len(self.vm) - vm):] if vm else []
        if lg is not None: parts.append(f'lgkmcnt({lg})'); self.lg = self.lg[max(0, len(self.lg) - lg):] if lg else []
        self._push(Ins('s_waitcnt ' + ' '.join(parts)))
    def _need(self, q, pred):
        last = -1
        for i, e in enumerate(q):
            if pred(e): last = i
        return None if last < 0 else len(q) - 1 - last
    def waitvm(self, tag=None, lg0=False):
        n = 0 if tag is None else self._need(self.vm, lambda e: e[0] == tag)
        lg = 0 if (lg0 and self.lg) else None
        if n is not None and n >= len(self.vm): n = None
        if n is None and lg is None: return
        assert n is None or n <= 63
        self._wait(n, lg)
    def waitlg(self, tag=None):
        n = 0 if tag is None else self._need(self.lg, lambda e: e[0] == tag)
        if n is None or not self.lg: return
        if self.smem_loose or any(e[2] for e in self.lg): n = 0
        self._wait(None, min(n, 15))
    def __call__(self, txt, tag=None):
        for line in txt.strip().split('\n'):
            line = line.strip()
            if not line or line.startswith(';'): continue
            self.emit(line, tag)
    def emit(self, txt, tag=None):
        ins = Ins(txt)
        touch = ins.src | ins.dst
        nv = self._need(self.vm, lambda e: e[1] & touch)
        nl = self._need(self.lg, lambda e: e[1] & touch)
        if nl is not None and (self.smem_loose or any(e[2] for e in self.lg)): nl = 0
        if nl is not None: nl = min(nl, 15)
        if nv is not None or nl is not None: self._wait(nv, nl)
        dist, need = 0, 0
        for p in reversed(self.hist):
            need = max(need, need_states(p, ins) - dist)
            dist += p.states
            if dist >= 20: break
        if need > 0:
            self._push(Ins(f's_nop {need - 1}')); self.nops += need
        self._push(ins)
        if ins.cls == 'vmem':
            self.vm.append((tag, ins.dst)); assert len(self.vm) <= 63, 'vmcnt overflow'
        elif ins.cls == 'ds': self.lg.append((tag, ins.dst, False))
        elif ins.cls == 'smem': self.lg.append((tag, ins.dst, True))
        if ins.op == 's_waitcnt':
            m = re.search(r'vmcnt\((\d+)\)', txt)
            if m: n = int(m.group(1)); self.vm = self.vm[max(0, len(self.vm) - n):] if n else []
            m = re.search(r'lgkmcnt\((\d+)\)', txt)
            if m: n = int(m.group(1)); self.lg = self.lg[max(0, len(self.lg) - n):] if n else []
    def text(self): return '\n'.join(self.out)

class VAlloc:
    def __init__(self, start=0, kind='v'): self.n = start; self.kind = kind; self.hi = start
    def get(self, n=1, align=1):
        align = 2 if n >= 2 else 1
        self.n = (self.n + align - 1) // align * align
        r = self.n; self.n += n; self.hi = max(self.hi, self.n); return r
def v(r, n=1): return f'v{r}' if n == 1 else f'v[{r}:{r+n-1}]'
def s(r, n=1): return f's{r}' if n == 1 else f's[{r}:{r+n-1}]'

import subprocess, tempfile, os
_E64_OK = ('v_mov_b32', 'v_add_u32', 'v_and_b32', 'v_or_b32', 'v_xor_b32', 'v_lshlrev_b32', 'v_lshrrev_b32', 'v_mul_f32', 'v_add_f32', 'v_sub_f32',
           'v_exp_f32', 'v_rcp_f32', 'v_rsq_f32', 'v_sin_f32', 'v_cos_f32', 'v_cvt_f32_u32', 'v_max_f32', 'v_fmac_f32', 'v_subrev_u32', 'v_mul_u32_u24')
def _is_ins(l):
    t = l.split(';')[0].strip()
    return bool(t) and not t.startswith('.') and not t.endswith(':')
def sizes_of(lines, extra):
    with tempfile.TemporaryDirectory() as d:
        p = os.path.join(d, 't.s'); open(p, 'w').write('.amdgcn_target "amdgcn-amd-amdhsa--gfx950"\n.text\n' + '\n'.join(lines) + '\n' + extra)
        r = subprocess.run(['clang', '-x', 'assembler', '-target', 'amdgcn-amd-amdhsa', '-mcpu=gfx950', '-c', p, '-o', p + '.o'], capture_output=True, text=True)
        assert r.returncode == 0, r.stderr[:2000]
        o = subprocess.run(['llvm-objdump', '-d', '--mcpu=gfx950', p + '.o'], capture_output=True, text=True).stdout
    return [len(m.group(1).split()) * 4 for m in re.finditer(r'// [0-9A-F]{12}: ([0-9A-F ]+)', o)]
def align64(text, extra='', use_nop=True):
    lines = text.split('\n')
    idx = [i for i, l in enumerate(lines) if _is_ins(l)]
    sz = sizes_of(lines, extra)[:len(idx)]
    assert len(sz) == len(idx)
    off, fixed, nop = 0, 0, 0
    start = []
    ins_extra = {}
    for k, i in enumerate(idx):
        if sz[k] == 8 and off % 64 == 60 and '@rel32' not in lines[i]:
            j = k - 1; done = False
            while j >= 0 and start[j] >= off - 60:
                op = lines[idx[j]].split()[0]
                if sz[j] == 4 and op in _E64_OK and 'vcc' not in lines[idx[j]]:
                    lines[idx[j]] = lines[idx[j]].replace(op, op + '_e64', 1); sz[j] = 8
                    for m in range(j + 1, k): start[m] += 4
                    done = True; fixed += 1; break
                if sz[j] == 8 and False: break
                j -= 1
            if not done and use_nop:
                ins_extra[i] = '    s_nop 0'; nop += 1
            if done or use_nop: off += 4
        start.append(off); off += sz[k]
    out = []
    for i, l in enumerate(lines):
        if i in ins_extra: out.append(ins_extra[i])
        out.append(l)
    return '\n'.join(out), fixed, nop, off
```

```python
from asmfw import Asm, VAlloc, v, s
import __main__ as M
G = M if hasattr(M, "dft_table") else __import__("gen")
OPT = G.OPT; fbits = G.fbits; srd = G.srd; mf32 = G.mf32; mf4 = G.mf4; Stamps = G.Stamps; header = G.header
untracked = G.untracked; interleave = G.interleave; finish_stats = G.finish_stats; LOG2E = G.LOG2E
X1_OFF, WT_OFF, STATS_OFF, CS_OFF, EPOCH_OFF, WS_END = G.X1_OFF, G.WT_OFF, G.STATS_OFF, G.CS_OFF, G.EPOCH_OFF, G.WS_END

def table_srd(a, r):
    a.raw(f"    s_getpc_b64 {s(r,2)}\n    s_add_u32 {s(r)}, {s(r)}, dft_table@rel32@lo+4\n    s_addc_u32 {s(r+1)}, {s(r+1)}, dft_table@rel32@hi+12")
    a(f"s_mov_b32 {s(r+2)}, 0x20000\ns_mov_b32 {s(r+3)}, 0x20000")

def gen_k1():
    a = Asm(); st = Stamps(a, 0)
    header(a, "k1_kernel")
    st.mark()
    SX, SB, SW, SWR, SWI, SPF, SD = 4, 8, 12, 16, 20, 64, 92
    NS = 4
    SCR = 131072; CSF = SCR + 1024; PRS = SCR + 2048; PCS = SCR + 2304
    a("s_cmp_ge_u32 s2, 256\ns_cbranch_scc1 K1_END")
    a("s_load_dwordx4 s[24:27], s[0:1], 0\ns_load_dwordx4 s[28:31], s[0:1], 32\ns_load_dwordx2 s[22:23], s[0:1], 16\ns_load_dwordx4 s[88:91], s[0:1], 56")
    V = VAlloc(0); tid = V.get(); lane = V.get()
    t0, t1, t2, t3, t4, t5 = [V.get() for _ in range(6)]
    pf = V.get()
    if OPT["pf"]: G.code_prefetch(a, SPF, pf, "k1_kernel", "code_end")
    sW, sLO, sCJ, sV, sWR_, sWC, sL, sHF = 34, 35, 36, 37, 38, 39, 51, 55
    a(f"""v_lshrrev_b32 {v(t0)}, 6, v0
          v_and_b32 {v(lane)}, 63, v0
          v_readfirstlane_b32 s56, {v(t0)}
          s_bfe_u32 {s(sW)}, s2, 0x20001
          s_and_b32 {s(sHF)}, s2, 1
          s_lshr_b32 {s(sCJ)}, s2, 5
          s_bfe_u32 {s(sLO)}, s2, 0x20003
          s_and_b32 {s(sV)}, s56, 3
          s_lshl_b32 {s(sL)}, {s(sV)}, 12
          v_lshrrev_b32 {v(t3)}, 5, {v(lane)}
          s_cmp_lt_u32 s56, 4
          s_cbranch_scc1 K1_COMPUTE""")
    snap0 = a.snapshot(); Vbase = V.n

    def x1_out(regs):
        rad = regs.get(4); vo = regs.get(); vo0 = regs.get(); buf = regs.get(32)
        pre = f"""v_and_b32 {v(t0)}, 15, {v(lane)}
              v_xor_b32 {v(t0)}, {v(t0)}, {v(t3)}
              v_bfe_u32 {v(t1)}, {v(lane)}, 4, 2
              s_lshl_b32 s3, s56, 13
              v_lshl_add_u32 {v(t2)}, {v(t1)}, 8, s3\n"""
        for i in range(4): pre += f"v_xor_b32 {v(t4)}, {2*i}, {v(t0)}\nv_lshl_add_u32 {v(rad+i)}, {v(t4)}, 4, {v(t2)}\n"
        pre += f"""s_bfe_u32 s46, s56, 0x10001
              s_lshr_b32 s47, s56, 2
              v_and_b32 {v(t0)}, 15, {v(lane)}
              v_lshlrev_b32 {v(t0)}, 4, {v(t0)}
              v_bfe_u32 {v(t1)}, {v(lane)}, 4, 1
              v_lshl_add_u32 {v(t0)}, {v(t1)}, 12, {v(t0)}
              v_xor_b32 {v(t1)}, s46, {v(t3)}
              v_lshl_add_u32 {v(vo)}, {v(t1)}, 13, {v(t0)}
              s_lshl_b32 s40, {s(sHF)}, 1
              s_and_b32 s41, s56, 1
              s_add_u32 s40, s40, s41
              s_lshl_b32 s40, s40, 4
              s_lshl_b32 s42, s47, 7
              s_add_u32 s41, s40, s42
              s_sub_u32 s41, s41, 1
              s_add_u32 s42, s42, s40
              s_sub_u32 s42, 254, s42
              s_cmp_eq_u32 s46, 0
              s_cselect_b32 s41, s41, s42
              s_movk_i32 s43, 0x4000
              s_cselect_b32 s43, s43, 0xffffc000
              s_lshl_b32 s41, s41, 13
              s_lshr_b32 s42, {s(sLO)}, 1
              s_lshl_b32 s42, s42, 11
              s_add_u32 s41, s41, s42
              s_lshl_b32 s42, {s(sW)}, 9
              s_add_u32 s41, s41, s42
              s_and_b32 s42, {s(sLO)}, 1
              s_lshl_b32 s42, s42, 8
              s_add_u32 s41, s41, s42
              s_add_u32 s41, s41, {X1_OFF}
              s_xor_b32 s42, s46, s47
              s_add_u32 s40, s40, s42
              v_add_u32 {v(t1)}, s40, {v(t3)}
              v_cmp_eq_u32 vcc, 0, {v(t1)}
              v_add_u32 {v(t0)}, {64*8192}, {v(vo)}
              v_cndmask_b32 {v(vo0)}, {v(vo)}, {v(t0)}, vcc"""
        def post():
            a.waitlg(); a("s_barrier")
            for jx in range(8): a(f"ds_read_b128 {v(buf+4*jx,4)}, {v(rad + (jx & 3))} offset:{1024*jx}")
            for jx in range(8):
                a(f"buffer_store_dwordx4 {v(buf+4*jx,4)}, {v(vo0 if jx == 0 else vo)}, {s(SW,4)}, s41 offen {OPT['stX']}")
                if jx < 7: a("s_add_u32 s41, s41, s43")
        return pre, post

    vX = V.get(4); vB = V.get(4)
    wl = V.get(16); vW = V.get(); l16 = V.get(); dmy = V.get(4); gr = V.get(4); gc = V.get(8); gq = V.get(4)
    grow, gad, gz, gn, pad = [V.get() for _ in range(5)]
    Vx = VAlloc(V.n)
    sXb, sBb, sK, sXo, sBo, sCB, sR0 = 48, 49, 50, 52, 53, 57, 58
    a(f"""v_bfe_u32 {v(t0)}, {v(lane)}, 3, 2
          v_lshrrev_b32 {v(t1)}, 4, {v(lane)}
          v_and_b32 {v(t2)}, 7, {v(lane)}
          v_xor_b32 {v(t2)}, {v(t2)}, {v(t1)}
          v_lshlrev_b32 {v(t2)}, 4, {v(t2)}
          s_lshl_b32 {s(sR0)}, {s(sW)}, 1
          s_lshr_b32 s3, {s(sLO)}, 1
          s_add_u32 {s(sR0)}, {s(sR0)}, s3
          s_mov_b32 {s(sK)}, {s(sR0)}
          s_lshl_b32 {s(sXo)}, {s(sK)}, 7
          s_mov_b32 {s(SX+2)}, {0x200000 + 4096}
          s_mov_b32 {s(SX+3)}, 0x20000
          s_mov_b32 m0, {s(sL)}
          s_cmp_eq_u32 {s(sCJ)}, 7
          s_cbranch_scc1 K1_LD""")
    snapL = a.snapshot(); stn = st.n
    def loader(D):
        X = "D" if D else "F"
        if not D:
            a(f"""v_lshl_add_u32 {v(t0)}, {v(t3)}, 4, {v(t0)}
                  v_lshl_add_u32 {v(t0)}, {v(t0)}, 10, {v(t2)}
                  v_add_u32 {v(vX)}, 4096, {v(t0)}
                  v_xor_b32 {v(t0)}, 64, {v(t0)}
                  v_add_u32 {v(vX+1)}, {4096 + 31744}, {v(t0)}
                  v_add_u32 {v(vX+2)}, {2*31744}, {v(vX)}
                  v_add_u32 {v(vX+3)}, {2*31744}, {v(vX+1)}
                  s_lshl_b32 s3, {s(sW)}, 7
                  s_lshl_b32 s40, {s(sV)}, 5
                  s_add_u32 s3, s3, s40
                  s_add_u32 s3, s3, {s(sLO)}
                  s_lshl_b32 {s(sXb)}, s3, 12""")
        else:
            a(f"""v_lshl_add_u32 {v(t0)}, {v(t3)}, 3, {v(t0)}
                  v_lshl_add_u32 {v(t0)}, {v(t0)}, 15, {v(t2)}
                  v_add_u32 {v(vX)}, 4096, {v(t0)}
                  v_add_u32 {v(vX+2)}, {4096 - 1024}, {v(t0)}
                  v_xor_b32 {v(t0)}, 64, {v(t0)}
                  v_add_u32 {v(vX+1)}, {4096 + 131072 - 1024}, {v(t0)}
                  v_add_u32 {v(vX+3)}, {4096 + 131072 + 1024 - 3072}, {v(t0)}
                  s_lshl_b32 s3, {s(sW)}, 8
                  s_lshl_b32 s40, {s(sLO)}, 2
                  s_add_u32 s3, s3, s40
                  s_add_u32 s3, s3, {s(sV)}
                  s_lshl_b32 {s(sXb)}, s3, 11""")
        a(f"s_add_u32 {s(sXo)}, {s(sXo)}, {s(sXb)}")
        a.waitlg()
        a(f"s_sub_u32 {s(SX)}, s24, 4096\ns_subb_u32 {s(SX+1)}, s25, 0")
        def b_setup():
            a(f"v_lshlrev_b32 {v(l16)}, 4, {v(lane)}")
            if not D:
                srd(a, SB, 28, 29, 512 * 3584)
                a(f"""v_and_b32 {v(t0)}, 15, {v(lane)}
                      v_lshlrev_b32 {v(t2)}, 2, {v(t1)}
                      v_xor_b32 {v(t0)}, {v(t0)}, {v(t2)}
                      v_lshlrev_b32 {v(t0)}, 4, {v(t0)}
                      s_movk_i32 s3, 3584
                      v_mad_u32_u24 {v(vB)}, {v(t1)}, s3, {v(t0)}
                      v_add_u32 {v(vB+1)}, 13312, {v(vB)}
                      v_add_u32 {v(vB+2)}, {2*13312}, {v(vB)}
                      v_add_u32 {v(vB+3)}, {3*13312}, {v(vB)}
                      s_mul_i32 {s(sCB)}, {s(sHF)}, 7
                      s_add_u32 {s(sCB)}, {s(sCB)}, {s(sCJ)}
                      s_lshl_b32 s3, {s(sCB)}, 8
                      s_mul_i32 {s(sBb)}, {s(sV)}, {16*3584}
                      s_add_u32 {s(sBb)}, {s(sBb)}, s3""")
            else:
                table_srd(a, SB)
                a(f"""s_lshl_b32 s3, {s(sHF)}, 16
                      s_lshl_b32 s59, {s(sV)}, 11
                      s_add_u32 {s(sBb)}, s3, s59""")
        BSTEP = 8192 if D else 64 * 3584
        def dma(slab, q):
            slot = slab % NS; part, hf = q >> 1, q & 1
            if (slab, q) == (0, 2): b_setup()
            if OPT["nodma"] or (D and q == 3): pass
            elif part == 0:
                if hf == 0 and slab: a(f"s_add_u32 m0, {s(sL)}, {slot*32768}")
                for j in (2*hf, 2*hf + 1): a(f"buffer_load_dwordx4 {v(vX+j)}, {s(SX,4)}, {s(sXo)} offen offset:{1024*j} lds", tag=f"S{slab}")
            else:
                if hf == 0: a(f"s_mul_i32 {s(sBo)}, {s(sK)}, {BSTEP}\ns_add_u32 m0, {'s59' if D else s(sL)}, {slot*32768 + 16384}\ns_add_u32 {s(sBo)}, {s(sBo)}, {s(sBb)}")
                for j in (2*hf, 2*hf + 1): a(f"buffer_load_dwordx4 {v(l16 if D else vB+j)}, {s(SB,4)}, {s(sBo)} offen offset:{1024*j} lds", tag=f"S{slab}")
            if q == 3 and slab < 7:
                a(f"s_add_u32 {s(sK)}, {s(sK)}, 1\ns_and_b32 {s(sK)}, {s(sK)}, 7\ns_lshl_b32 {s(sXo)}, {s(sK)}, 7\ns_add_u32 {s(sXo)}, {s(sXo)}, {s(sXb)}")
        def j_nonce():
            srd(a, SW, 90, 91, WS_END); srd(a, SD, 88, 89, 256)
            a(f"v_mov_b32 {v(gz)}, 0\nbuffer_load_dword {v(gn)}, {v(gz)}, {s(SD,4)}, 0 offen sc1")
        def j_tablepf():
            if D or not OPT["pft"]: return
            table_srd(a, SPF)
            a(f"""s_lshr_b32 s3, s2, 3
                  s_lshl_b32 s3, s3, 2
                  s_add_u32 s3, s3, {s(sV)}
                  s_min_u32 s3, s3, 47
                  s_lshl_b32 s40, {s(sW)}, 4
                  s_add_u32 s3, s3, s40
                  s_add_u32 s3, s3, 24
                  s_and_b32 s3, s3, 63
                  s_lshl_b32 s40, {s(sHF)}, 6
                  s_add_u32 s3, s3, s40
                  s_lshl_b32 s3, s3, 10
                  buffer_load_dwordx4 {v(dmy,4)}, {v(l16)}, {s(SPF,4)}, s3 offen""")
            untracked(a)
        def j_publish():
            a(f"""v_and_b32 {v(t0)}, 15, {v(lane)}
                  v_cmp_gt_u32 vcc, 16, {v(lane)}
                  s_lshl_b32 s3, {s(sV)}, 7
                  s_add_u32 s3, s3, {PCS}
                  s_lshl_b32 s40, {s(sV)}, 4
                  s_add_u32 s40, s40, {PRS}
                  v_mov_b32 {v(t1)}, s3
                  v_mov_b32 {v(t2)}, s40
                  v_cndmask_b32 {v(t1)}, {v(t2)}, {v(t1)}, vcc
                  v_lshl_add_u32 {v(t1)}, {v(t0)}, 3, {v(t1)}
                  ds_read_b64 {v(gq,2)}, {v(t1)}
                  s_lshl_b32 s3, {s(sW)}, 2
                  s_add_u32 s3, s3, {s(sLO)}
                  s_lshl_b32 s3, s3, 1
                  s_add_u32 s3, s3, {s(sHF)}
                  s_lshl_b32 s3, s3, 3
                  s_add_u32 s3, s3, {s(sCJ)}
                  s_lshl_b32 s3, s3, 2
                  s_add_u32 s3, s3, {s(sV)}
                  s_lshl_b32 s3, s3, 5
                  s_add_u32 s3, s3, {STATS_OFF}
                  v_mov_b32 {v(t2)}, s3""")
            if not D:
                a(f"""s_lshl_b32 s3, {s(sCB)}, 3
                      s_add_u32 s3, s3, {s(sR0)}
                      s_lshl_b32 s3, s3, 2
                      s_add_u32 s3, s3, {s(sV)}
                      s_lshl_b32 s3, s3, 8
                      s_add_u32 s3, s3, {CS_OFF}
                      v_mov_b32 {v(t1)}, s3
                      v_cndmask_b32 {v(t2)}, {v(t2)}, {v(t1)}, vcc""")
            a(f"v_lshl_add_u32 {v(pad)}, {v(t0)}, 4, {v(t2)}")
            a(f"v_readfirstlane_b32 s60, {v(gn)}\ns_cmp_lg_u32 s60, 0\ns_cbranch_scc1 K1_PUBOK{X}\ns_mov_b32 s61, 0")
            keep = a.snapshot()
            a.label(f"K1_PUBSPIN{X}")
            a(f"""buffer_load_dword {v(gn)}, {v(gz)}, {s(SD,4)}, 0 offen sc1
                  s_waitcnt vmcnt(0)
                  v_readfirstlane_b32 s60, {v(gn)}
                  s_add_u32 s61, s61, 1
                  s_cmp_gt_u32 s61, 2000
                  s_cbranch_scc1 K1_PUBOK{X}
                  s_cmp_eq_u32 s60, 0
                  s_cbranch_scc1 K1_PUBSPIN{X}""")
            a.label(f"K1_PUBOK{X}")
            a.restore(keep)
            a(f"""v_mov_b32 {v(gq+2)}, s60
                  v_mov_b32 {v(gq+3)}, s60
                  s_mov_b64 exec, {0x30000 if D else 0x3ffff}
                  buffer_store_dwordx4 {v(gq,4)}, {v(pad)}, {s(SW,4)}, 0 offen sc1
                  s_mov_b64 exec, -1""")
        def gather_loads():
            a(f"buffer_load_dwordx4 {v(gr,4)}, {v(gad)}, {s(SW,4)}, s62 offen sc1")
            if not D:
                for j in range(2): a(f"buffer_load_dwordx4 {v(gc+4*j,4)}, {v(pad)}, {s(SW,4)}, s{32+j} offen sc1")
        def j_gather():
            a(f"""v_bfe_u32 {v(t0)}, {v(lane)}, 3, 2
                  v_bfe_u32 {v(t1)}, {v(lane)}, 2, 1
                  v_and_b32 {v(t2)}, 3, {v(lane)}""")
            if not D:
                a(f"""v_lshl_add_u32 {v(t0)}, {v(t0)}, 1, {v(t1)}
                      v_lshl_add_u32 {v(grow)}, {v(t0)}, 4, {v(t2)}
                      s_lshl_b32 s3, {s(sV)}, 7
                      s_lshl_b32 s40, {s(sLO)}, 2
                      v_lshrrev_b32 {v(t0)}, 4, {v(lane)}
                      v_and_b32 {v(t1)}, 15, {v(lane)}
                      v_lshlrev_b32 {v(t1)}, 4, {v(t1)}
                      v_lshl_add_u32 {v(pad)}, {v(t0)}, 10, {v(t1)}
                      s_lshl_b32 s32, {s(sCB)}, 5
                      s_add_u32 s32, s32, {s(sV)}
                      s_lshl_b32 s32, s32, 8
                      s_add_u32 s32, s32, {CS_OFF}
                      s_add_u32 s33, s32, 4096""")
            else:
                a(f"""v_lshl_add_u32 {v(t2)}, {v(t1)}, 3, {v(t2)}
                      v_and_b32 {v(t1)}, 1, {v(t0)}
                      v_lshl_add_u32 {v(t2)}, {v(t1)}, 2, {v(t2)}
                      v_lshrrev_b32 {v(t0)}, 1, {v(t0)}
                      v_lshl_add_u32 {v(grow)}, {v(t2)}, 5, {v(t0)}
                      s_lshl_b32 s3, {s(sV)}, 1
                      s_lshl_b32 s40, {s(sLO)}, 3""")
            a(f"""s_add_u32 s3, s3, s40
                  s_lshl_b32 s40, {s(sW)}, 9
                  s_add_u32 s3, s3, s40
                  v_add_u32 {v(grow)}, s3, {v(grow)}
                  v_lshlrev_b32 {v(gad)}, 4, {v(grow)}
                  s_mov_b32 s62, {STATS_OFF}""")
            gather_loads()
        def j_check():
            tags = [gr + 2, gr + 3] + ([] if D else [gc + 2, gc + 3, gc + 6, gc + 7])
            a("s_mov_b32 s61, 0")
            a(f"v_xor_b32 {v(t0)}, {v(tags[-1])}, {v(gn)}")
            a.label(f"K1_CHECK{X}")
            for t in tags[:-1]: a(f"v_xor_b32 {v(t1)}, {v(t)}, {v(gn)}\nv_or_b32 {v(t0)}, {v(t0)}, {v(t1)}")
            a(f"""v_cmp_ne_u32 vcc, 0, {v(t0)}
                  v_cmp_eq_u32 s[40:41], 0, {v(gn)}
                  s_or_b64 vcc, vcc, s[40:41]
                  {"s_nop 0" if OPT["forcefb"] else "s_cbranch_vccz K1_GOT" + X}
                  s_add_u32 s61, s61, 1
                  s_cmp_gt_u32 s61, {OPT["spin"]}
                  s_cbranch_scc1 K1_FALLBACK{X}""")
            keep = a.snapshot()
            a(f"buffer_load_dword {v(gn)}, {v(gz)}, {s(SD,4)}, 0 offen sc1")
            gather_loads()
            a(f"s_waitcnt vmcnt(0)\nv_xor_b32 {v(t0)}, {v(tags[-1])}, {v(gn)}\ns_branch K1_CHECK{X}")
            a.label(f"K1_FALLBACK{X}")
            a(f"""v_lshl_add_u32 {v(gad)}, {v(grow)}, 10, 0
                  v_add_u32 {v(gad)}, 4096, {v(gad)}
                  v_mov_b32 {v(t0)}, 0
                  v_mov_b32 {v(t1)}, 0
                  v_mov_b32 {v(t2)}, 0x3f803f80
                  s_mov_b32 s61, 0""")
            a.label(f"K1_FBLOOP{X}")
            a(f"buffer_load_dwordx4 {v(gr,4)}, {v(gad)}, {s(SX,4)}, s61 offen\ns_waitcnt vmcnt(0)")
            for i in range(4): a(f"v_dot2_f32_bf16 {v(t0)}, {v(gr+i)}, {v(gr+i)}, {v(t0)}\nv_dot2_f32_bf16 {v(t1)}, {v(gr+i)}, {v(t2)}, {v(t1)}\ns_nop 2")
            a(f"s_add_u32 s61, s61, 16\ns_cmp_lt_u32 s61, 1024\ns_cbranch_scc1 K1_FBLOOP{X}")
            a("s_nop 4")
            for r in finish_stats(t0, t1, t4, t5): a(r)
            a(f"s_nop 1\nv_mov_b32 {v(gr)}, {v(t0)}\nv_mov_b32 {v(gr+1)}, {v(t1)}")
            if not D:
                a(f"""v_and_b32 {v(t0)}, 9, {v(lane)}
                      v_bfe_u32 {v(t1)}, {v(lane)}, 1, 1
                      v_lshl_or_b32 {v(t0)}, {v(t1)}, 2, {v(t0)}
                      v_bfe_u32 {v(t1)}, {v(lane)}, 2, 1
                      v_lshl_or_b32 {v(t0)}, {v(t1)}, 1, {v(t0)}
                      v_lshlrev_b32 {v(t0)}, 2, {v(t0)}
                      v_lshrrev_b32 {v(t1)}, 4, {v(lane)}
                      s_mov_b32 s3, {128*3584}
                      v_mad_u32_u24 {v(t0)}, {v(t1)}, s3, {v(t0)}
                      s_lshl_b32 s61, {s(sCB)}, 2
                      s_add_u32 s61, s61, {s(sV)}
                      s_lshl_b32 s61, s61, 6
                      s_mov_b32 s3, 0
                      v_mov_b32 {v(gc)}, 0
                      v_mov_b32 {v(gc+1)}, 0
                      v_mov_b32 {v(gc+4)}, 0
                      v_mov_b32 {v(gc+5)}, 0""")
                a.label("K1_FBLOOPC")
                a(f"""buffer_load_dword {v(t1)}, {v(t0)}, {s(SB,4)}, s61 offen
                      s_waitcnt vmcnt(0)
                      v_lshlrev_b32 {v(t2)}, 16, {v(t1)}
                      v_and_b32 {v(t1)}, 0xffff0000, {v(t1)}
                      v_add_f32 {v(gc)}, {v(gc)}, {v(t2)}
                      v_add_f32 {v(gc+1)}, {v(gc+1)}, {v(t1)}
                      s_add_u32 s61, s61, 3584
                      s_add_u32 s3, s3, 1
                      s_cmp_lt_u32 s3, 128
                      s_cbranch_scc1 K1_FBLOOPC""")
            a.label(f"K1_GOT{X}")
            a.restore(keep); a.hist = []
            a(f"v_and_b32 {v(t0)}, 31, {v(lane)}")
            if not D:
                a(f"""v_add_f32 {v(gc)}, {v(gc)}, {v(gc+4)}
                      v_add_f32 {v(gc+1)}, {v(gc+1)}, {v(gc+5)}
                      s_lshl_b32 s3, {s(sV)}, 8
                      s_add_u32 s3, s3, {SCR}
                      v_lshl_add_u32 {v(t0)}, {v(t0)}, 3, s3
                      v_mov_b32 {v(gc+2)}, {v(gc)}
                      v_mov_b32 {v(gc+3)}, {v(gc+1)}
                      v_mul_f32 {v(gr)}, {fbits(-LOG2E)}, {v(gr)}
                      v_mul_f32 {v(gr+1)}, {v(gr+1)}, {v(gr)}
                      v_permlane32_swap_b32 {v(gc)}, {v(gc+2)}
                      v_permlane32_swap_b32 {v(gc+1)}, {v(gc+3)}
                      v_sub_f32 {v(gr+1)}, 0, {v(gr+1)}
                      v_add_f32 {v(gc)}, {v(gc)}, {v(gc+2)}
                      v_add_f32 {v(gc+1)}, {v(gc+1)}, {v(gc+3)}
                      ds_write_b64 {v(t0)}, {v(gr,2)}
                      v_mov_b32 {v(gc+2)}, {v(gc)}
                      v_mov_b32 {v(gc+3)}, {v(gc+1)}
                      v_and_b32 {v(t1)}, 15, {v(lane)}
                      s_lshl_b32 s3, {s(sV)}, 7
                      v_permlane16_swap_b32 {v(gc)}, {v(gc+2)}
                      v_permlane16_swap_b32 {v(gc+1)}, {v(gc+3)}
                      s_add_u32 s3, s3, {CSF}
                      v_lshl_add_u32 {v(t1)}, {v(t1)}, 3, s3
                      v_add_f32 {v(gc)}, {v(gc)}, {v(gc+2)}
                      v_add_f32 {v(gc+1)}, {v(gc+1)}, {v(gc+3)}
                      ds_write_b64 {v(t1)}, {v(gc,2)}""")
            else:
                a(f"""s_lshl_b32 s3, {s(sV)}, 7
                      s_add_u32 s3, s3, {SCR}
                      v_lshl_add_u32 {v(t0)}, {v(t0)}, 2, s3
                      ds_write_b32 {v(t0)}, {v(gr)}""")
        def j_wload(part):
            if part == 0:
                srd(a, SWR, 26, 27, 2048 * 514)
                a(f"s_mov_b64 s[44:45], s[22:23]")
                srd(a, SWI, 44, 45, 2048 * 514)
                a(f"""s_and_b32 s54, s2, 3
                      s_lshl_b32 s54, s54, 2
                      s_add_u32 s54, s54, {s(sV)}
                      s_lshl_b32 s41, s54, 4
                      s_add_u32 s41, s41, 1
                      v_and_b32 {v(t0)}, 15, {v(lane)}
                      v_add_lshl_u32 {v(t0)}, {v(t0)}, s41, 1
                      v_lshrrev_b32 {v(t1)}, 4, {v(lane)}
                      s_movk_i32 s41, 514
                      v_mad_u32_u24 {v(vW)}, {v(t1)}, s41, {v(t0)}
                      s_bfe_u32 s41, s2, 0x30002
                      s_lshl_b32 s43, s41, 3
                      s_lshl_b32 s44, {s(sCJ)}, 8
                      s_add_u32 s43, s43, s44
                      s_mul_i32 s44, s43, 514
                      s_add_u32 s45, s44, 32896
                      s_add_u32 s46, s44, 65792
                      s_add_u32 s47, s44, 98688""")
            for r in range(4):
                a(f"buffer_load_ushort {v(wl + part*8 + r)}, {v(vW)}, {s(SWR,4)}, s{44+r} offen offset:{2056*part}", tag="W")
                a(f"buffer_load_ushort {v(wl + part*8 + 4 + r)}, {v(vW)}, {s(SWI,4)}, s{44+r} offen offset:{2056*part}", tag="W")
        def j_wstore():
            a(f"""s_lshl_b32 s54, s54, 17
                  s_lshl_b32 s41, {s(sLO)}, 11
                  s_add_u32 s54, s54, s41
                  s_lshr_b32 s41, s2, 7
                  s_lshl_b32 s41, s41, 10
                  s_add_u32 s54, s54, s41
                  s_bfe_u32 s41, s2, 0x20005
                  s_lshl_b32 s41, s41, 8
                  s_add_u32 s54, s54, s41
                  s_bfe_u32 s41, s2, 0x10002
                  s_lshl_b32 s41, s41, 7
                  s_add_u32 s54, s54, s41
                  s_add_u32 s54, s54, {WT_OFF}
                  s_add_u32 s41, s54, 65536
                  v_and_b32 {v(t0)}, 7, {v(lane)}
                  v_bfe_u32 {v(t1)}, {v(lane)}, 3, 1
                  v_lshrrev_b32 {v(t2)}, 4, {v(lane)}
                  v_lshl_add_u32 {v(t1)}, {v(t1)}, 2, {v(t2)}
                  v_lshlrev_b32 {v(t1)}, 4, {v(t1)}
                  v_lshl_add_u32 {v(vW)}, {v(t0)}, 13, {v(t1)}""")
            for kk in range(2):
                for r in range(4): a(f"v_lshl_or_b32 {v(wl+kk*8+r)}, {v(wl+kk*8+4+r)}, 16, {v(wl+kk*8+r)}")
            for r in range(4): a(f"v_mov_b32 {v(wl+4+r)}, {v(wl+r)}")
            for r in range(4): a(f"v_mov_b32_dpp {v(wl+r)}, {v(wl+8+r)} row_ror:8 row_mask:0xf bank_mask:0xc")
            for r in range(4): a(f"v_mov_b32_dpp {v(wl+8+r)}, {v(wl+4+r)} row_ror:8 row_mask:0xf bank_mask:0x3")
            a(f"buffer_store_dwordx4 {v(wl,4)}, {v(vW)}, {s(SW,4)}, s54 offen {OPT['stW']}")
            a(f"buffer_store_dwordx4 {v(wl+8,4)}, {v(vW)}, {s(SW,4)}, s41 offen {OPT['stW']}")
        def j_pfw2():
            if not OPT["pfw2"]: return
            srd(a, SPF, 30, 31, 1792 * 1024)
            a(f"""s_lshr_b32 s3, s2, 3
                  s_lshl_b32 s3, s3, 2
                  s_add_u32 s3, s3, {s(sV)}
                  s_min_u32 s3, s3, 111
                  s_mul_i32 s41, {s(sW)}, 112
                  s_add_u32 s3, s3, s41
                  s_lshl_b32 s3, s3, 12""")
            for j in range(4):
                a(f"buffer_load_dwordx4 {v(dmy,4)}, {v(l16)}, {s(SPF,4)}, s3 offen offset:{1024*j}"); untracked(a)
        pre, post = {}, {1: [j_tablepf]}
        phG = OPT["phGD"] if D else OPT["phG"]
        for ph, j in ((OPT["phN"], j_nonce), (OPT["phN"] + 2, j_publish), (phG, j_gather)): pre.setdefault(ph, []).append(j)
        for p, ph in enumerate(OPT["phW"]): (post if ph < 8 else pre).setdefault(ph, []).append(lambda p=p: j_wload(p))
        (post if OPT["pfw2"] < 8 else pre).setdefault(OPT["pfw2"], []).append(j_pfw2)
        quarters = [(i >> 2, i & 3) for i in range(32)]; pos = 0
        st.mark()
        for ph, cnt in enumerate(OPT["k1sched"]):
            for j in pre.get(ph, []): j()
            for (sl, q) in quarters[pos:pos+cnt]:
                assert sl < NS or sl - NS <= ph - 2, (sl, ph)
                dma(sl, q)
            pos += cnt
            for j in post.get(ph, []): j()
            a.waitvm(f"S{ph}", lg0=True); a("s_barrier")
            st.mark()
        assert pos == 32
        if phG == 8: pre[8].pop(0)()
        j_check()
        for j in pre.get(8, []): j()
        a.waitlg(); a("s_barrier")
        for j in pre.get(9, []): j()
        j_wstore()
        st.mark()
        if D:
            p, q = x1_out(Vx); a(p); q()
        st.flush(SW, wl, tid, 256, 1)
        a("s_endpgm")
    loader(False)
    a.restore(snapL); st.n = stn
    a.label("K1_LD")
    loader(True)
    a.restore(snap0); V.n = Vbase; st.n = 1 if OPT["stamp"] else 0
    a.label("K1_COMPUTE")
    if OPT["prio"]: a(f"s_setprio {OPT['prio']}")
    ones = V.get(2); gq = V.get(4); gn = V.get(); gz = V.get()
    key = t4
    rw = 200
    a(f"""s_lshl_b32 s3, {s(sW)}, 2
          s_add_u32 s3, s3, {s(sLO)}
          s_lshl_b32 s3, s3, 1
          s_add_u32 s3, s3, {s(sHF)}
          s_lshl_b32 s3, s3, 3
          s_add_u32 s3, s3, {s(sCJ)}
          s_lshl_b32 s3, s3, 2
          s_add_u32 s3, s3, {s(sV)}
          s_lshl_b32 s3, s3, 11
          v_lshlrev_b32 {v(t0)}, 4, {v(lane)}
          s_mov_b32 {s(SX+2)}, 0x200000
          s_mov_b32 {s(SX+3)}, 0x20000""")
    a.waitlg()
    a(f"""s_mov_b64 {s(SX,2)}, s[24:25]
          buffer_load_dwordx4 {v(rw,4)}, {v(t0)}, {s(SX,4)}, s3 offen
          buffer_load_dwordx4 {v(rw+4,4)}, {v(t0)}, {s(SX,4)}, s3 offen offset:1024""")
    srd(a, SW, 90, 91, WS_END)
    a(f"s_or_b32 s3, s2, {s(sV)}\ns_cmp_lg_u32 s3, 0\ns_cbranch_scc1 K1_NOEPOCH")
    keep = a.snapshot()
    srd(a, SD, 88, 89, 256)
    a(f"""v_mov_b32 {v(gz)}, 0
          s_mov_b32 s3, {EPOCH_OFF}
          buffer_load_dword {v(gn)}, {v(gz)}, {s(SW,4)}, s3 offen sc1""")
    a(f"""v_add_u32 {v(gn)}, 1, {v(gn)}
          v_or_b32 {v(gn)}, 1, {v(gn)}
          s_mov_b64 exec, 1
          buffer_store_dword {v(gn)}, {v(gz)}, {s(SD,4)}, 0 offen sc1
          buffer_store_dword {v(gn)}, {v(gz)}, {s(SW,4)}, s3 offen sc1
          s_mov_b64 exec, -1""")
    a.label("K1_NOEPOCH")
    a.restore(keep)
    a(f"""v_mov_b32 {v(ones)}, 0x3f803f80
          v_mov_b32 {v(ones+1)}, 0x3f803f80
          v_and_b32 {v(t1)}, 1, {v(lane)}
          v_cmp_eq_u32 s[58:59], 1, {v(t1)}
          v_bfe_u32 {v(key)}, {v(lane)}, 1, 3
          v_and_b32 {v(t0)}, 31, {v(lane)}
          v_lshlrev_b32 {v(t0)}, 7, {v(t0)}
          v_add_u32 {v(t0)}, {s(sL)}, {v(t0)}""")
    def produce():
        for i in range(4):
            for r in range(2):
                c0 = "0" if i == 0 else None
                a(f"v_dot2_f32_bf16 {v(gq+2*r)}, {v(rw+4*r+i)}, {v(rw+4*r+i)}, {c0 or v(gq+2*r)}\nv_dot2_f32_bf16 {v(gq+2*r+1)}, {v(rw+4*r+i)}, {v(ones)}, {c0 or v(gq+2*r+1)}")
        a("s_nop 2")
        for m in ("row_shr:1 row_mask:0xf", "row_shr:2 row_mask:0xf", "row_shr:4 row_mask:0xf", "row_shr:8 row_mask:0xf", "row_bcast:15 row_mask:0xa", "row_bcast:31 row_mask:0xc"):
            for i in range(4): a(f"v_add_f32_dpp {v(gq+i)}, {v(gq+i)}, {v(gq+i)} {m} bank_mask:0xf bound_ctrl:0")
        for i in range(4): a(f"v_readlane_b32 s{28+i}, {v(gq+i)}, 63")
        a(f"""v_mov_b32 {v(gq)}, s28
              v_mov_b32 {v(gq+1)}, s29
              v_mov_b32 {v(gq+2)}, s30
              v_mov_b32 {v(gq+3)}, s31
              v_cndmask_b32 {v(gq)}, {v(gq)}, {v(gq+2)}, s[58:59]
              v_cndmask_b32 {v(gq+1)}, {v(gq+1)}, {v(gq+3)}, s[58:59]""")
        for r in finish_stats(gq, gq + 1, t4, t5): a(r)
        a(f"""s_lshl_b32 s3, {s(sV)}, 4
              s_add_u32 s3, s3, {PRS}
              v_lshl_add_u32 {v(gq+2)}, {v(lane)}, 3, s3
              s_mov_b64 exec, 3
              ds_write_b64 {v(gq+2)}, {v(gq,2)}
              s_mov_b64 exec, -1""")
    def bar():
        a.waitlg(); a("s_barrier")
    a(f"s_cmp_eq_u32 {s(sCJ)}, 7\ns_cbranch_scc1 K1_DFT")
    snap = a.snapshot(); V0 = V.n
    xa = [[V.get(4), V.get(4)] for _ in range(2)]
    wa = [[V.get(), V.get()] for _ in range(2)]
    ad1, ad2, ad3, ad4, ad5, l16 = [V.get() for _ in range(6)]
    cs = V.get(4)
    a(f"v_xor_b32 {v(t1)}, {v(t3)}, {v(key)}")
    for i in range(4):
        a(f"""v_xor_b32 {v(t2)}, {2*i}, {v(t1)}
              v_lshl_add_u32 {v(xa[0][0]+i)}, {v(t2)}, 4, {v(t0)}
              v_xor_b32 {v(xa[0][1]+i)}, 0x1000, {v(xa[0][0]+i)}
              v_add_u32 {v(xa[1][0]+i)}, 65536, {v(xa[0][0]+i)}
              v_add_u32 {v(xa[1][1]+i)}, 65536, {v(xa[0][1]+i)}""")
    a(f"""s_lshr_b32 {s(sWR_)}, {s(sV)}, 1
          s_and_b32 {s(sWC)}, {s(sV)}, 1
          v_and_b32 {v(t1)}, 2, {v(lane)}
          v_cmp_eq_u32 s[62:63], 2, {v(t1)}
          v_bfe_u32 {v(t0)}, {v(lane)}, 2, 2
          v_lshl_add_u32 {v(t1)}, {v(t3)}, 3, {v(t0)}
          v_lshlrev_b32 {v(t1)}, 8, {v(t1)}
          s_lshl_b32 s3, {s(sWC)}, 1
          s_add_u32 s54, s3, {s(sWR_)}
          v_xor_b32 {v(t0)}, s54, {v(t0)}
          v_lshl_add_u32 {v(t1)}, {v(t0)}, 6, {v(t1)}
          v_bfe_u32 {v(t0)}, {v(lane)}, 4, 1
          v_lshl_add_u32 {v(t1)}, {v(t0)}, 5, {v(t1)}
          v_and_b32 {v(t0)}, 1, {v(lane)}
          v_lshl_add_u32 {v(t1)}, {v(t0)}, 4, {v(t1)}
          v_bfe_u32 {v(t0)}, {v(lane)}, 1, 1
          v_lshl_add_u32 {v(t1)}, {v(t0)}, 3, {v(t1)}
          v_add_u32 {v(wa[0][0])}, 16384, {v(t1)}
          v_xor_b32 {v(wa[0][1])}, 64, {v(wa[0][0])}
          v_add_u32 {v(wa[1][0])}, 65536, {v(wa[0][0])}
          v_add_u32 {v(wa[1][1])}, 65536, {v(wa[0][1])}
          v_and_b32 {v(t0)}, 31, {v(lane)}
          s_lshl_b32 s3, {s(sV)}, 8
          s_add_u32 s3, s3, {SCR}
          v_lshl_add_u32 {v(ad1)}, {v(t0)}, 3, s3
          v_xor_b32 {v(ad3)}, 0x100, {v(ad1)}
          s_lshl_b32 s3, s54, 7
          s_add_u32 s40, s3, {PCS}
          v_lshl_add_u32 {v(ad2)}, {v(t0)}, 2, s40
          s_add_u32 s3, s3, {CSF}
          v_lshl_add_u32 {v(ad4)}, {v(t3)}, 4, s3
          v_xor_b32 {v(ad5)}, 0x80, {v(ad4)}
          s_mov_b32 s60, {fbits(-LOG2E)}
          s_mov_b32 s61, {fbits(-LOG2E)}
          v_lshlrev_b32 {v(l16)}, 4, {v(lane)}
          s_lshl_b32 s3, {s(sW)}, 2
          s_add_u32 s3, s3, {s(sLO)}
          s_lshl_b32 s3, s3, 2
          s_add_u32 s40, s3, {s(sV)}
          s_xor_b32 s41, s40, 1
          s_mul_i32 s40, s40, {112*1024}
          s_mul_i32 s41, s41, {112*1024}
          s_mul_i32 s3, {s(sHF)}, 7
          s_add_u32 s3, s3, {s(sCJ)}
          s_lshl_b32 s3, s3, 13
          s_lshl_b32 s42, s54, 11
          s_add_u32 s42, s42, s3
          s_xor_b32 s43, s42, 0x800
          s_add_u32 s44, s40, s42
          s_add_u32 s45, s41, s42
          s_add_u32 s46, s40, s43
          s_add_u32 s47, s41, s43""")
    acc = [[V.get(16) for _ in range(2)] for _ in range(2)]
    xf = [[V.get(4) for _ in range(2)] for _ in range(3)]
    wf = [[V.get(4) for _ in range(2)] for _ in range(3)]
    a12 = [V.get(2), V.get(2)]; cv = [V.get(16), V.get(16)]
    def reads_ffn(n):
        if n >= 32: return []
        slab, t = divmod(n, 4); slot = slab % NS; se, off = slot >> 1, (slot & 1) * 32768; b = n % 3
        r = []
        for T in range(2):
            r.append(f"ds_read_b128 {v(xf[b][T],4)}, {v(xa[se][T]+t)} offset:{off}")
            r.append(f"ds_read_b64_tr_b16 {v(wf[b][T],2)}, {v(wa[se][T])} offset:{off + t*4096}")
            r.append(f"ds_read_b64_tr_b16 {v(wf[b][T]+2,2)}, {v(wa[se][T])} offset:{off + t*4096 + 1024}")
        return r
    produce()
    bar(); st.mark()
    for r in reads_ffn(0) + reads_ffn(1): a(r)
    for n in range(32):
        b = n % 3; z = "0" if n == 0 else None
        mfs = [(lambda F=F, S=S: mf32(a, acc[F][S], wf[b][F], xf[b][S], z)) for (F, S) in ((0, 0), (1, 0), (0, 1), (1, 1))]
        fill = reads_ffn(n + 2); per = [3, 3, 0, 0]
        if n % 4 == 2 and n < 28: fill = [bar] + fill; per = [3, 2, 2, 0]
        if n == 4:
            fill += [f"v_cndmask_b32 {v(cs)}, {v(cs)}, {v(cs+1)}, s[58:59]", f"v_cndmask_b32 {v(cs+2)}, {v(cs+2)}, {v(cs+3)}, s[58:59]",
                     f"v_cndmask_b32 {v(cs+1)}, {v(cs)}, {v(cs+2)}, s[62:63]", f"v_cndmask_b32 {v(cs)}, {v(cs)}, {v(cs+2)}, s[62:63]"]
            per = [3, 3, 2, 2]
        if n == 5:
            fill += [f"v_permlane32_swap_b32 {v(cs)}, {v(cs+1)}", f"v_add_f32 {v(cs)}, {v(cs)}, {v(cs+1)}", f"ds_write_b32 {v(ad2)}, {v(cs)}"]
            per = [3, 4, 1, 1]
        if n == OPT["e1step"]:
            fill = [bar, f"ds_read_b64 {v(a12[0],2)}, {v(ad1)}", f"ds_read_b64 {v(a12[1],2)}, {v(ad3)}"] + \
                   [f"ds_read_b128 {v(cv[F]+4*jj,4)}, {v(ad)} offset:{32*jj}" for F, ad in ((0, ad4), (1, ad5)) for jj in range(4)]
            per = [4, 4, 3, 0]
        interleave(a, mfs, fill, per)
        if n < 4:
            for h in (0, 2): mf4(a, cs, ones, wf[b][0]+h, "0" if (n == 0 and h == 0) else None)
        if n == 10: st.mark()
    st.mark()
    tmp = xf[0][0]; ee = tmp + 16; pk = [ee + 16, ee + 24]
    assert wf[2][1] + 4 == tmp + 48
    k = 0
    for S in range(2):
        for F in range(2):
            A_ = acc[F][S]; pp = pk[k & 1]; k += 1
            for i in range(0, 16, 2): a(f"v_pk_mul_f32 {v(tmp+i,2)}, {v(cv[F]+i,2)}, {v(a12[S],2)} op_sel:[0,1] op_sel_hi:[1,1]")
            for i in range(0, 16, 2): a(f"v_pk_fma_f32 {v(A_+i,2)}, {v(A_+i,2)}, {v(a12[S],2)}, {v(tmp+i,2)} op_sel:[0,0,0] op_sel_hi:[1,0,1]")
            for i in range(16): a(f"v_exp_f32 {v(ee+i)}, {v(A_+i)}")
            for i in range(0, 16, 2): a(f"v_pk_fma_f32 {v(ee+i,2)}, {v(ee+i,2)}, s[60:61], s[60:61]")
            for i in range(16): a(f"v_rcp_f32 {v(ee+i)}, {v(ee+i)}")
            for i in range(0, 16, 2): a(f"v_pk_mul_f32 {v(A_+i,2)}, {v(A_+i,2)}, {v(ee+i,2)}")
            for u in range(2):
                for i in range(4): a(f"v_cvt_pk_bf16_f32 {v(pp+4*u+i)}, {v(A_+8*u+2*i)}, {v(A_+8*u+2*i+1)}")
                a(f"buffer_store_dwordx4 {v(pp+4*u,4)}, {v(l16)}, {s(SW,4)}, s{44+2*F+S} offen offset:{1024*u} {'sc1' if 2*(k-1) + u < OPT['nsc1'] else ''}")
    st.mark()
    st.flush(SW, tmp, tid)
    a("s_endpgm")
    vmax = max(V.hi, Vx.hi, rw + 8)
    a.restore(snap); V.n = V0; st.n = 1 if OPT["stamp"] else 0
    a.label("K1_DFT")
    xa = [V.get(4), V.get(4)]; ta = [V.get(), V.get()]; ad2 = V.get(); wad = [V.get(), V.get()]
    Vo = VAlloc(V.get(6))
    acc = [[V.get(16) for _ in range(2)] for _ in range(4)]
    xr = V.get(16); xe = [V.get(4) for _ in range(4)]; tf = [[V.get(4) for _ in range(2)] for _ in range(4)]
    assert rw >= xr
    a(f"v_lshlrev_b32 {v(t1)}, 2, {v(t3)}\nv_xor_b32 {v(t1)}, {v(t1)}, {v(key)}")
    for i in range(4):
        a(f"v_xor_b32 {v(t2)}, {i}, {v(t1)}\nv_lshl_add_u32 {v(xa[0]+i)}, {v(t2)}, 4, {v(t0)}\nv_add_u32 {v(xa[1]+i)}, 65536, {v(xa[0]+i)}")
    a(f"""v_lshlrev_b32 {v(ta[0])}, 4, {v(lane)}
          v_add_u32 {v(ta[0])}, 16384, {v(ta[0])}
          v_add_u32 {v(ta[1])}, 65536, {v(ta[0])}
          s_mov_b32 s62, 0x05040100
          s_mov_b32 s63, 0x07060302
          s_lshl_b32 s3, {s(sV)}, 7
          s_add_u32 s3, s3, {SCR}
          v_lshl_add_u32 {v(ad2)}, {v(t3)}, 4, s3
          v_and_b32 {v(t1)}, 31, {v(lane)}
          v_cmp_eq_u32 s[64:65], 0, {v(t1)}
          v_lshlrev_b32 {v(t5)}, 9, {v(t1)}
          v_and_b32 {v(t1)}, 7, {v(lane)}
          v_xor_b32 {v(t1)}, {v(t1)}, {v(t3)}
          s_lshl_b32 s3, {s(sV)}, 2
          v_xor_b32 {v(t1)}, s3, {v(t1)}
          v_lshl_add_u32 {v(wad[0])}, {v(t1)}, 4, {v(t5)}
          v_xor_b32 {v(wad[1])}, 32, {v(wad[0])}
          s_mov_b32 s60, 2.0
          s_mov_b32 s61, 2.0
          s_mov_b32 s32, 0.5
          s_mov_b32 s33, 0.5""")
    class R2:
        def __init__(s_): s_.k = 0
        def get(s_, n=1):
            return acc[0][0] if n == 32 else Vo.get(n)
    x1pre, x1post = x1_out(R2())
    a(x1pre)
    def loc(sl): slot = sl % NS; return slot >> 1, (slot & 1) * 32768
    def rd_x(sl): se, off = loc(sl); return [f"ds_read_b128 {v(xr+4*b,4)}, {v(xa[se]+b)} offset:{off}" for b in range(4)]
    def rd_t(sl, r): se, off = loc(sl); return [f"ds_read_b128 {v(tf[r][c],4)}, {v(ta[se])} offset:{off + (2*r + c)*1024}" for c in range(2)]
    def perms(r): return [f"v_perm_b32 {v(xe[r]+i)}, {v(xr+4*i+2+(r>>1))}, {v(xr+4*i+(r>>1))}, s{62+(r&1)}" for i in range(4)]
    produce()
    bar(); st.mark()
    for r in rd_x(0) + sum((rd_t(0, r) for r in range(4)), []): a(r)
    for r in range(4):
        for p in perms(r): a(p)
    rs = xr
    for sl in range(8):
        z = "0" if sl == 0 else None
        mfs = [(lambda r=r, c=c: mf32(a, acc[r][c], xe[r], tf[r][c], z)) for r in range(4) for c in range(2)]
        if sl < 7:
            bar()
            fill = rd_x(sl + 1); per = [4]
            for r in range(4):
                nx = rd_t(sl + 1, r) + (perms(r - 1) if r else [])
                fill += nx; per += [len(nx), 0]
            fill += perms(3); per = per[:8]
        else: fill = []; per = [0] * 8
        interleave(a, mfs, fill, per)
        if sl == 2: st.mark()
    st.mark()
    tmp = xe[0]; pk = [tf[0][0], tf[0][1]]
    ng = lambda *n: f" neg_lo:[{n[0]},{n[1]},{n[2]}] neg_hi:[{n[0]},{n[1]},{n[2]}]"
    for i in range(0, 16, 2):
        P = lambda q, c: v(acc[q][c]+i, 2)
        for q in range(2):
            for c in range(2): a(f"v_pk_add_f32 {P(q,c)}, {P(q,c)}, {P(q+2,c)}")
        for q in range(2):
            for c in range(2): a(f"v_pk_fma_f32 {P(q+2,c)}, {P(q+2,c)}, s[60:61], {P(q,c)}{ng(1,0,0)}")
        a(f"""v_pk_add_f32 {P(0,0)}, {P(0,0)}, {P(1,0)}
              v_pk_add_f32 {P(0,1)}, {P(0,1)}, {P(1,1)}
              v_pk_add_f32 {P(2,0)}, {P(2,0)}, {P(3,1)}
              v_pk_add_f32 {P(2,1)}, {P(2,1)}, {P(3,0)} neg_lo:[0,1] neg_hi:[0,1]
              v_pk_fma_f32 {P(1,0)}, {P(1,0)}, s[60:61], {P(0,0)}{ng(1,0,0)}
              v_pk_fma_f32 {P(1,1)}, {P(1,1)}, s[60:61], {P(0,1)}{ng(0,0,1)}
              v_pk_fma_f32 {P(3,1)}, {P(3,1)}, s[60:61], {P(2,0)}{ng(1,0,0)}
              v_pk_fma_f32 {P(3,0)}, {P(3,0)}, s[60:61], {P(2,1)}{ng(1,0,1)}""")
    a(f"s_cmp_lg_u32 {s(sHF)}, 0\ns_cbranch_scc1 K1_NOSPEC\ns_mov_b64 exec, s[64:65]")
    for i in range(0, 16, 2):
        P = lambda q, c: v(acc[q][c]+i, 2); T = lambda k: v(tmp+2*k, 2); n2 = " neg_lo:[0,1] neg_hi:[0,1]"
        a(f"""v_pk_add_f32 {T(0)}, {P(2,0)}, {P(3,1)}{n2}
              v_pk_add_f32 {T(1)}, {P(2,1)}, {P(3,0)}{n2}
              v_pk_add_f32 {T(2)}, {P(0,1)}, {P(1,1)}
              v_pk_add_f32 {T(3)}, {P(0,1)}, {P(1,1)}{n2}
              v_pk_add_f32 {P(2,0)}, {P(2,0)}, {P(3,1)}
              v_pk_add_f32 {P(2,1)}, {P(2,1)}, {P(3,0)}
              v_pk_add_f32 {T(4)}, {T(3)}, {T(1)}
              v_pk_add_f32 {T(5)}, {T(3)}, {T(1)}{n2}
              v_pk_mul_f32 {P(2,0)}, {P(2,0)}, s[32:33]
              v_pk_mul_f32 {P(2,1)}, {P(2,1)}, s[32:33]
              v_pk_add_f32 {P(0,0)}, {T(4)}, {T(0)}
              v_pk_add_f32 {P(0,1)}, {T(5)}, {T(2)} neg_lo:[1,1] neg_hi:[1,1]
              v_pk_add_f32 {P(3,1)}, {T(4)}, {T(0)}{n2}
              v_pk_add_f32 {P(3,0)}, {T(5)}, {T(2)}{n2}
              v_mov_b32 {v(acc[1][1]+i)}, 0
              v_mov_b32 {v(acc[1][1]+i+1)}, 0""")
    a("s_mov_b64 exec, -1")
    a.label("K1_NOSPEC")
    st.mark()
    bar()
    for jj in range(4): a(f"ds_read_b128 {v(rs+4*jj,4)}, {v(ad2)} offset:{32*jj}")
    k = 0
    for ty in range(4):
        for c in range(2):
            src = acc[ty][c if ty < 3 else 1 - c]
            for u in range(2):
                pp = pk[k & 1]; k += 1
                for i in range(4): a(f"v_pk_mul_f32 {v(src+8*u+2*i,2)}, {v(src+8*u+2*i,2)}, {v(rs+8*u+2*i,2)}")
                for i in range(4): a(f"v_cvt_pk_bf16_f32 {v(pp+i)}, {v(src+8*u+2*i)}, {v(src+8*u+2*i+1)}")
                a(f"ds_write_b128 {v(wad[u])}, {v(pp,4)} offset:{ty*16384 + c*256}")
    st.mark()
    x1post()
    st.mark()
    st.flush(SW, tmp, tid)
    a.label("K1_END")
    a("s_endpgm")
    return a, max(vmax, V.hi), (139264, 512)
```

```python
from asmfw import Asm, VAlloc, v, s
import __main__ as M
G = M if hasattr(M, "dft_table") else __import__("gen")
OPT = G.OPT; fbits = G.fbits; srd = G.srd; mf32 = G.mf32; mf16 = G.mf16; Stamps = G.Stamps; header = G.header
H_OFF, X1_OFF, WT_OFF, Y1_OFF, PART_OFF, WS_END = G.H_OFF, G.X1_OFF, G.WT_OFF, G.Y1_OFF, G.PART_OFF, G.WS_END

def gen_k2():
    a = Asm(); st = Stamps(a, 1)
    header(a, "k2_kernel")
    st.mark()
    SW, S2, SPF = 4, 8, 12
    XB, WB, EX = 65536, 73728, 81920
    NS2 = 5
    a("s_cmp_ge_u32 s2, 256\ns_cbranch_scc1 K2_END")
    a("s_load_dwordx2 s[24:25], s[0:1], 64\ns_load_dwordx2 s[26:27], s[0:1], 40\ns_load_dwordx2 s[28:29], s[0:1], 0")
    V = VAlloc(0); tid = V.get(); lane = V.get()
    t0, t1, t2, t3, t4, t5 = [V.get() for _ in range(6)]
    sV, sQ, sRB, sNB, sL, sHo, s2o, sWR_, sWC = 34, 35, 36, 37, 38, 39, 40, 41, 42
    l16 = V.get()
    a(f"""v_lshrrev_b32 {v(t0)}, 6, v0
          v_and_b32 {v(lane)}, 63, v0
          v_readfirstlane_b32 s50, {v(t0)}
          v_lshlrev_b32 {v(l16)}, 4, {v(lane)}
          v_lshrrev_b32 {v(t1)}, 4, {v(lane)}
          s_bfe_u32 {s(sQ)}, s2, 0x20001
          s_and_b32 s3, s2, 1
          s_lshl_b32 s3, s3, 3
          s_lshr_b32 {s(sRB)}, s2, 5
          s_add_u32 {s(sRB)}, {s(sRB)}, s3
          s_bfe_u32 {s(sNB)}, s2, 0x20003
          s_and_b32 {s(sV)}, s50, 3
          s_lshl_b32 s43, s2, 13
          s_lshl_b32 s44, {s(sV)}, 11
          s_add_u32 s43, s43, s44
          s_cmp_lt_u32 s50, 4
          s_cbranch_scc1 K2_COMPUTE""")
    snap0 = a.snapshot(); Vb = V.n
    v2 = V.get(4); pf = V.get(); stmp = V.get(8, 4); stmp2 = V.get(8, 4)
    a(f"""s_add_u32 s47, s43, {X1_OFF}
          s_add_u32 s48, s43, {WT_OFF}
          s_lshl_b32 {s(sL)}, {s(sV)}, 12
          s_lshl_b32 s3, {s(sRB)}, 2
          s_add_u32 s3, s3, {s(sV)}
          s_mul_i32 s3, s3, 112
          s_mul_i32 s43, {s(sQ)}, 28
          s_add_u32 s3, s3, s43
          s_lshl_b32 {s(sHo)}, s3, 10
          s_mul_i32 s3, {s(sQ)}, 448
          s_lshl_b32 s43, {s(sV)}, 4
          s_add_u32 s3, s3, s43
          s_lshl_b32 s3, s3, 10
          s_lshl_b32 s43, {s(sNB)}, 7
          s_add_u32 {s(s2o)}, s3, s43
          v_and_b32 {v(t0)}, 15, {v(lane)}
          v_lshlrev_b32 {v(t2)}, 2, {v(t1)}
          v_xor_b32 {v(t0)}, {v(t0)}, {v(t2)}
          v_lshrrev_b32 {v(t2)}, 3, {v(t0)}
          v_and_b32 {v(t0)}, 7, {v(t0)}
          v_lshlrev_b32 {v(t0)}, 4, {v(t0)}
          v_lshl_add_u32 {v(t0)}, {v(t2)}, 9, {v(t0)}
          v_lshl_add_u32 {v(v2)}, {v(t1)}, 10, {v(t0)}
          v_add_u32 {v(v2+1)}, 3072, {v(v2)}
          v_add_u32 {v(v2+2)}, 6144, {v(v2)}
          v_add_u32 {v(v2+3)}, 9216, {v(v2)}""")
    a.waitlg()
    srd(a, SW, 24, 25, WS_END)
    srd(a, S2, 26, 27, 1792 * 1024)
    if OPT["rot2"]:
        a(f"""s_lshl_b32 s46, {s(sNB)}, 1
              s_lshl_b32 s3, s46, 12
              s_add_u32 {s(sHo)}, {s(sHo)}, s3
              s_lshl_b32 s3, s46, 16
              s_add_u32 {s(s2o)}, {s(s2o)}, s3""")
    def dma(slab, q):
        slot = slab % NS2; part, hf = q >> 1, q & 1
        if hf == 0: a(f"s_add_u32 m0, {s(sL)}, {slot*32768 + part*16384}")
        for j in (2*hf, 2*hf + 1):
            if part == 0: a(f"buffer_load_dwordx4 {v(l16)}, {s(SW,4)}, {s(sHo)} offen offset:{1024*j} lds", tag=f"S{slab}")
            else: a(f"buffer_load_dwordx4 {v(v2+j)}, {s(S2,4)}, {s(s2o)} offen offset:{1024*j} lds", tag=f"S{slab}")
        if hf == 1:
            reg, step = (sHo, 4096) if part == 0 else (s2o, 65536)
            if OPT["rot2"] and slab in (0, 2, 4):
                a(f"s_cmp_eq_u32 s46, {6 - slab}\ns_mov_b32 s3, {step}\ns_cselect_b32 s3, {(-6*step) & 0xffffffff}, s3\ns_add_u32 {s(reg)}, {s(reg)}, s3")
            else: a(f"s_add_u32 {s(reg)}, {s(reg)}, {step}")
    def j_pf3():
        srd(a, SPF, 28, 29, 0x200000)
        a(f"""s_lshr_b32 s3, s2, 3
              s_lshl_b32 s3, s3, 2
              s_add_u32 s3, s3, {s(sV)}
              s_lshl_b32 s3, s3, 11
              s_and_b32 s52, s2, 7
              s_lshr_b32 s53, s52, 1
              s_lshl_b32 s53, s53, 19
              s_and_b32 s52, s52, 1
              s_lshl_b32 s52, s52, 13
              s_add_u32 s53, s53, s52
              s_lshr_b32 s52, s3, 13
              s_lshl_b32 s52, s52, 14
              s_add_u32 s53, s53, s52
              s_and_b32 s52, s3, 0x1fff
              s_add_u32 s53, s53, s52""")
        for j in range(2):
            a(f"buffer_load_dwordx4 {v(stmp+4,4)}, {v(l16)}, {s(SPF,4)}, s53 offen offset:{1024*j}"); G.untracked(a)
    st.mark()
    halves = [(i >> 2, i & 3) for i in range(28)]; pos = 0
    for ph, cnt in enumerate(OPT["k2sched"]):
        for (sl, part) in halves[pos:pos+cnt]:
            assert sl < NS2 or sl - NS2 <= ph - 2, (sl, ph)
            dma(sl, part)
        pos += cnt
        if ph == OPT["phX"]:
            assert ph >= 4
            for base, so in ((XB, 47), (WB, 48)):
                a(f"s_add_u32 m0, s44, {base}")
                for j in range(2): a(f"buffer_load_dwordx4 {v(l16)}, {s(SW,4)}, s{so} offen offset:{1024*j} lds", tag="X")
        if OPT["pf3"] and ph == OPT["pf3"]: j_pf3()
        a.waitvm(f"S{ph}")
        if ph == 6: a.waitvm("X")
        a("s_barrier")
        st.mark()
    assert pos == 28 and len(OPT["k2sched"]) == 7
    if OPT["pf3"] == 7: j_pf3()
    a("s_barrier")
    if OPT["pf3"] == 8: j_pf3()
    st.flush(SW, stmp2, tid, 256, 1)
    a("s_endpgm")
    a.restore(snap0); V.n = Vb; st.n = 1 if OPT["stamp"] else 0
    a.label("K2_COMPUTE")
    if OPT["prio"]: a(f"s_setprio {OPT['prio']}")
    a(f"""s_lshr_b32 {s(sWR_)}, {s(sV)}, 1
          s_and_b32 {s(sWC)}, {s(sV)}, 1""")
    C64 = [V.get(4) for _ in range(2)]; S64 = [V.get(4) for _ in range(2)]; N64 = [V.get(4) for _ in range(2)]
    C32 = [V.get(4) for _ in range(2)]; S32 = [V.get(4) for _ in range(2)]; N32 = [V.get(4) for _ in range(2)]
    c1 = V.get(8); s1 = V.get(8); c2 = V.get(8); s2_ = V.get(8)
    xrd, exw, exr0, exr1, pad, wrd = [V.get() for _ in range(6)]
    ha = [V.get(), V.get(), V.get()]; wa = [[V.get(), V.get()] for _ in range(3)]
    acc = [[V.get(16) for _ in range(2)] for _ in range(2)]
    hf = [[V.get(4) for _ in range(2)] for _ in range(3)]
    wf = [[V.get(4) for _ in range(2)] for _ in range(3)]
    D = [V.get(8), V.get(8)]; wd = V.get(8)
    fr = hf[0][0]; assert wf[2][1] + 4 == fr + 48
    fj, fg, fk, ang = fr, fr + 1, fr + 2, fr + 3; cb = fr + 4; sb = fr + 12
    free = [fr + 8, fr + 12, fr + 16, fr + 20, fr + 32, fr + 36, fr + 40, fr + 44]
    xin = [[[free[(c*2 + m)*2 + t] for t in range(2)] for m in range(2)] for c in range(2)]
    pk = fr
    E = [acc[0][0], acc[0][0] + 8]; P = [acc[0][1], acc[0][1] + 4]; wr = acc[1][0]; wi = acc[1][0] + 8
    a(f"""v_and_b32 {v(t0)}, 15, {v(lane)}
          v_cvt_f32_u32 {v(fj)}, {v(t0)}
          v_cvt_f32_u32 {v(fg)}, {v(t1)}
          s_lshl_b32 s3, {s(sV)}, 4
          v_add_u32 {v(t0)}, s3, {v(t0)}
          v_cvt_f32_u32 {v(fk)}, {v(t0)}
          s_mov_b32 s47, 0x80008000""")
    def frag(step, base, offs, Cd, Sd, Nd):
        for e in range(8):
            a(f"v_mov_b32 {v(t4)}, {fbits(float(offs[e]))}\nv_fma_f32 {v(ang)}, {v(t4)}, {v(step)}, {v(base)}" if offs[e] not in (0, 1, 2, 4) else
              (f"v_mov_b32 {v(ang)}, {v(base)}" if offs[e] == 0 else f"v_fma_f32 {v(ang)}, {float(offs[e])}, {v(step)}, {v(base)}"))
            a(f"v_cos_f32 {v(cb+e)}, {v(ang)}\nv_sin_f32 {v(sb+e)}, {v(ang)}")
        for i in range(4):
            a(f"v_cvt_pk_bf16_f32 {v(Cd+i)}, {v(cb+2*i)}, {v(cb+2*i+1)}\nv_cvt_pk_bf16_f32 {v(Sd+i)}, {v(sb+2*i)}, {v(sb+2*i+1)}\nv_xor_b32 {v(Nd+i)}, s47, {v(Sd+i)}")
    a(f"v_mul_f32 {v(t2)}, {fbits(1/64)}, {v(fk)}\nv_mul_f32 {v(t3)}, {fbits(8.0)}, {v(fg)}\nv_mul_f32 {v(t5)}, {v(t3)}, {v(t2)}")
    frag(t2, t5, list(range(8)), C64[0], S64[0], N64[0])
    a(f"v_add_f32 {v(t3)}, {fbits(32.0)}, {v(t3)}\nv_mul_f32 {v(t5)}, {v(t3)}, {v(t2)}")
    frag(t2, t5, list(range(8)), C64[1], S64[1], N64[1])
    o32 = [0, 1, 2, 3, 16, 17, 18, 19]
    a(f"v_mul_f32 {v(t3)}, 4.0, {v(fg)}")
    for m in range(2):
        a(f"v_mul_f32 {v(t2)}, {fbits(1/32)}, {v(fj)}")
        if m: a(f"v_add_f32 {v(t2)}, 0.5, {v(t2)}")
        a(f"v_mul_f32 {v(t5)}, {v(t3)}, {v(t2)}")
        frag(t2, t5, o32, C32[m], S32[m], N32[m])
    a(f"v_mul_f32 {v(t2)}, {fbits(1/2048)}, {v(fk)}\nv_mul_f32 {v(t5)}, {v(t3)}, {v(t2)}")
    for e in range(8):
        a(f"v_mov_b32 {v(t4)}, {fbits(float(o32[e]))}\nv_fma_f32 {v(ang)}, {v(t4)}, {v(t2)}, {v(t5)}\nv_cos_f32 {v(c1+e)}, {v(ang)}\nv_sin_f32 {v(s1+e)}, {v(ang)}")
    a(f"v_cvt_f32_u32 {v(t4)}, s3\nv_add_f32 {v(t3)}, {v(t3)}, {v(t4)}")
    for m in range(2):
        a(f"v_mul_f32 {v(t2)}, {fbits(1/2048)}, {v(fj)}")
        if m: a(f"v_add_f32 {v(t2)}, {fbits(16/2048)}, {v(t2)}")
        a(f"v_mul_f32 {v(ang)}, {v(t3)}, {v(t2)}")
        for r in range(4):
            if r: a(f"v_add_f32 {v(ang)}, {v(ang)}, {v(t2)}")
            a(f"v_cos_f32 {v(c2+4*m+r)}, {v(ang)}\nv_sin_f32 {v(s2_+4*m+r)}, {v(ang)}")
    a(f"s_mov_b32 s48, {fbits(1/2048)}\ns_mov_b32 s49, {fbits(1/2048)}")
    for i in range(0, 8, 2): a(f"v_pk_mul_f32 {v(c2+i,2)}, {v(c2+i,2)}, s[48:49]\nv_pk_mul_f32 {v(s2_+i,2)}, {v(s2_+i,2)}, s[48:49]")
    a(f"""v_and_b32 {v(t0)}, 15, {v(lane)}
          v_lshrrev_b32 {v(t2)}, 1, {v(t1)}
          v_and_b32 {v(t3)}, 1, {v(t1)}
          v_lshlrev_b32 {v(t4)}, 5, {v(t0)}
          v_lshl_add_u32 {v(t4)}, {v(t2)}, 9, {v(t4)}
          v_lshl_add_u32 {v(t4)}, {v(t3)}, 4, {v(t4)}
          v_add_u32 {v(xrd)}, {XB}, {v(t4)}
          v_lshrrev_b32 {v(t4)}, 1, {v(t0)}
          v_lshlrev_b32 {v(t0)}, 7, {v(t0)}
          v_add_u32 {v(t0)}, {EX}, {v(t0)}
          v_xor_b32 {v(t5)}, {v(t4)}, {v(t1)}
          v_lshl_add_u32 {v(exr0)}, {v(t5)}, 4, {v(t0)}
          v_xor_b32 {v(exr1)}, 64, {v(exr0)}
          s_lshl_b32 s3, {s(sV)}, 1
          v_add_u32 {v(t2)}, s3, {v(t2)}
          v_xor_b32 {v(t2)}, {v(t2)}, {v(t4)}
          v_lshl_add_u32 {v(t2)}, {v(t2)}, 4, {v(t0)}
          v_lshl_add_u32 {v(exw)}, {v(t3)}, 3, {v(t2)}""")
    a(f"s_lshl_b32 s3, {s(sV)}, 11\ns_add_u32 s3, s3, {WB}\nv_add_u32 {v(wrd)}, s3, {v(l16)}")
    a(f"""s_lshl_b32 s3, {s(sWR_)}, 13
          v_add_u32 {v(ha[0])}, s3, {v(l16)}
          v_add_u32 {v(ha[1])}, 65536, {v(ha[0])}
          v_lshrrev_b32 {v(t3)}, 5, {v(lane)}
          v_bfe_u32 {v(t0)}, {v(lane)}, 2, 2
          v_lshl_add_u32 {v(t1)}, {v(t3)}, 3, {v(t0)}
          v_lshlrev_b32 {v(t1)}, 8, {v(t1)}
          s_lshl_b32 s3, {s(sWC)}, 1
          v_xor_b32 {v(t0)}, s3, {v(t0)}
          v_lshl_add_u32 {v(t1)}, {v(t0)}, 6, {v(t1)}
          v_bfe_u32 {v(t0)}, {v(lane)}, 4, 1
          v_lshl_add_u32 {v(t1)}, {v(t0)}, 5, {v(t1)}
          v_and_b32 {v(t0)}, 1, {v(lane)}
          v_lshl_add_u32 {v(t1)}, {v(t0)}, 4, {v(t1)}
          v_bfe_u32 {v(t0)}, {v(lane)}, 1, 1
          v_lshl_add_u32 {v(t1)}, {v(t0)}, 3, {v(t1)}
          v_add_u32 {v(wa[0][0])}, 16384, {v(t1)}
          v_xor_b32 {v(wa[0][1])}, 64, {v(wa[0][0])}
          v_add_u32 {v(wa[1][0])}, 65536, {v(wa[0][0])}
          v_add_u32 {v(wa[1][1])}, 65536, {v(wa[0][1])}
          v_add_u32 {v(ha[2])}, 131072, {v(ha[0])}
          v_add_u32 {v(wa[2][0])}, 131072, {v(wa[0][0])}
          v_add_u32 {v(wa[2][1])}, 131072, {v(wa[0][1])}""")
    a(f"""v_and_b32 {v(t0)}, 15, {v(lane)}
          v_lshlrev_b32 {v(t0)}, 6, {v(t0)}
          v_lshl_add_u32 {v(t0)}, {v(t3)}, 4, {v(t0)}
          v_bfe_u32 {v(t1)}, {v(lane)}, 4, 1
          v_lshl_add_u32 {v(pad)}, {v(t1)}, 5, {v(t0)}
          s_lshl_b32 s3, {s(sRB)}, 2
          s_lshl_b32 s43, {s(sWR_)}, 1
          s_add_u32 s3, s3, s43
          s_lshl_b32 s3, s3, 4
          s_lshl_b32 s43, {s(sWC)}, 3
          s_add_u32 s3, s3, s43
          s_lshl_b32 s43, {s(sNB)}, 1
          s_add_u32 s3, s3, s43
          s_lshl_b32 s3, s3, 11
          s_lshl_b32 s43, {s(sQ)}, 21
          s_add_u32 s3, s3, s43
          s_add_u32 s50, s3, {PART_OFF}
          s_add_u32 s51, s50, 32768""")
    a(f"""s_and_b32 s3, s2, 1
          s_lshl_b32 s3, s3, 7
          s_lshr_b32 s43, s2, 1
          s_add_u32 s3, s3, s43
          s_lshl_b32 s3, s3, 13
          s_lshl_b32 s43, {s(sV)}, 10
          s_add_u32 s3, s3, s43
          s_add_u32 s44, s3, {Y1_OFF}
          s_add_u32 s45, s44, 4096""")
    a.waitlg()
    srd(a, SW, 24, 25, WS_END)
    st.mark()
    def reads(n):
        if n >= 28: return []
        slab, t = divmod(n, 4); slot = slab % NS2; se, off = slot >> 1, (slot & 1) * 32768; b = n % 3
        r = []
        for T in range(2):
            r.append(f"ds_read_b128 {v(hf[b][T],4)}, {v(ha[se])} offset:{off + T*4096 + t*1024}")
            r.append(f"ds_read_b64_tr_b16 {v(wf[b][T],2)}, {v(wa[se][T])} offset:{off + t*4096}")
            r.append(f"ds_read_b64_tr_b16 {v(wf[b][T]+2,2)}, {v(wa[se][T])} offset:{off + t*4096 + 1024}")
        return r
    def bar():
        a.waitlg(); a("s_barrier")
    a("s_barrier")
    st.mark()
    for r in reads(0) + reads(1): a(r)
    for n in range(28):
        b = n % 3; z = "0" if n == 0 else None
        mfs = [(lambda F=F, S=S: mf32(a, acc[F][S], wf[b][F], hf[b][S], z)) for (F, S) in ((0, 0), (1, 0), (0, 1), (1, 1))]
        fill = reads(n + 2); per = [3, 3, 0, 0]
        if n % 4 == 2 and n < 24: fill = [bar] + fill; per = [3, 2, 2, 0]
        if n == 27:
            fill = [f"ds_read_b128 {v(xin[c][m][t],4)}, {v(xrd)} offset:{c*4096 + m*2048 + t*1024}" for m in range(2) for t in range(2) for c in range(2)]
            fill += [f"ds_read_b128 {v(wd+4*j,4)}, {v(wrd)} offset:{1024*j}" for j in range(2)]
            per = [3, 3, 3, 1]
        G.interleave(a, mfs, fill, per)
    st.mark()
    def big(src, Cc, Sre, Sim, fill=()):
        mfs = []
        for m in range(2):
            for t in range(2):
                z = "0" if t == 0 else None
                mfs += [lambda m=m, t=t, z=z: mf16(a, D[0]+4*m, src[0][m][t], Cc[t], z), lambda m=m, t=t, z=z: mf16(a, D[1]+4*m, src[0][m][t], Sim[t], z),
                        lambda m=m, t=t: mf16(a, D[0]+4*m, src[1][m][t], Sre[t]), lambda m=m, t=t: mf16(a, D[1]+4*m, src[1][m][t], Cc[t])]
        G.interleave(a, mfs, fill, [OPT["pper"]] * 16)
    def cmul(cc, ss, nre, nim):
        ng = lambda n: " neg_lo:[0,1,0] neg_hi:[0,1,0]" if n < 0 else ""
        for i in range(0, 8, 2):
            a(f"""v_pk_mul_f32 {v(E[0]+i,2)}, {v(D[0]+i,2)}, {v(cc+i,2)}
                  v_pk_mul_f32 {v(E[1]+i,2)}, {v(D[1]+i,2)}, {v(cc+i,2)}
                  v_pk_fma_f32 {v(E[0]+i,2)}, {v(D[1]+i,2)}, {v(ss+i,2)}, {v(E[0]+i,2)}{ng(nre)}
                  v_pk_fma_f32 {v(E[1]+i,2)}, {v(D[0]+i,2)}, {v(ss+i,2)}, {v(E[1]+i,2)}{ng(nim)}""")
        for c in range(2):
            for i in range(4): a(f"v_cvt_pk_bf16_f32 {v(P[c]+i)}, {v(E[c]+2*i)}, {v(E[c]+2*i+1)}")
    fill = []
    for S in range(2):
        for F in range(2):
            pp = pk + 24 * F
            fill += [f"v_cvt_pk_bf16_f32 {v(pp+i)}, {v(acc[F][S]+2*i)}, {v(acc[F][S]+2*i+1)}" for i in range(8)]
            fill += [f"v_permlane16_swap_b32 {v(pp+i)}, {v(pp+4+i)}" for i in range(4)]
            fill += [f"buffer_store_dwordx4 {v(pp+4*u,4)}, {v(pad)}, {s(SW,4)}, s{50+S} offen offset:{2048*F + 1024*u} {OPT['stP']}" for u in range(2)]
    for f in fill[:OPT["plead"]]: a(f)
    big(xin, C64, S64, N64, fill[OPT["plead"]:])
    st.mark()
    for i in range(8): a(f"v_lshlrev_b32 {v(wr+i)}, 16, {v(wd+i)}\nv_and_b32 {v(wi+i)}, 0xffff0000, {v(wd+i)}")
    cmul(c1, s1, +1, -1)
    for m in range(2):
        mf16(a, D[0]+4*m, C32[m], P[0], "0"); mf16(a, D[1]+4*m, N32[m], P[0], "0")
        mf16(a, D[0]+4*m, S32[m], P[1]); mf16(a, D[1]+4*m, C32[m], P[1])
    cmul(wr, wi, -1, +1)
    for m in range(2):
        mf16(a, D[0]+4*m, P[0], C32[m], "0"); mf16(a, D[1]+4*m, P[0], S32[m], "0")
        mf16(a, D[0]+4*m, P[1], N32[m]); mf16(a, D[1]+4*m, P[1], C32[m])
    cmul(c2, s2_, -1, +1)
    for c in range(2):
        for m in range(2): a(f"ds_write_b64 {v(exw)}, {v(P[c]+2*m,2)} offset:{c*4096 + m*2048}")
    a.waitlg(); a("s_barrier")
    for m in range(2):
        for t in range(2):
            for c in range(2): a(f"ds_read_b128 {v(xin[c][m][t],4)}, {v(exr1 if t else exr0)} offset:{c*4096 + m*2048}")
    big(xin, C64, N64, S64)
    for c in range(2):
        for i in range(4): a(f"v_cvt_pk_bf16_f32 {v(P[c]+i)}, {v(D[c]+2*i)}, {v(D[c]+2*i+1)}")
        a(f"buffer_store_dwordx4 {v(P[c],4)}, {v(l16)}, {s(SW,4)}, s{44+c} offen {OPT['stY']}", tag="st")
    st.mark()
    st.flush(SW, pk, tid)
    a.label("K2_END")
    a("s_endpgm")
    return a, V.hi, (163840, 512)

def gen_k3():
    a = Asm(); st = Stamps(a, 2)
    header(a, "k3_kernel")
    st.mark()
    SW, SX, SO = 4, 8, 12
    RED = 65536
    a("s_cmp_ge_u32 s2, 256\ns_cbranch_scc1 K3_END")
    a("s_load_dwordx2 s[24:25], s[0:1], 64\ns_load_dwordx2 s[26:27], s[0:1], 0\ns_load_dwordx2 s[28:29], s[0:1], 48")
    V = VAlloc(0); tid = V.get(); lane = V.get()
    t0, t1, t2, t3, t4, t5 = [V.get() for _ in range(6)]
    sV, sRT, sCB, sL, sYo = 34, 35, 36, 37, 38
    a(f"""v_lshrrev_b32 {v(t0)}, 6, v0
          v_and_b32 {v(lane)}, 63, v0
          v_readfirstlane_b32 s50, {v(t0)}
          s_and_b32 s3, s2, 7
          s_lshl_b32 s3, s3, 2
          s_bfe_u32 {s(sRT)}, s2, 0x20003
          s_add_u32 {s(sRT)}, {s(sRT)}, s3
          s_lshr_b32 {s(sCB)}, s2, 5
          s_and_b32 {s(sV)}, s50, 3
          v_lshrrev_b32 {v(t3)}, 5, {v(lane)}
          s_mov_b32 {s(SW+2)}, {WS_END}
          s_mov_b32 {s(SW+3)}, 0x20000
          s_cmp_lt_u32 s50, 4
          s_cbranch_scc0 K3_SUM""")
    snap0 = a.snapshot(); Vb = V.n
    vy = V.get(4); df = V.get(32); cs_ = V.get(4); ang, dd, hf_, an0 = V.get(), V.get(), V.get(), V.get()
    if OPT["k3prio"]: a(f"s_setprio {OPT['k3prio']}")
    a(f"""s_lshl_b32 {s(sL)}, {s(sV)}, 14
          v_lshrrev_b32 {v(t1)}, 3, {v(lane)}
          v_bfe_u32 {v(t2)}, {v(lane)}, 4, 1
          v_lshlrev_b32 {v(t2)}, 2, {v(t2)}
          v_and_b32 {v(t0)}, 7, {v(lane)}
          v_xor_b32 {v(t0)}, {v(t0)}, {v(t2)}
          v_lshlrev_b32 {v(t0)}, 4, {v(t0)}
          v_lshl_add_u32 {v(vy)}, {v(t1)}, 12, {v(t0)}
          v_add_u32 {v(vy+1)}, 31744, {v(vy)}
          v_add_u32 {v(vy+2)}, {2*31744}, {v(vy)}
          v_add_u32 {v(vy+3)}, {3*31744}, {v(vy)}
          s_lshl_b32 s3, {s(sV)}, 19
          s_lshl_b32 s40, {s(sRT)}, 7
          s_add_u32 s3, s3, s40
          s_add_u32 {s(sYo)}, s3, {Y1_OFF}
          s_mov_b32 m0, {s(sL)}""")
    R = OPT["rot3"]
    if R: a(f"s_and_b32 s41, {s(sCB)}, 3\ns_lshl_b32 s3, s41, 17\ns_add_u32 {s(sYo)}, {s(sYo)}, s3")
    a.waitlg()
    G.ws_base(a, SW, 24)
    gen = [f"v_and_b32 {v(t0)}, 31, {v(lane)}", f"s_lshl_b32 s3, {s(sCB)}, 5", f"v_add_u32 {v(t0)}, s3, {v(t0)}", f"v_cvt_f32_u32 {v(dd)}, {v(t0)}",
           f"s_and_b32 s3, {s(sV)}, 1", f"s_lshl_b32 s3, s3, 7", f"s_lshr_b32 s40, {s(sV)}, 1", f"s_add_u32 s3, s3, s40", f"s_add_u32 s3, s3, 1",
           f"v_lshl_add_u32 {v(t0)}, {v(t3)}, 3, s3", f"v_cvt_f32_u32 {v(ang)}, {v(t0)}", f"v_mul_f32 {v(dd)}, {fbits(1/256)}, {v(dd)}",
           f"v_mul_f32 {v(ang)}, {v(ang)}, {v(dd)}", f"v_mul_f32 {v(ang)}, 0.5, {v(ang)}",
           f"v_cmp_eq_u32 vcc, {256 - 118}, {v(t0)}", f"v_mov_b32 {v(hf_)}, 1.0", f"v_mul_f32 {v(t1)}, {fbits(5.0)}, {v(dd)}", f"v_cndmask_b32 {v(hf_)}, {v(hf_)}, 0.5, vcc"]
    if R: gen += [f"v_mov_b32 {v(an0)}, {v(ang)}"]
    for t in range(8):
        if R and t % 2 == 0:
            gen += [f"s_add_u32 s3, s41, {t // 2}", "s_and_b32 s3, s3, 3", "s_lshl_b32 s40, s3, 4", f"v_cvt_f32_u32 {v(t2)}, s40",
                    "s_cmp_eq_u32 s3, 3", "s_cselect_b64 s[42:43], vcc, 0", f"v_fma_f32 {v(ang)}, {v(t2)}, {v(dd)}, {v(an0)}",
                    f"v_mov_b32 {v(hf_)}, 1.0", f"v_cndmask_b32 {v(hf_)}, {v(hf_)}, 0.5, s[42:43]"]
        for e in range(4):
            c, s_ = cs_ + 2 * (e & 1), cs_ + 2 * (e & 1) + 1
            gen += [f"v_cos_f32 {v(c)}, {v(ang)}", f"v_sin_f32 {v(s_)}, {v(ang)}"]
            if e == 3 and (t == 7 or (R and t % 2)): gen += [f"v_mul_f32 {v(c)}, {v(c)}, {v(hf_)}"]
            else: gen += [f"v_add_f32 {v(ang)}, {v(ang)}, {v(dd if e < 3 else t1)}"]
            gen += [f"v_cvt_pk_bf16_f32 {v(df+4*t+e)}, {v(c)}, -{v(s_)}"]
    per = -(-len(gen) // 16); k = 0
    for g in range(4):
        if g: a(f"s_add_u32 m0, {s(sL)}, {g*4096}")
        for j in range(4):
            a(f"buffer_load_dwordx4 {v(vy+j)}, {s(SW,4)}, {s(sYo)} offen offset:{1024*j} lds", tag=f"Y{g}")
            if OPT["k3mix"]:
                for r in gen[k:k+per]: a(r)
                k += per
        if g < 3 and R: a(f"s_cmp_eq_u32 s41, {3 - g}\ns_mov_b32 s44, 131072\ns_cselect_b32 s44, {(-3*131072) & 0xffffffff}, s44\ns_add_u32 {s(sYo)}, {s(sYo)}, s44")
        elif g < 3: a(f"s_add_u32 {s(sYo)}, {s(sYo)}, 131072")
    for r in gen[k:]: a(r)
    st.mark()
    ya = [V.get(), V.get()]; yf = [[V.get(4) for _ in range(2)] for _ in range(3)]; acc = [V.get(16), V.get(16)]
    rw = V.get(4)
    a(f"""v_bfe_u32 {v(t1)}, {v(lane)}, 2, 2
          v_lshl_add_u32 {v(t0)}, {v(t3)}, 3, {v(t1)}
          v_lshlrev_b32 {v(t0)}, 7, {v(t0)}
          v_lshrrev_b32 {v(t2)}, 1, {v(t1)}
          v_lshl_add_u32 {v(t0)}, {v(t2)}, 6, {v(t0)}
          v_bfe_u32 {v(t2)}, {v(lane)}, 4, 1
          v_lshl_add_u32 {v(t0)}, {v(t2)}, 5, {v(t0)}
          v_and_b32 {v(t2)}, 3, {v(lane)}
          v_lshl_add_u32 {v(t0)}, {v(t2)}, 3, {v(t0)}
          v_add_u32 {v(ya[0])}, {s(sL)}, {v(t0)}
          v_xor_b32 {v(ya[1])}, 64, {v(ya[0])}
          v_and_b32 {v(t0)}, 31, {v(lane)}
          s_lshl_b32 s3, {s(sV)}, 13
          s_add_u32 s3, s3, {RED}
          v_lshl_add_u32 {v(t0)}, {v(t0)}, 7, s3
          v_and_b32 {v(t2)}, 7, {v(lane)}
          v_xor_b32 {v(t2)}, {v(t2)}, {v(t3)}""")
    for jj in range(4): a(f"v_xor_b32 {v(t4)}, {2*jj}, {v(t2)}\nv_lshl_add_u32 {v(rw+jj)}, {v(t4)}, 4, {v(t0)}")
    def reads(t):
        return [f"ds_read_b64_tr_b16 {v(yf[t%3][T]+2*aa,2)}, {v(ya[T])} offset:{t*2048 + aa*512}" for T in range(2) for aa in range(2)]
    a.waitvm("Y0")
    for r in reads(0) + reads(1): a(r)
    for t in range(8):
        if t < 6:
            if t % 2 == 0: a.waitvm(f"Y{(t+2)//2}")
            for r in reads(t + 2): a(r)
        for T in range(2): mf32(a, acc[T], df + 4*t, yf[t % 3][T], "0" if t == 0 else None)
    st.mark()
    for T in range(2):
        for jj in range(4): a(f"ds_write_b128 {v(rw+jj)}, {v(acc[T]+4*jj,4)} offset:{4096*T}")
    a.waitlg(); a("s_barrier")
    st.mark()
    st.flush(SW, df, tid)
    a("s_endpgm")
    vmax = V.hi
    a.restore(snap0); V.n = Vb; st.n = 1 if OPT["stamp"] else 0
    a.label("K3_SUM")
    l16 = V.get(); vxo = V.get(); pt = V.get(32); xv = V.get(8); rr = V.get(2)
    a(f"""v_lshlrev_b32 {v(l16)}, 4, {v(lane)}
          s_lshl_b32 s3, {s(sRT)}, 1
          s_lshr_b32 s40, {s(sV)}, 1
          s_add_u32 s3, s3, s40
          s_lshl_b32 s3, s3, 4
          s_add_u32 s3, s3, {s(sCB)}
          s_lshl_b32 s3, s3, 1
          s_and_b32 s40, {s(sV)}, 1
          s_add_u32 s3, s3, s40
          s_lshl_b32 s3, s3, 10
          s_add_u32 s43, s3, {PART_OFF}""")
    a.waitlg()
    G.ws_base(a, SW, 24)
    for q in range(4):
        for lh in range(2):
            if q or lh: a(f"s_add_u32 s43, s43, {16384 if lh else 0x200000 - 16384}")
            a(f"buffer_load_dwordx4 {v(pt + 8*q + 4*lh,4)}, {v(l16)}, {s(SW,4)}, s43 offen", tag="P")
    srd(a, SX, 26, 27, 0x200000); srd(a, SO, 28, 29, 0x200000)
    a(f"""v_bfe_u32 {v(t0)}, {v(lane)}, 4, 1
          v_bfe_u32 {v(t1)}, {v(lane)}, 2, 2
          v_lshl_add_u32 {v(t0)}, {v(t0)}, 4, {v(t1)}
          v_lshl_add_u32 {v(t0)}, {v(t3)}, 5, {v(t0)}
          v_and_b32 {v(t2)}, 3, {v(lane)}
          v_lshlrev_b32 {v(t2)}, 4, {v(t2)}
          v_lshl_add_u32 {v(vxo)}, {v(t0)}, 10, {v(t2)}
          s_lshr_b32 s3, {s(sRT)}, 3
          s_lshl_b32 s3, s3, 9
          s_and_b32 s40, {s(sRT)}, 1
          s_lshl_b32 s40, s40, 8
          s_add_u32 s3, s3, s40
          s_lshl_b32 s40, {s(sV)}, 6
          s_add_u32 s3, s3, s40
          s_bfe_u32 s40, {s(sRT)}, 0x20001
          s_lshl_b32 s40, s40, 2
          s_add_u32 s3, s3, s40
          s_lshl_b32 s3, s3, 10
          s_lshl_b32 s40, {s(sCB)}, 6
          s_add_u32 s45, s3, s40""")
    for lh in range(2): a(f"buffer_load_dwordx4 {v(xv+4*lh,4)}, {v(vxo)}, {s(SX,4)}, s45 offen offset:{512*lh}", tag="P")
    st.mark()
    a(f"""v_lshrrev_b32 {v(t0)}, 2, {v(lane)}
          s_lshl_b32 s3, {s(sV)}, 11
          s_add_u32 s3, s3, {RED}
          v_lshl_add_u32 {v(t2)}, {v(t0)}, 7, s3
          v_and_b32 {v(t0)}, 7, {v(t0)}
          v_and_b32 {v(t4)}, 3, {v(lane)}
          v_lshlrev_b32 {v(t4)}, 1, {v(t4)}
          v_xor_b32 {v(t0)}, {v(t0)}, {v(t4)}
          v_lshl_add_u32 {v(rr)}, {v(t0)}, 4, {v(t2)}
          v_xor_b32 {v(rr+1)}, 16, {v(rr)}
          s_mov_b32 s46, 0xffff0000
          s_mov_b32 s48, {fbits(1/256)}
          s_mov_b32 s49, {fbits(1/256)}""")
    bs = [V.get(8), V.get(8)]; u0 = V.get(8); red = V.get(32); pk = V.get(8)
    for q in range(5):
        for lh in range(2):
            for i in range(4):
                src = (pt + 8*q if q < 4 else xv) + 4*lh + i; dst = bs[lh] if q == 0 else u0
                a(f"v_lshlrev_b32 {v(dst+2*i)}, 16, {v(src)}\nv_and_b32 {v(dst+2*i+1)}, s46, {v(src)}")
            if q:
                for i in range(4): a(f"v_add_f32 {v(bs[lh]+2*i)}, {v(bs[lh]+2*i)}, {v(u0+2*i)}\nv_add_f32 {v(bs[lh]+2*i+1)}, {v(bs[lh]+2*i+1)}, {v(u0+2*i+1)}")
    st.mark()
    a("s_barrier")
    st.mark()
    for b in range(2):
        for w in range(4): a(f"ds_read_b128 {v(red+8*w+4*b,4)}, {v(rr+b)} offset:{8192*w}")
    for i in range(0, 8, 2):
        a(f"""v_pk_add_f32 {v(red+i,2)}, {v(red+i,2)}, {v(red+8+i,2)}
              v_pk_add_f32 {v(red+16+i,2)}, {v(red+16+i,2)}, {v(red+24+i,2)}
              v_pk_fma_f32 {v(bs[0]+i,2)}, {v(red+16+i,2)}, s[48:49], {v(bs[0]+i,2)}
              v_pk_fma_f32 {v(bs[1]+i,2)}, {v(red+16+i,2)}, s[48:49], {v(bs[1]+i,2)}
              v_pk_fma_f32 {v(bs[0]+i,2)}, {v(red+i,2)}, s[48:49], {v(bs[0]+i,2)}
              v_pk_fma_f32 {v(bs[1]+i,2)}, {v(red+i,2)}, s[48:49], {v(bs[1]+i,2)} neg_lo:[1,0,0] neg_hi:[1,0,0]""")
    for lh in range(2):
        for i in range(4): a(f"v_cvt_pk_bf16_f32 {v(pk+4*lh+i)}, {v(bs[lh]+2*i)}, {v(bs[lh]+2*i+1)}")
        a(f"buffer_store_dwordx4 {v(pk+4*lh,4)}, {v(vxo)}, {s(SO,4)}, s45 offen offset:{512*lh} {OPT['stO']}")
    st.mark()
    st.flush(SW, red, tid, 256, 1)
    a.label("K3_END")
    a("s_endpgm")
    return a, max(vmax, V.hi), (98304, 512)
```

```python
import sys, os, math, struct
sys.path.insert(0, os.path.dirname(os.path.abspath(__file__)))
from asmfw import Asm, VAlloc, v, s, align64
import numpy as np

H_OFF, X1_OFF, WT_OFF, Y1_OFF, PART_OFF, CS_OFF, STATS_OFF, EPOCH_OFF, WS_END = 0, 0x700000, 0x900000, 0xB00000, 0xD00000, 0x1500000, 0x1540000, 0x1548000, 0x1548080
STAMP_OFF = 0x1600000
OPT = dict(stamp=False, wsb=0, nsc1=8, stX="sc1", stW="sc1", stY="sc1", stP="sc1", stO="", pf=1, pft=0, pfw2=8, pf3=8, prio=0, nodma=0, cyc=0, align=2,
           k1sched=[12,4,4,4,4,4,0,0], phN=1, phG=7, phGD=8, phW=[6,7], e1step=31, spin=4000, forcefb=0,
           k2sched=[12,4,4,4,4,0,0], phX=4, plead=14, pper=2, rot2=0, k3mix=0, k3prio=0, rot3=0)
LOG2E = 1.4426950408889634
def fbits(x): return "0x%08x" % struct.unpack("<I", struct.pack("<f", x))[0]

def ws_base(a, r, lo):
    if OPT["wsb"]: a(f"s_add_u32 {s(r)}, {s(lo)}, {OPT['wsb'] << 20}\ns_addc_u32 {s(r+1)}, {s(lo+1)}, 0")
    else: a(f"s_mov_b64 {s(r,2)}, {s(lo,2)}")
def srd(a, r, lo, hi, nbytes, bias=0):
    if nbytes == WS_END:
        ws_base(a, r, lo); a(f"s_mov_b32 {s(r+2)}, {nbytes}\ns_mov_b32 {s(r+3)}, 0x20000"); return
    if bias: a(f"s_sub_u32 {s(r)}, {s(lo)}, {bias}\ns_subb_u32 {s(r+1)}, {s(hi)}, 0")
    else: a(f"s_mov_b64 {s(r,2)}, {s(lo,2)}")
    a(f"s_mov_b32 {s(r+2)}, {nbytes + bias}\ns_mov_b32 {s(r+3)}, 0x20000")

class Stamps:
    REG = list(range(70, 88, 2)) + [96, 98, 100]
    def __init__(self, a, kidx): self.a, self.k, self.n = a, kidx, 0
    def mark(self):
        if not OPT["stamp"]: return
        r = self.REG[self.n]
        self.a.raw(f"    {'s_memtime' if OPT['cyc'] else 's_memrealtime'} s[{r}:{r+1}]"); self.n += 1
    def flush(self, ws_srd, vtmp, tid0, who=0, rec=0):
        if not OPT["stamp"]: return
        a = self.a
        a("s_waitcnt lgkmcnt(0)")
        a(f"s_lshl_b32 s3, s2, 7\ns_add_u32 s3, s3, {STAMP_OFF + (self.k * 2 + rec) * 32768}")
        a(f"s_mov_b32 {s(ws_srd+2)}, {STAMP_OFF + 0x100000}")
        a(f"v_cmp_eq_u32 vcc, {who}, {v(tid0)}\ns_and_saveexec_b64 s[68:69], vcc")
        a(f"v_mov_b32 {v(vtmp+4)}, s3")
        for q in range(self.n, 12): a(f"s_mov_b64 s[{self.REG[q]}:{self.REG[q]+1}], 0")
        for q in range(6):
            for j in range(4): a(f"v_mov_b32 {v(vtmp+j)}, s{self.REG[2*q + (j >> 1)] + (j & 1)}")
            a(f"buffer_store_dwordx4 {v(vtmp,4)}, {v(vtmp+4)}, {s(ws_srd,4)}, 0 offen offset:{16*q}")
        a("s_mov_b64 exec, s[68:69]")

def header(a, name): a.raw(f".globl {name}\n.p2align 8\n.type {name},@function\n{name}:")
def mf32(a, d, x, y, c=None): a(f"v_mfma_f32_32x32x16_bf16 {v(d,16)}, {v(x,4)}, {v(y,4)}, {v(d,16) if c is None else c}")
def mf16(a, d, x, y, c=None): a(f"v_mfma_f32_16x16x32_bf16 {v(d,4)}, {v(x,4)}, {v(y,4)}, {v(d,4) if c is None else c}")
def mf4(a, d, x, y, c=None): a(f"v_mfma_f32_4x4x4_16b_bf16 {v(d,4)}, {v(x,2)}, {v(y,2)}, {v(d,4) if c is None else c}")
def untracked(a):
    a.vm[-1] = ("pf", set())

def code_prefetch(a, srdr, vtmp, first, last):
    a.raw(f"    s_getpc_b64 {s(srdr,2)}\n    s_add_u32 {s(srdr)}, {s(srdr)}, {first}@rel32@lo+4\n    s_addc_u32 {s(srdr+1)}, {s(srdr+1)}, {first}@rel32@hi+12")
    a.raw(f"    s_mov_b32 {s(srdr+2)}, {last}-{first}")
    a(f"""s_mov_b32 {s(srdr+3)}, 0x20000
          s_and_b32 s3, s2, 0xf8
          s_lshl_b32 s3, s3, 7
          v_lshlrev_b32 {v(vtmp)}, 1, v0
          v_and_b32 {v(vtmp)}, 0x3fc, {v(vtmp)}
          buffer_load_dword {v(vtmp)}, {v(vtmp)}, {s(srdr,4)}, s3 offen""")
    untracked(a)

def interleave(a, mfs, fill, per=None, lead=0):
    n = len(mfs); fill = list(fill)
    for f in fill[:lead]: a(f)
    fill = fill[lead:]
    per = per or [-(-len(fill) // n)] * n
    k = 0
    for i, m in enumerate(mfs):
        m()
        for f in fill[k:k+per[i]]:
            f() if callable(f) else a(f)
        k += per[i]
    for f in fill[k:]:
        f() if callable(f) else a(f)

def finish_stats(q, m, ta, tb):
    return [f"v_mov_b32 {v(tb)}, {fbits(1/512)}", f"v_mul_f32 {v(m)}, {v(tb)}, {v(m)}", f"v_mul_f32 {v(ta)}, {v(m)}, {v(m)}",
            f"v_fma_f32 {v(q)}, {v(q)}, {v(tb)}, -{v(ta)}", f"v_max_f32 {v(q)}, 0, {v(q)}", f"v_add_f32 {v(q)}, {fbits(1e-5)}, {v(q)}", f"v_rsq_f32 {v(q)}, {v(q)}"]

def dft_table():
    cosb = []
    for i in range(512):
        f = np.float32(math.cos(2 * math.pi * i / 512)) if i % 128 else np.float32([1, 0, -1, 0][i // 128])
        u = int(np.array([f]).view(np.uint32)[0]); cosb.append(((u + 0x7FFF + ((u >> 16) & 1)) >> 16) & 0xFFFF)
    t = [".p2align 8", ".type dft_table,@object", "dft_table:", ".altmacro",
         ".macro E8 a,b,c,d,e,f,g,h", ".short C\\a,C\\b,C\\c,C\\d,C\\e,C\\f,C\\g,C\\h", ".endm"]
    cosb += [0x3e80, 0xbe80, 0x3eb5, 0xbeb5]
    t += [f".set C{i},{cosb[i]:#x}" for i in range(516)]
    t.append(""".set blk,0
.rept 128
.set ln,0
.rept 64
.set cl,(blk>>1)&3
.set kap,32*(blk>>6)+(ln&31)
.set ph,128*(blk&1)+(64*((blk>>3)&7)+32*(ln>>5)+cl)*kap
.if (kap==0)&&(blk&1)
E8 %(512+2*(cl&1)),%(513+2*(cl&1)),%(512+2*(cl&1)),%(513+2*(cl&1)),%(512+2*(cl&1)),%(513+2*(cl&1)),%(512+2*(cl&1)),%(513+2*(cl&1))
.else
E8 %(ph&511),%((ph+4*kap)&511),%((ph+8*kap)&511),%((ph+12*kap)&511),%((ph+16*kap)&511),%((ph+20*kap)&511),%((ph+24*kap)&511),%((ph+28*kap)&511)
.endif
.set ln,ln+1
.endr
.set blk,blk+1
.endr
.noaltmacro
.size dft_table,131072""")
    return "\n".join(t)

def descriptor(name, nv):
    nv = (nv + 7) // 8 * 8
    return f""".p2align 6
.amdhsa_kernel {name}
  .amdhsa_next_free_vgpr {nv}
  .amdhsa_next_free_sgpr 102
  .amdhsa_accum_offset {nv}
  .amdhsa_group_segment_fixed_size 0
  .amdhsa_kernarg_size 72
  .amdhsa_user_sgpr_count 2
  .amdhsa_user_sgpr_kernarg_segment_ptr 1
  .amdhsa_system_sgpr_workgroup_id_x 1
  .amdhsa_float_denorm_mode_32 3
.end_amdhsa_kernel"""

def build(kernels, extra_empty=0):
    out = ["; x + irfft2(rfft2(LN x) * W) + silu(LN x @ w1) @ w2 in three launches (k1map2; written with my own generator script)"]
    for name, _, _, (lds, blk) in kernels: out.append(f"; @launch kernel={name} grid=(256,1,1) block=({blk},1,1) lds={lds}")
    for i in range(extra_empty): out.append("; @launch kernel=kz_kernel grid=(256,1,1) block=(256,1,1) lds=0")
    out.append('.amdgcn_target "amdgcn-amd-amdhsa--gfx950"\n.text')
    info = []
    for name, a, nv, _ in kernels:
        txt = a.text()
        if OPT["align"]:
            ext = "\n".join(f"{l}:" for l in ("k1_kernel", "k2_kernel", "k3_kernel", "code_end", "dft_table") if l != name)
            txt, fx, nn, size = align64(txt, ext + "\n", OPT["align"] == 1); info.append((fx, nn, size))
        out.append(txt)
    out.append("code_end:")
    if extra_empty: out.append(".globl kz_kernel\n.p2align 8\n.type kz_kernel,@function\nkz_kernel:\n    s_endpgm")
    out.append('.section .rodata,"a"')
    for name, a, nv, _ in kernels: out.append(descriptor(name, nv))
    if extra_empty: out.append(descriptor("kz_kernel", 8))
    out.append(dft_table())
    return "\n".join(out) + "\n", info

if __name__ == "__main__":
    import argparse, json
    ap = argparse.ArgumentParser(); ap.add_argument("out"); ap.add_argument("--stamp", action="store_true")
    ap.add_argument("--empty", type=int, default=0); ap.add_argument("-o", action="append", default=[])
    args = ap.parse_args(); OPT["stamp"] = args.stamp
    for kv in args.o:
        k, val = kv.split("=", 1); assert k in OPT, k
        OPT[k] = val if isinstance(OPT[k], str) else json.loads(val)
    from gen1 import gen_k1
    from gen23 import gen_k2, gen_k3
    ks = [(n, *g()) for n, g in (("k1_kernel", gen_k1), ("k2_kernel", gen_k2), ("k3_kernel", gen_k3))]
    txt, info = build(ks, args.empty)
    open(args.out, "w").write(txt)
    print("vgprs", [k[2] for k in ks], "nops", [k[1].nops for k in ks], "align(fixed,nop,size)", info)
```

```python
from asmfw import Asm, VAlloc, v, s
import __main__ as M
G = M if hasattr(M, "dft_table") else __import__("gen")
OPT = G.OPT; fbits = G.fbits; srd = G.srd; mf32 = G.mf32; mf4 = G.mf4; Stamps = G.Stamps; header = G.header
untracked = G.untracked; interleave = G.interleave; finish_stats = G.finish_stats; LOG2E = G.LOG2E
X1_OFF, WT_OFF, STATS_OFF, CS_OFF, EPOCH_OFF, WS_END = G.X1_OFF, G.WT_OFF, G.STATS_OFF, G.CS_OFF, G.EPOCH_OFF, G.WS_END

def table_srd(a, r):
    a.raw(f"    s_getpc_b64 {s(r,2)}\n    s_add_u32 {s(r)}, {s(r)}, dft_table@rel32@lo+4\n    s_addc_u32 {s(r+1)}, {s(r+1)}, dft_table@rel32@hi+12")
    a(f"s_mov_b32 {s(r+2)}, 0x20000\ns_mov_b32 {s(r+3)}, 0x20000")

def gen_k1(name="k1_kernel"):
    MG = OPT["merge"]
    a = Asm(); st = Stamps(a, 0)
    few = (lambda: None) if MG else st.mark
    header(a, name)
    st.mark()
    SX, SB, SW, SWR, SWI, SPF, SD = 4, 8, 12, 16, 20, 64, 92
    NS = 4
    SCR = 131072; CSF = SCR + 1024; PRS = SCR + 2048; PCS = SCR + 2304; NON = SCR + 2816
    a("s_cmp_ge_u32 s2, 256\ns_cbranch_scc1 K1_END")
    a("s_load_dwordx4 s[24:27], s[0:1], 0\ns_load_dwordx4 s[28:31], s[0:1], 32\ns_load_dwordx2 s[22:23], s[0:1], 16\ns_load_dwordx4 s[88:91], s[0:1], 56")
    V = VAlloc(0); tid = V.get(); lane = V.get()
    t0, t1, t2, t3, t4, t5 = [V.get() for _ in range(6)]
    pf = V.get()
    if OPT["pf"]: G.code_prefetch(a, SPF, pf, name, "code_end")
    sW, sLO, sCJ, sV, sWR_, sWC, sL, sHF = 34, 35, 36, 37, 38, 39, 51, 55
    a(f"""v_lshrrev_b32 {v(t0)}, 6, v0
          v_and_b32 {v(lane)}, 63, v0
          v_readfirstlane_b32 s56, {v(t0)}
          s_bfe_u32 {s(sW)}, s2, 0x20001
          s_and_b32 {s(sHF)}, s2, 1
          s_lshr_b32 {s(sCJ)}, s2, 5
          s_bfe_u32 {s(sLO)}, s2, 0x20003
          s_and_b32 {s(sV)}, s56, 3
          s_lshl_b32 {s(sL)}, {s(sV)}, 12
          v_lshrrev_b32 {v(t3)}, 5, {v(lane)}
          s_cmp_lt_u32 s56, 4
          s_cbranch_scc1 K1_COMPUTE""")
    snap0 = a.snapshot(); Vbase = V.n

    def x1_out(regs):
        rad = regs.get(4); vo = regs.get(); vo0 = regs.get(); buf = regs.get(32)
        pre = f"""v_and_b32 {v(t0)}, 15, {v(lane)}
              v_xor_b32 {v(t0)}, {v(t0)}, {v(t3)}
              v_bfe_u32 {v(t1)}, {v(lane)}, 4, 2
              s_lshl_b32 s3, s56, 13
              v_lshl_add_u32 {v(t2)}, {v(t1)}, 8, s3\n"""
        for i in range(4): pre += f"v_xor_b32 {v(t4)}, {2*i}, {v(t0)}\nv_lshl_add_u32 {v(rad+i)}, {v(t4)}, 4, {v(t2)}\n"
        pre += f"""s_bfe_u32 s46, s56, 0x10001
              s_lshr_b32 s47, s56, 2
              v_and_b32 {v(t0)}, 15, {v(lane)}
              v_lshlrev_b32 {v(t0)}, 4, {v(t0)}
              v_bfe_u32 {v(t1)}, {v(lane)}, 4, 1
              v_lshl_add_u32 {v(t0)}, {v(t1)}, 12, {v(t0)}
              v_xor_b32 {v(t1)}, s46, {v(t3)}
              v_lshl_add_u32 {v(vo)}, {v(t1)}, 13, {v(t0)}
              s_lshl_b32 s40, {s(sHF)}, 1
              s_and_b32 s41, s56, 1
              s_add_u32 s40, s40, s41
              s_lshl_b32 s40, s40, 4
              s_lshl_b32 s42, s47, 7
              s_add_u32 s41, s40, s42
              s_sub_u32 s41, s41, 1
              s_add_u32 s42, s42, s40
              s_sub_u32 s42, 254, s42
              s_cmp_eq_u32 s46, 0
              s_cselect_b32 s41, s41, s42
              s_movk_i32 s43, 0x4000
              s_cselect_b32 s43, s43, 0xffffc000
              s_lshl_b32 s41, s41, 13
              s_lshr_b32 s42, {s(sLO)}, 1
              s_lshl_b32 s42, s42, 11
              s_add_u32 s41, s41, s42
              s_lshl_b32 s42, {s(sW)}, 9
              s_add_u32 s41, s41, s42
              s_and_b32 s42, {s(sLO)}, 1
              s_lshl_b32 s42, s42, 8
              s_add_u32 s41, s41, s42
              s_add_u32 s41, s41, {X1_OFF}
              s_xor_b32 s42, s46, s47
              s_add_u32 s40, s40, s42
              v_add_u32 {v(t1)}, s40, {v(t3)}
              v_cmp_eq_u32 vcc, 0, {v(t1)}
              v_add_u32 {v(t0)}, {64*8192}, {v(vo)}
              v_cndmask_b32 {v(vo0)}, {v(vo)}, {v(t0)}, vcc"""
        def post():
            a.waitlg(); a("s_barrier")
            for jx in range(8): a(f"ds_read_b128 {v(buf+4*jx,4)}, {v(rad + (jx & 3))} offset:{1024*jx}")
            for jx in range(8):
                if not OPT["noX"]: a(f"buffer_store_dwordx4 {v(buf+4*jx,4)}, {v(vo0 if jx == 0 else vo)}, {s(SW,4)}, s41 offen {OPT['stX']}")
                if jx < 7: a("s_add_u32 s41, s41, s43")
        return pre, post

    vX = V.get(4); vB = V.get(4)
    wl = V.get(16); vW = V.get(); l16 = V.get(); dmy = V.get(4); gr = V.get(4); gc = V.get(8); gq = V.get(4)
    grow, gad, gz, gn, pad = [V.get() for _ in range(5)]
    Vx = VAlloc(V.n)
    sXb, sBb, sK, sXo, sBo, sCB, sR0 = 48, 49, 50, 52, 53, 57, 58
    a(f"""v_bfe_u32 {v(t0)}, {v(lane)}, 3, 2
          v_lshrrev_b32 {v(t1)}, 4, {v(lane)}
          v_and_b32 {v(t2)}, 7, {v(lane)}
          v_xor_b32 {v(t2)}, {v(t2)}, {v(t1)}
          v_lshlrev_b32 {v(t2)}, 4, {v(t2)}
          s_lshl_b32 {s(sR0)}, {s(sW)}, 1
          s_lshr_b32 s3, {s(sLO)}, 1
          s_add_u32 {s(sR0)}, {s(sR0)}, s3
          s_mov_b32 {s(sK)}, {s(sR0)}
          s_lshl_b32 {s(sXo)}, {s(sK)}, 7
          s_mov_b32 {s(SX+2)}, {0x200000 + 4096}
          s_mov_b32 {s(SX+3)}, 0x20000
          s_mov_b32 m0, {s(sL)}
          s_cmp_eq_u32 {s(sCJ)}, 7
          s_cbranch_scc1 K1_LD""")
    snapL = a.snapshot(); stn = st.n
    def loader(D):
        X = "D" if D else "F"
        if not D:
            a(f"""v_lshl_add_u32 {v(t0)}, {v(t3)}, 4, {v(t0)}
                  v_lshl_add_u32 {v(t0)}, {v(t0)}, 10, {v(t2)}
                  v_add_u32 {v(vX)}, 4096, {v(t0)}
                  v_xor_b32 {v(t0)}, 64, {v(t0)}
                  v_add_u32 {v(vX+1)}, {4096 + 31744}, {v(t0)}
                  v_add_u32 {v(vX+2)}, {2*31744}, {v(vX)}
                  v_add_u32 {v(vX+3)}, {2*31744}, {v(vX+1)}
                  s_lshl_b32 s3, {s(sW)}, 7
                  s_lshl_b32 s40, {s(sV)}, 5
                  s_add_u32 s3, s3, s40
                  s_add_u32 s3, s3, {s(sLO)}
                  s_lshl_b32 {s(sXb)}, s3, 12""")
        else:
            a(f"""v_lshl_add_u32 {v(t0)}, {v(t3)}, 3, {v(t0)}
                  v_lshl_add_u32 {v(t0)}, {v(t0)}, 15, {v(t2)}
                  v_add_u32 {v(vX)}, 4096, {v(t0)}
                  v_add_u32 {v(vX+2)}, {4096 - 1024}, {v(t0)}
                  v_xor_b32 {v(t0)}, 64, {v(t0)}
                  v_add_u32 {v(vX+1)}, {4096 + 131072 - 1024}, {v(t0)}
                  v_add_u32 {v(vX+3)}, {4096 + 131072 + 1024 - 3072}, {v(t0)}
                  s_lshl_b32 s3, {s(sW)}, 8
                  s_lshl_b32 s40, {s(sLO)}, 2
                  s_add_u32 s3, s3, s40
                  s_add_u32 s3, s3, {s(sV)}
                  s_lshl_b32 {s(sXb)}, s3, 11""")
        a(f"s_add_u32 {s(sXo)}, {s(sXo)}, {s(sXb)}")
        a.waitlg()
        a(f"s_sub_u32 {s(SX)}, s24, 4096\ns_subb_u32 {s(SX+1)}, s25, 0")
        def b_setup():
            a(f"v_lshlrev_b32 {v(l16)}, 4, {v(lane)}")
            if not D:
                srd(a, SB, 28, 29, 512 * 3584)
                a(f"""v_and_b32 {v(t0)}, 15, {v(lane)}
                      v_lshlrev_b32 {v(t2)}, 2, {v(t1)}
                      v_xor_b32 {v(t0)}, {v(t0)}, {v(t2)}
                      v_lshlrev_b32 {v(t0)}, 4, {v(t0)}
                      s_movk_i32 s3, 3584
                      v_mad_u32_u24 {v(vB)}, {v(t1)}, s3, {v(t0)}
                      v_add_u32 {v(vB+1)}, 13312, {v(vB)}
                      v_add_u32 {v(vB+2)}, {2*13312}, {v(vB)}
                      v_add_u32 {v(vB+3)}, {3*13312}, {v(vB)}
                      s_mul_i32 {s(sCB)}, {s(sHF)}, 7
                      s_add_u32 {s(sCB)}, {s(sCB)}, {s(sCJ)}
                      s_lshl_b32 s3, {s(sCB)}, 8
                      s_mul_i32 {s(sBb)}, {s(sV)}, {16*3584}
                      s_add_u32 {s(sBb)}, {s(sBb)}, s3""")
            else:
                table_srd(a, SB)
                a(f"""s_lshl_b32 s3, {s(sHF)}, 16
                      s_lshl_b32 s59, {s(sV)}, 11
                      s_add_u32 {s(sBb)}, s3, s59""")
        BSTEP = 8192 if D else 64 * 3584
        def dma(slab, q):
            slot = slab % NS; part, hf = q >> 1, q & 1
            if (slab, q) == (0, 2): b_setup()
            if OPT["nodma"] or (D and q == 3): pass
            elif part == 0:
                if hf == 0 and slab: a(f"s_add_u32 m0, {s(sL)}, {slot*32768}")
                for j in (2*hf, 2*hf + 1): a(f"buffer_load_dwordx4 {v(vX+j)}, {s(SX,4)}, {s(sXo)} offen offset:{1024*j} lds", tag=f"S{slab}")
            else:
                if hf == 0: a(f"s_mul_i32 {s(sBo)}, {s(sK)}, {BSTEP}\ns_add_u32 m0, {'s59' if D else s(sL)}, {slot*32768 + 16384}\ns_add_u32 {s(sBo)}, {s(sBo)}, {s(sBb)}")
                for j in (2*hf, 2*hf + 1): a(f"buffer_load_dwordx4 {v(l16 if D else vB+j)}, {s(SB,4)}, {s(sBo)} offen offset:{1024*j} lds", tag=f"S{slab}")
            if q == 3 and slab < 7:
                a(f"s_add_u32 {s(sK)}, {s(sK)}, 1\ns_and_b32 {s(sK)}, {s(sK)}, 7\ns_lshl_b32 {s(sXo)}, {s(sK)}, 7\ns_add_u32 {s(sXo)}, {s(sXo)}, {s(sXb)}")
        def j_nonce():
            srd(a, SW, 90, 91, WS_END); srd(a, SD, 88, 89, 256)
            a(f"v_mov_b32 {v(gz)}, 0\nbuffer_load_dword {v(gn)}, {v(gz)}, {s(SD,4)}, 0 offen sc1")
        def j_tablepf():
            if D or not OPT["pft"]: return
            table_srd(a, SPF)
            a(f"""s_lshr_b32 s3, s2, 3
                  s_lshl_b32 s3, s3, 2
                  s_add_u32 s3, s3, {s(sV)}
                  s_min_u32 s3, s3, 47
                  s_lshl_b32 s40, {s(sW)}, 4
                  s_add_u32 s3, s3, s40
                  s_add_u32 s3, s3, 24
                  s_and_b32 s3, s3, 63
                  s_lshl_b32 s40, {s(sHF)}, 6
                  s_add_u32 s3, s3, s40
                  s_lshl_b32 s3, s3, 10
                  buffer_load_dwordx4 {v(dmy,4)}, {v(l16)}, {s(SPF,4)}, s3 offen""")
            untracked(a)
        def j_publish():
            a(f"""v_and_b32 {v(t0)}, 15, {v(lane)}
                  v_cmp_gt_u32 vcc, 16, {v(lane)}
                  s_lshl_b32 s3, {s(sV)}, 7
                  s_add_u32 s3, s3, {PCS}
                  s_lshl_b32 s40, {s(sV)}, 4
                  s_add_u32 s40, s40, {PRS}
                  v_mov_b32 {v(t1)}, s3
                  v_mov_b32 {v(t2)}, s40
                  v_cndmask_b32 {v(t1)}, {v(t2)}, {v(t1)}, vcc
                  v_lshl_add_u32 {v(t1)}, {v(t0)}, 3, {v(t1)}
                  ds_read_b64 {v(gq,2)}, {v(t1)}
                  s_lshl_b32 s3, {s(sW)}, 2
                  s_add_u32 s3, s3, {s(sLO)}
                  s_lshl_b32 s3, s3, 1
                  s_add_u32 s3, s3, {s(sHF)}
                  s_lshl_b32 s3, s3, 3
                  s_add_u32 s3, s3, {s(sCJ)}
                  s_lshl_b32 s3, s3, 2
                  s_add_u32 s3, s3, {s(sV)}
                  s_lshl_b32 s3, s3, 5
                  s_add_u32 s3, s3, {STATS_OFF}
                  v_mov_b32 {v(t2)}, s3""")
            if not D:
                a(f"""s_lshl_b32 s3, {s(sCB)}, 3
                      s_add_u32 s3, s3, {s(sR0)}
                      s_lshl_b32 s3, s3, 2
                      s_add_u32 s3, s3, {s(sV)}
                      s_lshl_b32 s3, s3, 8
                      s_add_u32 s3, s3, {CS_OFF}
                      v_mov_b32 {v(t1)}, s3
                      v_cndmask_b32 {v(t2)}, {v(t2)}, {v(t1)}, vcc""")
            a(f"v_lshl_add_u32 {v(pad)}, {v(t0)}, 4, {v(t2)}")
            a(f"v_readfirstlane_b32 s60, {v(gn)}\ns_cmp_lg_u32 s60, 0\ns_cbranch_scc1 K1_PUBOK{X}\ns_mov_b32 s61, 0")
            keep = a.snapshot()
            a.label(f"K1_PUBSPIN{X}")
            a(f"""buffer_load_dword {v(gn)}, {v(gz)}, {s(SD,4)}, 0 offen sc1
                  s_waitcnt vmcnt(0)
                  v_readfirstlane_b32 s60, {v(gn)}
                  s_add_u32 s61, s61, 1
                  s_cmp_gt_u32 s61, 2000
                  s_cbranch_scc1 K1_PUBOK{X}
                  s_cmp_eq_u32 s60, 0
                  s_cbranch_scc1 K1_PUBSPIN{X}""")
            a.label(f"K1_PUBOK{X}")
            a.restore(keep)
            a(f"""v_mov_b32 {v(gq+2)}, s60
                  v_mov_b32 {v(gq+3)}, s60
                  s_mov_b64 exec, {0x30000 if D else 0x3ffff}
                  buffer_store_dwordx4 {v(gq,4)}, {v(pad)}, {s(SW,4)}, 0 offen sc1
                  s_mov_b64 exec, -1""")
        def gather_loads():
            a(f"buffer_load_dwordx4 {v(gr,4)}, {v(gad)}, {s(SW,4)}, s62 offen sc1")
            if not D:
                for j in range(2): a(f"buffer_load_dwordx4 {v(gc+4*j,4)}, {v(pad)}, {s(SW,4)}, s{32+j} offen sc1")
        def j_gather():
            a(f"""v_bfe_u32 {v(t0)}, {v(lane)}, 3, 2
                  v_bfe_u32 {v(t1)}, {v(lane)}, 2, 1
                  v_and_b32 {v(t2)}, 3, {v(lane)}""")
            if not D:
                a(f"""v_lshl_add_u32 {v(t0)}, {v(t0)}, 1, {v(t1)}
                      v_lshl_add_u32 {v(grow)}, {v(t0)}, 4, {v(t2)}
                      s_lshl_b32 s3, {s(sV)}, 7
                      s_lshl_b32 s40, {s(sLO)}, 2
                      v_lshrrev_b32 {v(t0)}, 4, {v(lane)}
                      v_and_b32 {v(t1)}, 15, {v(lane)}
                      v_lshlrev_b32 {v(t1)}, 4, {v(t1)}
                      v_lshl_add_u32 {v(pad)}, {v(t0)}, 10, {v(t1)}
                      s_lshl_b32 s32, {s(sCB)}, 5
                      s_add_u32 s32, s32, {s(sV)}
                      s_lshl_b32 s32, s32, 8
                      s_add_u32 s32, s32, {CS_OFF}
                      s_add_u32 s33, s32, 4096""")
            else:
                a(f"""v_lshl_add_u32 {v(t2)}, {v(t1)}, 3, {v(t2)}
                      v_and_b32 {v(t1)}, 1, {v(t0)}
                      v_lshl_add_u32 {v(t2)}, {v(t1)}, 2, {v(t2)}
                      v_lshrrev_b32 {v(t0)}, 1, {v(t0)}
                      v_lshl_add_u32 {v(grow)}, {v(t2)}, 5, {v(t0)}
                      s_lshl_b32 s3, {s(sV)}, 1
                      s_lshl_b32 s40, {s(sLO)}, 3""")
            a(f"""s_add_u32 s3, s3, s40
                  s_lshl_b32 s40, {s(sW)}, 9
                  s_add_u32 s3, s3, s40
                  v_add_u32 {v(grow)}, s3, {v(grow)}
                  v_lshlrev_b32 {v(gad)}, 4, {v(grow)}
                  s_mov_b32 s62, {STATS_OFF}""")
            gather_loads()
        def j_check():
            tags = [gr + 2, gr + 3] + ([] if D else [gc + 2, gc + 3, gc + 6, gc + 7])
            a("s_mov_b32 s61, 0")
            a(f"v_xor_b32 {v(t0)}, {v(tags[-1])}, {v(gn)}")
            a.label(f"K1_CHECK{X}")
            for t in tags[:-1]: a(f"v_xor_b32 {v(t1)}, {v(t)}, {v(gn)}\nv_or_b32 {v(t0)}, {v(t0)}, {v(t1)}")
            a(f"""v_cmp_ne_u32 vcc, 0, {v(t0)}
                  v_cmp_eq_u32 s[40:41], 0, {v(gn)}
                  s_or_b64 vcc, vcc, s[40:41]
                  {"s_nop 0" if OPT["forcefb"] else "s_cbranch_vccz K1_GOT" + X}
                  s_add_u32 s61, s61, 1
                  s_cmp_gt_u32 s61, {OPT["spin"]}
                  s_cbranch_scc1 K1_FALLBACK{X}""")
            keep = a.snapshot()
            a(f"buffer_load_dword {v(gn)}, {v(gz)}, {s(SD,4)}, 0 offen sc1")
            gather_loads()
            a(f"s_waitcnt vmcnt(0)\nv_xor_b32 {v(t0)}, {v(tags[-1])}, {v(gn)}\ns_branch K1_CHECK{X}")
            a.label(f"K1_FALLBACK{X}")
            a(f"""v_lshl_add_u32 {v(gad)}, {v(grow)}, 10, 0
                  v_add_u32 {v(gad)}, 4096, {v(gad)}
                  v_mov_b32 {v(t0)}, 0
                  v_mov_b32 {v(t1)}, 0
                  v_mov_b32 {v(t2)}, 0x3f803f80
                  s_mov_b32 s61, 0""")
            a.label(f"K1_FBLOOP{X}")
            a(f"buffer_load_dwordx4 {v(gr,4)}, {v(gad)}, {s(SX,4)}, s61 offen\ns_waitcnt vmcnt(0)")
            for i in range(4): a(f"v_dot2_f32_bf16 {v(t0)}, {v(gr+i)}, {v(gr+i)}, {v(t0)}\nv_dot2_f32_bf16 {v(t1)}, {v(gr+i)}, {v(t2)}, {v(t1)}\ns_nop 2")
            a(f"s_add_u32 s61, s61, 16\ns_cmp_lt_u32 s61, 1024\ns_cbranch_scc1 K1_FBLOOP{X}")
            a("s_nop 4")
            for r in finish_stats(t0, t1, t4, t5): a(r)
            a(f"s_nop 1\nv_mov_b32 {v(gr)}, {v(t0)}\nv_mov_b32 {v(gr+1)}, {v(t1)}")
            if not D:
                a(f"""v_and_b32 {v(t0)}, 9, {v(lane)}
                      v_bfe_u32 {v(t1)}, {v(lane)}, 1, 1
                      v_lshl_or_b32 {v(t0)}, {v(t1)}, 2, {v(t0)}
                      v_bfe_u32 {v(t1)}, {v(lane)}, 2, 1
                      v_lshl_or_b32 {v(t0)}, {v(t1)}, 1, {v(t0)}
                      v_lshlrev_b32 {v(t0)}, 2, {v(t0)}
                      v_lshrrev_b32 {v(t1)}, 4, {v(lane)}
                      s_mov_b32 s3, {128*3584}
                      v_mad_u32_u24 {v(t0)}, {v(t1)}, s3, {v(t0)}
                      s_lshl_b32 s61, {s(sCB)}, 2
                      s_add_u32 s61, s61, {s(sV)}
                      s_lshl_b32 s61, s61, 6
                      s_mov_b32 s3, 0
                      v_mov_b32 {v(gc)}, 0
                      v_mov_b32 {v(gc+1)}, 0
                      v_mov_b32 {v(gc+4)}, 0
                      v_mov_b32 {v(gc+5)}, 0""")
                a.label("K1_FBLOOPC")
                a(f"""buffer_load_dword {v(t1)}, {v(t0)}, {s(SB,4)}, s61 offen
                      s_waitcnt vmcnt(0)
                      v_lshlrev_b32 {v(t2)}, 16, {v(t1)}
                      v_and_b32 {v(t1)}, 0xffff0000, {v(t1)}
                      v_add_f32 {v(gc)}, {v(gc)}, {v(t2)}
                      v_add_f32 {v(gc+1)}, {v(gc+1)}, {v(t1)}
                      s_add_u32 s61, s61, 3584
                      s_add_u32 s3, s3, 1
                      s_cmp_lt_u32 s3, 128
                      s_cbranch_scc1 K1_FBLOOPC""")
            a.label(f"K1_GOT{X}")
            a.restore(keep); a.hist = []
            if MG: a(f"v_mov_b32 {v(t1)}, {NON}\nds_write_b32 {v(t1)}, {v(gn)}")
            a(f"v_and_b32 {v(t0)}, 31, {v(lane)}")
            if not D:
                a(f"""v_add_f32 {v(gc)}, {v(gc)}, {v(gc+4)}
                      v_add_f32 {v(gc+1)}, {v(gc+1)}, {v(gc+5)}
                      s_lshl_b32 s3, {s(sV)}, 8
                      s_add_u32 s3, s3, {SCR}
                      v_lshl_add_u32 {v(t0)}, {v(t0)}, 3, s3
                      v_mov_b32 {v(gc+2)}, {v(gc)}
                      v_mov_b32 {v(gc+3)}, {v(gc+1)}
                      v_mul_f32 {v(gr)}, {fbits(-LOG2E)}, {v(gr)}
                      v_mul_f32 {v(gr+1)}, {v(gr+1)}, {v(gr)}
                      v_permlane32_swap_b32 {v(gc)}, {v(gc+2)}
                      v_permlane32_swap_b32 {v(gc+1)}, {v(gc+3)}
                      v_sub_f32 {v(gr+1)}, 0, {v(gr+1)}
                      v_add_f32 {v(gc)}, {v(gc)}, {v(gc+2)}
                      v_add_f32 {v(gc+1)}, {v(gc+1)}, {v(gc+3)}
                      ds_write_b64 {v(t0)}, {v(gr,2)}
                      v_mov_b32 {v(gc+2)}, {v(gc)}
                      v_mov_b32 {v(gc+3)}, {v(gc+1)}
                      v_and_b32 {v(t1)}, 15, {v(lane)}
                      s_lshl_b32 s3, {s(sV)}, 7
                      v_permlane16_swap_b32 {v(gc)}, {v(gc+2)}
                      v_permlane16_swap_b32 {v(gc+1)}, {v(gc+3)}
                      s_add_u32 s3, s3, {CSF}
                      v_lshl_add_u32 {v(t1)}, {v(t1)}, 3, s3
                      v_add_f32 {v(gc)}, {v(gc)}, {v(gc+2)}
                      v_add_f32 {v(gc+1)}, {v(gc+1)}, {v(gc+3)}
                      ds_write_b64 {v(t1)}, {v(gc,2)}""")
            else:
                a(f"""s_lshl_b32 s3, {s(sV)}, 7
                      s_add_u32 s3, s3, {SCR}
                      v_lshl_add_u32 {v(t0)}, {v(t0)}, 2, s3
                      ds_write_b32 {v(t0)}, {v(gr)}""")
        def j_wload(part):
            if OPT["noW"]: return
            if part == 0:
                srd(a, SWR, 26, 27, 2048 * 514)
                a(f"s_mov_b64 s[44:45], s[22:23]")
                srd(a, SWI, 44, 45, 2048 * 514)
                a(f"""s_and_b32 s54, s2, 3
                      s_lshl_b32 s54, s54, 2
                      s_add_u32 s54, s54, {s(sV)}
                      s_lshl_b32 s41, s54, 5
                      s_add_u32 s41, s41, 2
                      v_and_b32 {v(t0)}, 7, {v(lane)}
                      v_lshl_add_u32 {v(t0)}, {v(t0)}, 2, s41
                      v_lshrrev_b32 {v(t1)}, 3, {v(lane)}
                      s_movk_i32 s41, 514
                      v_mad_u32_u24 {v(vW)}, {v(t1)}, s41, {v(t0)}
                      s_bfe_u32 s41, s2, 0x30002
                      s_lshl_b32 s43, s41, 3
                      s_lshl_b32 s44, {s(sCJ)}, 8
                      s_add_u32 s43, s43, s44
                      s_mul_i32 s44, s43, 514
                      s_add_u32 s45, s44, 32896
                      s_add_u32 s46, s44, 65792
                      s_add_u32 s47, s44, 98688""")
            for r in (2*part, 2*part + 1):
                a(f"buffer_load_dword {v(wl + r)}, {v(vW)}, {s(SWR,4)}, s{44+r} offen", tag="W")
                a(f"buffer_load_dword {v(wl + 4 + r)}, {v(vW)}, {s(SWI,4)}, s{44+r} offen", tag="W")
        def j_wstore():
            if OPT["noW"]: return
            a(f"""s_lshl_b32 s54, s54, 17
                  s_lshl_b32 s41, {s(sLO)}, 11
                  s_add_u32 s54, s54, s41
                  s_lshr_b32 s41, s2, 7
                  s_lshl_b32 s41, s41, 10
                  s_add_u32 s54, s54, s41
                  s_bfe_u32 s41, s2, 0x20005
                  s_lshl_b32 s41, s41, 8
                  s_add_u32 s54, s54, s41
                  s_bfe_u32 s41, s2, 0x10002
                  s_lshl_b32 s41, s41, 7
                  s_add_u32 s54, s54, s41
                  s_add_u32 s54, s54, {WT_OFF}
                  s_add_u32 s41, s54, 8192
                  s_mov_b32 s42, 0x05040100
                  s_mov_b32 s43, 0x07060302
                  v_and_b32 {v(t0)}, 7, {v(lane)}
                  v_lshrrev_b32 {v(t1)}, 3, {v(lane)}
                  v_lshlrev_b32 {v(t1)}, 4, {v(t1)}
                  v_lshl_add_u32 {v(vW)}, {v(t0)}, 14, {v(t1)}""")
            for kk in range(2):
                for r in range(4): a(f"v_perm_b32 {v(wl+8+4*kk+r)}, {v(wl+4+r)}, {v(wl+r)}, s{42+kk}")
                a(f"buffer_store_dwordx4 {v(wl+8+4*kk,4)}, {v(vW)}, {s(SW,4)}, s{41 if kk else 54} offen {OPT['stW']}")
        def j_pfw2():
            if not OPT["pfw2"]: return
            srd(a, SPF, 30, 31, 1792 * 1024)
            a(f"""s_lshr_b32 s3, s2, 3
                  s_lshl_b32 s3, s3, 2
                  s_add_u32 s3, s3, {s(sV)}
                  s_min_u32 s3, s3, 111
                  s_mul_i32 s41, {s(sW)}, 112
                  s_add_u32 s3, s3, s41
                  s_lshl_b32 s3, s3, 12""")
            for j in range(4):
                a(f"buffer_load_dwordx4 {v(dmy,4)}, {v(l16)}, {s(SPF,4)}, s3 offen offset:{1024*j}"); untracked(a)
        pre, post = {}, {1: [j_tablepf]}
        phG = OPT["phGD"] if D else OPT["phG"]
        for ph, j in ((OPT["phN"], j_nonce), (OPT["phN"] + 2, j_publish), (phG, j_gather)): pre.setdefault(ph, []).append(j)
        for p, ph in enumerate(OPT["phW"]): (post if ph < 8 else pre).setdefault(ph, []).append(lambda p=p: j_wload(p))
        (post if OPT["pfw2"] < 8 else pre).setdefault(OPT["pfw2"], []).append(j_pfw2)
        if OPT["phS"] < 8: post.setdefault(OPT["phS"], []).append(j_wstore)
        quarters = [(i >> 2, i & 3) for i in range(32)]; pos = 0
        few()
        for ph, cnt in enumerate(OPT["k1sched"]):
            for j in pre.get(ph, []): j()
            for (sl, q) in quarters[pos:pos+cnt]:
                assert sl < NS or sl - NS <= ph - 2, (sl, ph)
                dma(sl, q)
            pos += cnt
            for j in post.get(ph, []): j()
            a.waitvm(f"S{ph}", lg0=True); a("s_barrier")
            (st.mark if ph in (0, 7) else few)()
        assert pos == 32
        if phG == 8: pre[8].pop(0)()
        j_check()
        for j in pre.get(8, []): j()
        if OPT["phS"] == 8: j_wstore()
        a.waitlg(); a("s_barrier")
        for j in pre.get(9, []): j()
        if OPT["phS"] == 9: j_wstore()
        few()
        if D:
            p, q = x1_out(Vx); a(p); q()
        if MG: a(f"v_readfirstlane_b32 s66, {v(gn)}\ns_branch P2_LOADER")
        else:
            st.flush(SW, wl, tid, 256, 1)
            a("s_endpgm")
        return st.n
    nl = loader(False)
    a.restore(snapL); st.n = stn
    a.label("K1_LD")
    assert loader(True) == nl
    a.restore(snap0); V.n = Vbase; st.n = 1 if OPT["stamp"] else 0
    a.label("K1_COMPUTE")
    if OPT["prio"]: a(f"s_setprio {OPT['prio']}")
    ones = V.get(2); gq = V.get(4); gn = V.get(); gz = V.get()
    key = t4
    rw = 200
    a(f"""s_lshl_b32 s3, {s(sW)}, 2
          s_add_u32 s3, s3, {s(sLO)}
          s_lshl_b32 s3, s3, 1
          s_add_u32 s3, s3, {s(sHF)}
          s_lshl_b32 s3, s3, 3
          s_add_u32 s3, s3, {s(sCJ)}
          s_lshl_b32 s3, s3, 2
          s_add_u32 s3, s3, {s(sV)}
          s_lshl_b32 s3, s3, 11
          v_lshlrev_b32 {v(t0)}, 4, {v(lane)}
          s_mov_b32 {s(SX+2)}, 0x200000
          s_mov_b32 {s(SX+3)}, 0x20000""")
    a.waitlg()
    a(f"""s_mov_b64 {s(SX,2)}, s[24:25]
          buffer_load_dwordx4 {v(rw,4)}, {v(t0)}, {s(SX,4)}, s3 offen
          buffer_load_dwordx4 {v(rw+4,4)}, {v(t0)}, {s(SX,4)}, s3 offen offset:1024
          s_lshr_b32 s53, s3, 6
          s_add_u32 s53, s53, {STATS_OFF}
          v_mov_b32 {v(gz)}, 0""")
    srd(a, SW, 90, 91, WS_END); srd(a, SD, 88, 89, 256)
    a(f"s_or_b32 s3, s2, {s(sV)}\ns_cmp_lg_u32 s3, 0\ns_cbranch_scc1 K1_NOEPOCH")
    keep = a.snapshot()
    a(f"""s_add_u32 s40, {s(SW)}, {EPOCH_OFF}
          s_addc_u32 s41, {s(SW+1)}, 0
          s_load_dword s42, s[40:41], 0
          s_mov_b32 s3, {EPOCH_OFF}
          s_add_u32 s42, s42, 1
          s_or_b32 s42, s42, 1
          v_mov_b32 {v(gn)}, s42
          s_mov_b64 exec, 1
          buffer_store_dword {v(gn)}, {v(gz)}, {s(SD,4)}, 0 offen sc1
          buffer_store_dword {v(gn)}, {v(gz)}, {s(SW,4)}, s3 offen sc1
          s_mov_b64 exec, -1""")
    a.label("K1_NOEPOCH")
    a.restore(keep)
    a(f"""v_mov_b32 {v(ones)}, 0x3f803f80
          v_mov_b32 {v(ones+1)}, 0x3f803f80
          v_and_b32 {v(t1)}, 1, {v(lane)}
          v_cmp_eq_u32 s[58:59], 1, {v(t1)}
          v_bfe_u32 {v(key)}, {v(lane)}, 1, 3
          v_and_b32 {v(t0)}, 31, {v(lane)}
          v_lshlrev_b32 {v(t0)}, 7, {v(t0)}
          v_add_u32 {v(t0)}, {s(sL)}, {v(t0)}""")
    uid = [0]
    def produce():
        if OPT["early"]: a(f"s_waitcnt vmcnt(0)\nbuffer_load_dword {v(gn)}, {v(gz)}, {s(SD,4)}, 0 offen sc1")
        for i in range(4):
            for r in range(2):
                c0 = "0" if i == 0 else None
                a(f"v_dot2_f32_bf16 {v(gq+2*r)}, {v(rw+4*r+i)}, {v(rw+4*r+i)}, {c0 or v(gq+2*r)}\nv_dot2_f32_bf16 {v(gq+2*r+1)}, {v(rw+4*r+i)}, {v(ones)}, {c0 or v(gq+2*r+1)}")
        a("s_nop 2")
        for m in ("row_shr:1 row_mask:0xf", "row_shr:2 row_mask:0xf", "row_shr:4 row_mask:0xf", "row_shr:8 row_mask:0xf", "row_bcast:15 row_mask:0xa", "row_bcast:31 row_mask:0xc"):
            for i in range(4): a(f"v_add_f32_dpp {v(gq+i)}, {v(gq+i)}, {v(gq+i)} {m} bank_mask:0xf bound_ctrl:0")
        for i in range(4): a(f"v_readlane_b32 s{28+i}, {v(gq+i)}, 63")
        a(f"""v_mov_b32 {v(gq)}, s28
              v_mov_b32 {v(gq+1)}, s29
              v_mov_b32 {v(gq+2)}, s30
              v_mov_b32 {v(gq+3)}, s31
              v_cndmask_b32 {v(gq)}, {v(gq)}, {v(gq+2)}, s[58:59]
              v_cndmask_b32 {v(gq+1)}, {v(gq+1)}, {v(gq+3)}, s[58:59]""")
        for r in finish_stats(gq, gq + 1, t4, t5): a(r)
        a(f"""s_lshl_b32 s3, {s(sV)}, 4
              s_add_u32 s3, s3, {PRS}
              v_lshl_add_u32 {v(t4)}, {v(lane)}, 3, s3
              s_mov_b64 exec, 3
              ds_write_b64 {v(t4)}, {v(gq,2)}
              s_mov_b64 exec, -1""")
        if OPT["early"]:
            uid[0] += 1
            a(f"""v_readfirstlane_b32 s3, {v(gn)}
                  s_cmp_eq_u32 s3, 0
                  s_cbranch_scc1 K1_NOEARLY{uid[0]}""")
            a(f"""v_mov_b32 {v(gq+2)}, s3
                  v_mov_b32 {v(gq+3)}, s3
                  v_lshlrev_b32 {v(gz)}, 4, {v(lane)}
                  s_mov_b64 exec, 3
                  buffer_store_dwordx4 {v(gq,4)}, {v(gz)}, {s(SW,4)}, s53 offen sc1
                  s_mov_b64 exec, -1""")
            a.label(f"K1_NOEARLY{uid[0]}")
    def bar():
        a.waitlg(); a("s_barrier")
    a(f"s_cmp_eq_u32 {s(sCJ)}, 7\ns_cbranch_scc1 K1_DFT")
    snap = a.snapshot(); V0 = V.n
    xa = [[V.get(4), V.get(4)] for _ in range(2)]
    wa = [[V.get(), V.get()] for _ in range(2)]
    ad1, ad2, ad3, ad4, ad5, l16 = [V.get() for _ in range(6)]
    cs = V.get(4)
    a(f"v_xor_b32 {v(t1)}, {v(t3)}, {v(key)}")
    for i in range(4):
        a(f"""v_xor_b32 {v(t2)}, {2*i}, {v(t1)}
              v_lshl_add_u32 {v(xa[0][0]+i)}, {v(t2)}, 4, {v(t0)}
              v_xor_b32 {v(xa[0][1]+i)}, 0x1000, {v(xa[0][0]+i)}
              v_add_u32 {v(xa[1][0]+i)}, 65536, {v(xa[0][0]+i)}
              v_add_u32 {v(xa[1][1]+i)}, 65536, {v(xa[0][1]+i)}""")
    a(f"""s_lshr_b32 {s(sWR_)}, {s(sV)}, 1
          s_and_b32 {s(sWC)}, {s(sV)}, 1
          v_and_b32 {v(t1)}, 2, {v(lane)}
          v_cmp_eq_u32 s[62:63], 2, {v(t1)}
          v_bfe_u32 {v(t0)}, {v(lane)}, 2, 2
          v_lshl_add_u32 {v(t1)}, {v(t3)}, 3, {v(t0)}
          v_lshlrev_b32 {v(t1)}, 8, {v(t1)}
          s_lshl_b32 s3, {s(sWC)}, 1
          s_add_u32 s54, s3, {s(sWR_)}
          v_xor_b32 {v(t0)}, s54, {v(t0)}
          v_lshl_add_u32 {v(t1)}, {v(t0)}, 6, {v(t1)}
          v_bfe_u32 {v(t0)}, {v(lane)}, 4, 1
          v_lshl_add_u32 {v(t1)}, {v(t0)}, 5, {v(t1)}
          v_and_b32 {v(t0)}, 1, {v(lane)}
          v_lshl_add_u32 {v(t1)}, {v(t0)}, 4, {v(t1)}
          v_bfe_u32 {v(t0)}, {v(lane)}, 1, 1
          v_lshl_add_u32 {v(t1)}, {v(t0)}, 3, {v(t1)}
          v_add_u32 {v(wa[0][0])}, 16384, {v(t1)}
          v_xor_b32 {v(wa[0][1])}, 64, {v(wa[0][0])}
          v_add_u32 {v(wa[1][0])}, 65536, {v(wa[0][0])}
          v_add_u32 {v(wa[1][1])}, 65536, {v(wa[0][1])}
          v_and_b32 {v(t0)}, 31, {v(lane)}
          s_lshl_b32 s3, {s(sV)}, 8
          s_add_u32 s3, s3, {SCR}
          v_lshl_add_u32 {v(ad1)}, {v(t0)}, 3, s3
          v_xor_b32 {v(ad3)}, 0x100, {v(ad1)}
          s_lshl_b32 s3, s54, 7
          s_add_u32 s40, s3, {PCS}
          v_lshl_add_u32 {v(ad2)}, {v(t0)}, 2, s40
          s_add_u32 s3, s3, {CSF}
          v_lshl_add_u32 {v(ad4)}, {v(t3)}, 4, s3
          v_xor_b32 {v(ad5)}, 0x80, {v(ad4)}
          s_mov_b32 s60, {fbits(-LOG2E)}
          s_mov_b32 s61, {fbits(-LOG2E)}
          v_lshlrev_b32 {v(l16)}, 4, {v(lane)}
          s_lshl_b32 s3, {s(sW)}, 2
          s_add_u32 s3, s3, {s(sLO)}
          s_lshl_b32 s3, s3, 2
          s_add_u32 s40, s3, {s(sV)}
          s_xor_b32 s41, s40, 1
          s_mul_i32 s40, s40, {112*1024}
          s_mul_i32 s41, s41, {112*1024}
          s_mul_i32 s3, {s(sHF)}, 7
          s_add_u32 s3, s3, {s(sCJ)}
          s_lshl_b32 s3, s3, 13
          s_lshl_b32 s42, s54, 11
          s_add_u32 s42, s42, s3
          s_xor_b32 s43, s42, 0x800
          s_add_u32 s44, s40, s42
          s_add_u32 s45, s41, s42
          s_add_u32 s46, s40, s43
          s_add_u32 s47, s41, s43""")
    acc = [[V.get(16) for _ in range(2)] for _ in range(2)]
    xf = [[V.get(4) for _ in range(2)] for _ in range(3)]
    wf = [[V.get(4) for _ in range(2)] for _ in range(3)]
    a12 = [V.get(2), V.get(2)]; cv = [V.get(16), V.get(16)]
    def reads_ffn(n):
        if n >= 32: return []
        slab, t = divmod(n, 4); slot = slab % NS; se, off = slot >> 1, (slot & 1) * 32768; b = n % 3
        r = []
        for T in range(2):
            r.append(f"ds_read_b128 {v(xf[b][T],4)}, {v(xa[se][T]+t)} offset:{off}")
            r.append(f"ds_read_b64_tr_b16 {v(wf[b][T],2)}, {v(wa[se][T])} offset:{off + t*4096}")
            r.append(f"ds_read_b64_tr_b16 {v(wf[b][T]+2,2)}, {v(wa[se][T])} offset:{off + t*4096 + 1024}")
        return r
    produce()
    bar(); st.mark()
    for r in reads_ffn(0) + reads_ffn(1): a(r)
    for n in range(32):
        b = n % 3; z = "0" if n == 0 else None
        mfs = [(lambda F=F, S=S: mf32(a, acc[F][S], wf[b][F], xf[b][S], z)) for (F, S) in ((0, 0), (1, 0), (0, 1), (1, 1))]
        fill = reads_ffn(n + 2); per = [3, 3, 0, 0]
        if n % 4 == 2 and n < 28: fill = [bar] + fill; per = [3, 2, 2, 0]
        if n == 4:
            fill += [f"v_cndmask_b32 {v(cs)}, {v(cs)}, {v(cs+1)}, s[58:59]", f"v_cndmask_b32 {v(cs+2)}, {v(cs+2)}, {v(cs+3)}, s[58:59]",
                     f"v_cndmask_b32 {v(cs+1)}, {v(cs)}, {v(cs+2)}, s[62:63]", f"v_cndmask_b32 {v(cs)}, {v(cs)}, {v(cs+2)}, s[62:63]"]
            per = [3, 3, 2, 2]
        if n == 5:
            fill += [f"v_permlane32_swap_b32 {v(cs)}, {v(cs+1)}", f"v_add_f32 {v(cs)}, {v(cs)}, {v(cs+1)}", f"ds_write_b32 {v(ad2)}, {v(cs)}"]
            per = [3, 4, 1, 1]
        if n == OPT["e1step"]:
            fill = [bar, f"ds_read_b64 {v(a12[0],2)}, {v(ad1)}", f"ds_read_b64 {v(a12[1],2)}, {v(ad3)}"] + \
                   [f"ds_read_b128 {v(cv[F]+4*jj,4)}, {v(ad)} offset:{32*jj}" for F, ad in ((0, ad4), (1, ad5)) for jj in range(4)]
            per = [4, 4, 3, 0]
            if MG: fill += [f"v_mov_b32 {v(gz)}, {NON}", f"ds_read_b32 {v(gn)}, {v(gz)}"]; per[3] = 2
        interleave(a, mfs, fill, per)
        if n < 4:
            for h in (0, 2): mf4(a, cs, ones, wf[b][0]+h, "0" if (n == 0 and h == 0) else None)
        if n == 10: few()
    st.mark()
    tmp = xf[0][0]; ee = tmp + 16; pk = [ee + 16, ee + 24]
    assert wf[2][1] + 4 == tmp + 48
    k = 0
    for S in range(2):
        for F in range(2):
            A_ = acc[F][S]; pp = pk[k & 1]; k += 1
            for i in range(0, 16, 2): a(f"v_pk_mul_f32 {v(tmp+i,2)}, {v(cv[F]+i,2)}, {v(a12[S],2)} op_sel:[0,1] op_sel_hi:[1,1]")
            for i in range(0, 16, 2): a(f"v_pk_fma_f32 {v(A_+i,2)}, {v(A_+i,2)}, {v(a12[S],2)}, {v(tmp+i,2)} op_sel:[0,0,0] op_sel_hi:[1,0,1]")
            for i in range(16): a(f"v_exp_f32 {v(ee+i)}, {v(A_+i)}")
            for i in range(0, 16, 2): a(f"v_pk_fma_f32 {v(ee+i,2)}, {v(ee+i,2)}, s[60:61], s[60:61]")
            for i in range(16): a(f"v_rcp_f32 {v(ee+i)}, {v(ee+i)}")
            for i in range(0, 16, 2): a(f"v_pk_mul_f32 {v(A_+i,2)}, {v(A_+i,2)}, {v(ee+i,2)}")
            for u in range(2):
                for i in range(4): a(f"v_cvt_pk_bf16_f32 {v(pp+4*u+i)}, {v(A_+8*u+2*i)}, {v(A_+8*u+2*i+1)}")
                if 2*(k-1) + u >= OPT["noH"]: a(f"buffer_store_dwordx4 {v(pp+4*u,4)}, {v(l16)}, {s(SW,4)}, s{44+2*F+S} offen offset:{1024*u} {'sc1' if 2*(k-1) + u < OPT['nsc1'] else ''}")
    st.mark()
    nc = st.n
    if MG: a(f"v_readfirstlane_b32 s66, {v(gn)}\ns_branch P2_COMPUTE")
    else:
        st.flush(SW, tmp, tid)
        a("s_endpgm")
    vmax = max(V.hi, Vx.hi, rw + 8)
    a.restore(snap); V.n = V0; st.n = 1 if OPT["stamp"] else 0
    a.label("K1_DFT")
    xa = [V.get(4), V.get(4)]; ta = [V.get(), V.get()]; ad2 = V.get(); wad = [V.get(), V.get()]
    Vo = VAlloc(V.get(6))
    acc = [[V.get(16) for _ in range(2)] for _ in range(4)]
    xr = V.get(16); xe = [V.get(4) for _ in range(4)]; tf = [[V.get(4) for _ in range(2)] for _ in range(4)]
    assert rw >= xr
    a(f"v_lshlrev_b32 {v(t1)}, 2, {v(t3)}\nv_xor_b32 {v(t1)}, {v(t1)}, {v(key)}")
    for i in range(4):
        a(f"v_xor_b32 {v(t2)}, {i}, {v(t1)}\nv_lshl_add_u32 {v(xa[0]+i)}, {v(t2)}, 4, {v(t0)}\nv_add_u32 {v(xa[1]+i)}, 65536, {v(xa[0]+i)}")
    a(f"""v_lshlrev_b32 {v(ta[0])}, 4, {v(lane)}
          v_add_u32 {v(ta[0])}, 16384, {v(ta[0])}
          v_add_u32 {v(ta[1])}, 65536, {v(ta[0])}
          s_mov_b32 s62, 0x05040100
          s_mov_b32 s63, 0x07060302
          s_lshl_b32 s3, {s(sV)}, 7
          s_add_u32 s3, s3, {SCR}
          v_lshl_add_u32 {v(ad2)}, {v(t3)}, 4, s3
          v_and_b32 {v(t1)}, 31, {v(lane)}
          v_cmp_eq_u32 s[64:65], 0, {v(t1)}
          v_lshlrev_b32 {v(t5)}, 9, {v(t1)}
          v_and_b32 {v(t1)}, 7, {v(lane)}
          v_xor_b32 {v(t1)}, {v(t1)}, {v(t3)}
          s_lshl_b32 s3, {s(sV)}, 2
          v_xor_b32 {v(t1)}, s3, {v(t1)}
          v_lshl_add_u32 {v(wad[0])}, {v(t1)}, 4, {v(t5)}
          v_xor_b32 {v(wad[1])}, 32, {v(wad[0])}
          s_mov_b32 s60, 2.0
          s_mov_b32 s61, 2.0
          s_mov_b32 s32, 0.5
          s_mov_b32 s33, 0.5""")
    class R2:
        def __init__(s_): s_.k = 0
        def get(s_, n=1):
            return acc[0][0] if n == 32 else Vo.get(n)
    x1pre, x1post = x1_out(R2())
    a(x1pre)
    def loc(sl): slot = sl % NS; return slot >> 1, (slot & 1) * 32768
    def rd_x(sl): se, off = loc(sl); return [f"ds_read_b128 {v(xr+4*b,4)}, {v(xa[se]+b)} offset:{off}" for b in range(4)]
    def rd_t(sl, r): se, off = loc(sl); return [f"ds_read_b128 {v(tf[r][c],4)}, {v(ta[se])} offset:{off + (2*r + c)*1024}" for c in range(2)]
    def perms(r): return [f"v_perm_b32 {v(xe[r]+i)}, {v(xr+4*i+2+(r>>1))}, {v(xr+4*i+(r>>1))}, s{62+(r&1)}" for i in range(4)]
    produce()
    bar(); st.mark()
    for r in rd_x(0) + sum((rd_t(0, r) for r in range(4)), []): a(r)
    for r in range(4):
        for p in perms(r): a(p)
    rs = xr
    for sl in range(8):
        z = "0" if sl == 0 else None
        mfs = [(lambda r=r, c=c: mf32(a, acc[r][c], xe[r], tf[r][c], z)) for r in range(4) for c in range(2)]
        if sl < 7:
            bar()
            fill = rd_x(sl + 1); per = [4]
            for r in range(4):
                nx = rd_t(sl + 1, r) + (perms(r - 1) if r else [])
                fill += nx; per += [len(nx), 0]
            fill += perms(3); per = per[:8]
        else: fill = []; per = [0] * 8
        interleave(a, mfs, fill, per)
        if sl == 2: few()
    st.mark()
    tmp = xe[0]; pk = [tf[0][0], tf[0][1]]
    ng = lambda *n: f" neg_lo:[{n[0]},{n[1]},{n[2]}] neg_hi:[{n[0]},{n[1]},{n[2]}]"
    for i in range(0, 16, 2):
        P = lambda q, c: v(acc[q][c]+i, 2)
        for q in range(2):
            for c in range(2): a(f"v_pk_add_f32 {P(q,c)}, {P(q,c)}, {P(q+2,c)}")
        for q in range(2):
            for c in range(2): a(f"v_pk_fma_f32 {P(q+2,c)}, {P(q+2,c)}, s[60:61], {P(q,c)}{ng(1,0,0)}")
        a(f"""v_pk_add_f32 {P(0,0)}, {P(0,0)}, {P(1,0)}
              v_pk_add_f32 {P(0,1)}, {P(0,1)}, {P(1,1)}
              v_pk_add_f32 {P(2,0)}, {P(2,0)}, {P(3,1)}
              v_pk_add_f32 {P(2,1)}, {P(2,1)}, {P(3,0)} neg_lo:[0,1] neg_hi:[0,1]
              v_pk_fma_f32 {P(1,0)}, {P(1,0)}, s[60:61], {P(0,0)}{ng(1,0,0)}
              v_pk_fma_f32 {P(1,1)}, {P(1,1)}, s[60:61], {P(0,1)}{ng(0,0,1)}
              v_pk_fma_f32 {P(3,1)}, {P(3,1)}, s[60:61], {P(2,0)}{ng(1,0,0)}
              v_pk_fma_f32 {P(3,0)}, {P(3,0)}, s[60:61], {P(2,1)}{ng(1,0,1)}""")
    a(f"s_cmp_lg_u32 {s(sHF)}, 0\ns_cbranch_scc1 K1_NOSPEC\ns_mov_b64 exec, s[64:65]")
    for i in range(0, 16, 2):
        P = lambda q, c: v(acc[q][c]+i, 2); T = lambda k: v(tmp+2*k, 2); n2 = " neg_lo:[0,1] neg_hi:[0,1]"
        a(f"""v_pk_add_f32 {T(0)}, {P(2,0)}, {P(3,1)}{n2}
              v_pk_add_f32 {T(1)}, {P(2,1)}, {P(3,0)}{n2}
              v_pk_add_f32 {T(2)}, {P(0,1)}, {P(1,1)}
              v_pk_add_f32 {T(3)}, {P(0,1)}, {P(1,1)}{n2}
              v_pk_add_f32 {P(2,0)}, {P(2,0)}, {P(3,1)}
              v_pk_add_f32 {P(2,1)}, {P(2,1)}, {P(3,0)}
              v_pk_add_f32 {T(4)}, {T(3)}, {T(1)}
              v_pk_add_f32 {T(5)}, {T(3)}, {T(1)}{n2}
              v_pk_mul_f32 {P(2,0)}, {P(2,0)}, s[32:33]
              v_pk_mul_f32 {P(2,1)}, {P(2,1)}, s[32:33]
              v_pk_add_f32 {P(0,0)}, {T(4)}, {T(0)}
              v_pk_add_f32 {P(0,1)}, {T(5)}, {T(2)} neg_lo:[1,1] neg_hi:[1,1]
              v_pk_add_f32 {P(3,1)}, {T(4)}, {T(0)}{n2}
              v_pk_add_f32 {P(3,0)}, {T(5)}, {T(2)}{n2}
              v_mov_b32 {v(acc[1][1]+i)}, 0
              v_mov_b32 {v(acc[1][1]+i+1)}, 0""")
    a("s_mov_b64 exec, -1")
    a.label("K1_NOSPEC")
    few()
    bar()
    if MG: a(f"v_mov_b32 {v(gz)}, {NON}\nds_read_b32 {v(gn)}, {v(gz)}")
    for jj in range(4): a(f"ds_read_b128 {v(rs+4*jj,4)}, {v(ad2)} offset:{32*jj}")
    k = 0
    for ty in range(4):
        for c in range(2):
            src = acc[ty][c if ty < 3 else 1 - c]
            for u in range(2):
                pp = pk[k & 1]; k += 1
                for i in range(4): a(f"v_pk_mul_f32 {v(src+8*u+2*i,2)}, {v(src+8*u+2*i,2)}, {v(rs+8*u+2*i,2)}")
                for i in range(4): a(f"v_cvt_pk_bf16_f32 {v(pp+i)}, {v(src+8*u+2*i)}, {v(src+8*u+2*i+1)}")
                a(f"ds_write_b128 {v(wad[u])}, {v(pp,4)} offset:{ty*16384 + c*256}")
    few()
    x1post()
    st.mark()
    if MG:
        import genp
        assert st.n == nc
        a(f"v_readfirstlane_b32 s66, {v(gn)}")
        a.vm, a.lg, a.hist = [("?", set())], [], []
        vmax = max(vmax, genp.compute23(a, st))
        a.vm, a.lg, a.hist = [("?", set())], [], []; st.n = nl
        vmax = max(vmax, genp.loader23(a, st))
    else: st.flush(SW, tmp, tid)
    a.label("K1_END")
    a("s_endpgm")
    return a, max(vmax, V.hi), (163840 if MG else 139264, 512)
```

```python
from asmfw import Asm, VAlloc, v, s
import __main__ as M
G = M if hasattr(M, "dft_table") else __import__("gen")
OPT = G.OPT; fbits = G.fbits; srd = G.srd; mf32 = G.mf32; mf16 = G.mf16
H_OFF, X1_OFF, WT_OFF, Y1_OFF, PART_OFF, WS_END, F1_OFF, F2_OFF, F3_OFF = G.H_OFF, G.X1_OFF, G.WT_OFF, G.Y1_OFF, G.PART_OFF, G.WS_END, G.F1_OFF, G.F2_OFF, G.F3_OFF
SW, S2, SX, SO = 12, 8, 4, 16
sN = 66
XB, WB, EX, RED, CNT = 65536, 73728, 81920, 98304, 90112
NS2 = 5
tid, lane, t0, t1, t2, t3, t4, t5 = range(8)
sV, sQ, sRB, sNB, sL, sHo, s2o, sWR_, sWC, sRT, sCB, sYo = 37, 35, 36, 34, 38, 39, 40, 41, 42, 35, 36, 39

def put_flag(a, off, va, vd):
    a(f"""s_lshl_b32 s3, s2, 7
          s_add_u32 s3, s3, {off}
          v_mov_b32 {v(va)}, s3
          v_mov_b32 {v(vd)}, {s(sN)}
          s_mov_b64 exec, 1
          buffer_store_dword {v(vd)}, {v(va)}, {s(SW,4)}, 0 offen sc1
          s_mov_b64 exec, -1""")
def flag_load(a, va, vd): a(f"buffer_load_dword {v(vd)}, {v(va)}, {s(SW,4)}, 0 offen sc1")
def wait_flags(a, name, va, vd):
    a(f"v_cmp_ne_u32 vcc, {s(sN)}, {v(vd)}\ns_cbranch_vccz {name}_OK\ns_mov_b32 s67, 0")
    keep = a.snapshot()
    a.label(f"{name}_SPIN")
    if OPT["slS"]: a(f"s_sleep {OPT['slS']}")
    flag_load(a, va, vd)
    a(f"""s_add_u32 s67, s67, 1
          s_cmp_gt_u32 s67, {OPT["spinf"]}
          s_waitcnt vmcnt(0)
          s_cbranch_scc1 {name}_OK
          v_cmp_ne_u32 vcc, {s(sN)}, {v(vd)}
          s_cbranch_vccnz {name}_SPIN""")
    a.label(f"{name}_OK")
    a.restore(keep); a.hist = []

def decode2(a, l16):
    a(f"""v_lshlrev_b32 {v(l16)}, 4, {v(lane)}
          v_lshrrev_b32 {v(t1)}, 4, {v(lane)}
          s_bfe_u32 {s(sQ)}, s2, 0x20001
          s_and_b32 s3, s2, 1
          s_lshl_b32 s3, s3, 3
          s_lshr_b32 {s(sRB)}, s2, 5
          s_add_u32 {s(sRB)}, {s(sRB)}, s3
          s_bfe_u32 {s(sNB)}, s2, 0x20003""")
def decode3(a):
    a(f"""s_and_b32 s3, s2, 7
          s_lshl_b32 s3, s3, 2
          s_bfe_u32 {s(sRT)}, s2, 0x20003
          s_add_u32 {s(sRT)}, {s(sRT)}, s3
          s_lshr_b32 {s(sCB)}, s2, 5
          v_lshrrev_b32 {v(t3)}, 5, {v(lane)}""")

def loader23(a, st):
    a.label("P2_LOADER")
    V = VAlloc(8); l16 = V.get(); v2 = V.get(4); fa, fd, fa2, fd2 = [V.get() for _ in range(4)]
    a("s_load_dwordx2 s[26:27], s[0:1], 40\ns_load_dwordx2 s[28:29], s[0:1], 0\ns_load_dwordx2 s[30:31], s[0:1], 48")
    decode2(a, l16)
    a(f"""s_lshl_b32 s43, s2, 13
          s_lshl_b32 s44, {s(sV)}, 11
          s_add_u32 s43, s43, s44""")
    a(f"""s_add_u32 s47, s43, {X1_OFF}
          s_add_u32 s48, s43, {WT_OFF}
          s_lshl_b32 {s(sL)}, {s(sV)}, 12
          s_lshl_b32 s3, {s(sRB)}, 2
          s_add_u32 s3, s3, {s(sV)}
          s_mul_i32 s3, s3, 112
          s_mul_i32 s43, {s(sQ)}, 28
          s_add_u32 s3, s3, s43
          s_lshl_b32 {s(sHo)}, s3, 10
          s_mul_i32 s3, {s(sQ)}, 448
          s_lshl_b32 s43, {s(sV)}, 4
          s_add_u32 s3, s3, s43
          s_lshl_b32 s3, s3, 10
          s_lshl_b32 s43, {s(sNB)}, 7
          s_add_u32 {s(s2o)}, s3, s43
          v_and_b32 {v(t0)}, 15, {v(lane)}
          v_lshlrev_b32 {v(t2)}, 2, {v(t1)}
          v_xor_b32 {v(t0)}, {v(t0)}, {v(t2)}
          v_lshrrev_b32 {v(t2)}, 3, {v(t0)}
          v_and_b32 {v(t0)}, 7, {v(t0)}
          v_lshlrev_b32 {v(t0)}, 4, {v(t0)}
          v_lshl_add_u32 {v(t0)}, {v(t2)}, 9, {v(t0)}
          v_lshl_add_u32 {v(v2)}, {v(t1)}, 10, {v(t0)}
          v_add_u32 {v(v2+1)}, 3072, {v(v2)}
          v_add_u32 {v(v2+2)}, 6144, {v(v2)}
          v_add_u32 {v(v2+3)}, 9216, {v(v2)}""")
    a(f"""s_and_b32 s3, {s(sRB)}, 3
          s_lshl_b32 s3, s3, 3
          s_lshr_b32 s43, {s(sRB)}, 2
          s_lshl_b32 s43, s43, 1
          s_add_u32 s3, s3, s43
          s_lshr_b32 s43, {s(sQ)}, 1
          s_add_u32 s3, s3, s43
          s_and_b32 s43, {s(sQ)}, 1
          s_mul_i32 s43, s43, 96
          s_add_u32 s3, s3, s43
          s_lshl_b32 s3, s3, 7
          s_add_u32 s3, s3, {F1_OFF}
          v_and_b32 {v(t0)}, 3, {v(lane)}
          v_lshl_add_u32 {v(fa)}, {v(t0)}, 12, s3
          s_lshl_b32 s3, {s(sV)}, 13
          s_add_u32 s3, s3, {F1_OFF}
          v_lshl_add_u32 {v(fa2)}, {v(lane)}, 7, s3""")
    a.waitlg()
    srd(a, S2, 26, 27, 1792 * 1024)
    a("s_waitcnt vmcnt(0)\ns_barrier")
    st.mark()
    a(f"s_cmp_lg_u32 {s(sV)}, 0\ns_cbranch_scc1 P2_NOFLAG")
    keep = a.snapshot(); put_flag(a, F1_OFF, t0, t2); a.label("P2_NOFLAG"); a.restore(keep)
    def dma(slab, q):
        slot = slab % NS2; part, hf = q >> 1, q & 1
        if hf == 0: a(f"s_add_u32 m0, {s(sL)}, {slot*32768 + part*16384}")
        for j in (2*hf, 2*hf + 1):
            if part == 0: a(f"buffer_load_dwordx4 {v(l16)}, {s(SW,4)}, {s(sHo)} offen offset:{1024*j} sc1 lds", tag=f"S{slab}")
            else: a(f"buffer_load_dwordx4 {v(v2+j)}, {s(S2,4)}, {s(s2o)} offen offset:{1024*j} lds", tag=f"S{slab}")
        if hf == 1:
            reg, step = (sHo, 4096) if part == 0 else (s2o, 65536)
            a(f"s_add_u32 {s(reg)}, {s(reg)}, {step}")
    npre = OPT["k2sched"][0] // 4
    for sl in range(npre): dma(sl, 2); dma(sl, 3)
    if OPT["slH"]: a(f"s_sleep {OPT['slH']}")
    flag_load(a, fa, fd); wait_flags(a, "P2_FH", fa, fd)
    st.mark()
    for sl in range(npre): dma(sl, 0); dma(sl, 1)
    quarters = [(i >> 2, i & 3) for i in range(28)]; pos = 0
    for ph, cnt in enumerate(OPT["k2sched"]):
        if ph == 1: flag_load(a, fa2, fd2)
        for (sl, part) in quarters[pos:pos+cnt]:
            assert sl < NS2 or sl - NS2 <= ph - 2, (sl, ph)
            if ph: dma(sl, part)
        pos += cnt
        if ph == OPT["phX"]:
            assert ph >= 4
            for base, so in ((XB, 47), (WB, 48)):
                a(f"s_add_u32 m0, s44, {base}")
                for j in range(2): a(f"buffer_load_dwordx4 {v(l16)}, {s(SW,4)}, s{so} offen offset:{1024*j} sc1 lds", tag="X")
        a.waitvm(f"S{ph}")
        if ph == 3: wait_flags(a, "P2_FA", fa2, fd2)
        if ph == 6: a.waitvm("X")
        a("s_barrier")
        if ph in (0, 6): st.mark()
    assert pos == 28 and len(OPT["k2sched"]) == 7
    decode3(a)
    vxo = V.get(); pt = V.get(32); xv = V.get(8); rr = V.get(2)
    a(f"""s_lshl_b32 s3, {s(sRT)}, 1
          s_lshr_b32 s40, {s(sV)}, 1
          s_add_u32 s3, s3, s40
          s_lshl_b32 s3, s3, 4
          s_add_u32 s3, s3, {s(sCB)}
          s_lshl_b32 s3, s3, 1
          s_and_b32 s40, {s(sV)}, 1
          s_add_u32 s3, s3, s40
          s_lshl_b32 s3, s3, 10
          s_add_u32 s43, s3, {PART_OFF}""")
    srd(a, SX, 28, 29, 0x200000); srd(a, SO, 30, 31, 0x200000)
    a(f"""v_bfe_u32 {v(t0)}, {v(lane)}, 4, 1
          v_bfe_u32 {v(t1)}, {v(lane)}, 2, 2
          v_lshl_add_u32 {v(t0)}, {v(t0)}, 4, {v(t1)}
          v_lshl_add_u32 {v(t0)}, {v(t3)}, 5, {v(t0)}
          v_and_b32 {v(t2)}, 3, {v(lane)}
          v_lshlrev_b32 {v(t2)}, 4, {v(t2)}
          v_lshl_add_u32 {v(vxo)}, {v(t0)}, 10, {v(t2)}
          s_lshr_b32 s3, {s(sRT)}, 3
          s_lshl_b32 s3, s3, 9
          s_and_b32 s40, {s(sRT)}, 1
          s_lshl_b32 s40, s40, 8
          s_add_u32 s3, s3, s40
          s_lshl_b32 s40, {s(sV)}, 6
          s_add_u32 s3, s3, s40
          s_bfe_u32 s40, {s(sRT)}, 0x20001
          s_lshl_b32 s40, s40, 2
          s_add_u32 s3, s3, s40
          s_lshl_b32 s3, s3, 10
          s_lshl_b32 s40, {s(sCB)}, 6
          s_add_u32 s45, s3, s40""")
    for lh in range(2): a(f"buffer_load_dwordx4 {v(xv+4*lh,4)}, {v(vxo)}, {s(SX,4)}, s45 offen offset:{512*lh}", tag="P")
    a(f"""s_bfe_u32 s3, {s(sRT)}, 0x30001
          s_lshl_b32 s3, s3, 2
          s_lshr_b32 s40, {s(sCB)}, 1
          s_add_u32 s3, s3, s40
          s_lshl_b32 s3, s3, 3
          s_lshr_b32 s40, {s(sRT)}, 4
          s_add_u32 s3, s3, s40
          s_lshl_b32 s3, s3, 7
          s_add_u32 s3, s3, {F2_OFF}
          v_and_b32 {v(t0)}, 3, {v(lane)}
          v_lshl_add_u32 {v(fa)}, {v(t0)}, 8, s3""")
    a("s_barrier")
    st.mark()
    if OPT["slP"]: a(f"s_sleep {OPT['slP']}")
    flag_load(a, fa, fd); wait_flags(a, "P3_FP", fa, fd)
    st.mark()
    for q in range(4):
        for lh in range(2):
            if q or lh: a(f"s_add_u32 s43, s43, {16384 if lh else 0x200000 - 16384}")
            a(f"buffer_load_dwordx4 {v(pt + 8*q + 4*lh,4)}, {v(l16)}, {s(SW,4)}, s43 offen sc1", tag="P")
    a(f"""v_lshrrev_b32 {v(t0)}, 2, {v(lane)}
          s_lshl_b32 s3, {s(sV)}, 11
          s_add_u32 s3, s3, {RED}
          v_lshl_add_u32 {v(t2)}, {v(t0)}, 7, s3
          v_and_b32 {v(t0)}, 7, {v(t0)}
          v_and_b32 {v(t4)}, 3, {v(lane)}
          v_lshlrev_b32 {v(t4)}, 1, {v(t4)}
          v_xor_b32 {v(t0)}, {v(t0)}, {v(t4)}
          v_lshl_add_u32 {v(rr)}, {v(t0)}, 4, {v(t2)}
          v_xor_b32 {v(rr+1)}, 16, {v(rr)}
          s_mov_b32 s46, 0xffff0000
          s_mov_b32 s48, {fbits(1/256)}
          s_mov_b32 s49, {fbits(1/256)}""")
    bs = [V.get(8), V.get(8)]; u0 = V.get(8); red = V.get(32); pk = V.get(8)
    for q in range(5):
        for lh in range(2):
            for i in range(4):
                src = (pt + 8*(q-1) if q else xv) + 4*lh + i; dst = bs[lh] if q == 0 else u0
                a(f"v_lshlrev_b32 {v(dst+2*i)}, 16, {v(src)}\nv_and_b32 {v(dst+2*i+1)}, s46, {v(src)}")
            if q:
                for i in range(4): a(f"v_add_f32 {v(bs[lh]+2*i)}, {v(bs[lh]+2*i)}, {v(u0+2*i)}\nv_add_f32 {v(bs[lh]+2*i+1)}, {v(bs[lh]+2*i+1)}, {v(u0+2*i+1)}")
    st.mark()
    a("s_barrier")
    for b in range(2):
        for w in range(4): a(f"ds_read_b128 {v(red+8*w+4*b,4)}, {v(rr+b)} offset:{8192*w}")
    for i in range(0, 8, 2):
        a(f"""v_pk_add_f32 {v(red+i,2)}, {v(red+i,2)}, {v(red+8+i,2)}
              v_pk_add_f32 {v(red+16+i,2)}, {v(red+16+i,2)}, {v(red+24+i,2)}
              v_pk_fma_f32 {v(bs[0]+i,2)}, {v(red+16+i,2)}, s[48:49], {v(bs[0]+i,2)}
              v_pk_fma_f32 {v(bs[1]+i,2)}, {v(red+16+i,2)}, s[48:49], {v(bs[1]+i,2)}
              v_pk_fma_f32 {v(bs[0]+i,2)}, {v(red+i,2)}, s[48:49], {v(bs[0]+i,2)}
              v_pk_fma_f32 {v(bs[1]+i,2)}, {v(red+i,2)}, s[48:49], {v(bs[1]+i,2)} neg_lo:[1,0,0] neg_hi:[1,0,0]""")
    for lh in range(2):
        for i in range(4): a(f"v_cvt_pk_bf16_f32 {v(pk+4*lh+i)}, {v(bs[lh]+2*i)}, {v(bs[lh]+2*i+1)}")
        a(f"buffer_store_dwordx4 {v(pk+4*lh,4)}, {v(vxo)}, {s(SO,4)}, s45 offen offset:{512*lh} {OPT['stO']}")
    st.mark()
    st.flush(SW, red, tid, 256, 1)
    a("s_endpgm")
    return V.hi

def compute23(a, st):
    a.label("P2_COMPUTE")
    V = VAlloc(8); l16 = V.get()
    decode2(a, l16)
    a(f"""s_lshr_b32 {s(sWR_)}, {s(sV)}, 1
          s_and_b32 {s(sWC)}, {s(sV)}, 1""")
    C64 = [V.get(4) for _ in range(2)]; S64 = [V.get(4) for _ in range(2)]; N64 = [V.get(4) for _ in range(2)]
    C32 = [V.get(4) for _ in range(2)]; S32 = [V.get(4) for _ in range(2)]; N32 = [V.get(4) for _ in range(2)]
    c1 = V.get(8); s1 = V.get(8); c2 = V.get(8); s2_ = V.get(8)
    xrd, exw, exr0, exr1, pad, wrd = [V.get() for _ in range(6)]
    ha = [V.get(), V.get(), V.get()]; wa = [[V.get(), V.get()] for _ in range(3)]
    acc = [[V.get(16) for _ in range(2)] for _ in range(2)]
    hf = [[V.get(4) for _ in range(2)] for _ in range(3)]
    wf = [[V.get(4) for _ in range(2)] for _ in range(3)]
    D = [V.get(8), V.get(8)]; wd = V.get(8)
    fr = hf[0][0]; assert wf[2][1] + 4 == fr + 48
    fj, fg, fk, ang = fr, fr + 1, fr + 2, fr + 3; cb = fr + 4; sb = fr + 12
    free = [fr + 8, fr + 12, fr + 16, fr + 20, fr + 32, fr + 36, fr + 40, fr + 44]
    xin = [[[free[(c*2 + m)*2 + t] for t in range(2)] for m in range(2)] for c in range(2)]
    pk = fr
    E = [acc[0][0], acc[0][0] + 8]; P = [acc[0][1], acc[0][1] + 4]; wr = acc[1][0]; wi = acc[1][0] + 8
    a(f"""v_and_b32 {v(t0)}, 15, {v(lane)}
          v_cvt_f32_u32 {v(fj)}, {v(t0)}
          v_cvt_f32_u32 {v(fg)}, {v(t1)}
          s_lshl_b32 s3, {s(sV)}, 4
          v_add_u32 {v(t0)}, s3, {v(t0)}
          v_cvt_f32_u32 {v(fk)}, {v(t0)}
          s_mov_b32 s47, 0x80008000""")
    def frag(step, base, offs, Cd, Sd, Nd):
        for e in range(8):
            a(f"v_mov_b32 {v(t4)}, {fbits(float(offs[e]))}\nv_fma_f32 {v(ang)}, {v(t4)}, {v(step)}, {v(base)}" if offs[e] not in (0, 1, 2, 4) else
              (f"v_mov_b32 {v(ang)}, {v(base)}" if offs[e] == 0 else f"v_fma_f32 {v(ang)}, {float(offs[e])}, {v(step)}, {v(base)}"))
            a(f"v_cos_f32 {v(cb+e)}, {v(ang)}\nv_sin_f32 {v(sb+e)}, {v(ang)}")
        for i in range(4):
            a(f"v_cvt_pk_bf16_f32 {v(Cd+i)}, {v(cb+2*i)}, {v(cb+2*i+1)}\nv_cvt_pk_bf16_f32 {v(Sd+i)}, {v(sb+2*i)}, {v(sb+2*i+1)}\nv_xor_b32 {v(Nd+i)}, s47, {v(Sd+i)}")
    a(f"v_mul_f32 {v(t2)}, {fbits(1/64)}, {v(fk)}\nv_mul_f32 {v(t3)}, {fbits(8.0)}, {v(fg)}\nv_mul_f32 {v(t5)}, {v(t3)}, {v(t2)}")
    frag(t2, t5, list(range(8)), C64[0], S64[0], N64[0])
    a(f"v_add_f32 {v(t3)}, {fbits(32.0)}, {v(t3)}\nv_mul_f32 {v(t5)}, {v(t3)}, {v(t2)}")
    frag(t2, t5, list(range(8)), C64[1], S64[1], N64[1])
    o32 = [0, 1, 2, 3, 16, 17, 18, 19]
    a(f"v_mul_f32 {v(t3)}, 4.0, {v(fg)}")
    for m in range(2):
        a(f"v_mul_f32 {v(t2)}, {fbits(1/32)}, {v(fj)}")
        if m: a(f"v_add_f32 {v(t2)}, 0.5, {v(t2)}")
        a(f"v_mul_f32 {v(t5)}, {v(t3)}, {v(t2)}")
        frag(t2, t5, o32, C32[m], S32[m], N32[m])
    a(f"v_mul_f32 {v(t2)}, {fbits(1/2048)}, {v(fk)}\nv_mul_f32 {v(t5)}, {v(t3)}, {v(t2)}")
    for e in range(8):
        a(f"v_mov_b32 {v(t4)}, {fbits(float(o32[e]))}\nv_fma_f32 {v(ang)}, {v(t4)}, {v(t2)}, {v(t5)}\nv_cos_f32 {v(c1+e)}, {v(ang)}\nv_sin_f32 {v(s1+e)}, {v(ang)}")
    a(f"v_cvt_f32_u32 {v(t4)}, s3\nv_add_f32 {v(t3)}, {v(t3)}, {v(t4)}")
    for m in range(2):
        a(f"v_mul_f32 {v(t2)}, {fbits(1/2048)}, {v(fj)}")
        if m: a(f"v_add_f32 {v(t2)}, {fbits(16/2048)}, {v(t2)}")
        a(f"v_mul_f32 {v(ang)}, {v(t3)}, {v(t2)}")
        for r in range(4):
            if r: a(f"v_add_f32 {v(ang)}, {v(ang)}, {v(t2)}")
            a(f"v_cos_f32 {v(c2+4*m+r)}, {v(ang)}\nv_sin_f32 {v(s2_+4*m+r)}, {v(ang)}")
    a(f"s_mov_b32 s48, {fbits(1/2048)}\ns_mov_b32 s49, {fbits(1/2048)}")
    for i in range(0, 8, 2): a(f"v_pk_mul_f32 {v(c2+i,2)}, {v(c2+i,2)}, s[48:49]\nv_pk_mul_f32 {v(s2_+i,2)}, {v(s2_+i,2)}, s[48:49]")
    a(f"""v_and_b32 {v(t0)}, 15, {v(lane)}
          v_lshrrev_b32 {v(t2)}, 1, {v(t1)}
          v_and_b32 {v(t3)}, 1, {v(t1)}
          v_lshlrev_b32 {v(t4)}, 5, {v(t0)}
          v_lshl_add_u32 {v(t4)}, {v(t2)}, 9, {v(t4)}
          v_lshl_add_u32 {v(t4)}, {v(t3)}, 4, {v(t4)}
          v_add_u32 {v(xrd)}, {XB}, {v(t4)}
          v_lshrrev_b32 {v(t4)}, 1, {v(t0)}
          v_lshlrev_b32 {v(t0)}, 7, {v(t0)}
          v_add_u32 {v(t0)}, {EX}, {v(t0)}
          v_xor_b32 {v(t5)}, {v(t4)}, {v(t1)}
          v_lshl_add_u32 {v(exr0)}, {v(t5)}, 4, {v(t0)}
          v_xor_b32 {v(exr1)}, 64, {v(exr0)}
          s_lshl_b32 s3, {s(sV)}, 1
          v_add_u32 {v(t2)}, s3, {v(t2)}
          v_xor_b32 {v(t2)}, {v(t2)}, {v(t4)}
          v_lshl_add_u32 {v(t2)}, {v(t2)}, 4, {v(t0)}
          v_lshl_add_u32 {v(exw)}, {v(t3)}, 3, {v(t2)}""")
    a(f"s_lshl_b32 s3, {s(sV)}, 11\ns_add_u32 s3, s3, {WB}\nv_add_u32 {v(wrd)}, s3, {v(l16)}")
    a(f"""s_lshl_b32 s3, {s(sWR_)}, 13
          v_add_u32 {v(ha[0])}, s3, {v(l16)}
          v_add_u32 {v(ha[1])}, 65536, {v(ha[0])}
          v_lshrrev_b32 {v(t3)}, 5, {v(lane)}
          v_bfe_u32 {v(t0)}, {v(lane)}, 2, 2
          v_lshl_add_u32 {v(t1)}, {v(t3)}, 3, {v(t0)}
          v_lshlrev_b32 {v(t1)}, 8, {v(t1)}
          s_lshl_b32 s3, {s(sWC)}, 1
          v_xor_b32 {v(t0)}, s3, {v(t0)}
          v_lshl_add_u32 {v(t1)}, {v(t0)}, 6, {v(t1)}
          v_bfe_u32 {v(t0)}, {v(lane)}, 4, 1
          v_lshl_add_u32 {v(t1)}, {v(t0)}, 5, {v(t1)}
          v_and_b32 {v(t0)}, 1, {v(lane)}
          v_lshl_add_u32 {v(t1)}, {v(t0)}, 4, {v(t1)}
          v_bfe_u32 {v(t0)}, {v(lane)}, 1, 1
          v_lshl_add_u32 {v(t1)}, {v(t0)}, 3, {v(t1)}
          v_add_u32 {v(wa[0][0])}, 16384, {v(t1)}
          v_xor_b32 {v(wa[0][1])}, 64, {v(wa[0][0])}
          v_add_u32 {v(wa[1][0])}, 65536, {v(wa[0][0])}
          v_add_u32 {v(wa[1][1])}, 65536, {v(wa[0][1])}
          v_add_u32 {v(ha[2])}, 131072, {v(ha[0])}
          v_add_u32 {v(wa[2][0])}, 131072, {v(wa[0][0])}
          v_add_u32 {v(wa[2][1])}, 131072, {v(wa[0][1])}""")
    a(f"""v_and_b32 {v(t0)}, 15, {v(lane)}
          v_lshlrev_b32 {v(t0)}, 6, {v(t0)}
          v_lshl_add_u32 {v(t0)}, {v(t3)}, 4, {v(t0)}
          v_bfe_u32 {v(t1)}, {v(lane)}, 4, 1
          v_lshl_add_u32 {v(pad)}, {v(t1)}, 5, {v(t0)}
          s_lshl_b32 s3, {s(sRB)}, 2
          s_lshl_b32 s43, {s(sWR_)}, 1
          s_add_u32 s3, s3, s43
          s_lshl_b32 s3, s3, 4
          s_lshl_b32 s43, {s(sWC)}, 3
          s_add_u32 s3, s3, s43
          s_lshl_b32 s43, {s(sNB)}, 1
          s_add_u32 s3, s3, s43
          s_lshl_b32 s3, s3, 11
          s_lshl_b32 s43, {s(sQ)}, 21
          s_add_u32 s3, s3, s43
          s_add_u32 s50, s3, {PART_OFF}
          s_add_u32 s51, s50, 32768""")
    a(f"""s_and_b32 s3, s2, 1
          s_lshl_b32 s3, s3, 7
          s_lshr_b32 s43, s2, 1
          s_add_u32 s3, s3, s43
          s_lshl_b32 s3, s3, 13
          s_lshl_b32 s43, {s(sV)}, 10
          s_add_u32 s3, s3, s43
          s_add_u32 s44, s3, {Y1_OFF}
          s_add_u32 s45, s44, 4096""")
    a("s_waitcnt vmcnt(0)\ns_barrier")
    st.mark()
    def reads(n):
        if n >= 28: return []
        slab, t = divmod(n, 4); slot = slab % NS2; se, off = slot >> 1, (slot & 1) * 32768; b = n % 3
        r = []
        for T in range(2):
            r.append(f"ds_read_b128 {v(hf[b][T],4)}, {v(ha[se])} offset:{off + T*4096 + t*1024}")
            r.append(f"ds_read_b64_tr_b16 {v(wf[b][T],2)}, {v(wa[se][T])} offset:{off + t*4096}")
            r.append(f"ds_read_b64_tr_b16 {v(wf[b][T]+2,2)}, {v(wa[se][T])} offset:{off + t*4096 + 1024}")
        return r
    def bar():
        a.waitlg(); a("s_barrier")
    a("s_barrier")
    st.mark()
    for r in reads(0) + reads(1): a(r)
    for n in range(28):
        b = n % 3; z = "0" if n == 0 else None
        mfs = [(lambda F=F, S=S: mf32(a, acc[F][S], wf[b][F], hf[b][S], z)) for (F, S) in ((0, 0), (1, 0), (0, 1), (1, 1))]
        fill = reads(n + 2); per = [3, 3, 0, 0]
        if n % 4 == 2 and n < 24: fill = [bar] + fill; per = [3, 2, 2, 0]
        if n == 27:
            fill = [f"ds_read_b128 {v(xin[c][m][t],4)}, {v(xrd)} offset:{c*4096 + m*2048 + t*1024}" for m in range(2) for t in range(2) for c in range(2)]
            fill += [f"ds_read_b128 {v(wd+4*j,4)}, {v(wrd)} offset:{1024*j}" for j in range(2)]
            per = [3, 3, 3, 1]
        G.interleave(a, mfs, fill, per)
    st.mark()
    def big(src, Cc, Sre, Sim, fill=()):
        mfs = []
        for m in range(2):
            for t in range(2):
                z = "0" if t == 0 else None
                mfs += [lambda m=m, t=t, z=z: mf16(a, D[0]+4*m, src[0][m][t], Cc[t], z), lambda m=m, t=t, z=z: mf16(a, D[1]+4*m, src[0][m][t], Sim[t], z),
                        lambda m=m, t=t: mf16(a, D[0]+4*m, src[1][m][t], Sre[t]), lambda m=m, t=t: mf16(a, D[1]+4*m, src[1][m][t], Cc[t])]
        G.interleave(a, mfs, fill, [OPT["pper"]] * 16)
    def cmul(cc, ss, nre, nim):
        ng = lambda n: " neg_lo:[0,1,0] neg_hi:[0,1,0]" if n < 0 else ""
        for i in range(0, 8, 2):
            a(f"""v_pk_mul_f32 {v(E[0]+i,2)}, {v(D[0]+i,2)}, {v(cc+i,2)}
                  v_pk_mul_f32 {v(E[1]+i,2)}, {v(D[1]+i,2)}, {v(cc+i,2)}
                  v_pk_fma_f32 {v(E[0]+i,2)}, {v(D[1]+i,2)}, {v(ss+i,2)}, {v(E[0]+i,2)}{ng(nre)}
                  v_pk_fma_f32 {v(E[1]+i,2)}, {v(D[0]+i,2)}, {v(ss+i,2)}, {v(E[1]+i,2)}{ng(nim)}""")
        for c in range(2):
            for i in range(4): a(f"v_cvt_pk_bf16_f32 {v(P[c]+i)}, {v(E[c]+2*i)}, {v(E[c]+2*i+1)}")
    fill = []
    for S in range(2):
        for F in range(2):
            pp = pk + 24 * F
            fill += [f"v_cvt_pk_bf16_f32 {v(pp+i)}, {v(acc[F][S]+2*i)}, {v(acc[F][S]+2*i+1)}" for i in range(8)]
            fill += [f"v_permlane16_swap_b32 {v(pp+i)}, {v(pp+4+i)}" for i in range(4)]
            fill += [f"buffer_store_dwordx4 {v(pp+4*u,4)}, {v(pad)}, {s(SW,4)}, s{50+S} offen offset:{2048*F + 1024*u} {OPT['stP']}" for u in range(2)]
    for f in fill[:OPT["plead"]]: a(f)
    big(xin, C64, S64, N64, fill[OPT["plead"]:])
    for i in range(8): a(f"v_lshlrev_b32 {v(wr+i)}, 16, {v(wd+i)}\nv_and_b32 {v(wi+i)}, 0xffff0000, {v(wd+i)}")
    cmul(c1, s1, +1, -1)
    for m in range(2):
        mf16(a, D[0]+4*m, C32[m], P[0], "0"); mf16(a, D[1]+4*m, N32[m], P[0], "0")
        mf16(a, D[0]+4*m, S32[m], P[1]); mf16(a, D[1]+4*m, C32[m], P[1])
    cmul(wr, wi, -1, +1)
    for m in range(2):
        mf16(a, D[0]+4*m, P[0], C32[m], "0"); mf16(a, D[1]+4*m, P[0], S32[m], "0")
        mf16(a, D[0]+4*m, P[1], N32[m]); mf16(a, D[1]+4*m, P[1], C32[m])
    cmul(c2, s2_, -1, +1)
    for c in range(2):
        for m in range(2): a(f"ds_write_b64 {v(exw)}, {v(P[c]+2*m,2)} offset:{c*4096 + m*2048}")
    a(f"v_mov_b32 {v(t0)}, {CNT}\nv_mov_b32 {v(t2)}, 0\nds_write_b32 {v(t0)}, {v(t2)}\nds_write_b32 {v(t0)}, {v(t2)} offset:4")
    a.waitlg(); a("s_barrier")
    for m in range(2):
        for t in range(2):
            for c in range(2): a(f"ds_read_b128 {v(xin[c][m][t],4)}, {v(exr1 if t else exr0)} offset:{c*4096 + m*2048}")
    big(xin, C64, N64, S64)
    for c in range(2):
        for i in range(4): a(f"v_cvt_pk_bf16_f32 {v(P[c]+i)}, {v(D[c]+2*i)}, {v(D[c]+2*i+1)}")
        a(f"buffer_store_dwordx4 {v(P[c],4)}, {v(l16)}, {s(SW,4)}, s{44+c} offen {OPT['stY']}", tag="st")
    st.mark()
    vmax = V.hi; keepP = P; V = VAlloc(9); fa, fd = V.get(), V.get()
    decode3(a)
    vy = V.get(4); df = V.get(32); cs_ = V.get(4); ang, dd, hf_, an0 = V.get(), V.get(), V.get(), V.get()
    a(f"""s_lshl_b32 {s(sL)}, {s(sV)}, 14
          v_lshrrev_b32 {v(t1)}, 3, {v(lane)}
          v_bfe_u32 {v(t2)}, {v(lane)}, 4, 1
          v_lshlrev_b32 {v(t2)}, 2, {v(t2)}
          v_and_b32 {v(t0)}, 7, {v(lane)}
          v_xor_b32 {v(t0)}, {v(t0)}, {v(t2)}
          v_lshlrev_b32 {v(t0)}, 4, {v(t0)}
          v_lshl_add_u32 {v(vy)}, {v(t1)}, 12, {v(t0)}
          v_add_u32 {v(vy+1)}, 31744, {v(vy)}
          v_add_u32 {v(vy+2)}, {2*31744}, {v(vy)}
          v_add_u32 {v(vy+3)}, {3*31744}, {v(vy)}
          s_lshl_b32 s3, {s(sV)}, 19
          s_lshl_b32 s40, {s(sRT)}, 7
          s_add_u32 s3, s3, s40
          s_add_u32 {s(sYo)}, s3, {Y1_OFF}
          """)
    R = OPT["rot3"]
    if R: a(f"s_and_b32 s41, {s(sCB)}, 3\ns_lshl_b32 s3, s41, 17\ns_add_u32 {s(sYo)}, {s(sYo)}, s3")
    gen = [f"v_and_b32 {v(t0)}, 31, {v(lane)}", f"s_lshl_b32 s3, {s(sCB)}, 5", f"v_add_u32 {v(t0)}, s3, {v(t0)}", f"v_cvt_f32_u32 {v(dd)}, {v(t0)}",
           f"s_and_b32 s3, {s(sV)}, 1", f"s_lshl_b32 s3, s3, 7", f"s_lshr_b32 s40, {s(sV)}, 1", f"s_add_u32 s3, s3, s40", f"s_add_u32 s3, s3, 1",
           f"v_lshl_add_u32 {v(t0)}, {v(t3)}, 3, s3", f"v_cvt_f32_u32 {v(ang)}, {v(t0)}", f"v_mul_f32 {v(dd)}, {fbits(1/256)}, {v(dd)}",
           f"v_mul_f32 {v(ang)}, {v(ang)}, {v(dd)}", f"v_mul_f32 {v(ang)}, 0.5, {v(ang)}",
           f"v_cmp_eq_u32 vcc, {256 - 118}, {v(t0)}", f"v_mov_b32 {v(hf_)}, 1.0", f"v_mul_f32 {v(t1)}, {fbits(5.0)}, {v(dd)}", f"v_cndmask_b32 {v(hf_)}, {v(hf_)}, 0.5, vcc"]
    if R: gen += [f"v_mov_b32 {v(an0)}, {v(ang)}"]
    for t in range(8):
        if R and t % 2 == 0:
            gen += [f"s_add_u32 s3, s41, {t // 2}", "s_and_b32 s3, s3, 3", "s_lshl_b32 s40, s3, 4", f"v_cvt_f32_u32 {v(t2)}, s40",
                    "s_cmp_eq_u32 s3, 3", "s_cselect_b64 s[42:43], vcc, 0", f"v_fma_f32 {v(ang)}, {v(t2)}, {v(dd)}, {v(an0)}",
                    f"v_mov_b32 {v(hf_)}, 1.0", f"v_cndmask_b32 {v(hf_)}, {v(hf_)}, 0.5, s[42:43]"]
        for e in range(4):
            c, s_ = cs_ + 2 * (e & 1), cs_ + 2 * (e & 1) + 1
            gen += [f"v_cos_f32 {v(c)}, {v(ang)}", f"v_sin_f32 {v(s_)}, {v(ang)}"]
            if e == 3 and (t == 7 or (R and t % 2)): gen += [f"v_mul_f32 {v(c)}, {v(c)}, {v(hf_)}"]
            else: gen += [f"v_add_f32 {v(ang)}, {v(ang)}, {v(dd if e < 3 else t1)}"]
            gen += [f"v_cvt_pk_bf16_f32 {v(df+4*t+e)}, {v(c)}, -{v(s_)}"]
    def last_wave_flag(n, cnt, off, name):
        a(f"""s_waitcnt vmcnt({n})
              v_mov_b32 {v(fa)}, {cnt}
              v_mov_b32 {v(fd)}, 1
              s_mov_b64 exec, 1
              ds_add_rtn_u32 {v(fd)}, {v(fa)}, {v(fd)}
              s_mov_b64 exec, -1
              v_readfirstlane_b32 s46, {v(fd)}
              s_cmp_lg_u32 s46, 3
              s_cbranch_scc1 {name}""")
        keep = a.snapshot(); put_flag(a, off, fa, fd); a.label(name); a.restore(keep)
    last_wave_flag(2, CNT + 4, F2_OFF, "P3_NOFLAG2")
    half = OPT["ghalf"]
    for r in gen[:half]: a(r)
    a("s_waitcnt vmcnt(1)") if False else None
    last_wave_flag(0, CNT, F3_OFF, "P3_NOFLAG3")
    st.mark()
    for r in gen[half:]: a(r)
    ya = [V.get(), V.get()]; yf = [[V.get(4) for _ in range(2)] for _ in range(3)]; acc = [V.get(16), V.get(16)]
    rw = V.get(4)
    a(f"""v_bfe_u32 {v(t1)}, {v(lane)}, 2, 2
          v_lshl_add_u32 {v(t0)}, {v(t3)}, 3, {v(t1)}
          v_lshlrev_b32 {v(t0)}, 7, {v(t0)}
          v_lshrrev_b32 {v(t2)}, 1, {v(t1)}
          v_lshl_add_u32 {v(t0)}, {v(t2)}, 6, {v(t0)}
          v_bfe_u32 {v(t2)}, {v(lane)}, 4, 1
          v_lshl_add_u32 {v(t0)}, {v(t2)}, 5, {v(t0)}
          v_and_b32 {v(t2)}, 3, {v(lane)}
          v_lshl_add_u32 {v(t0)}, {v(t2)}, 3, {v(t0)}
          v_add_u32 {v(ya[0])}, {s(sL)}, {v(t0)}
          v_xor_b32 {v(ya[1])}, 64, {v(ya[0])}
          v_and_b32 {v(t0)}, 31, {v(lane)}
          s_lshl_b32 s3, {s(sV)}, 13
          s_add_u32 s3, s3, {RED}
          v_lshl_add_u32 {v(t0)}, {v(t0)}, 7, s3
          v_and_b32 {v(t2)}, 7, {v(lane)}
          v_xor_b32 {v(t2)}, {v(t2)}, {v(t3)}""")
    for jj in range(4): a(f"v_xor_b32 {v(t4)}, {2*jj}, {v(t2)}\nv_lshl_add_u32 {v(rw+jj)}, {v(t4)}, 4, {v(t0)}")
    a(f"""s_and_b32 s3, {s(sV)}, 1
          s_lshl_b32 s3, s3, 7
          s_lshr_b32 s40, {s(sV)}, 1
          s_add_u32 s3, s3, s40
          s_lshl_b32 s3, s3, 7
          s_add_u32 s3, s3, {F3_OFF}
          v_lshl_add_u32 {v(fa)}, {v(lane)}, 8, s3""")
    if OPT["slY"]: a(f"s_sleep {OPT['slY']}")
    flag_load(a, fa, fd); wait_flags(a, "P3_FY", fa, fd)
    st.mark()
    for g in range(4):
        a(f"s_add_u32 m0, {s(sL)}, {g*4096}")
        for j in range(4): a(f"buffer_load_dwordx4 {v(vy+j)}, {s(SW,4)}, {s(sYo)} offen offset:{1024*j} sc1 lds", tag=f"Y{g}")
        if g < 3 and R: a(f"s_cmp_eq_u32 s41, {3 - g}\ns_mov_b32 s44, 131072\ns_cselect_b32 s44, {(-3*131072) & 0xffffffff}, s44\ns_add_u32 {s(sYo)}, {s(sYo)}, s44")
        elif g < 3: a(f"s_add_u32 {s(sYo)}, {s(sYo)}, 131072")
    def reads(t):
        return [f"ds_read_b64_tr_b16 {v(yf[t%3][T]+2*aa,2)}, {v(ya[T])} offset:{t*2048 + aa*512}" for T in range(2) for aa in range(2)]
    a.waitvm("Y0")
    for r in reads(0) + reads(1): a(r)
    for t in range(8):
        if t < 6:
            if t % 2 == 0: a.waitvm(f"Y{(t+2)//2}")
            for r in reads(t + 2): a(r)
        for T in range(2): mf32(a, acc[T], df + 4*t, yf[t % 3][T], "0" if t == 0 else None)
    st.mark()
    for T in range(2):
        for jj in range(4): a(f"ds_write_b128 {v(rw+jj)}, {v(acc[T]+4*jj,4)} offset:{4096*T}")
    a.waitlg(); a("s_barrier")
    assert V.hi <= keepP[0]
    st.flush(SW, df, tid)
    a("s_endpgm")
    return max(vmax, V.hi)
```

```python
import sys, os, math, struct
sys.path.insert(0, os.path.dirname(os.path.abspath(__file__)))
from asmfw import Asm, VAlloc, v, s, align64
import numpy as np

H_OFF, X1_OFF, WT_OFF, Y1_OFF, PART_OFF, CS_OFF, STATS_OFF, EPOCH_OFF, WS_END = 0, 0x700000, 0x900000, 0xB00000, 0xD00000, 0x1500000, 0x1540000, 0x1548000, 0x1548080
F1_OFF, F2_OFF, F3_OFF = 0x1550000, 0x1558000, 0x1560000
WS_END = 0x1568000
STAMP_OFF = 0x1600000
NAME = "parallel_sum__spectral_gfnet__dense_activation_silu__prompt_kernel"
OPT = dict(stamp=False, wsb=0, merge=1, spinf=20000, ghalf=60, pfl=0, pfd=0, pfm=0, rotc=0, est=0, fline=1, touch=0, slP=28, slS=4, slY=28, slH=0, nsc1=8, stX="sc1", stW="sc1", stY="sc1", stP="sc1", stO="sc1", pf=1, pft=0, pfw2=8, pf3=8, prio=0, nodma=0, cyc=0, align=2,
           k1sched=[12,4,4,4,4,4,0,0], phN=1, phG=7, phGD=8, phW=[6,7], e1step=31, noX=0, noW=0, noH=0, phS=9, early=0, spin=4000, forcefb=0,
           k2sched=[12,4,4,4,4,0,0], phX=4, plead=14, pper=2, rot2=0, k3mix=0, k3prio=0, rot3=0)
LOG2E = 1.4426950408889634
def fbits(x): return "0x%08x" % struct.unpack("<I", struct.pack("<f", x))[0]

def ws_base(a, r, lo):
    if OPT["wsb"]: a(f"s_add_u32 {s(r)}, {s(lo)}, {OPT['wsb'] << 20}\ns_addc_u32 {s(r+1)}, {s(lo+1)}, 0")
    else: a(f"s_mov_b64 {s(r,2)}, {s(lo,2)}")
def srd(a, r, lo, hi, nbytes, bias=0):
    if nbytes == WS_END:
        ws_base(a, r, lo); a(f"s_mov_b32 {s(r+2)}, {nbytes}\ns_mov_b32 {s(r+3)}, 0x20000"); return
    if bias: a(f"s_sub_u32 {s(r)}, {s(lo)}, {bias}\ns_subb_u32 {s(r+1)}, {s(hi)}, 0")
    else: a(f"s_mov_b64 {s(r,2)}, {s(lo,2)}")
    a(f"s_mov_b32 {s(r+2)}, {nbytes + bias}\ns_mov_b32 {s(r+3)}, 0x20000")

class Stamps:
    REG = list(range(70, 88, 2)) + [96, 98, 100]
    def __init__(self, a, kidx): self.a, self.k, self.n = a, kidx, 0
    def mark(self):
        if not OPT["stamp"]: return
        if self.n >= 12: return
        r = self.REG[self.n]
        self.a.raw(f"    {'s_memtime' if OPT['cyc'] else 's_memrealtime'} s[{r}:{r+1}]"); self.n += 1
    def flush(self, ws_srd, vtmp, tid0, who=0, rec=0):
        if not OPT["stamp"]: return
        a = self.a
        a("s_waitcnt lgkmcnt(0)")
        a(f"s_lshl_b32 s3, s2, 7\ns_add_u32 s3, s3, {STAMP_OFF + (self.k * 2 + rec) * 32768}")
        a(f"s_mov_b32 {s(ws_srd+2)}, {STAMP_OFF + 0x100000}")
        a(f"v_cmp_eq_u32 vcc, {who}, {v(tid0)}\ns_and_saveexec_b64 s[68:69], vcc")
        a(f"v_mov_b32 {v(vtmp+4)}, s3")
        for q in range(self.n, 12): a(f"s_mov_b64 s[{self.REG[q]}:{self.REG[q]+1}], 0")
        for q in range(6):
            for j in range(4): a(f"v_mov_b32 {v(vtmp+j)}, s{self.REG[2*q + (j >> 1)] + (j & 1)}")
            a(f"buffer_store_dwordx4 {v(vtmp,4)}, {v(vtmp+4)}, {s(ws_srd,4)}, 0 offen offset:{16*q}")
        a("s_mov_b64 exec, s[68:69]")

def header(a, name): a.raw(f".globl {name}\n.p2align 8\n.type {name},@function\n{name}:")
def mf32(a, d, x, y, c=None): a(f"v_mfma_f32_32x32x16_bf16 {v(d,16)}, {v(x,4)}, {v(y,4)}, {v(d,16) if c is None else c}")
def mf16(a, d, x, y, c=None): a(f"v_mfma_f32_16x16x32_bf16 {v(d,4)}, {v(x,4)}, {v(y,4)}, {v(d,4) if c is None else c}")
def mf4(a, d, x, y, c=None): a(f"v_mfma_f32_4x4x4_16b_bf16 {v(d,4)}, {v(x,2)}, {v(y,2)}, {v(d,4) if c is None else c}")
def untracked(a):
    a.vm[-1] = ("pf", set())

def code_prefetch(a, srdr, vtmp, first, last):
    a.raw(f"    s_getpc_b64 {s(srdr,2)}\n    s_add_u32 {s(srdr)}, {s(srdr)}, {first}@rel32@lo+4\n    s_addc_u32 {s(srdr+1)}, {s(srdr+1)}, {first}@rel32@hi+12")
    a.raw(f"    s_mov_b32 {s(srdr+2)}, {last}-{first}")
    a(f"""s_mov_b32 {s(srdr+3)}, 0x20000
          s_and_b32 s3, s2, 0xf8
          s_lshl_b32 s3, s3, 7
          v_lshlrev_b32 {v(vtmp)}, 1, v0
          v_and_b32 {v(vtmp)}, 0x3fc, {v(vtmp)}
          buffer_load_dword {v(vtmp)}, {v(vtmp)}, {s(srdr,4)}, s3 offen""")
    untracked(a)

def interleave(a, mfs, fill, per=None, lead=0):
    n = len(mfs); fill = list(fill)
    for f in fill[:lead]: a(f)
    fill = fill[lead:]
    per = per or [-(-len(fill) // n)] * n
    k = 0
    for i, m in enumerate(mfs):
        m()
        for f in fill[k:k+per[i]]:
            f() if callable(f) else a(f)
        k += per[i]
    for f in fill[k:]:
        f() if callable(f) else a(f)

def finish_stats(q, m, ta, tb):
    return [f"v_mov_b32 {v(tb)}, {fbits(1/512)}", f"v_mul_f32 {v(m)}, {v(tb)}, {v(m)}", f"v_mul_f32 {v(ta)}, {v(m)}, {v(m)}",
            f"v_fma_f32 {v(q)}, {v(q)}, {v(tb)}, -{v(ta)}", f"v_max_f32 {v(q)}, 0, {v(q)}", f"v_add_f32 {v(q)}, {fbits(1e-5)}, {v(q)}", f"v_rsq_f32 {v(q)}, {v(q)}"]

def dft_table():
    cosb = []
    for i in range(512):
        f = np.float32(math.cos(2 * math.pi * i / 512)) if i % 128 else np.float32([1, 0, -1, 0][i // 128])
        u = int(np.array([f]).view(np.uint32)[0]); cosb.append(((u + 0x7FFF + ((u >> 16) & 1)) >> 16) & 0xFFFF)
    t = [".p2align 8", ".type dft_table,@object", "dft_table:", ".altmacro",
         ".macro E8 a,b,c,d,e,f,g,h", ".short C\\a,C\\b,C\\c,C\\d,C\\e,C\\f,C\\g,C\\h", ".endm"]
    cosb += [0x3e80, 0xbe80, 0x3eb5, 0xbeb5]
    t += [f".set C{i},{cosb[i]:#x}" for i in range(516)]
    t.append(""".set blk,0
.rept 128
.set ln,0
.rept 64
.set cl,(blk>>1)&3
.set kap,32*(blk>>6)+(ln&31)
.set ph,128*(blk&1)+(64*((blk>>3)&7)+32*(ln>>5)+cl)*kap
.if (kap==0)&&(blk&1)
E8 %(512+2*(cl&1)),%(513+2*(cl&1)),%(512+2*(cl&1)),%(513+2*(cl&1)),%(512+2*(cl&1)),%(513+2*(cl&1)),%(512+2*(cl&1)),%(513+2*(cl&1))
.else
E8 %(ph&511),%((ph+4*kap)&511),%((ph+8*kap)&511),%((ph+12*kap)&511),%((ph+16*kap)&511),%((ph+20*kap)&511),%((ph+24*kap)&511),%((ph+28*kap)&511)
.endif
.set ln,ln+1
.endr
.set blk,blk+1
.endr
.noaltmacro
.size dft_table,131072""")
    return "\n".join(t)

def descriptor(name, nv):
    nv = (nv + 7) // 8 * 8
    return f""".p2align 6
.amdhsa_kernel {name}
  .amdhsa_next_free_vgpr {nv}
  .amdhsa_next_free_sgpr 102
  .amdhsa_accum_offset {nv}
  .amdhsa_group_segment_fixed_size 0
  .amdhsa_kernarg_size 72
  .amdhsa_user_sgpr_count 2
  .amdhsa_user_sgpr_kernarg_segment_ptr 1
  .amdhsa_system_sgpr_workgroup_id_x 1
  .amdhsa_float_denorm_mode_32 3
.end_amdhsa_kernel"""

def build(kernels, extra_empty=0):
    out = ["; x + irfft2(rfft2(LN x) * W) + silu(LN x @ w1) @ w2 in three launches (k1map2; written with my own generator script)"]
    for name, _, _, (lds, blk) in kernels: out.append(f"; @launch {'' if len(kernels) == 1 else 'kernel=' + name + ' '}grid=(256,1,1) block=({blk},1,1) lds={lds}")
    for i in range(extra_empty): out.append("; @launch kernel=kz_kernel grid=(256,1,1) block=(256,1,1) lds=0")
    out.append('.amdgcn_target "amdgcn-amd-amdhsa--gfx950"\n.text')
    info = []
    for name, a, nv, _ in kernels:
        txt = a.text()
        if OPT["align"]:
            ext = "\n".join(f"{l}:" for l in ("k1_kernel", "k2_kernel", "k3_kernel", "code_end", "dft_table") if l != name)
            txt, fx, nn, size = align64(txt, ext + "\n", OPT["align"] == 1); info.append((fx, nn, size))
        out.append(txt)
    out.append("code_end:")
    if extra_empty: out.append(".globl kz_kernel\n.p2align 8\n.type kz_kernel,@function\nkz_kernel:\n    s_endpgm")
    out.append('.section .rodata,"a"')
    for name, a, nv, _ in kernels: out.append(descriptor(name, nv))
    if extra_empty: out.append(descriptor("kz_kernel", 8))
    out.append(dft_table())
    return "\n".join(out) + "\n", info

if __name__ == "__main__":
    import argparse, json
    ap = argparse.ArgumentParser(); ap.add_argument("out"); ap.add_argument("--stamp", action="store_true")
    ap.add_argument("--empty", type=int, default=0); ap.add_argument("-o", action="append", default=[])
    args = ap.parse_args(); OPT["stamp"] = args.stamp
    for kv in args.o:
        k, val = kv.split("=", 1); assert k in OPT, k
        OPT[k] = val if isinstance(OPT[k], str) else json.loads(val)
    from gen1 import gen_k1
    from gen23 import gen_k2, gen_k3
    if OPT["merge"]: ks = [(NAME, *gen_k1(NAME))]
    else: ks = [(n, *g()) for n, g in (("k1_kernel", gen_k1), ("k2_kernel", gen_k2), ("k3_kernel", gen_k3))]
    txt, info = build(ks, args.empty)
    open(args.out, "w").write(txt)
    print("vgprs", [k[2] for k in ks], "nops", [k[1].nops for k in ks], "align(fixed,nop,size)", info)
```

```python
from asmfw import Asm, VAlloc, v, s
import __main__ as M
G = M if hasattr(M, "dft_table") else __import__("gen")
OPT = G.OPT; fbits = G.fbits; srd = G.srd; mf32 = G.mf32; mf4 = G.mf4; Stamps = G.Stamps; header = G.header
untracked = G.untracked; interleave = G.interleave; finish_stats = G.finish_stats; LOG2E = G.LOG2E
X1_OFF, WT_OFF, STATS_OFF, CS_OFF, EPOCH_OFF, WS_END = G.X1_OFF, G.WT_OFF, G.STATS_OFF, G.CS_OFF, G.EPOCH_OFF, G.WS_END

def table_srd(a, r):
    a.raw(f"    s_getpc_b64 {s(r,2)}\n    s_add_u32 {s(r)}, {s(r)}, dft_table@rel32@lo+4\n    s_addc_u32 {s(r+1)}, {s(r+1)}, dft_table@rel32@hi+12")
    a(f"s_mov_b32 {s(r+2)}, 0x20000\ns_mov_b32 {s(r+3)}, 0x20000")

def gen_k1(name="k1_kernel"):
    MG = OPT["merge"]
    a = Asm(); st = Stamps(a, 0)
    few = (lambda: None) if MG else st.mark
    header(a, name)
    st.mark()
    SX, SB, SW, SWR, SWI, SPF, SD = 4, 8, 12, 16, 20, 64, 92
    NS = 4
    SCR = 131072; CSF = SCR + 1024; PRS = SCR + 2048; PCS = SCR + 2304; NON = SCR + 2816
    a("s_cmp_ge_u32 s2, 256\ns_cbranch_scc1 K1_END")
    a("s_load_dwordx4 s[24:27], s[0:1], 0\ns_load_dwordx4 s[28:31], s[0:1], 32\ns_load_dwordx2 s[22:23], s[0:1], 16\ns_load_dwordx4 s[88:91], s[0:1], 56")
    V = VAlloc(0); tid = V.get(); lane = V.get()
    t0, t1, t2, t3, t4, t5 = [V.get() for _ in range(6)]
    pf = V.get()
    if OPT["pf"]: G.code_prefetch(a, SPF, pf, name, "code_end")
    sW, sLO, sCJ, sV, sWR_, sWC, sL, sHF = 34, 35, 36, 37, 38, 39, 51, 55
    a(f"""v_lshrrev_b32 {v(t0)}, 6, v0
          v_and_b32 {v(lane)}, 63, v0
          v_readfirstlane_b32 s56, {v(t0)}
          s_bfe_u32 {s(sW)}, s2, 0x20001
          s_and_b32 {s(sHF)}, s2, 1
          s_lshr_b32 {s(sCJ)}, s2, 5
          s_bfe_u32 {s(sLO)}, s2, 0x20003
          s_and_b32 {s(sV)}, s56, 3
          s_lshl_b32 {s(sL)}, {s(sV)}, 12
          v_lshrrev_b32 {v(t3)}, 5, {v(lane)}
          s_cmp_lt_u32 s56, 4
          s_cbranch_scc1 K1_COMPUTE""")
    snap0 = a.snapshot(); Vbase = V.n

    def x1_out(regs):
        rad = regs.get(4); vo = regs.get(); vo0 = regs.get(); buf = regs.get(32)
        pre = f"""v_and_b32 {v(t0)}, 15, {v(lane)}
              v_xor_b32 {v(t0)}, {v(t0)}, {v(t3)}
              v_bfe_u32 {v(t1)}, {v(lane)}, 4, 2
              s_lshl_b32 s3, s56, 13
              v_lshl_add_u32 {v(t2)}, {v(t1)}, 8, s3\n"""
        for i in range(4): pre += f"v_xor_b32 {v(t4)}, {2*i}, {v(t0)}\nv_lshl_add_u32 {v(rad+i)}, {v(t4)}, 4, {v(t2)}\n"
        pre += f"""s_bfe_u32 s46, s56, 0x10001
              s_lshr_b32 s47, s56, 2
              v_and_b32 {v(t0)}, 15, {v(lane)}
              v_lshlrev_b32 {v(t0)}, 4, {v(t0)}
              v_bfe_u32 {v(t1)}, {v(lane)}, 4, 1
              v_lshl_add_u32 {v(t0)}, {v(t1)}, 12, {v(t0)}
              v_xor_b32 {v(t1)}, s46, {v(t3)}
              v_lshl_add_u32 {v(vo)}, {v(t1)}, 13, {v(t0)}
              s_lshl_b32 s40, {s(sHF)}, 1
              s_and_b32 s41, s56, 1
              s_add_u32 s40, s40, s41
              s_lshl_b32 s40, s40, 4
              s_lshl_b32 s42, s47, 7
              s_add_u32 s41, s40, s42
              s_sub_u32 s41, s41, 1
              s_add_u32 s42, s42, s40
              s_sub_u32 s42, 254, s42
              s_cmp_eq_u32 s46, 0
              s_cselect_b32 s41, s41, s42
              s_movk_i32 s43, 0x4000
              s_cselect_b32 s43, s43, 0xffffc000
              s_lshl_b32 s41, s41, 13
              s_lshr_b32 s42, {s(sLO)}, 1
              s_lshl_b32 s42, s42, 11
              s_add_u32 s41, s41, s42
              s_lshl_b32 s42, {s(sW)}, 9
              s_add_u32 s41, s41, s42
              s_and_b32 s42, {s(sLO)}, 1
              s_lshl_b32 s42, s42, 8
              s_add_u32 s41, s41, s42
              s_add_u32 s41, s41, {X1_OFF}
              s_xor_b32 s42, s46, s47
              s_add_u32 s40, s40, s42
              v_add_u32 {v(t1)}, s40, {v(t3)}
              v_cmp_eq_u32 vcc, 0, {v(t1)}
              v_add_u32 {v(t0)}, {64*8192}, {v(vo)}
              v_cndmask_b32 {v(vo0)}, {v(vo)}, {v(t0)}, vcc"""
        def post():
            a.waitlg(); a("s_barrier")
            for jx in range(8): a(f"ds_read_b128 {v(buf+4*jx,4)}, {v(rad + (jx & 3))} offset:{1024*jx}")
            for jx in range(8):
                if not OPT["noX"]: a(f"buffer_store_dwordx4 {v(buf+4*jx,4)}, {v(vo0 if jx == 0 else vo)}, {s(SW,4)}, s41 offen {OPT['stX']}")
                if jx < 7: a("s_add_u32 s41, s41, s43")
        return pre, post

    vX = V.get(4); vB = V.get(4)
    wl = V.get(16); vW = V.get(); l16 = V.get(); dmy = V.get(4); gr = V.get(4); gc = V.get(8); gq = V.get(4)
    grow, gad, gz, gn, pad = [V.get() for _ in range(5)]
    Vx = VAlloc(V.n)
    sXb, sBb, sK, sXo, sBo, sCB, sR0 = 48, 49, 50, 52, 53, 57, 58
    a(f"""v_bfe_u32 {v(t0)}, {v(lane)}, 3, 2
          v_lshrrev_b32 {v(t1)}, 4, {v(lane)}
          v_and_b32 {v(t2)}, 7, {v(lane)}
          v_xor_b32 {v(t2)}, {v(t2)}, {v(t1)}
          v_lshlrev_b32 {v(t2)}, 4, {v(t2)}
          s_lshl_b32 {s(sR0)}, {s(sW)}, 1
          s_lshr_b32 s3, {s(sLO)}, 1
          s_add_u32 {s(sR0)}, {s(sR0)}, s3
          s_mul_i32 s3, {s(sCJ)}, {OPT["rotc"]}
          s_add_u32 {s(sR0)}, {s(sR0)}, s3
          s_and_b32 {s(sR0)}, {s(sR0)}, 7
          s_mov_b32 {s(sK)}, {s(sR0)}
          s_lshl_b32 {s(sXo)}, {s(sK)}, 7
          s_mov_b32 {s(SX+2)}, {0x200000 + 4096}
          s_mov_b32 {s(SX+3)}, 0x20000
          s_mov_b32 m0, {s(sL)}
          s_cmp_eq_u32 {s(sCJ)}, 7
          s_cbranch_scc1 K1_LD""")
    snapL = a.snapshot(); stn = st.n
    def loader(D):
        X = "D" if D else "F"
        if not D:
            a(f"""v_lshl_add_u32 {v(t0)}, {v(t3)}, 4, {v(t0)}
                  v_lshl_add_u32 {v(t0)}, {v(t0)}, 10, {v(t2)}
                  v_add_u32 {v(vX)}, 4096, {v(t0)}
                  v_xor_b32 {v(t0)}, 64, {v(t0)}
                  v_add_u32 {v(vX+1)}, {4096 + 31744}, {v(t0)}
                  v_add_u32 {v(vX+2)}, {2*31744}, {v(vX)}
                  v_add_u32 {v(vX+3)}, {2*31744}, {v(vX+1)}
                  s_lshl_b32 s3, {s(sW)}, 7
                  s_lshl_b32 s40, {s(sV)}, 5
                  s_add_u32 s3, s3, s40
                  s_add_u32 s3, s3, {s(sLO)}
                  s_lshl_b32 {s(sXb)}, s3, 12""")
        else:
            a(f"""v_lshl_add_u32 {v(t0)}, {v(t3)}, 3, {v(t0)}
                  v_lshl_add_u32 {v(t0)}, {v(t0)}, 15, {v(t2)}
                  v_add_u32 {v(vX)}, 4096, {v(t0)}
                  v_add_u32 {v(vX+2)}, {4096 - 1024}, {v(t0)}
                  v_xor_b32 {v(t0)}, 64, {v(t0)}
                  v_add_u32 {v(vX+1)}, {4096 + 131072 - 1024}, {v(t0)}
                  v_add_u32 {v(vX+3)}, {4096 + 131072 + 1024 - 3072}, {v(t0)}
                  s_lshl_b32 s3, {s(sW)}, 8
                  s_lshl_b32 s40, {s(sLO)}, 2
                  s_add_u32 s3, s3, s40
                  s_add_u32 s3, s3, {s(sV)}
                  s_lshl_b32 {s(sXb)}, s3, 11""")
        a(f"s_add_u32 {s(sXo)}, {s(sXo)}, {s(sXb)}")
        a.waitlg()
        if OPT["est"]: st.mark()
        a(f"s_sub_u32 {s(SX)}, s24, 4096\ns_subb_u32 {s(SX+1)}, s25, 0")
        def b_setup():
            a(f"v_lshlrev_b32 {v(l16)}, 4, {v(lane)}")
            if not D:
                srd(a, SB, 28, 29, 512 * 3584)
                a(f"""v_and_b32 {v(t0)}, 15, {v(lane)}
                      v_lshlrev_b32 {v(t2)}, 2, {v(t1)}
                      v_xor_b32 {v(t0)}, {v(t0)}, {v(t2)}
                      v_lshlrev_b32 {v(t0)}, 4, {v(t0)}
                      s_movk_i32 s3, 3584
                      v_mad_u32_u24 {v(vB)}, {v(t1)}, s3, {v(t0)}
                      v_add_u32 {v(vB+1)}, 13312, {v(vB)}
                      v_add_u32 {v(vB+2)}, {2*13312}, {v(vB)}
                      v_add_u32 {v(vB+3)}, {3*13312}, {v(vB)}
                      s_mul_i32 {s(sCB)}, {s(sHF)}, 7
                      s_add_u32 {s(sCB)}, {s(sCB)}, {s(sCJ)}
                      s_lshl_b32 s3, {s(sCB)}, 8
                      s_mul_i32 {s(sBb)}, {s(sV)}, {16*3584}
                      s_add_u32 {s(sBb)}, {s(sBb)}, s3""")
            else:
                table_srd(a, SB)
                a(f"""s_lshl_b32 s3, {s(sHF)}, 16
                      s_lshl_b32 s59, {s(sV)}, 11
                      s_add_u32 {s(sBb)}, s3, s59""")
        BSTEP = 8192 if D else 64 * 3584
        def dma(slab, q):
            slot = slab % NS; part, hf = q >> 1, q & 1
            if (slab, q) == (0, 2): b_setup()
            if OPT["nodma"] or (D and q == 3): pass
            elif part == 0:
                if hf == 0 and slab: a(f"s_add_u32 m0, {s(sL)}, {slot*32768}")
                for j in (2*hf, 2*hf + 1): a(f"buffer_load_dwordx4 {v(vX+j)}, {s(SX,4)}, {s(sXo)} offen offset:{1024*j} lds", tag=f"S{slab}")
            else:
                if hf == 0: a(f"s_mul_i32 {s(sBo)}, {s(sK)}, {BSTEP}\ns_add_u32 m0, {'s59' if D else s(sL)}, {slot*32768 + 16384}\ns_add_u32 {s(sBo)}, {s(sBo)}, {s(sBb)}")
                for j in (2*hf, 2*hf + 1): a(f"buffer_load_dwordx4 {v(l16 if D else vB+j)}, {s(SB,4)}, {s(sBo)} offen offset:{1024*j} lds", tag=f"S{slab}")
            if OPT["est"] and q == 3 and slab < 3: st.mark()
            if q == 3 and slab < 7:
                a(f"s_add_u32 {s(sK)}, {s(sK)}, 1\ns_and_b32 {s(sK)}, {s(sK)}, 7\ns_lshl_b32 {s(sXo)}, {s(sK)}, 7\ns_add_u32 {s(sXo)}, {s(sXo)}, {s(sXb)}")
        def j_nonce():
            srd(a, SW, 90, 91, WS_END); srd(a, SD, 88, 89, 256)
            a(f"v_mov_b32 {v(gz)}, 0\nbuffer_load_dword {v(gn)}, {v(gz)}, {s(SD,4)}, 0 offen sc1")
        def j_tablepf():
            if D or not OPT["pft"]: return
            table_srd(a, SPF)
            a(f"""s_lshr_b32 s3, s2, 3
                  s_lshl_b32 s3, s3, 2
                  s_add_u32 s3, s3, {s(sV)}
                  s_min_u32 s3, s3, 47
                  s_lshl_b32 s40, {s(sW)}, 4
                  s_add_u32 s3, s3, s40
                  s_add_u32 s3, s3, 24
                  s_and_b32 s3, s3, 63
                  s_lshl_b32 s40, {s(sHF)}, 6
                  s_add_u32 s3, s3, s40
                  s_lshl_b32 s3, s3, 10
                  buffer_load_dwordx4 {v(dmy,4)}, {v(l16)}, {s(SPF,4)}, s3 offen""")
            untracked(a)
        def j_publish():
            a(f"""v_and_b32 {v(t0)}, 15, {v(lane)}
                  v_cmp_gt_u32 vcc, 16, {v(lane)}
                  s_lshl_b32 s3, {s(sV)}, 7
                  s_add_u32 s3, s3, {PCS}
                  v_mov_b32 {v(t1)}, s3
                  v_mov_b32 {v(t2)}, {PRS}
                  v_cndmask_b32 {v(t1)}, {v(t2)}, {v(t1)}, vcc
                  v_lshl_add_u32 {v(t1)}, {v(t0)}, 3, {v(t1)}
                  ds_read_b64 {v(gq,2)}, {v(t1)}
                  s_lshl_b32 s3, {s(sW)}, 2
                  s_add_u32 s3, s3, {s(sLO)}
                  s_lshl_b32 s3, s3, 1
                  s_add_u32 s3, s3, {s(sHF)}
                  s_lshl_b32 s3, s3, 3
                  s_add_u32 s3, s3, {s(sCJ)}
                  s_lshl_b32 s3, s3, 7
                  s_add_u32 s3, s3, {STATS_OFF}
                  v_mov_b32 {v(t2)}, s3""")
            if not D:
                a(f"""s_lshl_b32 s3, {s(sCB)}, 3
                      s_add_u32 s3, s3, {s(sR0)}
                      s_lshl_b32 s3, s3, 2
                      s_add_u32 s3, s3, {s(sV)}
                      s_lshl_b32 s3, s3, 8
                      s_add_u32 s3, s3, {CS_OFF}
                      v_mov_b32 {v(t1)}, s3
                      v_cndmask_b32 {v(t2)}, {v(t2)}, {v(t1)}, vcc""")
            a(f"v_lshl_add_u32 {v(pad)}, {v(t0)}, 4, {v(t2)}")
            a(f"v_readfirstlane_b32 s60, {v(gn)}\ns_cmp_lg_u32 s60, 0\ns_cbranch_scc1 K1_PUBOK{X}\ns_mov_b32 s61, 0")
            keep = a.snapshot()
            a.label(f"K1_PUBSPIN{X}")
            a(f"""buffer_load_dword {v(gn)}, {v(gz)}, {s(SD,4)}, 0 offen sc1
                  s_waitcnt vmcnt(0)
                  v_readfirstlane_b32 s60, {v(gn)}
                  s_add_u32 s61, s61, 1
                  s_cmp_gt_u32 s61, 2000
                  s_cbranch_scc1 K1_PUBOK{X}
                  s_cmp_eq_u32 s60, 0
                  s_cbranch_scc1 K1_PUBSPIN{X}""")
            a.label(f"K1_PUBOK{X}")
            a.restore(keep)
            a(f"""v_mov_b32 {v(gq+2)}, s60
                  v_mov_b32 {v(gq+3)}, s60
                  s_cmp_eq_u32 {s(sV)}, 0
                  s_cselect_b32 s40, 0xff0000, 0
                  s_mov_b32 s41, 0""")
            if D: a(f"s_cbranch_scc0 K1_NOPUBD")
            else: a("s_or_b32 s40, s40, 0xffff")
            keep = a.snapshot()
            a(f"""s_mov_b64 exec, s[40:41]
                  buffer_store_dwordx4 {v(gq,4)}, {v(pad)}, {s(SW,4)}, 0 offen sc1
                  s_mov_b64 exec, -1""")
            if D: a.label("K1_NOPUBD"); a.restore(keep)
        def gather_loads():
            a(f"buffer_load_dwordx4 {v(gr,4)}, {v(gad)}, {s(SW,4)}, s62 offen sc1")
            if not D:
                for j in range(2): a(f"buffer_load_dwordx4 {v(gc+4*j,4)}, {v(pad)}, {s(SW,4)}, s{32+j} offen sc1")
        def j_gather():
            a(f"""v_bfe_u32 {v(t0)}, {v(lane)}, 3, 2
                  v_bfe_u32 {v(t1)}, {v(lane)}, 2, 1
                  v_and_b32 {v(t2)}, 3, {v(lane)}""")
            if not D:
                a(f"""v_lshl_add_u32 {v(t0)}, {v(t0)}, 1, {v(t1)}
                      v_lshl_add_u32 {v(grow)}, {v(t0)}, 4, {v(t2)}
                      s_lshl_b32 s3, {s(sV)}, 7
                      s_lshl_b32 s40, {s(sLO)}, 2
                      v_lshrrev_b32 {v(t0)}, 4, {v(lane)}
                      v_and_b32 {v(t1)}, 15, {v(lane)}
                      v_lshlrev_b32 {v(t1)}, 4, {v(t1)}
                      v_lshl_add_u32 {v(pad)}, {v(t0)}, 10, {v(t1)}
                      s_lshl_b32 s32, {s(sCB)}, 5
                      s_add_u32 s32, s32, {s(sV)}
                      s_lshl_b32 s32, s32, 8
                      s_add_u32 s32, s32, {CS_OFF}
                      s_add_u32 s33, s32, 4096""")
            else:
                a(f"""v_lshl_add_u32 {v(t2)}, {v(t1)}, 3, {v(t2)}
                      v_and_b32 {v(t1)}, 1, {v(t0)}
                      v_lshl_add_u32 {v(t2)}, {v(t1)}, 2, {v(t2)}
                      v_lshrrev_b32 {v(t0)}, 1, {v(t0)}
                      v_lshl_add_u32 {v(grow)}, {v(t2)}, 5, {v(t0)}
                      s_lshl_b32 s3, {s(sV)}, 1
                      s_lshl_b32 s40, {s(sLO)}, 3""")
            a(f"""s_add_u32 s3, s3, s40
                  s_lshl_b32 s40, {s(sW)}, 9
                  s_add_u32 s3, s3, s40
                  v_add_u32 {v(grow)}, s3, {v(grow)}
                  v_lshlrev_b32 {v(gad)}, 4, {v(grow)}
                  s_mov_b32 s62, {STATS_OFF}""")
            gather_loads()
        def j_check():
            tags = [gr + 2, gr + 3] + ([] if D else [gc + 2, gc + 3, gc + 6, gc + 7])
            a("s_mov_b32 s61, 0")
            a(f"v_xor_b32 {v(t0)}, {v(tags[-1])}, {v(gn)}")
            a.label(f"K1_CHECK{X}")
            for t in tags[:-1]: a(f"v_xor_b32 {v(t1)}, {v(t)}, {v(gn)}\nv_or_b32 {v(t0)}, {v(t0)}, {v(t1)}")
            a(f"""v_cmp_ne_u32 vcc, 0, {v(t0)}
                  v_cmp_eq_u32 s[40:41], 0, {v(gn)}
                  s_or_b64 vcc, vcc, s[40:41]
                  {"s_nop 0" if OPT["forcefb"] else "s_cbranch_vccz K1_GOT" + X}
                  s_add_u32 s61, s61, 1
                  s_cmp_gt_u32 s61, {OPT["spin"]}
                  s_cbranch_scc1 K1_FALLBACK{X}""")
            keep = a.snapshot()
            a(f"buffer_load_dword {v(gn)}, {v(gz)}, {s(SD,4)}, 0 offen sc1")
            gather_loads()
            a(f"s_waitcnt vmcnt(0)\nv_xor_b32 {v(t0)}, {v(tags[-1])}, {v(gn)}\ns_branch K1_CHECK{X}")
            a.label(f"K1_FALLBACK{X}")
            a(f"""v_lshl_add_u32 {v(gad)}, {v(grow)}, 10, 0
                  v_add_u32 {v(gad)}, 4096, {v(gad)}
                  v_mov_b32 {v(t0)}, 0
                  v_mov_b32 {v(t1)}, 0
                  v_mov_b32 {v(t2)}, 0x3f803f80
                  s_mov_b32 s61, 0""")
            a.label(f"K1_FBLOOP{X}")
            a(f"buffer_load_dwordx4 {v(gr,4)}, {v(gad)}, {s(SX,4)}, s61 offen\ns_waitcnt vmcnt(0)")
            for i in range(4): a(f"v_dot2_f32_bf16 {v(t0)}, {v(gr+i)}, {v(gr+i)}, {v(t0)}\nv_dot2_f32_bf16 {v(t1)}, {v(gr+i)}, {v(t2)}, {v(t1)}\ns_nop 2")
            a(f"s_add_u32 s61, s61, 16\ns_cmp_lt_u32 s61, 1024\ns_cbranch_scc1 K1_FBLOOP{X}")
            a("s_nop 4")
            for r in finish_stats(t0, t1, t4, t5): a(r)
            a(f"s_nop 1\nv_mov_b32 {v(gr)}, {v(t0)}\nv_mov_b32 {v(gr+1)}, {v(t1)}")
            if not D:
                a(f"""v_and_b32 {v(t0)}, 9, {v(lane)}
                      v_bfe_u32 {v(t1)}, {v(lane)}, 1, 1
                      v_lshl_or_b32 {v(t0)}, {v(t1)}, 2, {v(t0)}
                      v_bfe_u32 {v(t1)}, {v(lane)}, 2, 1
                      v_lshl_or_b32 {v(t0)}, {v(t1)}, 1, {v(t0)}
                      v_lshlrev_b32 {v(t0)}, 2, {v(t0)}
                      v_lshrrev_b32 {v(t1)}, 4, {v(lane)}
                      s_mov_b32 s3, {128*3584}
                      v_mad_u32_u24 {v(t0)}, {v(t1)}, s3, {v(t0)}
                      s_lshl_b32 s61, {s(sCB)}, 2
                      s_add_u32 s61, s61, {s(sV)}
                      s_lshl_b32 s61, s61, 6
                      s_mov_b32 s3, 0
                      v_mov_b32 {v(gc)}, 0
                      v_mov_b32 {v(gc+1)}, 0
                      v_mov_b32 {v(gc+4)}, 0
                      v_mov_b32 {v(gc+5)}, 0""")
                a.label("K1_FBLOOPC")
                a(f"""buffer_load_dword {v(t1)}, {v(t0)}, {s(SB,4)}, s61 offen
                      s_waitcnt vmcnt(0)
                      v_lshlrev_b32 {v(t2)}, 16, {v(t1)}
                      v_and_b32 {v(t1)}, 0xffff0000, {v(t1)}
                      v_add_f32 {v(gc)}, {v(gc)}, {v(t2)}
                      v_add_f32 {v(gc+1)}, {v(gc+1)}, {v(t1)}
                      s_add_u32 s61, s61, 3584
                      s_add_u32 s3, s3, 1
                      s_cmp_lt_u32 s3, 128
                      s_cbranch_scc1 K1_FBLOOPC""")
            a.label(f"K1_GOT{X}")
            a.restore(keep); a.hist = []
            if MG: a(f"v_mov_b32 {v(t1)}, {NON}\nds_write_b32 {v(t1)}, {v(gn)}")
            a(f"v_and_b32 {v(t0)}, 31, {v(lane)}")
            if not D:
                a(f"""v_add_f32 {v(gc)}, {v(gc)}, {v(gc+4)}
                      v_add_f32 {v(gc+1)}, {v(gc+1)}, {v(gc+5)}
                      s_lshl_b32 s3, {s(sV)}, 8
                      s_add_u32 s3, s3, {SCR}
                      v_lshl_add_u32 {v(t0)}, {v(t0)}, 3, s3
                      v_mov_b32 {v(gc+2)}, {v(gc)}
                      v_mov_b32 {v(gc+3)}, {v(gc+1)}
                      v_mul_f32 {v(gr)}, {fbits(-LOG2E)}, {v(gr)}
                      v_mul_f32 {v(gr+1)}, {v(gr+1)}, {v(gr)}
                      v_permlane32_swap_b32 {v(gc)}, {v(gc+2)}
                      v_permlane32_swap_b32 {v(gc+1)}, {v(gc+3)}
                      v_sub_f32 {v(gr+1)}, 0, {v(gr+1)}
                      v_add_f32 {v(gc)}, {v(gc)}, {v(gc+2)}
                      v_add_f32 {v(gc+1)}, {v(gc+1)}, {v(gc+3)}
                      ds_write_b64 {v(t0)}, {v(gr,2)}
                      v_mov_b32 {v(gc+2)}, {v(gc)}
                      v_mov_b32 {v(gc+3)}, {v(gc+1)}
                      v_and_b32 {v(t1)}, 15, {v(lane)}
                      s_lshl_b32 s3, {s(sV)}, 7
                      v_permlane16_swap_b32 {v(gc)}, {v(gc+2)}
                      v_permlane16_swap_b32 {v(gc+1)}, {v(gc+3)}
                      s_add_u32 s3, s3, {CSF}
                      v_lshl_add_u32 {v(t1)}, {v(t1)}, 3, s3
                      v_add_f32 {v(gc)}, {v(gc)}, {v(gc+2)}
                      v_add_f32 {v(gc+1)}, {v(gc+1)}, {v(gc+3)}
                      ds_write_b64 {v(t1)}, {v(gc,2)}""")
            else:
                a(f"""s_lshl_b32 s3, {s(sV)}, 7
                      s_add_u32 s3, s3, {SCR}
                      v_lshl_add_u32 {v(t0)}, {v(t0)}, 2, s3
                      ds_write_b32 {v(t0)}, {v(gr)}""")
        def j_wload(part):
            if OPT["noW"]: return
            if part == 0:
                srd(a, SWR, 26, 27, 2048 * 514)
                a(f"s_mov_b64 s[44:45], s[22:23]")
                srd(a, SWI, 44, 45, 2048 * 514)
                a(f"""s_and_b32 s54, s2, 3
                      s_lshl_b32 s54, s54, 2
                      s_add_u32 s54, s54, {s(sV)}
                      s_lshl_b32 s41, s54, 5
                      s_add_u32 s41, s41, 2
                      v_and_b32 {v(t0)}, 7, {v(lane)}
                      v_lshl_add_u32 {v(t0)}, {v(t0)}, 2, s41
                      v_lshrrev_b32 {v(t1)}, 3, {v(lane)}
                      s_movk_i32 s41, 514
                      v_mad_u32_u24 {v(vW)}, {v(t1)}, s41, {v(t0)}
                      s_bfe_u32 s41, s2, 0x30002
                      s_lshl_b32 s43, s41, 3
                      s_lshl_b32 s44, {s(sCJ)}, 8
                      s_add_u32 s43, s43, s44
                      s_mul_i32 s44, s43, 514
                      s_add_u32 s45, s44, 32896
                      s_add_u32 s46, s44, 65792
                      s_add_u32 s47, s44, 98688""")
            for r in (2*part, 2*part + 1):
                a(f"buffer_load_dword {v(wl + r)}, {v(vW)}, {s(SWR,4)}, s{44+r} offen", tag="W")
                a(f"buffer_load_dword {v(wl + 4 + r)}, {v(vW)}, {s(SWI,4)}, s{44+r} offen", tag="W")
        def j_wstore():
            if OPT["noW"]: return
            a(f"""s_lshl_b32 s54, s54, 17
                  s_lshl_b32 s41, {s(sLO)}, 11
                  s_add_u32 s54, s54, s41
                  s_lshr_b32 s41, s2, 7
                  s_lshl_b32 s41, s41, 10
                  s_add_u32 s54, s54, s41
                  s_bfe_u32 s41, s2, 0x20005
                  s_lshl_b32 s41, s41, 8
                  s_add_u32 s54, s54, s41
                  s_bfe_u32 s41, s2, 0x10002
                  s_lshl_b32 s41, s41, 7
                  s_add_u32 s54, s54, s41
                  s_add_u32 s54, s54, {WT_OFF}
                  s_add_u32 s41, s54, 8192
                  s_mov_b32 s42, 0x05040100
                  s_mov_b32 s43, 0x07060302
                  v_and_b32 {v(t0)}, 7, {v(lane)}
                  v_lshrrev_b32 {v(t1)}, 3, {v(lane)}
                  v_lshlrev_b32 {v(t1)}, 4, {v(t1)}
                  v_lshl_add_u32 {v(vW)}, {v(t0)}, 14, {v(t1)}""")
            for kk in range(2):
                for r in range(4): a(f"v_perm_b32 {v(wl+8+4*kk+r)}, {v(wl+4+r)}, {v(wl+r)}, s{42+kk}")
                a(f"buffer_store_dwordx4 {v(wl+8+4*kk,4)}, {v(vW)}, {s(SW,4)}, s{41 if kk else 54} offen {OPT['stW']}")
        def j_pfw2(js):
            if js[0] == 0:
                srd(a, SPF, 30, 31, 1792 * 1024)
                a(f"""s_lshr_b32 s3, s2, 3
                      s_lshl_b32 s3, s3, 2
                      s_add_u32 s3, s3, {s(sV)}
                      s_min_u32 s3, s3, 111
                      s_mul_i32 s41, {s(sW)}, 112
                      s_add_u32 s3, s3, s41
                      s_lshl_b32 s63, s3, 12""")
            for j in js:
                a(f"buffer_load_dwordx4 {v(dmy,4)}, {v(l16)}, {s(SPF,4)}, s63 offen offset:{1024*j}"); untracked(a)
        def j_pfl():
            srd(a, SPF, 30, 31, 1792 * 1024)
            a(f"s_lshl_b32 s3, s2, 2\ns_add_u32 s3, s3, {s(sV)}\ns_mul_i32 s3, s3, 1792")
            for j in range(2):
                a(f"buffer_load_dwordx4 {v(dmy,4)}, {v(l16)}, {s(SPF,4)}, s3 offen offset:{1024*j}"); untracked(a)
        pre, post = {}, {1: [j_tablepf]}
        if OPT["pfl"]: (post if OPT["pfl"] < 8 else pre).setdefault(OPT["pfl"], []).append(j_pfl)
        phG = OPT["phGD"] if D else OPT["phG"]
        for ph, j in ((OPT["phN"], j_nonce), (OPT["phN"] + 2, j_publish)) + (((phG, j_gather),) if phG < 8 else ()): pre.setdefault(ph, []).append(j)
        for p, ph in enumerate(OPT["phW"]): (post if ph < 8 else pre).setdefault(ph, []).append(lambda p=p: j_wload(p))
        pw = OPT["pfw2"]; pw = [] if pw in (0, 20) else [pw] * 4 if isinstance(pw, int) else pw
        for ph in sorted(set(pw)): (post if ph < 8 else pre).setdefault(ph, []).append(lambda ph=ph: j_pfw2([j for j in range(4) if pw[j] == ph]))
        if OPT["phS"] < 8: post.setdefault(OPT["phS"], []).append(j_wstore)
        quarters = [(i >> 2, i & 3) for i in range(32)]; pos = 0
        few()
        for ph, cnt in enumerate(OPT["k1sched"]):
            for j in pre.get(ph, []): j()
            for (sl, q) in quarters[pos:pos+cnt]:
                assert sl < NS or sl - NS <= ph - 2, (sl, ph)
                dma(sl, q)
            pos += cnt
            for j in post.get(ph, []): j()
            a.waitvm(f"S{ph}", lg0=True); a("s_barrier")
            (st.mark if ph in (0, 7) else few)()
        assert pos == 32
        if phG == 8: j_gather()
        j_check()
        for j in pre.get(8, []): j()
        if OPT["phS"] == 8: j_wstore()
        a.waitlg(); a("s_barrier")
        for j in pre.get(9, []): j()
        if OPT["phS"] == 9: j_wstore()
        few()
        if D:
            p, q = x1_out(Vx); a(p); q()
        for j in pre.get(10, []): j()
        if OPT["pfw2"] == 20 and D:
            a("s_waitcnt vmcnt(0)")
            srd(a, SPF, 30, 31, 1792 * 1024)
            a(f"""s_lshl_b32 s3, {s(sW)}, 2
                  s_add_u32 s3, s3, {s(sLO)}
                  s_lshl_b32 s3, s3, 2
                  s_add_u32 s3, s3, {s(sV)}
                  s_mul_i32 s63, s3, {28*1024}""")
            for j in range(28):
                if j and j % 4 == 0: a("s_add_u32 s63, s63, 4096")
                a(f"buffer_load_dwordx4 {v(dmy,4)}, {v(l16)}, {s(SPF,4)}, s63 offen offset:{1024*(j & 3)}"); untracked(a)
            a("s_mov_b32 s63, 1")
        elif OPT["pfw2"] == 20: a("s_mov_b32 s63, 0")
        if MG: a(f"v_readfirstlane_b32 s66, {v(gn)}\ns_branch P2_LOADER")
        else:
            st.flush(SW, wl, tid, 256, 1)
            a("s_endpgm")
        return st.n
    nl = loader(False)
    a.restore(snapL); st.n = stn
    a.label("K1_LD")
    assert loader(True) == nl
    a.restore(snap0); V.n = Vbase; st.n = 1 if OPT["stamp"] else 0
    a.label("K1_COMPUTE")
    if OPT["est"]: st.mark()
    if OPT["prio"]: a(f"s_setprio {OPT['prio']}")
    ones = V.get(2); gq = V.get(4); gn = V.get(); gz = V.get()
    key = t4
    rw = 236
    a(f"""s_lshl_b32 s3, {s(sW)}, 2
          s_add_u32 s3, s3, {s(sLO)}
          s_lshl_b32 s3, s3, 1
          s_add_u32 s3, s3, {s(sHF)}
          s_lshl_b32 s3, s3, 3
          s_add_u32 s3, s3, {s(sCJ)}
          s_lshl_b32 s3, s3, 2
          s_add_u32 s3, s3, {s(sV)}
          s_lshl_b32 s3, s3, 11
          v_lshlrev_b32 {v(t0)}, 4, {v(lane)}
          s_mov_b32 {s(SX+2)}, 0x200000
          s_mov_b32 {s(SX+3)}, 0x20000""")
    a.waitlg()
    a(f"""s_mov_b64 {s(SX,2)}, s[24:25]
          buffer_load_dwordx4 {v(rw,4)}, {v(t0)}, {s(SX,4)}, s3 offen
          buffer_load_dwordx4 {v(rw+4,4)}, {v(t0)}, {s(SX,4)}, s3 offen offset:1024
          s_lshr_b32 s53, s3, 6
          s_add_u32 s53, s53, {STATS_OFF}
          v_mov_b32 {v(gz)}, 0""")
    if OPT["est"]: st.mark()
    def linear_pf(lo, nbytes, n):
        srd(a, SB, lo, lo + 1, nbytes)
        a(f"s_lshl_b32 s3, s2, 2\ns_add_u32 s3, s3, {s(sV)}\ns_mul_i32 s3, s3, {nbytes // 1024 // 128 * 128}\nv_lshlrev_b32 {v(pf)}, 4, {v(lane)}")
        for j in range(n):
            a(f"buffer_load_dwordx4 {v(rw+8,4)}, {v(pf)}, {s(SB,4)}, s3 offen offset:{1024*j}"); untracked(a)
    if OPT["pfm"] & 1: linear_pf(28, 512 * 3584, 2)
    srd(a, SW, 90, 91, WS_END); srd(a, SD, 88, 89, 256)
    if OPT["touch"]:
        a(f"""s_load_dwordx2 s[44:45], s[0:1], 48
              v_lshlrev_b32 {v(pf)}, 19, {v(lane)}
              v_min_u32 {v(pf)}, {G.F3_OFF}, {v(pf)}
              s_lshl_b32 s3, s2, 7
              buffer_load_dword {v(pf)}, {v(pf)}, {s(SW,4)}, s3 offen sc1""")
        untracked(a)
    a(f"s_or_b32 s3, s2, {s(sV)}\ns_cmp_lg_u32 s3, 0\ns_cbranch_scc1 K1_NOEPOCH")
    keep = a.snapshot()
    a(f"""s_add_u32 s40, {s(SW)}, {EPOCH_OFF}
          s_addc_u32 s41, {s(SW+1)}, 0
          s_load_dword s42, s[40:41], 0
          s_mov_b32 s3, {EPOCH_OFF}
          s_add_u32 s42, s42, 1
          s_or_b32 s42, s42, 1
          v_mov_b32 {v(gn)}, s42
          s_mov_b64 exec, 1
          buffer_store_dword {v(gn)}, {v(gz)}, {s(SD,4)}, 0 offen sc1
          buffer_store_dword {v(gn)}, {v(gz)}, {s(SW,4)}, s3 offen sc1
          s_mov_b64 exec, -1""")
    a.label("K1_NOEPOCH")
    a.restore(keep)
    a(f"""v_mov_b32 {v(ones)}, 0x3f803f80
          v_mov_b32 {v(ones+1)}, 0x3f803f80
          v_and_b32 {v(t1)}, 1, {v(lane)}
          v_cmp_eq_u32 s[58:59], 1, {v(t1)}
          v_bfe_u32 {v(key)}, {v(lane)}, 1, 3
          v_and_b32 {v(t0)}, 31, {v(lane)}
          v_lshlrev_b32 {v(t0)}, 7, {v(t0)}
          v_add_u32 {v(t0)}, {s(sL)}, {v(t0)}""")
    uid = [0]
    def produce():
        if OPT["est"]: st.mark(); a("s_waitcnt vmcnt(0)"); st.mark()
        if OPT["early"]: a(f"s_waitcnt vmcnt(0)\nbuffer_load_dword {v(gn)}, {v(gz)}, {s(SD,4)}, 0 offen sc1")
        for i in range(4):
            for r in range(2):
                c0 = "0" if i == 0 else None
                a(f"v_dot2_f32_bf16 {v(gq+2*r)}, {v(rw+4*r+i)}, {v(rw+4*r+i)}, {c0 or v(gq+2*r)}\nv_dot2_f32_bf16 {v(gq+2*r+1)}, {v(rw+4*r+i)}, {v(ones)}, {c0 or v(gq+2*r+1)}")
        a("s_nop 2")
        for m in ("row_shr:1 row_mask:0xf", "row_shr:2 row_mask:0xf", "row_shr:4 row_mask:0xf", "row_shr:8 row_mask:0xf", "row_bcast:15 row_mask:0xa", "row_bcast:31 row_mask:0xc"):
            for i in range(4): a(f"v_add_f32_dpp {v(gq+i)}, {v(gq+i)}, {v(gq+i)} {m} bank_mask:0xf bound_ctrl:0")
        for i in range(4): a(f"v_readlane_b32 s{16+i}, {v(gq+i)}, 63")
        a(f"""v_mov_b32 {v(gq)}, s16
              v_mov_b32 {v(gq+1)}, s17
              v_mov_b32 {v(gq+2)}, s18
              v_mov_b32 {v(gq+3)}, s19
              v_cndmask_b32 {v(gq)}, {v(gq)}, {v(gq+2)}, s[58:59]
              v_cndmask_b32 {v(gq+1)}, {v(gq+1)}, {v(gq+3)}, s[58:59]""")
        for r in finish_stats(gq, gq + 1, t4, t5): a(r)
        a(f"""s_lshl_b32 s3, {s(sV)}, 4
              s_add_u32 s3, s3, {PRS}
              v_lshl_add_u32 {v(t4)}, {v(lane)}, 3, s3
              s_mov_b64 exec, 3
              ds_write_b64 {v(t4)}, {v(gq,2)}
              s_mov_b64 exec, -1""")
        if OPT["est"]: st.mark()
        if OPT["pfm"] & 2: linear_pf(30, 1792 * 1024, 2)
        if OPT["pfm"] & 4: linear_pf(26, 2048 * 514, 1); linear_pf(22, 2048 * 514, 1)
        if OPT["early"]:
            uid[0] += 1
            a(f"""v_readfirstlane_b32 s3, {v(gn)}
                  s_cmp_eq_u32 s3, 0
                  s_cbranch_scc1 K1_NOEARLY{uid[0]}""")
            a(f"""v_mov_b32 {v(gq+2)}, s3
                  v_mov_b32 {v(gq+3)}, s3
                  v_lshlrev_b32 {v(gz)}, 4, {v(lane)}
                  s_mov_b64 exec, 3
                  buffer_store_dwordx4 {v(gq,4)}, {v(gz)}, {s(SW,4)}, s53 offen sc1
                  s_mov_b64 exec, -1""")
            a.label(f"K1_NOEARLY{uid[0]}")
    def bar():
        a.waitlg(); a("s_barrier")
    a(f"s_cmp_eq_u32 {s(sCJ)}, 7\ns_cbranch_scc1 K1_DFT")
    snap = a.snapshot(); V0 = V.n; stc = st.n
    xa = [[V.get(4), V.get(4)] for _ in range(2)]
    wa = [[V.get(), V.get()] for _ in range(2)]
    ad1, ad2, ad3, ad4, ad5, l16 = [V.get() for _ in range(6)]
    cs = V.get(4)
    a(f"v_xor_b32 {v(t1)}, {v(t3)}, {v(key)}")
    for i in range(4):
        a(f"""v_xor_b32 {v(t2)}, {2*i}, {v(t1)}
              v_lshl_add_u32 {v(xa[0][0]+i)}, {v(t2)}, 4, {v(t0)}
              v_xor_b32 {v(xa[0][1]+i)}, 0x1000, {v(xa[0][0]+i)}
              v_add_u32 {v(xa[1][0]+i)}, 65536, {v(xa[0][0]+i)}
              v_add_u32 {v(xa[1][1]+i)}, 65536, {v(xa[0][1]+i)}""")
    a(f"""s_lshr_b32 {s(sWR_)}, {s(sV)}, 1
          s_and_b32 {s(sWC)}, {s(sV)}, 1
          v_and_b32 {v(t1)}, 2, {v(lane)}
          v_cmp_eq_u32 s[62:63], 2, {v(t1)}
          v_bfe_u32 {v(t0)}, {v(lane)}, 2, 2
          v_lshl_add_u32 {v(t1)}, {v(t3)}, 3, {v(t0)}
          v_lshlrev_b32 {v(t1)}, 8, {v(t1)}
          s_lshl_b32 s3, {s(sWC)}, 1
          s_add_u32 s54, s3, {s(sWR_)}
          v_xor_b32 {v(t0)}, s54, {v(t0)}
          v_lshl_add_u32 {v(t1)}, {v(t0)}, 6, {v(t1)}
          v_bfe_u32 {v(t0)}, {v(lane)}, 4, 1
          v_lshl_add_u32 {v(t1)}, {v(t0)}, 5, {v(t1)}
          v_and_b32 {v(t0)}, 1, {v(lane)}
          v_lshl_add_u32 {v(t1)}, {v(t0)}, 4, {v(t1)}
          v_bfe_u32 {v(t0)}, {v(lane)}, 1, 1
          v_lshl_add_u32 {v(t1)}, {v(t0)}, 3, {v(t1)}
          v_add_u32 {v(wa[0][0])}, 16384, {v(t1)}
          v_xor_b32 {v(wa[0][1])}, 64, {v(wa[0][0])}
          v_add_u32 {v(wa[1][0])}, 65536, {v(wa[0][0])}
          v_add_u32 {v(wa[1][1])}, 65536, {v(wa[0][1])}
          v_and_b32 {v(t0)}, 31, {v(lane)}
          s_lshl_b32 s3, {s(sV)}, 8
          s_add_u32 s3, s3, {SCR}
          v_lshl_add_u32 {v(ad1)}, {v(t0)}, 3, s3
          v_xor_b32 {v(ad3)}, 0x100, {v(ad1)}
          s_lshl_b32 s3, s54, 7
          s_add_u32 s40, s3, {PCS}
          v_lshl_add_u32 {v(ad2)}, {v(t0)}, 2, s40
          s_add_u32 s3, s3, {CSF}
          v_lshl_add_u32 {v(ad4)}, {v(t3)}, 4, s3
          v_xor_b32 {v(ad5)}, 0x80, {v(ad4)}
          s_mov_b32 s60, {fbits(-LOG2E)}
          s_mov_b32 s61, {fbits(-LOG2E)}
          v_lshlrev_b32 {v(l16)}, 4, {v(lane)}
          s_lshl_b32 s3, {s(sW)}, 2
          s_add_u32 s3, s3, {s(sLO)}
          s_lshl_b32 s3, s3, 2
          s_add_u32 s40, s3, {s(sV)}
          s_xor_b32 s41, s40, 1
          s_mul_i32 s40, s40, {112*1024}
          s_mul_i32 s41, s41, {112*1024}
          s_mul_i32 s3, {s(sHF)}, 7
          s_add_u32 s3, s3, {s(sCJ)}
          s_lshl_b32 s3, s3, 13
          s_lshl_b32 s42, s54, 11
          s_add_u32 s42, s42, s3
          s_xor_b32 s43, s42, 0x800
          s_add_u32 s44, s40, s42
          s_add_u32 s45, s41, s42
          s_add_u32 s46, s40, s43
          s_add_u32 s47, s41, s43""")
    acc = [[V.get(16) for _ in range(2)] for _ in range(2)]
    xf = [[V.get(4) for _ in range(2)] for _ in range(3)]
    wf = [[V.get(4) for _ in range(2)] for _ in range(3)]
    a12 = [V.get(2), V.get(2)]; cv = [V.get(16), V.get(16)]
    def reads_ffn(n):
        if n >= 32: return []
        slab, t = divmod(n, 4); slot = slab % NS; se, off = slot >> 1, (slot & 1) * 32768; b = n % 3
        r = []
        for T in range(2):
            r.append(f"ds_read_b128 {v(xf[b][T],4)}, {v(xa[se][T]+t)} offset:{off}")
            r.append(f"ds_read_b64_tr_b16 {v(wf[b][T],2)}, {v(wa[se][T])} offset:{off + t*4096}")
            r.append(f"ds_read_b64_tr_b16 {v(wf[b][T]+2,2)}, {v(wa[se][T])} offset:{off + t*4096 + 1024}")
        return r
    produce()
    bar(); st.mark()
    for r in reads_ffn(0) + reads_ffn(1): a(r)
    for n in range(32):
        b = n % 3; z = "0" if n == 0 else None
        mfs = [(lambda F=F, S=S: mf32(a, acc[F][S], wf[b][F], xf[b][S], z)) for (F, S) in ((0, 0), (1, 0), (0, 1), (1, 1))]
        fill = reads_ffn(n + 2); per = [3, 3, 0, 0]
        if n % 4 == 2 and n < 28: fill = [bar] + fill; per = [3, 2, 2, 0]
        if n == 4:
            fill += [f"v_cndmask_b32 {v(cs)}, {v(cs)}, {v(cs+1)}, s[58:59]", f"v_cndmask_b32 {v(cs+2)}, {v(cs+2)}, {v(cs+3)}, s[58:59]",
                     f"v_cndmask_b32 {v(cs+1)}, {v(cs)}, {v(cs+2)}, s[62:63]", f"v_cndmask_b32 {v(cs)}, {v(cs)}, {v(cs+2)}, s[62:63]"]
            per = [3, 3, 2, 2]
        if n == 5:
            fill += [f"v_permlane32_swap_b32 {v(cs)}, {v(cs+1)}", f"v_add_f32 {v(cs)}, {v(cs)}, {v(cs+1)}", f"ds_write_b32 {v(ad2)}, {v(cs)}"]
            per = [3, 4, 1, 1]
        if n == OPT["e1step"]:
            fill = [bar, f"ds_read_b64 {v(a12[0],2)}, {v(ad1)}", f"ds_read_b64 {v(a12[1],2)}, {v(ad3)}"] + \
                   [f"ds_read_b128 {v(cv[F]+4*jj,4)}, {v(ad)} offset:{32*jj}" for F, ad in ((0, ad4), (1, ad5)) for jj in range(4)]
            per = [4, 4, 3, 0]
            if MG: fill += [f"v_mov_b32 {v(gz)}, {NON}", f"ds_read_b32 {v(gn)}, {v(gz)}"]; per[3] = 2
        interleave(a, mfs, fill, per)
        if n < 4:
            for h in (0, 2): mf4(a, cs, ones, wf[b][0]+h, "0" if (n == 0 and h == 0) else None)
        if n == 10: few()
    st.mark()
    tmp = xf[0][0]; ee = tmp + 16; pk = [ee + 16, ee + 24]
    assert wf[2][1] + 4 == tmp + 48
    k = 0
    for S in range(2):
        for F in range(2):
            A_ = acc[F][S]; pp = pk[k & 1]; k += 1
            for i in range(0, 16, 2): a(f"v_pk_mul_f32 {v(tmp+i,2)}, {v(cv[F]+i,2)}, {v(a12[S],2)} op_sel:[0,1] op_sel_hi:[1,1]")
            for i in range(0, 16, 2): a(f"v_pk_fma_f32 {v(A_+i,2)}, {v(A_+i,2)}, {v(a12[S],2)}, {v(tmp+i,2)} op_sel:[0,0,0] op_sel_hi:[1,0,1]")
            for i in range(16): a(f"v_exp_f32 {v(ee+i)}, {v(A_+i)}")
            for i in range(0, 16, 2): a(f"v_pk_fma_f32 {v(ee+i,2)}, {v(ee+i,2)}, s[60:61], s[60:61]")
            for i in range(16): a(f"v_rcp_f32 {v(ee+i)}, {v(ee+i)}")
            for i in range(0, 16, 2): a(f"v_pk_mul_f32 {v(A_+i,2)}, {v(A_+i,2)}, {v(ee+i,2)}")
            for u in range(2):
                for i in range(4): a(f"v_cvt_pk_bf16_f32 {v(pp+4*u+i)}, {v(A_+8*u+2*i)}, {v(A_+8*u+2*i+1)}")
                if 2*(k-1) + u >= OPT["noH"]: a(f"buffer_store_dwordx4 {v(pp+4*u,4)}, {v(l16)}, {s(SW,4)}, s{44+2*F+S} offen offset:{1024*u} {'sc1' if 2*(k-1) + u < OPT['nsc1'] else ''}")
    st.mark()
    nc = st.n
    if MG: a(f"v_readfirstlane_b32 s66, {v(gn)}\ns_branch P2_COMPUTE")
    else:
        st.flush(SW, tmp, tid)
        a("s_endpgm")
    vmax = max(V.hi, Vx.hi, rw + 12)
    a.restore(snap); V.n = V0; st.n = stc
    a.label("K1_DFT")
    xa = [V.get(4), V.get(4)]; ta = [V.get(), V.get()]; ad2 = V.get(); wad = [V.get(), V.get()]
    Vo = VAlloc(V.get(6))
    acc = [[V.get(16) for _ in range(2)] for _ in range(4)]
    xr = V.get(16); xe = [V.get(4) for _ in range(4)]; tf = [[V.get(4) for _ in range(2)] for _ in range(4)]
    assert rw >= xr
    a(f"v_lshlrev_b32 {v(t1)}, 2, {v(t3)}\nv_xor_b32 {v(t1)}, {v(t1)}, {v(key)}")
    for i in range(4):
        a(f"v_xor_b32 {v(t2)}, {i}, {v(t1)}\nv_lshl_add_u32 {v(xa[0]+i)}, {v(t2)}, 4, {v(t0)}\nv_add_u32 {v(xa[1]+i)}, 65536, {v(xa[0]+i)}")
    a(f"""v_lshlrev_b32 {v(ta[0])}, 4, {v(lane)}
          v_add_u32 {v(ta[0])}, 16384, {v(ta[0])}
          v_add_u32 {v(ta[1])}, 65536, {v(ta[0])}
          s_mov_b32 s62, 0x05040100
          s_mov_b32 s63, 0x07060302
          s_lshl_b32 s3, {s(sV)}, 7
          s_add_u32 s3, s3, {SCR}
          v_lshl_add_u32 {v(ad2)}, {v(t3)}, 4, s3
          v_and_b32 {v(t1)}, 31, {v(lane)}
          v_cmp_eq_u32 s[64:65], 0, {v(t1)}
          v_lshlrev_b32 {v(t5)}, 9, {v(t1)}
          v_and_b32 {v(t1)}, 7, {v(lane)}
          v_xor_b32 {v(t1)}, {v(t1)}, {v(t3)}
          s_lshl_b32 s3, {s(sV)}, 2
          v_xor_b32 {v(t1)}, s3, {v(t1)}
          v_lshl_add_u32 {v(wad[0])}, {v(t1)}, 4, {v(t5)}
          v_xor_b32 {v(wad[1])}, 32, {v(wad[0])}
          s_mov_b32 s60, 2.0
          s_mov_b32 s61, 2.0
          s_mov_b32 s32, 0.5
          s_mov_b32 s33, 0.5""")
    class R2:
        def __init__(s_): s_.k = 0
        def get(s_, n=1):
            return acc[0][0] if n == 32 else Vo.get(n)
    x1pre, x1post = x1_out(R2())
    a(x1pre)
    def loc(sl): slot = sl % NS; return slot >> 1, (slot & 1) * 32768
    def rd_x(sl): se, off = loc(sl); return [f"ds_read_b128 {v(xr+4*b,4)}, {v(xa[se]+b)} offset:{off}" for b in range(4)]
    def rd_t(sl, r): se, off = loc(sl); return [f"ds_read_b128 {v(tf[r][c],4)}, {v(ta[se])} offset:{off + (2*r + c)*1024}" for c in range(2)]
    def perms(r): return [f"v_perm_b32 {v(xe[r]+i)}, {v(xr+4*i+2+(r>>1))}, {v(xr+4*i+(r>>1))}, s{62+(r&1)}" for i in range(4)]
    produce()
    bar(); st.mark()
    for r in rd_x(0) + sum((rd_t(0, r) for r in range(4)), []): a(r)
    for r in range(4):
        for p in perms(r): a(p)
    rs = xr
    for sl in range(8):
        z = "0" if sl == 0 else None
        mfs = [(lambda r=r, c=c: mf32(a, acc[r][c], xe[r], tf[r][c], z)) for r in range(4) for c in range(2)]
        if sl < 7:
            bar()
            fill = rd_x(sl + 1); per = [4]
            for r in range(4):
                nx = rd_t(sl + 1, r) + (perms(r - 1) if r else [])
                fill += nx; per += [len(nx), 0]
            fill += perms(3); per = per[:8]
        else: fill = []; per = [0] * 8
        interleave(a, mfs, fill, per)
        if sl == 2: few()
    st.mark()
    if OPT["pfd"]:
        n = 14 * OPT["pfd"]
        srd(a, SB, 30, 31, 1792 * 1024)
        if OPT["pfd"] == 1: a(f"s_and_b32 s3, s2, 31\ns_lshl_b32 s3, s3, 2")
        else: a(f"s_lshl_b32 s3, {s(sW)}, 2\ns_add_u32 s3, s3, {s(sLO)}\ns_lshl_b32 s3, s3, 2")
        a(f"s_add_u32 s3, s3, {s(sV)}\ns_mul_i32 s3, s3, {n*1024}\nv_lshlrev_b32 {v(pf)}, 4, {v(lane)}")
        for j in range(n):
            if j and j % 4 == 0: a("s_add_u32 s3, s3, 4096")
            a(f"buffer_load_dwordx4 {v(rw+8,4)}, {v(pf)}, {s(SB,4)}, s3 offen offset:{1024*(j & 3)}"); untracked(a)
    tmp = xe[0]; pk = [tf[0][0], tf[0][1]]
    ng = lambda *n: f" neg_lo:[{n[0]},{n[1]},{n[2]}] neg_hi:[{n[0]},{n[1]},{n[2]}]"
    for i in range(0, 16, 2):
        P = lambda q, c: v(acc[q][c]+i, 2)
        for q in range(2):
            for c in range(2): a(f"v_pk_add_f32 {P(q,c)}, {P(q,c)}, {P(q+2,c)}")
        for q in range(2):
            for c in range(2): a(f"v_pk_fma_f32 {P(q+2,c)}, {P(q+2,c)}, s[60:61], {P(q,c)}{ng(1,0,0)}")
        a(f"""v_pk_add_f32 {P(0,0)}, {P(0,0)}, {P(1,0)}
              v_pk_add_f32 {P(0,1)}, {P(0,1)}, {P(1,1)}
              v_pk_add_f32 {P(2,0)}, {P(2,0)}, {P(3,1)}
              v_pk_add_f32 {P(2,1)}, {P(2,1)}, {P(3,0)} neg_lo:[0,1] neg_hi:[0,1]
              v_pk_fma_f32 {P(1,0)}, {P(1,0)}, s[60:61], {P(0,0)}{ng(1,0,0)}
              v_pk_fma_f32 {P(1,1)}, {P(1,1)}, s[60:61], {P(0,1)}{ng(0,0,1)}
              v_pk_fma_f32 {P(3,1)}, {P(3,1)}, s[60:61], {P(2,0)}{ng(1,0,0)}
              v_pk_fma_f32 {P(3,0)}, {P(3,0)}, s[60:61], {P(2,1)}{ng(1,0,1)}""")
    a(f"s_cmp_lg_u32 {s(sHF)}, 0\ns_cbranch_scc1 K1_NOSPEC\ns_mov_b64 exec, s[64:65]")
    for i in range(0, 16, 2):
        P = lambda q, c: v(acc[q][c]+i, 2); T = lambda k: v(tmp+2*k, 2); n2 = " neg_lo:[0,1] neg_hi:[0,1]"
        a(f"""v_pk_add_f32 {T(0)}, {P(2,0)}, {P(3,1)}{n2}
              v_pk_add_f32 {T(1)}, {P(2,1)}, {P(3,0)}{n2}
              v_pk_add_f32 {T(2)}, {P(0,1)}, {P(1,1)}
              v_pk_add_f32 {T(3)}, {P(0,1)}, {P(1,1)}{n2}
              v_pk_add_f32 {P(2,0)}, {P(2,0)}, {P(3,1)}
              v_pk_add_f32 {P(2,1)}, {P(2,1)}, {P(3,0)}
              v_pk_add_f32 {T(4)}, {T(3)}, {T(1)}
              v_pk_add_f32 {T(5)}, {T(3)}, {T(1)}{n2}
              v_pk_mul_f32 {P(2,0)}, {P(2,0)}, s[32:33]
              v_pk_mul_f32 {P(2,1)}, {P(2,1)}, s[32:33]
              v_pk_add_f32 {P(0,0)}, {T(4)}, {T(0)}
              v_pk_add_f32 {P(0,1)}, {T(5)}, {T(2)} neg_lo:[1,1] neg_hi:[1,1]
              v_pk_add_f32 {P(3,1)}, {T(4)}, {T(0)}{n2}
              v_pk_add_f32 {P(3,0)}, {T(5)}, {T(2)}{n2}
              v_mov_b32 {v(acc[1][1]+i)}, 0
              v_mov_b32 {v(acc[1][1]+i+1)}, 0""")
    a("s_mov_b64 exec, -1")
    a.label("K1_NOSPEC")
    few()
    bar()
    if MG: a(f"v_mov_b32 {v(gz)}, {NON}\nds_read_b32 {v(gn)}, {v(gz)}")
    for jj in range(4): a(f"ds_read_b128 {v(rs+4*jj,4)}, {v(ad2)} offset:{32*jj}")
    k = 0
    for ty in range(4):
        for c in range(2):
            src = acc[ty][c if ty < 3 else 1 - c]
            for u in range(2):
                pp = pk[k & 1]; k += 1
                for i in range(4): a(f"v_pk_mul_f32 {v(src+8*u+2*i,2)}, {v(src+8*u+2*i,2)}, {v(rs+8*u+2*i,2)}")
                for i in range(4): a(f"v_cvt_pk_bf16_f32 {v(pp+i)}, {v(src+8*u+2*i)}, {v(src+8*u+2*i+1)}")
                a(f"ds_write_b128 {v(wad[u])}, {v(pp,4)} offset:{ty*16384 + c*256}")
    few()
    x1post()
    st.mark()
    if MG:
        import genp
        assert st.n == nc
        a(f"v_readfirstlane_b32 s66, {v(gn)}")
        a.vm, a.lg, a.hist = [("?", set())], [], []
        vmax = max(vmax, genp.compute23(a, st))
        a.vm, a.lg, a.hist = [("?", set())], [], []; st.n = nl
        vmax = max(vmax, genp.loader23(a, st))
    else: st.flush(SW, tmp, tid)
    a.label("K1_END")
    a("s_endpgm")
    return a, max(vmax, V.hi), (163840 if MG else 139264, 512)
```

```python
from asmfw import Asm, VAlloc, v, s
import __main__ as M
G = M if hasattr(M, "dft_table") else __import__("gen")
OPT = G.OPT; fbits = G.fbits; srd = G.srd; mf32 = G.mf32; mf16 = G.mf16
H_OFF, X1_OFF, WT_OFF, Y1_OFF, PART_OFF, WS_END, F1_OFF, F2_OFF, F3_OFF = G.H_OFF, G.X1_OFF, G.WT_OFF, G.Y1_OFF, G.PART_OFF, G.WS_END, G.F1_OFF, G.F2_OFF, G.F3_OFF
SW, S2, SX, SO = 12, 8, 4, 16
sN = 66
XB, WB, EX, RED, CNT = 65536, 73728, 81920, 98304, 90112
NS2 = 5
tid, lane, t0, t1, t2, t3, t4, t5 = range(8)
sV, sQ, sRB, sNB, sL, sHo, s2o, sWR_, sWC, sRT, sCB, sYo = 37, 35, 36, 34, 38, 39, 40, 41, 42, 35, 36, 39

def put_flag(a, off, va, vd):
    a(f"""s_lshl_b32 s3, s2, 7
          s_add_u32 s3, s3, {off}
          v_lshlrev_b32 {v(va)}, 2, {v(lane)}
          v_mov_b32 {v(vd)}, {s(sN)}
          s_mov_b64 exec, {0xffffffff if OPT["fline"] else 1}
          buffer_store_dword {v(vd)}, {v(va)}, {s(SW,4)}, s3 offen sc1
          s_mov_b64 exec, -1""")
def flag_load(a, va, vd): a(f"buffer_load_dword {v(vd)}, {v(va)}, {s(SW,4)}, 0 offen sc1")
def wait_flags(a, name, va, vd):
    a(f"v_cmp_ne_u32 vcc, {s(sN)}, {v(vd)}\ns_cbranch_vccz {name}_OK\ns_mov_b32 s67, 0")
    keep = a.snapshot()
    a.label(f"{name}_SPIN")
    if OPT["slS"]: a(f"s_sleep {OPT['slS']}")
    flag_load(a, va, vd)
    a(f"""s_add_u32 s67, s67, 1
          s_cmp_gt_u32 s67, {OPT["spinf"]}
          s_waitcnt vmcnt(0)
          s_cbranch_scc1 {name}_OK
          v_cmp_ne_u32 vcc, {s(sN)}, {v(vd)}
          s_cbranch_vccnz {name}_SPIN""")
    a.label(f"{name}_OK")
    a.restore(keep); a.hist = []

def decode2(a, l16):
    a(f"""v_lshlrev_b32 {v(l16)}, 4, {v(lane)}
          v_lshrrev_b32 {v(t1)}, 4, {v(lane)}
          s_bfe_u32 {s(sQ)}, s2, 0x20001
          s_and_b32 s3, s2, 1
          s_lshl_b32 s3, s3, 3
          s_lshr_b32 {s(sRB)}, s2, 5
          s_add_u32 {s(sRB)}, {s(sRB)}, s3
          s_bfe_u32 {s(sNB)}, s2, 0x20003""")
def decode3(a):
    a(f"""s_and_b32 s3, s2, 7
          s_lshl_b32 s3, s3, 2
          s_bfe_u32 {s(sRT)}, s2, 0x20003
          s_add_u32 {s(sRT)}, {s(sRT)}, s3
          s_lshr_b32 {s(sCB)}, s2, 5
          v_lshrrev_b32 {v(t3)}, 5, {v(lane)}""")

def loader23(a, st):
    a.label("P2_LOADER")
    V = VAlloc(8); l16 = V.get(); v2 = V.get(4); fa, fd, fa2, fd2 = [V.get() for _ in range(4)]
    a("s_load_dwordx2 s[26:27], s[0:1], 40\ns_load_dwordx2 s[28:29], s[0:1], 0\ns_load_dwordx2 s[30:31], s[0:1], 48")
    decode2(a, l16)
    a(f"""s_lshl_b32 s43, s2, 13
          s_lshl_b32 s44, {s(sV)}, 11
          s_add_u32 s43, s43, s44""")
    a(f"""s_add_u32 s47, s43, {X1_OFF}
          s_add_u32 s48, s43, {WT_OFF}
          s_lshl_b32 {s(sL)}, {s(sV)}, 12
          s_lshl_b32 s3, {s(sRB)}, 2
          s_add_u32 s3, s3, {s(sV)}
          s_mul_i32 s3, s3, 112
          s_mul_i32 s43, {s(sQ)}, 28
          s_add_u32 s3, s3, s43
          s_lshl_b32 {s(sHo)}, s3, 10
          s_mul_i32 s3, {s(sQ)}, 448
          s_lshl_b32 s43, {s(sV)}, 4
          s_add_u32 s3, s3, s43
          s_lshl_b32 s3, s3, 10
          s_lshl_b32 s43, {s(sNB)}, 7
          s_add_u32 {s(s2o)}, s3, s43
          v_and_b32 {v(t0)}, 15, {v(lane)}
          v_lshlrev_b32 {v(t2)}, 2, {v(t1)}
          v_xor_b32 {v(t0)}, {v(t0)}, {v(t2)}
          v_lshrrev_b32 {v(t2)}, 3, {v(t0)}
          v_and_b32 {v(t0)}, 7, {v(t0)}
          v_lshlrev_b32 {v(t0)}, 4, {v(t0)}
          v_lshl_add_u32 {v(t0)}, {v(t2)}, 9, {v(t0)}
          v_lshl_add_u32 {v(v2)}, {v(t1)}, 10, {v(t0)}
          v_add_u32 {v(v2+1)}, 3072, {v(v2)}
          v_add_u32 {v(v2+2)}, 6144, {v(v2)}
          v_add_u32 {v(v2+3)}, 9216, {v(v2)}""")
    a(f"""s_and_b32 s3, {s(sRB)}, 3
          s_lshl_b32 s3, s3, 3
          s_lshr_b32 s43, {s(sRB)}, 2
          s_lshl_b32 s43, s43, 1
          s_add_u32 s3, s3, s43
          s_lshr_b32 s43, {s(sQ)}, 1
          s_add_u32 s3, s3, s43
          s_and_b32 s43, {s(sQ)}, 1
          s_mul_i32 s43, s43, 96
          s_add_u32 s3, s3, s43
          s_lshl_b32 s3, s3, 7
          s_add_u32 s3, s3, {F1_OFF}
          v_and_b32 {v(t0)}, 3, {v(lane)}
          v_lshl_add_u32 {v(fa)}, {v(t0)}, 12, s3
          s_lshl_b32 s3, {s(sV)}, 13
          s_add_u32 s3, s3, {F1_OFF}
          v_lshl_add_u32 {v(fa2)}, {v(lane)}, 7, s3""")
    if OPT["rot2"]:
        a(f"""s_lshl_b32 s46, {s(sNB)}, 1
              s_lshl_b32 s3, s46, 12
              s_add_u32 {s(sHo)}, {s(sHo)}, s3
              s_lshl_b32 s3, s46, 16
              s_add_u32 {s(s2o)}, {s(s2o)}, s3""")
    a.waitlg()
    srd(a, S2, 26, 27, 1792 * 1024)
    if OPT["pfw2"] == 20:
        a("s_cmp_eq_u32 s63, 1\ns_cbranch_scc1 P2_NOW\ns_waitcnt vmcnt(0)"); a.label("P2_NOW"); a("s_barrier")
        a.vm = [("?", set())] * 28
    else: a(f"s_waitcnt vmcnt({4 if OPT['pfw2'] == 10 else 0})\ns_barrier")
    st.mark()
    a(f"s_cmp_lg_u32 {s(sV)}, 0\ns_cbranch_scc1 P2_NOFLAG")
    keep = a.snapshot(); put_flag(a, F1_OFF, t0, t2); a.label("P2_NOFLAG"); a.restore(keep)
    def dma(slab, q):
        slot = slab % NS2; part, hf = q >> 1, q & 1
        if hf == 0: a(f"s_add_u32 m0, {s(sL)}, {slot*32768 + part*16384}")
        for j in (2*hf, 2*hf + 1):
            if part == 0: a(f"buffer_load_dwordx4 {v(l16)}, {s(SW,4)}, {s(sHo)} offen offset:{1024*j} sc1 lds", tag=f"S{slab}")
            else: a(f"buffer_load_dwordx4 {v(v2+j)}, {s(S2,4)}, {s(s2o)} offen offset:{1024*j} lds", tag=f"S{slab}")
        if hf == 1:
            reg, step = (sHo, 4096) if part == 0 else (s2o, 65536)
            if OPT["rot2"] and slab in (0, 2, 4):
                a(f"s_cmp_eq_u32 s46, {6 - slab}\ns_mov_b32 s3, {step}\ns_cselect_b32 s3, {(-6*step) & 0xffffffff}, s3\ns_add_u32 {s(reg)}, {s(reg)}, s3")
            else: a(f"s_add_u32 {s(reg)}, {s(reg)}, {step}")
    npre = OPT["k2sched"][0] // 4
    for sl in range(npre): dma(sl, 2); dma(sl, 3)
    if OPT["slH"]: a(f"s_sleep {OPT['slH']}")
    flag_load(a, fa, fd); wait_flags(a, "P2_FH", fa, fd)
    st.mark()
    for sl in range(npre): dma(sl, 0); dma(sl, 1)
    quarters = [(i >> 2, i & 3) for i in range(28)]; pos = 0
    for ph, cnt in enumerate(OPT["k2sched"]):
        if ph == 1: flag_load(a, fa2, fd2)
        for (sl, part) in quarters[pos:pos+cnt]:
            assert sl < NS2 or sl - NS2 <= ph - 2, (sl, ph)
            if ph: dma(sl, part)
        pos += cnt
        if ph == OPT["phX"]:
            assert ph >= 4
            for base, so in ((XB, 47), (WB, 48)):
                a(f"s_add_u32 m0, s44, {base}")
                for j in range(2): a(f"buffer_load_dwordx4 {v(l16)}, {s(SW,4)}, s{so} offen offset:{1024*j} sc1 lds", tag="X")
        a.waitvm(f"S{ph}")
        if ph == 3: wait_flags(a, "P2_FA", fa2, fd2)
        if ph == 6: a.waitvm("X")
        a("s_barrier")
        if ph in (0, 6): st.mark()
    assert pos == 28 and len(OPT["k2sched"]) == 7
    decode3(a)
    vxo = V.get(); pt = V.get(32); xv = V.get(8); rr = V.get(2)
    a(f"""s_lshl_b32 s3, {s(sRT)}, 1
          s_lshr_b32 s40, {s(sV)}, 1
          s_add_u32 s3, s3, s40
          s_lshl_b32 s3, s3, 4
          s_add_u32 s3, s3, {s(sCB)}
          s_lshl_b32 s3, s3, 1
          s_and_b32 s40, {s(sV)}, 1
          s_add_u32 s3, s3, s40
          s_lshl_b32 s3, s3, 10
          s_add_u32 s43, s3, {PART_OFF}""")
    srd(a, SX, 28, 29, 0x200000); srd(a, SO, 30, 31, 0x200000)
    a(f"""v_bfe_u32 {v(t0)}, {v(lane)}, 4, 1
          v_bfe_u32 {v(t1)}, {v(lane)}, 2, 2
          v_lshl_add_u32 {v(t0)}, {v(t0)}, 4, {v(t1)}
          v_lshl_add_u32 {v(t0)}, {v(t3)}, 5, {v(t0)}
          v_and_b32 {v(t2)}, 3, {v(lane)}
          v_lshlrev_b32 {v(t2)}, 4, {v(t2)}
          v_lshl_add_u32 {v(vxo)}, {v(t0)}, 10, {v(t2)}
          s_lshr_b32 s3, {s(sRT)}, 3
          s_lshl_b32 s3, s3, 9
          s_and_b32 s40, {s(sRT)}, 1
          s_lshl_b32 s40, s40, 8
          s_add_u32 s3, s3, s40
          s_lshl_b32 s40, {s(sV)}, 6
          s_add_u32 s3, s3, s40
          s_bfe_u32 s40, {s(sRT)}, 0x20001
          s_lshl_b32 s40, s40, 2
          s_add_u32 s3, s3, s40
          s_lshl_b32 s3, s3, 10
          s_lshl_b32 s40, {s(sCB)}, 6
          s_add_u32 s45, s3, s40""")
    for lh in range(2): a(f"buffer_load_dwordx4 {v(xv+4*lh,4)}, {v(vxo)}, {s(SX,4)}, s45 offen offset:{512*lh}", tag="P")
    a(f"""s_bfe_u32 s3, {s(sRT)}, 0x30001
          s_lshl_b32 s3, s3, 2
          s_lshr_b32 s40, {s(sCB)}, 1
          s_add_u32 s3, s3, s40
          s_lshl_b32 s3, s3, 3
          s_lshr_b32 s40, {s(sRT)}, 4
          s_add_u32 s3, s3, s40
          s_lshl_b32 s3, s3, 7
          s_add_u32 s3, s3, {F2_OFF}
          v_and_b32 {v(t0)}, 3, {v(lane)}
          v_lshl_add_u32 {v(fa)}, {v(t0)}, 8, s3""")
    a("s_barrier")
    st.mark()
    if OPT["slP"]: a(f"s_sleep {OPT['slP']}")
    flag_load(a, fa, fd); wait_flags(a, "P3_FP", fa, fd)
    st.mark()
    for q in range(4):
        for lh in range(2):
            if q or lh: a(f"s_add_u32 s43, s43, {16384 if lh else 0x200000 - 16384}")
            a(f"buffer_load_dwordx4 {v(pt + 8*q + 4*lh,4)}, {v(l16)}, {s(SW,4)}, s43 offen sc1", tag="P")
    a(f"""v_lshrrev_b32 {v(t0)}, 2, {v(lane)}
          s_lshl_b32 s3, {s(sV)}, 11
          s_add_u32 s3, s3, {RED}
          v_lshl_add_u32 {v(t2)}, {v(t0)}, 7, s3
          v_and_b32 {v(t0)}, 7, {v(t0)}
          v_and_b32 {v(t4)}, 3, {v(lane)}
          v_lshlrev_b32 {v(t4)}, 1, {v(t4)}
          v_xor_b32 {v(t0)}, {v(t0)}, {v(t4)}
          v_lshl_add_u32 {v(rr)}, {v(t0)}, 4, {v(t2)}
          v_xor_b32 {v(rr+1)}, 16, {v(rr)}
          s_mov_b32 s46, 0xffff0000
          s_mov_b32 s48, {fbits(1/256)}
          s_mov_b32 s49, {fbits(1/256)}""")
    bs = [V.get(8), V.get(8)]; u0 = V.get(8); red = V.get(32); pk = V.get(8)
    for q in range(5):
        for lh in range(2):
            for i in range(4):
                src = (pt + 8*(q-1) if q else xv) + 4*lh + i; dst = bs[lh] if q == 0 else u0
                a(f"v_lshlrev_b32 {v(dst+2*i)}, 16, {v(src)}\nv_and_b32 {v(dst+2*i+1)}, s46, {v(src)}")
            if q:
                for i in range(4): a(f"v_add_f32 {v(bs[lh]+2*i)}, {v(bs[lh]+2*i)}, {v(u0+2*i)}\nv_add_f32 {v(bs[lh]+2*i+1)}, {v(bs[lh]+2*i+1)}, {v(u0+2*i+1)}")
    st.mark()
    a("s_barrier")
    for b in range(2):
        for w in range(4): a(f"ds_read_b128 {v(red+8*w+4*b,4)}, {v(rr+b)} offset:{8192*w}")
    for i in range(0, 8, 2):
        a(f"""v_pk_add_f32 {v(red+i,2)}, {v(red+i,2)}, {v(red+8+i,2)}
              v_pk_add_f32 {v(red+16+i,2)}, {v(red+16+i,2)}, {v(red+24+i,2)}
              v_pk_fma_f32 {v(bs[0]+i,2)}, {v(red+16+i,2)}, s[48:49], {v(bs[0]+i,2)}
              v_pk_fma_f32 {v(bs[1]+i,2)}, {v(red+16+i,2)}, s[48:49], {v(bs[1]+i,2)}
              v_pk_fma_f32 {v(bs[0]+i,2)}, {v(red+i,2)}, s[48:49], {v(bs[0]+i,2)}
              v_pk_fma_f32 {v(bs[1]+i,2)}, {v(red+i,2)}, s[48:49], {v(bs[1]+i,2)} neg_lo:[1,0,0] neg_hi:[1,0,0]""")
    for lh in range(2):
        for i in range(4): a(f"v_cvt_pk_bf16_f32 {v(pk+4*lh+i)}, {v(bs[lh]+2*i)}, {v(bs[lh]+2*i+1)}")
        a(f"buffer_store_dwordx4 {v(pk+4*lh,4)}, {v(vxo)}, {s(SO,4)}, s45 offen offset:{512*lh} {OPT['stO']}")
    st.mark()
    st.flush(SW, red, tid, 256, 1)
    a("s_endpgm")
    return V.hi

def compute23(a, st):
    a.label("P2_COMPUTE")
    V = VAlloc(8); l16 = V.get()
    decode2(a, l16)
    a(f"""s_lshr_b32 {s(sWR_)}, {s(sV)}, 1
          s_and_b32 {s(sWC)}, {s(sV)}, 1""")
    C64 = [V.get(4) for _ in range(2)]; S64 = [V.get(4) for _ in range(2)]; N64 = [V.get(4) for _ in range(2)]
    C32 = [V.get(4) for _ in range(2)]; S32 = [V.get(4) for _ in range(2)]; N32 = [V.get(4) for _ in range(2)]
    c1 = V.get(8); s1 = V.get(8); c2 = V.get(8); s2_ = V.get(8)
    xrd, exw, exr0, exr1, pad, wrd = [V.get() for _ in range(6)]
    ha = [V.get(), V.get(), V.get()]; wa = [[V.get(), V.get()] for _ in range(3)]
    acc = [[V.get(16) for _ in range(2)] for _ in range(2)]
    hf = [[V.get(4) for _ in range(2)] for _ in range(3)]
    wf = [[V.get(4) for _ in range(2)] for _ in range(3)]
    D = [V.get(8), V.get(8)]; wd = V.get(8)
    fr = hf[0][0]; assert wf[2][1] + 4 == fr + 48
    fj, fg, fk, ang = fr, fr + 1, fr + 2, fr + 3; cb = fr + 4; sb = fr + 12
    free = [fr + 8, fr + 12, fr + 16, fr + 20, fr + 32, fr + 36, fr + 40, fr + 44]
    xin = [[[free[(c*2 + m)*2 + t] for t in range(2)] for m in range(2)] for c in range(2)]
    pk = fr
    E = [acc[0][0], acc[0][0] + 8]; P = [acc[0][1], acc[0][1] + 4]; wr = acc[1][0]; wi = acc[1][0] + 8
    a(f"""v_and_b32 {v(t0)}, 15, {v(lane)}
          v_cvt_f32_u32 {v(fj)}, {v(t0)}
          v_cvt_f32_u32 {v(fg)}, {v(t1)}
          s_lshl_b32 s3, {s(sV)}, 4
          v_add_u32 {v(t0)}, s3, {v(t0)}
          v_cvt_f32_u32 {v(fk)}, {v(t0)}
          s_mov_b32 s47, 0x80008000""")
    def frag(step, base, offs, Cd, Sd, Nd):
        for e in range(8):
            a(f"v_mov_b32 {v(t4)}, {fbits(float(offs[e]))}\nv_fma_f32 {v(ang)}, {v(t4)}, {v(step)}, {v(base)}" if offs[e] not in (0, 1, 2, 4) else
              (f"v_mov_b32 {v(ang)}, {v(base)}" if offs[e] == 0 else f"v_fma_f32 {v(ang)}, {float(offs[e])}, {v(step)}, {v(base)}"))
            a(f"v_cos_f32 {v(cb+e)}, {v(ang)}\nv_sin_f32 {v(sb+e)}, {v(ang)}")
        for i in range(4):
            a(f"v_cvt_pk_bf16_f32 {v(Cd+i)}, {v(cb+2*i)}, {v(cb+2*i+1)}\nv_cvt_pk_bf16_f32 {v(Sd+i)}, {v(sb+2*i)}, {v(sb+2*i+1)}\nv_xor_b32 {v(Nd+i)}, s47, {v(Sd+i)}")
    a(f"v_mul_f32 {v(t2)}, {fbits(1/64)}, {v(fk)}\nv_mul_f32 {v(t3)}, {fbits(8.0)}, {v(fg)}\nv_mul_f32 {v(t5)}, {v(t3)}, {v(t2)}")
    frag(t2, t5, list(range(8)), C64[0], S64[0], N64[0])
    a(f"v_add_f32 {v(t3)}, {fbits(32.0)}, {v(t3)}\nv_mul_f32 {v(t5)}, {v(t3)}, {v(t2)}")
    frag(t2, t5, list(range(8)), C64[1], S64[1], N64[1])
    o32 = [0, 1, 2, 3, 16, 17, 18, 19]
    a(f"v_mul_f32 {v(t3)}, 4.0, {v(fg)}")
    for m in range(2):
        a(f"v_mul_f32 {v(t2)}, {fbits(1/32)}, {v(fj)}")
        if m: a(f"v_add_f32 {v(t2)}, 0.5, {v(t2)}")
        a(f"v_mul_f32 {v(t5)}, {v(t3)}, {v(t2)}")
        frag(t2, t5, o32, C32[m], S32[m], N32[m])
    a(f"v_mul_f32 {v(t2)}, {fbits(1/2048)}, {v(fk)}\nv_mul_f32 {v(t5)}, {v(t3)}, {v(t2)}")
    for e in range(8):
        a(f"v_mov_b32 {v(t4)}, {fbits(float(o32[e]))}\nv_fma_f32 {v(ang)}, {v(t4)}, {v(t2)}, {v(t5)}\nv_cos_f32 {v(c1+e)}, {v(ang)}\nv_sin_f32 {v(s1+e)}, {v(ang)}")
    a(f"v_cvt_f32_u32 {v(t4)}, s3\nv_add_f32 {v(t3)}, {v(t3)}, {v(t4)}")
    for m in range(2):
        a(f"v_mul_f32 {v(t2)}, {fbits(1/2048)}, {v(fj)}")
        if m: a(f"v_add_f32 {v(t2)}, {fbits(16/2048)}, {v(t2)}")
        a(f"v_mul_f32 {v(ang)}, {v(t3)}, {v(t2)}")
        for r in range(4):
            if r: a(f"v_add_f32 {v(ang)}, {v(ang)}, {v(t2)}")
            a(f"v_cos_f32 {v(c2+4*m+r)}, {v(ang)}\nv_sin_f32 {v(s2_+4*m+r)}, {v(ang)}")
    a(f"s_mov_b32 s48, {fbits(1/2048)}\ns_mov_b32 s49, {fbits(1/2048)}")
    for i in range(0, 8, 2): a(f"v_pk_mul_f32 {v(c2+i,2)}, {v(c2+i,2)}, s[48:49]\nv_pk_mul_f32 {v(s2_+i,2)}, {v(s2_+i,2)}, s[48:49]")
    a(f"""v_and_b32 {v(t0)}, 15, {v(lane)}
          v_lshrrev_b32 {v(t2)}, 1, {v(t1)}
          v_and_b32 {v(t3)}, 1, {v(t1)}
          v_lshlrev_b32 {v(t4)}, 5, {v(t0)}
          v_lshl_add_u32 {v(t4)}, {v(t2)}, 9, {v(t4)}
          v_lshl_add_u32 {v(t4)}, {v(t3)}, 4, {v(t4)}
          v_add_u32 {v(xrd)}, {XB}, {v(t4)}
          v_lshrrev_b32 {v(t4)}, 1, {v(t0)}
          v_lshlrev_b32 {v(t0)}, 7, {v(t0)}
          v_add_u32 {v(t0)}, {EX}, {v(t0)}
          v_xor_b32 {v(t5)}, {v(t4)}, {v(t1)}
          v_lshl_add_u32 {v(exr0)}, {v(t5)}, 4, {v(t0)}
          v_xor_b32 {v(exr1)}, 64, {v(exr0)}
          s_lshl_b32 s3, {s(sV)}, 1
          v_add_u32 {v(t2)}, s3, {v(t2)}
          v_xor_b32 {v(t2)}, {v(t2)}, {v(t4)}
          v_lshl_add_u32 {v(t2)}, {v(t2)}, 4, {v(t0)}
          v_lshl_add_u32 {v(exw)}, {v(t3)}, 3, {v(t2)}""")
    a(f"s_lshl_b32 s3, {s(sV)}, 11\ns_add_u32 s3, s3, {WB}\nv_add_u32 {v(wrd)}, s3, {v(l16)}")
    a(f"""s_lshl_b32 s3, {s(sWR_)}, 13
          v_add_u32 {v(ha[0])}, s3, {v(l16)}
          v_add_u32 {v(ha[1])}, 65536, {v(ha[0])}
          v_lshrrev_b32 {v(t3)}, 5, {v(lane)}
          v_bfe_u32 {v(t0)}, {v(lane)}, 2, 2
          v_lshl_add_u32 {v(t1)}, {v(t3)}, 3, {v(t0)}
          v_lshlrev_b32 {v(t1)}, 8, {v(t1)}
          s_lshl_b32 s3, {s(sWC)}, 1
          v_xor_b32 {v(t0)}, s3, {v(t0)}
          v_lshl_add_u32 {v(t1)}, {v(t0)}, 6, {v(t1)}
          v_bfe_u32 {v(t0)}, {v(lane)}, 4, 1
          v_lshl_add_u32 {v(t1)}, {v(t0)}, 5, {v(t1)}
          v_and_b32 {v(t0)}, 1, {v(lane)}
          v_lshl_add_u32 {v(t1)}, {v(t0)}, 4, {v(t1)}
          v_bfe_u32 {v(t0)}, {v(lane)}, 1, 1
          v_lshl_add_u32 {v(t1)}, {v(t0)}, 3, {v(t1)}
          v_add_u32 {v(wa[0][0])}, 16384, {v(t1)}
          v_xor_b32 {v(wa[0][1])}, 64, {v(wa[0][0])}
          v_add_u32 {v(wa[1][0])}, 65536, {v(wa[0][0])}
          v_add_u32 {v(wa[1][1])}, 65536, {v(wa[0][1])}
          v_add_u32 {v(ha[2])}, 131072, {v(ha[0])}
          v_add_u32 {v(wa[2][0])}, 131072, {v(wa[0][0])}
          v_add_u32 {v(wa[2][1])}, 131072, {v(wa[0][1])}""")
    a(f"""v_and_b32 {v(t0)}, 15, {v(lane)}
          v_lshlrev_b32 {v(t0)}, 6, {v(t0)}
          v_lshl_add_u32 {v(t0)}, {v(t3)}, 4, {v(t0)}
          v_bfe_u32 {v(t1)}, {v(lane)}, 4, 1
          v_lshl_add_u32 {v(pad)}, {v(t1)}, 5, {v(t0)}
          s_lshl_b32 s3, {s(sRB)}, 2
          s_lshl_b32 s43, {s(sWR_)}, 1
          s_add_u32 s3, s3, s43
          s_lshl_b32 s3, s3, 4
          s_lshl_b32 s43, {s(sWC)}, 3
          s_add_u32 s3, s3, s43
          s_lshl_b32 s43, {s(sNB)}, 1
          s_add_u32 s3, s3, s43
          s_lshl_b32 s3, s3, 11
          s_lshl_b32 s43, {s(sQ)}, 21
          s_add_u32 s3, s3, s43
          s_add_u32 s50, s3, {PART_OFF}
          s_add_u32 s51, s50, 32768""")
    a(f"""s_and_b32 s3, s2, 1
          s_lshl_b32 s3, s3, 7
          s_lshr_b32 s43, s2, 1
          s_add_u32 s3, s3, s43
          s_lshl_b32 s3, s3, 13
          s_lshl_b32 s43, {s(sV)}, 10
          s_add_u32 s3, s3, s43
          s_add_u32 s44, s3, {Y1_OFF}
          s_add_u32 s45, s44, 4096""")
    a("s_waitcnt vmcnt(0)\ns_barrier")
    st.mark()
    def reads(n):
        if n >= 28: return []
        slab, t = divmod(n, 4); slot = slab % NS2; se, off = slot >> 1, (slot & 1) * 32768; b = n % 3
        r = []
        for T in range(2):
            r.append(f"ds_read_b128 {v(hf[b][T],4)}, {v(ha[se])} offset:{off + T*4096 + t*1024}")
            r.append(f"ds_read_b64_tr_b16 {v(wf[b][T],2)}, {v(wa[se][T])} offset:{off + t*4096}")
            r.append(f"ds_read_b64_tr_b16 {v(wf[b][T]+2,2)}, {v(wa[se][T])} offset:{off + t*4096 + 1024}")
        return r
    def bar():
        a.waitlg(); a("s_barrier")
    a("s_barrier")
    st.mark()
    for r in reads(0) + reads(1): a(r)
    for n in range(28):
        b = n % 3; z = "0" if n == 0 else None
        mfs = [(lambda F=F, S=S: mf32(a, acc[F][S], wf[b][F], hf[b][S], z)) for (F, S) in ((0, 0), (1, 0), (0, 1), (1, 1))]
        fill = reads(n + 2); per = [3, 3, 0, 0]
        if n % 4 == 2 and n < 24: fill = [bar] + fill; per = [3, 2, 2, 0]
        if n == 27:
            fill = [f"ds_read_b128 {v(xin[c][m][t],4)}, {v(xrd)} offset:{c*4096 + m*2048 + t*1024}" for m in range(2) for t in range(2) for c in range(2)]
            fill += [f"ds_read_b128 {v(wd+4*j,4)}, {v(wrd)} offset:{1024*j}" for j in range(2)]
            per = [3, 3, 3, 1]
        G.interleave(a, mfs, fill, per)
    st.mark()
    def big(src, Cc, Sre, Sim, fill=()):
        mfs = []
        for m in range(2):
            for t in range(2):
                z = "0" if t == 0 else None
                mfs += [lambda m=m, t=t, z=z: mf16(a, D[0]+4*m, src[0][m][t], Cc[t], z), lambda m=m, t=t, z=z: mf16(a, D[1]+4*m, src[0][m][t], Sim[t], z),
                        lambda m=m, t=t: mf16(a, D[0]+4*m, src[1][m][t], Sre[t]), lambda m=m, t=t: mf16(a, D[1]+4*m, src[1][m][t], Cc[t])]
        G.interleave(a, mfs, fill, [OPT["pper"]] * 16)
    def cmul(cc, ss, nre, nim):
        ng = lambda n: " neg_lo:[0,1,0] neg_hi:[0,1,0]" if n < 0 else ""
        for i in range(0, 8, 2):
            a(f"""v_pk_mul_f32 {v(E[0]+i,2)}, {v(D[0]+i,2)}, {v(cc+i,2)}
                  v_pk_mul_f32 {v(E[1]+i,2)}, {v(D[1]+i,2)}, {v(cc+i,2)}
                  v_pk_fma_f32 {v(E[0]+i,2)}, {v(D[1]+i,2)}, {v(ss+i,2)}, {v(E[0]+i,2)}{ng(nre)}
                  v_pk_fma_f32 {v(E[1]+i,2)}, {v(D[0]+i,2)}, {v(ss+i,2)}, {v(E[1]+i,2)}{ng(nim)}""")
        for c in range(2):
            for i in range(4): a(f"v_cvt_pk_bf16_f32 {v(P[c]+i)}, {v(E[c]+2*i)}, {v(E[c]+2*i+1)}")
    fill = []
    for S in range(2):
        for F in range(2):
            pp = pk + 24 * F
            fill += [f"v_cvt_pk_bf16_f32 {v(pp+i)}, {v(acc[F][S]+2*i)}, {v(acc[F][S]+2*i+1)}" for i in range(8)]
            fill += [f"v_permlane16_swap_b32 {v(pp+i)}, {v(pp+4+i)}" for i in range(4)]
            fill += [f"buffer_store_dwordx4 {v(pp+4*u,4)}, {v(pad)}, {s(SW,4)}, s{50+S} offen offset:{2048*F + 1024*u} {OPT['stP']}" for u in range(2)]
    for f in fill[:OPT["plead"]]: a(f)
    big(xin, C64, S64, N64, fill[OPT["plead"]:])
    for i in range(8): a(f"v_lshlrev_b32 {v(wr+i)}, 16, {v(wd+i)}\nv_and_b32 {v(wi+i)}, 0xffff0000, {v(wd+i)}")
    cmul(c1, s1, +1, -1)
    for m in range(2):
        mf16(a, D[0]+4*m, C32[m], P[0], "0"); mf16(a, D[1]+4*m, N32[m], P[0], "0")
        mf16(a, D[0]+4*m, S32[m], P[1]); mf16(a, D[1]+4*m, C32[m], P[1])
    cmul(wr, wi, -1, +1)
    for m in range(2):
        mf16(a, D[0]+4*m, P[0], C32[m], "0"); mf16(a, D[1]+4*m, P[0], S32[m], "0")
        mf16(a, D[0]+4*m, P[1], N32[m]); mf16(a, D[1]+4*m, P[1], C32[m])
    cmul(c2, s2_, -1, +1)
    for c in range(2):
        for m in range(2): a(f"ds_write_b64 {v(exw)}, {v(P[c]+2*m,2)} offset:{c*4096 + m*2048}")
    a(f"v_mov_b32 {v(t0)}, {CNT}\nv_mov_b32 {v(t2)}, 0\nds_write_b32 {v(t0)}, {v(t2)}\nds_write_b32 {v(t0)}, {v(t2)} offset:4")
    a.waitlg(); a("s_barrier")
    for m in range(2):
        for t in range(2):
            for c in range(2): a(f"ds_read_b128 {v(xin[c][m][t],4)}, {v(exr1 if t else exr0)} offset:{c*4096 + m*2048}")
    big(xin, C64, N64, S64)
    for c in range(2):
        for i in range(4): a(f"v_cvt_pk_bf16_f32 {v(P[c]+i)}, {v(D[c]+2*i)}, {v(D[c]+2*i+1)}")
        a(f"buffer_store_dwordx4 {v(P[c],4)}, {v(l16)}, {s(SW,4)}, s{44+c} offen {OPT['stY']}", tag="st")
    st.mark()
    vmax = V.hi; keepP = P; V = VAlloc(9); fa, fd = V.get(), V.get()
    decode3(a)
    vy = V.get(4); df = V.get(32); cs_ = V.get(4); ang, dd, hf_, an0 = V.get(), V.get(), V.get(), V.get()
    a(f"""s_lshl_b32 {s(sL)}, {s(sV)}, 14
          v_lshrrev_b32 {v(t1)}, 3, {v(lane)}
          v_bfe_u32 {v(t2)}, {v(lane)}, 4, 1
          v_lshlrev_b32 {v(t2)}, 2, {v(t2)}
          v_and_b32 {v(t0)}, 7, {v(lane)}
          v_xor_b32 {v(t0)}, {v(t0)}, {v(t2)}
          v_lshlrev_b32 {v(t0)}, 4, {v(t0)}
          v_lshl_add_u32 {v(vy)}, {v(t1)}, 12, {v(t0)}
          v_add_u32 {v(vy+1)}, 31744, {v(vy)}
          v_add_u32 {v(vy+2)}, {2*31744}, {v(vy)}
          v_add_u32 {v(vy+3)}, {3*31744}, {v(vy)}
          s_lshl_b32 s3, {s(sV)}, 19
          s_lshl_b32 s40, {s(sRT)}, 7
          s_add_u32 s3, s3, s40
          s_add_u32 {s(sYo)}, s3, {Y1_OFF}
          """)
    R = OPT["rot3"]
    if R: a(f"s_and_b32 s41, {s(sCB)}, 3\ns_lshl_b32 s3, s41, 17\ns_add_u32 {s(sYo)}, {s(sYo)}, s3")
    gen = [f"v_and_b32 {v(t0)}, 31, {v(lane)}", f"s_lshl_b32 s3, {s(sCB)}, 5", f"v_add_u32 {v(t0)}, s3, {v(t0)}", f"v_cvt_f32_u32 {v(dd)}, {v(t0)}",
           f"s_and_b32 s3, {s(sV)}, 1", f"s_lshl_b32 s3, s3, 7", f"s_lshr_b32 s40, {s(sV)}, 1", f"s_add_u32 s3, s3, s40", f"s_add_u32 s3, s3, 1",
           f"v_lshl_add_u32 {v(t0)}, {v(t3)}, 3, s3", f"v_cvt_f32_u32 {v(ang)}, {v(t0)}", f"v_mul_f32 {v(dd)}, {fbits(1/256)}, {v(dd)}",
           f"v_mul_f32 {v(ang)}, {v(ang)}, {v(dd)}", f"v_mul_f32 {v(ang)}, 0.5, {v(ang)}",
           f"v_cmp_eq_u32 vcc, {256 - 118}, {v(t0)}", f"v_mov_b32 {v(hf_)}, 1.0", f"v_mul_f32 {v(t1)}, {fbits(5.0)}, {v(dd)}", f"v_cndmask_b32 {v(hf_)}, {v(hf_)}, 0.5, vcc"]
    if R: gen += [f"v_mov_b32 {v(an0)}, {v(ang)}"]
    for t in range(8):
        if R and t % 2 == 0:
            gen += [f"s_add_u32 s3, s41, {t // 2}", "s_and_b32 s3, s3, 3", "s_lshl_b32 s40, s3, 4", f"v_cvt_f32_u32 {v(t2)}, s40",
                    "s_cmp_eq_u32 s3, 3", "s_cselect_b64 s[42:43], vcc, 0", f"v_fma_f32 {v(ang)}, {v(t2)}, {v(dd)}, {v(an0)}",
                    f"v_mov_b32 {v(hf_)}, 1.0", f"v_cndmask_b32 {v(hf_)}, {v(hf_)}, 0.5, s[42:43]"]
        for e in range(4):
            c, s_ = cs_ + 2 * (e & 1), cs_ + 2 * (e & 1) + 1
            gen += [f"v_cos_f32 {v(c)}, {v(ang)}", f"v_sin_f32 {v(s_)}, {v(ang)}"]
            if e == 3 and (t == 7 or (R and t % 2)): gen += [f"v_mul_f32 {v(c)}, {v(c)}, {v(hf_)}"]
            else: gen += [f"v_add_f32 {v(ang)}, {v(ang)}, {v(dd if e < 3 else t1)}"]
            gen += [f"v_cvt_pk_bf16_f32 {v(df+4*t+e)}, {v(c)}, -{v(s_)}"]
    def last_wave_flag(n, cnt, off, name):
        a(f"""s_waitcnt vmcnt({n})
              v_mov_b32 {v(fa)}, {cnt}
              v_mov_b32 {v(fd)}, 1
              s_mov_b64 exec, 1
              ds_add_rtn_u32 {v(fd)}, {v(fa)}, {v(fd)}
              s_mov_b64 exec, -1
              v_readfirstlane_b32 s46, {v(fd)}
              s_cmp_lg_u32 s46, 3
              s_cbranch_scc1 {name}""")
        keep = a.snapshot(); put_flag(a, off, fa, fd); a.label(name); a.restore(keep)
    last_wave_flag(2, CNT + 4, F2_OFF, "P3_NOFLAG2")
    half = OPT["ghalf"]
    for r in gen[:half]: a(r)
    a("s_waitcnt vmcnt(1)") if False else None
    last_wave_flag(0, CNT, F3_OFF, "P3_NOFLAG3")
    st.mark()
    for r in gen[half:]: a(r)
    ya = [V.get(), V.get()]; yf = [[V.get(4) for _ in range(2)] for _ in range(3)]; acc = [V.get(16), V.get(16)]
    rw = V.get(4)
    a(f"""v_bfe_u32 {v(t1)}, {v(lane)}, 2, 2
          v_lshl_add_u32 {v(t0)}, {v(t3)}, 3, {v(t1)}
          v_lshlrev_b32 {v(t0)}, 7, {v(t0)}
          v_lshrrev_b32 {v(t2)}, 1, {v(t1)}
          v_lshl_add_u32 {v(t0)}, {v(t2)}, 6, {v(t0)}
          v_bfe_u32 {v(t2)}, {v(lane)}, 4, 1
          v_lshl_add_u32 {v(t0)}, {v(t2)}, 5, {v(t0)}
          v_and_b32 {v(t2)}, 3, {v(lane)}
          v_lshl_add_u32 {v(t0)}, {v(t2)}, 3, {v(t0)}
          v_add_u32 {v(ya[0])}, {s(sL)}, {v(t0)}
          v_xor_b32 {v(ya[1])}, 64, {v(ya[0])}
          v_and_b32 {v(t0)}, 31, {v(lane)}
          s_lshl_b32 s3, {s(sV)}, 13
          s_add_u32 s3, s3, {RED}
          v_lshl_add_u32 {v(t0)}, {v(t0)}, 7, s3
          v_and_b32 {v(t2)}, 7, {v(lane)}
          v_xor_b32 {v(t2)}, {v(t2)}, {v(t3)}""")
    for jj in range(4): a(f"v_xor_b32 {v(t4)}, {2*jj}, {v(t2)}\nv_lshl_add_u32 {v(rw+jj)}, {v(t4)}, 4, {v(t0)}")
    a(f"""s_and_b32 s3, {s(sV)}, 1
          s_lshl_b32 s3, s3, 7
          s_lshr_b32 s40, {s(sV)}, 1
          s_add_u32 s3, s3, s40
          s_lshl_b32 s3, s3, 7
          s_add_u32 s3, s3, {F3_OFF}
          v_lshl_add_u32 {v(fa)}, {v(lane)}, 8, s3""")
    if OPT["slY"]: a(f"s_sleep {OPT['slY']}")
    flag_load(a, fa, fd); wait_flags(a, "P3_FY", fa, fd)
    st.mark()
    for g in range(4):
        a(f"s_add_u32 m0, {s(sL)}, {g*4096}")
        for j in range(4): a(f"buffer_load_dwordx4 {v(vy+j)}, {s(SW,4)}, {s(sYo)} offen offset:{1024*j} sc1 lds", tag=f"Y{g}")
        if g < 3 and R: a(f"s_cmp_eq_u32 s41, {3 - g}\ns_mov_b32 s44, 131072\ns_cselect_b32 s44, {(-3*131072) & 0xffffffff}, s44\ns_add_u32 {s(sYo)}, {s(sYo)}, s44")
        elif g < 3: a(f"s_add_u32 {s(sYo)}, {s(sYo)}, 131072")
    def reads(t):
        return [f"ds_read_b64_tr_b16 {v(yf[t%3][T]+2*aa,2)}, {v(ya[T])} offset:{t*2048 + aa*512}" for T in range(2) for aa in range(2)]
    a.waitvm("Y0")
    for r in reads(0) + reads(1): a(r)
    for t in range(8):
        if t < 6:
            if t % 2 == 0: a.waitvm(f"Y{(t+2)//2}")
            for r in reads(t + 2): a(r)
        for T in range(2): mf32(a, acc[T], df + 4*t, yf[t % 3][T], "0" if t == 0 else None)
    st.mark()
    for T in range(2):
        for jj in range(4): a(f"ds_write_b128 {v(rw+jj)}, {v(acc[T]+4*jj,4)} offset:{4096*T}")
    a.waitlg(); a("s_barrier")
    assert V.hi <= keepP[0]
    st.flush(SW, df, tid)
    a("s_endpgm")
    return max(vmax, V.hi)
```

```python
from asmfw import Asm, VAlloc, v, s
import __main__ as M
G = M if hasattr(M, "dft_table") else __import__("gen")
OPT = G.OPT; fbits = G.fbits; srd = G.srd; mf32 = G.mf32; mf4 = G.mf4; Stamps = G.Stamps; header = G.header
untracked = G.untracked; interleave = G.interleave; finish_stats = G.finish_stats; LOG2E = G.LOG2E
X1_OFF, WT_OFF, STATS_OFF, CS_OFF, EPOCH_OFF, WS_END = G.X1_OFF, G.WT_OFF, G.STATS_OFF, G.CS_OFF, G.EPOCH_OFF, G.WS_END

def table_srd(a, r):
    a.raw(f"    s_getpc_b64 {s(r,2)}\n    s_add_u32 {s(r)}, {s(r)}, dft_table@rel32@lo+4\n    s_addc_u32 {s(r+1)}, {s(r+1)}, dft_table@rel32@hi+12")
    a(f"s_mov_b32 {s(r+2)}, 0x20000\ns_mov_b32 {s(r+3)}, 0x20000")

def gen_k1(name="k1_kernel"):
    MG = OPT["merge"]
    a = Asm(); st = Stamps(a, 0)
    few = (lambda: None) if MG else st.mark
    header(a, name)
    st.mark()
    SX, SB, SW, SWR, SWI, SPF, SD = 4, 8, 12, 16, 20, 64, 92
    NS = 4
    SCR = 131072; CSF = SCR + 1024; PRS = SCR + 2048; PCS = SCR + 2304; NON = SCR + 2816
    a("s_cmp_ge_u32 s2, 256\ns_cbranch_scc1 K1_END")
    a("s_load_dwordx4 s[24:27], s[0:1], 0\ns_load_dwordx4 s[28:31], s[0:1], 32\ns_load_dwordx2 s[22:23], s[0:1], 16\ns_load_dwordx4 s[88:91], s[0:1], 56")
    V = VAlloc(0); tid = V.get(); lane = V.get()
    t0, t1, t2, t3, t4, t5 = [V.get() for _ in range(6)]
    pf = V.get()
    if OPT["pf"]: G.code_prefetch(a, SPF, pf, name, "code_end")
    sW, sLO, sCJ, sV, sWR_, sWC, sL, sHF = 34, 35, 36, 37, 38, 39, 51, 55
    a(f"""v_lshrrev_b32 {v(t0)}, 6, v0
          v_and_b32 {v(lane)}, 63, v0
          v_readfirstlane_b32 s56, {v(t0)}
          s_bfe_u32 {s(sW)}, s2, 0x20001
          s_and_b32 {s(sHF)}, s2, 1
          s_lshr_b32 {s(sCJ)}, s2, 5
          s_bfe_u32 {s(sLO)}, s2, 0x20003
          s_and_b32 {s(sV)}, s56, 3
          s_lshl_b32 {s(sL)}, {s(sV)}, 12
          v_lshrrev_b32 {v(t3)}, 5, {v(lane)}
          s_cmp_lt_u32 s56, 4
          s_cbranch_scc1 K1_COMPUTE""")
    snap0 = a.snapshot(); Vbase = V.n

    def x1_out(regs):
        rad = regs.get(4); vo = regs.get(); vo0 = regs.get(); buf = regs.get(32)
        pre = f"""v_and_b32 {v(t0)}, 15, {v(lane)}
              v_xor_b32 {v(t0)}, {v(t0)}, {v(t3)}
              v_bfe_u32 {v(t1)}, {v(lane)}, 4, 2
              s_lshl_b32 s3, s56, 13
              v_lshl_add_u32 {v(t2)}, {v(t1)}, 8, s3\n"""
        for i in range(4): pre += f"v_xor_b32 {v(t4)}, {2*i}, {v(t0)}\nv_lshl_add_u32 {v(rad+i)}, {v(t4)}, 4, {v(t2)}\n"
        pre += f"""s_bfe_u32 s46, s56, 0x10001
              s_lshr_b32 s47, s56, 2
              v_and_b32 {v(t0)}, 15, {v(lane)}
              v_lshlrev_b32 {v(t0)}, 4, {v(t0)}
              v_bfe_u32 {v(t1)}, {v(lane)}, 4, 1
              v_lshl_add_u32 {v(t0)}, {v(t1)}, 12, {v(t0)}
              v_xor_b32 {v(t1)}, s46, {v(t3)}
              v_lshl_add_u32 {v(vo)}, {v(t1)}, 13, {v(t0)}
              s_lshl_b32 s40, {s(sHF)}, 1
              s_and_b32 s41, s56, 1
              s_add_u32 s40, s40, s41
              s_lshl_b32 s40, s40, 4
              s_lshl_b32 s42, s47, 7
              s_add_u32 s41, s40, s42
              s_sub_u32 s41, s41, 1
              s_add_u32 s42, s42, s40
              s_sub_u32 s42, 254, s42
              s_cmp_eq_u32 s46, 0
              s_cselect_b32 s41, s41, s42
              s_movk_i32 s43, 0x4000
              s_cselect_b32 s43, s43, 0xffffc000
              s_lshl_b32 s41, s41, 13
              s_lshr_b32 s42, {s(sLO)}, 1
              s_lshl_b32 s42, s42, 11
              s_add_u32 s41, s41, s42
              s_lshl_b32 s42, {s(sW)}, 9
              s_add_u32 s41, s41, s42
              s_and_b32 s42, {s(sLO)}, 1
              s_lshl_b32 s42, s42, 8
              s_add_u32 s41, s41, s42
              s_add_u32 s41, s41, {X1_OFF}
              s_xor_b32 s42, s46, s47
              s_add_u32 s40, s40, s42
              v_add_u32 {v(t1)}, s40, {v(t3)}
              v_cmp_eq_u32 vcc, 0, {v(t1)}
              v_add_u32 {v(t0)}, {64*8192}, {v(vo)}
              v_cndmask_b32 {v(vo0)}, {v(vo)}, {v(t0)}, vcc"""
        def post():
            a.waitlg(); a("s_barrier")
            for jx in range(8): a(f"ds_read_b128 {v(buf+4*jx,4)}, {v(rad + (jx & 3))} offset:{1024*jx}")
            for jx in range(8):
                if not OPT["noX"]: a(f"buffer_store_dwordx4 {v(buf+4*jx,4)}, {v(vo0 if jx == 0 else vo)}, {s(SW,4)}, s41 offen {OPT['stX']}")
                if jx < 7: a("s_add_u32 s41, s41, s43")
        return pre, post

    vX = V.get(4); vB = V.get(4)
    wl = V.get(16); vW = V.get(); l16 = V.get(); dmy = V.get(4); gr = V.get(4); gc = V.get(8); gq = V.get(4)
    grow, gad, gz, gn, pad = [V.get() for _ in range(5)]
    Vx = VAlloc(V.n)
    sXb, sBb, sK, sXo, sBo, sCB, sR0 = 48, 49, 50, 52, 53, 57, 58
    a(f"""v_bfe_u32 {v(t0)}, {v(lane)}, 3, 2
          v_lshrrev_b32 {v(t1)}, 4, {v(lane)}
          v_and_b32 {v(t2)}, 7, {v(lane)}
          v_xor_b32 {v(t2)}, {v(t2)}, {v(t1)}
          v_lshlrev_b32 {v(t2)}, 4, {v(t2)}
          s_lshl_b32 {s(sR0)}, {s(sW)}, 1
          s_lshr_b32 s3, {s(sLO)}, 1
          s_add_u32 {s(sR0)}, {s(sR0)}, s3
          s_mul_i32 s3, {s(sCJ)}, {OPT["rotc"]}
          s_add_u32 {s(sR0)}, {s(sR0)}, s3
          s_and_b32 {s(sR0)}, {s(sR0)}, {OPT["rmask"]}
          s_mov_b32 {s(sK)}, {s(sR0)}
          s_lshl_b32 {s(sXo)}, {s(sK)}, 7
          s_mov_b32 {s(SX+2)}, {0x200000 + 4096}
          s_mov_b32 {s(SX+3)}, 0x20000
          s_mov_b32 m0, {s(sL)}
          s_cmp_eq_u32 {s(sCJ)}, 7
          s_cbranch_scc1 K1_LD""")
    snapL = a.snapshot(); stn = st.n
    def loader(D):
        X = "D" if D else "F"
        if not D:
            a(f"""v_lshl_add_u32 {v(t0)}, {v(t3)}, 4, {v(t0)}
                  v_lshl_add_u32 {v(t0)}, {v(t0)}, 10, {v(t2)}
                  v_add_u32 {v(vX)}, 4096, {v(t0)}
                  v_xor_b32 {v(t0)}, 64, {v(t0)}
                  v_add_u32 {v(vX+1)}, {4096 + 31744}, {v(t0)}
                  v_add_u32 {v(vX+2)}, {2*31744}, {v(vX)}
                  v_add_u32 {v(vX+3)}, {2*31744}, {v(vX+1)}
                  s_lshl_b32 s3, {s(sW)}, 7
                  s_lshl_b32 s40, {s(sV)}, 5
                  s_add_u32 s3, s3, s40
                  s_add_u32 s3, s3, {s(sLO)}
                  s_lshl_b32 {s(sXb)}, s3, 12""")
        else:
            a(f"""v_lshl_add_u32 {v(t0)}, {v(t3)}, 3, {v(t0)}
                  v_lshl_add_u32 {v(t0)}, {v(t0)}, 15, {v(t2)}
                  v_add_u32 {v(vX)}, 4096, {v(t0)}
                  v_add_u32 {v(vX+2)}, {4096 - 1024}, {v(t0)}
                  v_xor_b32 {v(t0)}, 64, {v(t0)}
                  v_add_u32 {v(vX+1)}, {4096 + 131072 - 1024}, {v(t0)}
                  v_add_u32 {v(vX+3)}, {4096 + 131072 + 1024 - 3072}, {v(t0)}
                  s_lshl_b32 s3, {s(sW)}, 8
                  s_lshl_b32 s40, {s(sLO)}, 2
                  s_add_u32 s3, s3, s40
                  s_add_u32 s3, s3, {s(sV)}
                  s_lshl_b32 {s(sXb)}, s3, 11""")
        a(f"s_add_u32 {s(sXo)}, {s(sXo)}, {s(sXb)}")
        a.waitlg()
        if OPT["est"]: st.mark()
        a(f"s_sub_u32 {s(SX)}, s24, 4096\ns_subb_u32 {s(SX+1)}, s25, 0")
        def b_setup():
            a(f"v_lshlrev_b32 {v(l16)}, 4, {v(lane)}")
            if not D:
                srd(a, SB, 28, 29, 512 * 3584)
                a(f"""v_and_b32 {v(t0)}, 15, {v(lane)}
                      v_lshlrev_b32 {v(t2)}, 2, {v(t1)}
                      v_xor_b32 {v(t0)}, {v(t0)}, {v(t2)}
                      v_lshlrev_b32 {v(t0)}, 4, {v(t0)}
                      s_movk_i32 s3, 3584
                      v_mad_u32_u24 {v(vB)}, {v(t1)}, s3, {v(t0)}
                      v_add_u32 {v(vB+1)}, 13312, {v(vB)}
                      v_add_u32 {v(vB+2)}, {2*13312}, {v(vB)}
                      v_add_u32 {v(vB+3)}, {3*13312}, {v(vB)}
                      s_mul_i32 {s(sCB)}, {s(sHF)}, 7
                      s_add_u32 {s(sCB)}, {s(sCB)}, {s(sCJ)}
                      s_lshl_b32 s3, {s(sCB)}, 8
                      s_mul_i32 {s(sBb)}, {s(sV)}, {16*3584}
                      s_add_u32 {s(sBb)}, {s(sBb)}, s3""")
            else:
                table_srd(a, SB)
                a(f"""s_lshl_b32 s3, {s(sHF)}, 16
                      s_lshl_b32 s59, {s(sV)}, 11
                      s_add_u32 {s(sBb)}, s3, s59""")
        BSTEP = 8192 if D else 64 * 3584
        def dma(slab, q):
            slot = slab % NS; part, hf = q >> 1, q & 1
            if (slab, q) == (0, 2): b_setup()
            if OPT["nodma"] or (D and q == 3): pass
            elif part == 0:
                if hf == 0 and slab: a(f"s_add_u32 m0, {s(sL)}, {slot*32768}")
                for j in (2*hf, 2*hf + 1): a(f"buffer_load_dwordx4 {v(vX+j)}, {s(SX,4)}, {s(sXo)} offen offset:{1024*j} lds", tag=f"S{slab}")
            else:
                if hf == 0: a(f"s_mul_i32 {s(sBo)}, {s(sK)}, {BSTEP}\ns_add_u32 m0, {'s59' if D else s(sL)}, {slot*32768 + 16384}\ns_add_u32 {s(sBo)}, {s(sBo)}, {s(sBb)}")
                for j in (2*hf, 2*hf + 1): a(f"buffer_load_dwordx4 {v(l16 if D else vB+j)}, {s(SB,4)}, {s(sBo)} offen offset:{1024*j} lds", tag=f"S{slab}")
            if OPT["est"] and q == 3 and slab < 3: st.mark()
            if q == 3 and slab < 7:
                a(f"s_add_u32 {s(sK)}, {s(sK)}, 1\ns_and_b32 {s(sK)}, {s(sK)}, 7\ns_lshl_b32 {s(sXo)}, {s(sK)}, 7\ns_add_u32 {s(sXo)}, {s(sXo)}, {s(sXb)}")
        def j_nonce():
            srd(a, SW, 90, 91, WS_END); srd(a, SD, 88, 89, 256)
            a(f"v_mov_b32 {v(gz)}, 0\nbuffer_load_dword {v(gn)}, {v(gz)}, {s(SD,4)}, 0 offen sc1")
        def j_warm():
            if not (MG and OPT["warm"]): return
            a(f"""s_lshl_b32 s3, s2, 2
                  s_add_u32 s3, s3, {s(sV)}
                  s_lshl_b32 s3, s3, 7
                  s_add_u32 s3, s3, {G.FW_OFF}
                  s_lshl_b32 s40, s2, 7
                  s_add_u32 s40, s40, {G.F3_OFF}
                  s_cmp_eq_u32 {s(sV)}, 0
                  s_cselect_b32 s41, -1, 0
                  v_and_b32 {v(t0)}, 31, {v(lane)}
                  v_mov_b32 {v(t1)}, s3
                  v_mov_b32 {v(t2)}, s40
                  v_cmp_gt_u32 vcc, 32, {v(lane)}
                  s_mov_b32 s40, -1
                  v_cndmask_b32 {v(t1)}, {v(t2)}, {v(t1)}, vcc
                  v_lshl_add_u32 {v(t1)}, {v(t0)}, 2, {v(t1)}
                  s_mov_b64 exec, s[40:41]
                  buffer_store_dword {v(gz)}, {v(t1)}, {s(SW,4)}, 0 offen sc1""")
            if D:
                a(f"s_mov_b32 s40, 0\ns_mov_b32 s3, {G.FX_OFF - G.F3_OFF}\ns_cbranch_scc0 K1_NOWARM")
                keep = a.snapshot()
                a(f"s_mov_b64 exec, s[40:41]\nbuffer_store_dword {v(gz)}, {v(t1)}, {s(SW,4)}, s3 offen sc1")
                a.label("K1_NOWARM"); a.restore(keep)
            a("s_mov_b64 exec, -1")
        def j_tablepf():
            if D or not OPT["pft"]: return
            table_srd(a, SPF)
            a(f"""s_lshr_b32 s3, s2, 3
                  s_lshl_b32 s3, s3, 2
                  s_add_u32 s3, s3, {s(sV)}
                  s_min_u32 s3, s3, 47
                  s_lshl_b32 s40, {s(sW)}, 4
                  s_add_u32 s3, s3, s40
                  s_add_u32 s3, s3, 24
                  s_and_b32 s3, s3, 63
                  s_lshl_b32 s40, {s(sHF)}, 6
                  s_add_u32 s3, s3, s40
                  s_lshl_b32 s3, s3, 10
                  buffer_load_dwordx4 {v(dmy,4)}, {v(l16)}, {s(SPF,4)}, s3 offen""")
            untracked(a)
        def j_publish():
            a(f"""v_and_b32 {v(t0)}, 15, {v(lane)}
                  v_cmp_gt_u32 vcc, 16, {v(lane)}
                  s_lshl_b32 s3, {s(sV)}, 7
                  s_add_u32 s3, s3, {PCS}
                  v_mov_b32 {v(t1)}, s3
                  v_mov_b32 {v(t2)}, {PRS}
                  v_cndmask_b32 {v(t1)}, {v(t2)}, {v(t1)}, vcc
                  v_lshl_add_u32 {v(t1)}, {v(t0)}, 3, {v(t1)}
                  ds_read_b64 {v(gq,2)}, {v(t1)}
                  s_lshl_b32 s3, {s(sW)}, 2
                  s_add_u32 s3, s3, {s(sLO)}
                  s_lshl_b32 s3, s3, 1
                  s_add_u32 s3, s3, {s(sHF)}
                  s_lshl_b32 s3, s3, 3
                  s_add_u32 s3, s3, {s(sCJ)}
                  s_lshl_b32 s3, s3, 7
                  s_add_u32 s3, s3, {STATS_OFF}
                  v_mov_b32 {v(t2)}, s3""")
            if not D:
                a(f"""s_lshl_b32 s3, {s(sCB)}, 3
                      s_add_u32 s3, s3, {s(sR0)}
                      s_lshl_b32 s3, s3, 2
                      s_add_u32 s3, s3, {s(sV)}
                      s_lshl_b32 s3, s3, 8
                      s_add_u32 s3, s3, {CS_OFF}
                      v_mov_b32 {v(t1)}, s3
                      v_cndmask_b32 {v(t2)}, {v(t2)}, {v(t1)}, vcc""")
            a(f"v_lshl_add_u32 {v(pad)}, {v(t0)}, 4, {v(t2)}")
            a(f"v_readfirstlane_b32 s60, {v(gn)}\ns_cmp_lg_u32 s60, 0\ns_cbranch_scc1 K1_PUBOK{X}\ns_mov_b32 s61, 0")
            keep = a.snapshot()
            a.label(f"K1_PUBSPIN{X}")
            a(f"""buffer_load_dword {v(gn)}, {v(gz)}, {s(SD,4)}, 0 offen sc1
                  s_waitcnt vmcnt(0)
                  v_readfirstlane_b32 s60, {v(gn)}
                  s_add_u32 s61, s61, 1
                  s_cmp_gt_u32 s61, 2000
                  s_cbranch_scc1 K1_PUBOK{X}
                  s_cmp_eq_u32 s60, 0
                  s_cbranch_scc1 K1_PUBSPIN{X}""")
            a.label(f"K1_PUBOK{X}")
            a.restore(keep)
            a(f"""v_mov_b32 {v(gq+2)}, s60
                  v_mov_b32 {v(gq+3)}, s60
                  s_cmp_eq_u32 {s(sV)}, 0
                  s_cselect_b32 s40, 0xff0000, 0
                  s_mov_b32 s41, 0""")
            if D: a(f"s_cbranch_scc0 K1_NOPUBD")
            else: a("s_or_b32 s40, s40, 0xffff")
            keep = a.snapshot()
            a(f"""s_mov_b64 exec, s[40:41]
                  buffer_store_dwordx4 {v(gq,4)}, {v(pad)}, {s(SW,4)}, 0 offen sc1
                  s_mov_b64 exec, -1""")
            if D: a.label("K1_NOPUBD"); a.restore(keep)
        def gather_loads():
            a(f"buffer_load_dwordx4 {v(gr,4)}, {v(gad)}, {s(SW,4)}, s62 offen sc1")
            if not D:
                for j in range(2): a(f"buffer_load_dwordx4 {v(gc+4*j,4)}, {v(pad)}, {s(SW,4)}, s{32+j} offen sc1")
        def j_gather():
            a(f"""v_bfe_u32 {v(t0)}, {v(lane)}, 3, 2
                  v_bfe_u32 {v(t1)}, {v(lane)}, 2, 1
                  v_and_b32 {v(t2)}, 3, {v(lane)}""")
            if not D:
                a(f"""v_lshl_add_u32 {v(t0)}, {v(t0)}, 1, {v(t1)}
                      v_lshl_add_u32 {v(grow)}, {v(t0)}, 4, {v(t2)}
                      s_lshl_b32 s3, {s(sV)}, 7
                      s_lshl_b32 s40, {s(sLO)}, 2
                      v_lshrrev_b32 {v(t0)}, 4, {v(lane)}
                      v_and_b32 {v(t1)}, 15, {v(lane)}
                      v_lshlrev_b32 {v(t1)}, 4, {v(t1)}
                      v_lshl_add_u32 {v(pad)}, {v(t0)}, 10, {v(t1)}
                      s_lshl_b32 s32, {s(sCB)}, 5
                      s_add_u32 s32, s32, {s(sV)}
                      s_lshl_b32 s32, s32, 8
                      s_add_u32 s32, s32, {CS_OFF}
                      s_add_u32 s33, s32, 4096""")
            else:
                a(f"""v_lshl_add_u32 {v(t2)}, {v(t1)}, 3, {v(t2)}
                      v_and_b32 {v(t1)}, 1, {v(t0)}
                      v_lshl_add_u32 {v(t2)}, {v(t1)}, 2, {v(t2)}
                      v_lshrrev_b32 {v(t0)}, 1, {v(t0)}
                      v_lshl_add_u32 {v(grow)}, {v(t2)}, 5, {v(t0)}
                      s_lshl_b32 s3, {s(sV)}, 1
                      s_lshl_b32 s40, {s(sLO)}, 3""")
            a(f"""s_add_u32 s3, s3, s40
                  s_lshl_b32 s40, {s(sW)}, 9
                  s_add_u32 s3, s3, s40
                  v_add_u32 {v(grow)}, s3, {v(grow)}
                  v_lshlrev_b32 {v(gad)}, 4, {v(grow)}
                  s_mov_b32 s62, {STATS_OFF}""")
            gather_loads()
        def j_check():
            tags = [gr + 2, gr + 3] + ([] if D else [gc + 2, gc + 3, gc + 6, gc + 7])
            a("s_mov_b32 s61, 0")
            a(f"v_xor_b32 {v(t0)}, {v(tags[-1])}, {v(gn)}")
            a.label(f"K1_CHECK{X}")
            for t in tags[:-1]: a(f"v_xor_b32 {v(t1)}, {v(t)}, {v(gn)}\nv_or_b32 {v(t0)}, {v(t0)}, {v(t1)}")
            a(f"""v_cmp_ne_u32 vcc, 0, {v(t0)}
                  v_cmp_eq_u32 s[40:41], 0, {v(gn)}
                  s_or_b64 vcc, vcc, s[40:41]
                  {"s_nop 0" if OPT["forcefb"] else ("s_branch" if OPT["rmask"] < 7 else "s_cbranch_vccz") + " K1_GOT" + X}
                  s_add_u32 s61, s61, 1
                  s_cmp_gt_u32 s61, {OPT["spin"]}
                  s_cbranch_scc1 K1_FALLBACK{X}""")
            keep = a.snapshot()
            a(f"buffer_load_dword {v(gn)}, {v(gz)}, {s(SD,4)}, 0 offen sc1")
            gather_loads()
            a(f"s_waitcnt vmcnt(0)\nv_xor_b32 {v(t0)}, {v(tags[-1])}, {v(gn)}\ns_branch K1_CHECK{X}")
            a.label(f"K1_FALLBACK{X}")
            a(f"""v_lshl_add_u32 {v(gad)}, {v(grow)}, 10, 0
                  v_add_u32 {v(gad)}, 4096, {v(gad)}
                  v_mov_b32 {v(t0)}, 0
                  v_mov_b32 {v(t1)}, 0
                  v_mov_b32 {v(t2)}, 0x3f803f80
                  s_mov_b32 s61, 0""")
            a.label(f"K1_FBLOOP{X}")
            a(f"buffer_load_dwordx4 {v(gr,4)}, {v(gad)}, {s(SX,4)}, s61 offen\ns_waitcnt vmcnt(0)")
            for i in range(4): a(f"v_dot2_f32_bf16 {v(t0)}, {v(gr+i)}, {v(gr+i)}, {v(t0)}\nv_dot2_f32_bf16 {v(t1)}, {v(gr+i)}, {v(t2)}, {v(t1)}\ns_nop 2")
            a(f"s_add_u32 s61, s61, 16\ns_cmp_lt_u32 s61, 1024\ns_cbranch_scc1 K1_FBLOOP{X}")
            a("s_nop 4")
            for r in finish_stats(t0, t1, t4, t5): a(r)
            a(f"s_nop 1\nv_mov_b32 {v(gr)}, {v(t0)}\nv_mov_b32 {v(gr+1)}, {v(t1)}")
            if not D:
                a(f"""v_and_b32 {v(t0)}, 9, {v(lane)}
                      v_bfe_u32 {v(t1)}, {v(lane)}, 1, 1
                      v_lshl_or_b32 {v(t0)}, {v(t1)}, 2, {v(t0)}
                      v_bfe_u32 {v(t1)}, {v(lane)}, 2, 1
                      v_lshl_or_b32 {v(t0)}, {v(t1)}, 1, {v(t0)}
                      v_lshlrev_b32 {v(t0)}, 2, {v(t0)}
                      v_lshrrev_b32 {v(t1)}, 4, {v(lane)}
                      s_mov_b32 s3, {128*3584}
                      v_mad_u32_u24 {v(t0)}, {v(t1)}, s3, {v(t0)}
                      s_lshl_b32 s61, {s(sCB)}, 2
                      s_add_u32 s61, s61, {s(sV)}
                      s_lshl_b32 s61, s61, 6
                      s_mov_b32 s3, 0
                      v_mov_b32 {v(gc)}, 0
                      v_mov_b32 {v(gc+1)}, 0
                      v_mov_b32 {v(gc+4)}, 0
                      v_mov_b32 {v(gc+5)}, 0""")
                a.label("K1_FBLOOPC")
                a(f"""buffer_load_dword {v(t1)}, {v(t0)}, {s(SB,4)}, s61 offen
                      s_waitcnt vmcnt(0)
                      v_lshlrev_b32 {v(t2)}, 16, {v(t1)}
                      v_and_b32 {v(t1)}, 0xffff0000, {v(t1)}
                      v_add_f32 {v(gc)}, {v(gc)}, {v(t2)}
                      v_add_f32 {v(gc+1)}, {v(gc+1)}, {v(t1)}
                      s_add_u32 s61, s61, 3584
                      s_add_u32 s3, s3, 1
                      s_cmp_lt_u32 s3, 128
                      s_cbranch_scc1 K1_FBLOOPC""")
            a.label(f"K1_GOT{X}")
            a.restore(keep); a.hist = []
            if MG: a(f"v_mov_b32 {v(t1)}, {NON}\nds_write_b32 {v(t1)}, {v(gn)}")
            a(f"v_and_b32 {v(t0)}, 31, {v(lane)}")
            if not D:
                a(f"""v_add_f32 {v(gc)}, {v(gc)}, {v(gc+4)}
                      v_add_f32 {v(gc+1)}, {v(gc+1)}, {v(gc+5)}
                      s_lshl_b32 s3, {s(sV)}, 8
                      s_add_u32 s3, s3, {SCR}
                      v_lshl_add_u32 {v(t0)}, {v(t0)}, 3, s3
                      v_mov_b32 {v(gc+2)}, {v(gc)}
                      v_mov_b32 {v(gc+3)}, {v(gc+1)}
                      v_mul_f32 {v(gr)}, {fbits(-LOG2E)}, {v(gr)}
                      v_mul_f32 {v(gr+1)}, {v(gr+1)}, {v(gr)}
                      v_permlane32_swap_b32 {v(gc)}, {v(gc+2)}
                      v_permlane32_swap_b32 {v(gc+1)}, {v(gc+3)}
                      v_sub_f32 {v(gr+1)}, 0, {v(gr+1)}
                      v_add_f32 {v(gc)}, {v(gc)}, {v(gc+2)}
                      v_add_f32 {v(gc+1)}, {v(gc+1)}, {v(gc+3)}
                      ds_write_b64 {v(t0)}, {v(gr,2)}
                      v_mov_b32 {v(gc+2)}, {v(gc)}
                      v_mov_b32 {v(gc+3)}, {v(gc+1)}
                      v_and_b32 {v(t1)}, 15, {v(lane)}
                      s_lshl_b32 s3, {s(sV)}, 7
                      v_permlane16_swap_b32 {v(gc)}, {v(gc+2)}
                      v_permlane16_swap_b32 {v(gc+1)}, {v(gc+3)}
                      s_add_u32 s3, s3, {CSF}
                      v_lshl_add_u32 {v(t1)}, {v(t1)}, 3, s3
                      v_add_f32 {v(gc)}, {v(gc)}, {v(gc+2)}
                      v_add_f32 {v(gc+1)}, {v(gc+1)}, {v(gc+3)}
                      ds_write_b64 {v(t1)}, {v(gc,2)}""")
            else:
                a(f"""s_lshl_b32 s3, {s(sV)}, 7
                      s_add_u32 s3, s3, {SCR}
                      v_lshl_add_u32 {v(t0)}, {v(t0)}, 2, s3
                      ds_write_b32 {v(t0)}, {v(gr)}""")
        def j_wload(part):
            if OPT["noW"]: return
            if part == 0:
                srd(a, SWR, 26, 27, 2048 * 514)
                a(f"s_mov_b64 s[44:45], s[22:23]")
                srd(a, SWI, 44, 45, 2048 * 514)
                a(f"""s_and_b32 s54, s2, 3
                      s_lshl_b32 s54, s54, 2
                      s_add_u32 s54, s54, {s(sV)}
                      s_lshl_b32 s41, s54, 5
                      s_add_u32 s41, s41, 2
                      v_and_b32 {v(t0)}, 7, {v(lane)}
                      v_lshl_add_u32 {v(t0)}, {v(t0)}, 2, s41
                      v_lshrrev_b32 {v(t1)}, 3, {v(lane)}
                      s_movk_i32 s41, 514
                      v_mad_u32_u24 {v(vW)}, {v(t1)}, s41, {v(t0)}
                      s_bfe_u32 s41, s2, 0x30002
                      s_lshl_b32 s43, s41, 3
                      s_lshl_b32 s44, {s(sCJ)}, 8
                      s_add_u32 s43, s43, s44
                      s_mul_i32 s44, s43, 514
                      s_add_u32 s45, s44, 32896
                      s_add_u32 s46, s44, 65792
                      s_add_u32 s47, s44, 98688""")
            for r in (2*part, 2*part + 1):
                a(f"buffer_load_dword {v(wl + r)}, {v(vW)}, {s(SWR,4)}, s{44+r} offen", tag="W")
                a(f"buffer_load_dword {v(wl + 4 + r)}, {v(vW)}, {s(SWI,4)}, s{44+r} offen", tag="W")
        def j_wstore():
            if OPT["noW"]: return
            a(f"""s_lshl_b32 s54, s54, 17
                  s_lshl_b32 s59, {s(sLO)}, 11
                  s_add_u32 s54, s54, s59
                  s_lshr_b32 s59, s2, 7
                  s_lshl_b32 s59, s59, 10
                  s_add_u32 s54, s54, s59
                  s_bfe_u32 s59, s2, 0x20005
                  s_lshl_b32 s59, s59, 8
                  s_add_u32 s54, s54, s59
                  s_bfe_u32 s59, s2, 0x10002
                  s_lshl_b32 s59, s59, 7
                  s_add_u32 s54, s54, s59
                  s_add_u32 s54, s54, {WT_OFF}
                  s_add_u32 s63, s54, 8192
                  s_mov_b32 s60, 0x05040100
                  s_mov_b32 s61, 0x07060302
                  v_and_b32 {v(t0)}, 7, {v(lane)}
                  v_lshrrev_b32 {v(t1)}, 3, {v(lane)}
                  v_lshlrev_b32 {v(t1)}, 4, {v(t1)}
                  v_lshl_add_u32 {v(vW)}, {v(t0)}, 14, {v(t1)}""")
            for kk in range(2):
                for r in range(4): a(f"v_perm_b32 {v(wl+8+4*kk+r)}, {v(wl+4+r)}, {v(wl+r)}, s{60+kk}")
                a(f"buffer_store_dwordx4 {v(wl+8+4*kk,4)}, {v(vW)}, {s(SW,4)}, s{63 if kk else 54} offen {OPT['stW']}", tag="WS")
        def j_pfw2(js):
            if js[0] == 0:
                srd(a, SPF, 30, 31, 1792 * 1024)
                a(f"""s_lshr_b32 s3, s2, 3
                      s_lshl_b32 s3, s3, 2
                      s_add_u32 s3, s3, {s(sV)}
                      s_min_u32 s3, s3, 111
                      s_mul_i32 s41, {s(sW)}, 112
                      s_add_u32 s3, s3, s41
                      s_lshl_b32 s63, s3, 12""")
            for j in js:
                a(f"buffer_load_dwordx4 {v(dmy,4)}, {v(l16)}, {s(SPF,4)}, s63 offen offset:{1024*j}"); untracked(a)
        def j_pfl():
            srd(a, SPF, 30, 31, 1792 * 1024)
            a(f"s_lshl_b32 s3, s2, 2\ns_add_u32 s3, s3, {s(sV)}\ns_mul_i32 s3, s3, 1792")
            for j in range(2):
                a(f"buffer_load_dwordx4 {v(dmy,4)}, {v(l16)}, {s(SPF,4)}, s3 offen offset:{1024*j}"); untracked(a)
        def j_pfx():
            srd(a, SPF, 28, 29, 512 * 3584)
            a(f"s_lshl_b32 s3, s2, 2\ns_add_u32 s3, s3, {s(sV)}\ns_mul_i32 s40, s3, 1792\ns_lshl_b32 s3, s3, 11\ns_add_u32 s3, s3, 4096")
            for j in range(2):
                a(f"buffer_load_dwordx4 {v(dmy,4)}, {v(l16)}, {s(SX,4)}, s3 offen offset:{1024*j}"); untracked(a)
                a(f"buffer_load_dwordx4 {v(dmy,4)}, {v(l16)}, {s(SPF,4)}, s40 offen offset:{1024*j}"); untracked(a)
        def j_pfs(k):
            lo, share, first, n = ((26, 1024, 0, 16), (22, 1024, 0, 16), (30, 1792, 0, 14), (30, 1792, 14, 14))[k]
            a(f"""s_lshl_b32 s3, s2, 2
                  s_add_u32 s3, s3, {s(sV)}
                  s_mul_i32 s3, s3, {share}
                  s_add_u32 s40, {s(lo)}, s3
                  s_addc_u32 s41, {s(lo+1)}, 0""")
            for j in range(first, first + n):
                a(f"s_load_dword s65, s[40:41], {64*j}"); a.lg.pop()
            a.smem_loose = True
        pre, post = {}, {1: [j_tablepf]}
        for k, ph in enumerate(OPT["pfs"]): post.setdefault(ph, []).append(lambda k=k: j_pfs(k))
        if OPT["pfx"] > 0: pre.setdefault(OPT["pfx"], []).append(j_pfx)
        if OPT["pfx"] == 0: post.setdefault(0, []).append(j_pfx)
        pl = min(OPT["pfl"], 8) if D else OPT["pfl"]
        if pl: (post if pl < 8 else pre).setdefault(pl, []).append(j_pfl)
        phG = OPT["phGD"] if D else OPT["phG"]
        for ph, j in ((OPT["phN"], j_nonce), (OPT["phN"], j_warm), (OPT["phN"] + 2, j_publish)) + (((phG, j_gather),) if phG < 8 and not D else ()): pre.setdefault(ph, []).append(j)
        for p, ph in enumerate(OPT["phWD"] if D else OPT["phW"]): (post if ph < 8 else pre).setdefault(ph, []).append(lambda p=p: j_wload(p))
        pw = OPT["pfw2"]; pw = [] if pw in (0, 20) else [pw] * 4 if isinstance(pw, int) else pw
        for ph in sorted(set(pw)): (post if ph < 8 else pre).setdefault(ph, []).append(lambda ph=ph: j_pfw2([j for j in range(4) if pw[j] == ph]))
        if OPT["phS"] < 8 and not D: post.setdefault(OPT["phS"], []).append(j_wstore)
        quarters = [(i >> 2, i & 3) for i in range(32)]; pos = 0
        few()
        for ph, cnt in enumerate(OPT["k1sched"]):
            for j in pre.get(ph, []): j()
            for (sl, q) in quarters[pos:pos+cnt]:
                assert sl < NS or sl - NS <= ph - 2, (sl, ph)
                dma(sl, q)
            pos += cnt
            for j in post.get(ph, []): j()
            a.waitvm(f"S{ph}", lg0=True); a("s_barrier")
            (st.mark if ph in (0, 7) else few)()
        assert pos == 32
        if D:
            for j in pre.get(8, []): j()
            if MG: a(f"v_mov_b32 {v(t1)}, {NON}\nds_write_b32 {v(t1)}, {v(gn)}\nv_readfirstlane_b32 s66, {v(gn)}")
            p, q = x1_out(Vx); a(p)
            j_wstore()
            few()
            q()
            if MG:
                import genp
                a(f"s_waitcnt vmcnt(0)\ns_barrier\ns_cmp_lg_u32 {s(sV)}, 0\ns_cbranch_scc1 K1_NOFX")
                keep = a.snapshot(); genp.put_flag(a, G.FX_OFF, t0, t2); a.label("K1_NOFX"); a.restore(keep)
                genp.put_flag(a, G.FW_OFF, t0, t2, True)
        else:
            if phG == 8: j_gather()
            j_check()
            if OPT["e1first"]: a.waitlg(); a("s_barrier")
            if OPT["phS"] == 8: j_wstore()
            for j in pre.get(8, []): j()
            if not OPT["e1first"]: a.waitlg(); a("s_barrier")
            if OPT["phS"] == 9: j_wstore()
            for j in pre.get(9, []): j()
            few()
            if MG:
                import genp
                a(f"v_readfirstlane_b32 s66, {v(gn)}")
                a.waitvm("WS"); genp.put_flag(a, G.FW_OFF, t0, t2, True)
        for j in pre.get(10, []): j()
        if OPT["pfw2"] == 20 and D:
            a("s_waitcnt vmcnt(0)")
            srd(a, SPF, 30, 31, 1792 * 1024)
            a(f"""s_lshl_b32 s3, {s(sW)}, 2
                  s_add_u32 s3, s3, {s(sLO)}
                  s_lshl_b32 s3, s3, 2
                  s_add_u32 s3, s3, {s(sV)}
                  s_mul_i32 s63, s3, {28*1024}""")
            for j in range(28):
                if j and j % 4 == 0: a("s_add_u32 s63, s63, 4096")
                a(f"buffer_load_dwordx4 {v(dmy,4)}, {v(l16)}, {s(SPF,4)}, s63 offen offset:{1024*(j & 3)}"); untracked(a)
            a("s_mov_b32 s63, 1")
        elif OPT["pfw2"] == 20: a("s_mov_b32 s63, 0")
        if MG: a("s_branch P2_LOADER")
        else:
            st.flush(SW, wl, tid, 256, 1)
            a("s_endpgm")
        return st.n
    nl = loader(False)
    a.restore(snapL); st.n = stn
    a.label("K1_LD")
    assert loader(True) == nl
    a.restore(snap0); V.n = Vbase; st.n = 1 if OPT["stamp"] else 0
    a.label("K1_COMPUTE"); a.smem_loose = False
    if OPT["est"]: st.mark()
    if OPT["prio"]: a(f"s_setprio {OPT['prio']}")
    ones = V.get(2); gq = V.get(4); gn = V.get(); gz = V.get()
    key = t4
    rw = 240
    a(f"""s_lshl_b32 s3, {s(sW)}, 2
          s_add_u32 s3, s3, {s(sLO)}
          s_lshl_b32 s3, s3, 1
          s_add_u32 s3, s3, {s(sHF)}
          s_lshl_b32 s3, s3, 3
          s_add_u32 s3, s3, {s(sCJ)}
          s_lshl_b32 s3, s3, 2
          s_add_u32 s3, s3, {s(sV)}
          s_lshl_b32 s3, s3, 11
          v_lshlrev_b32 {v(t0)}, 4, {v(lane)}
          s_mov_b32 {s(SX+2)}, 0x200000
          s_mov_b32 {s(SX+3)}, 0x20000""")
    a.waitlg()
    a(f"""s_mov_b64 {s(SX,2)}, s[24:25]
          {"s_nop 0" if OPT["norow"] else f"buffer_load_dwordx4 {v(rw,4)}, {v(t0)}, {s(SX,4)}, s3 offen"}
          {"s_nop 0" if OPT["norow"] else f"buffer_load_dwordx4 {v(rw+4,4)}, {v(t0)}, {s(SX,4)}, s3 offen offset:1024"}
          s_lshr_b32 s53, s3, 6
          s_add_u32 s53, s53, {STATS_OFF}
          v_mov_b32 {v(gz)}, 0""")
    if OPT["est"]: st.mark()
    def linear_pf(lo, nbytes, n):
        srd(a, SB, lo, lo + 1, nbytes)
        a(f"s_lshl_b32 s3, s2, 2\ns_add_u32 s3, s3, {s(sV)}\ns_mul_i32 s3, s3, {nbytes // 1024 // 128 * 128}\nv_lshlrev_b32 {v(pf)}, 4, {v(lane)}")
        for j in range(n):
            a(f"buffer_load_dwordx4 {v(rw+8,4)}, {v(pf)}, {s(SB,4)}, s3 offen offset:{1024*j}"); untracked(a)
    if OPT["pfm"] & 1: linear_pf(28, 512 * 3584, 2)
    srd(a, SW, 90, 91, WS_END); srd(a, SD, 88, 89, 256)
    if OPT["touch"]:
        a(f"""s_load_dwordx2 s[44:45], s[0:1], 48
              v_lshlrev_b32 {v(pf)}, 19, {v(lane)}
              v_min_u32 {v(pf)}, {G.F3_OFF}, {v(pf)}
              s_lshl_b32 s3, s2, 7
              buffer_load_dword {v(pf)}, {v(pf)}, {s(SW,4)}, s3 offen sc1""")
        untracked(a)
    if MG and OPT["warm"]:
        a(f"""s_lshl_b32 s3, s2, 2
              s_add_u32 s3, s3, {s(sV)}
              s_lshl_b32 s3, s3, 7
              s_add_u32 s3, s3, {G.F1_OFF}
              v_and_b32 {v(t1)}, 31, {v(lane)}
              v_lshlrev_b32 {v(t1)}, 2, {v(t1)}
              v_lshl_add_u32 {v(t1)}, {v(t3)}, 17, {v(t1)}
              buffer_store_dword {v(gz)}, {v(t1)}, {s(SW,4)}, s3 offen sc1""")
        assert G.F2_OFF - G.F1_OFF == 1 << 17
    a(f"s_or_b32 s3, s2, {s(sV)}\ns_cmp_lg_u32 s3, 0\ns_cbranch_scc1 K1_NOEPOCH")
    keep = a.snapshot()
    a(f"""s_add_u32 s40, {s(SW)}, {EPOCH_OFF}
          s_addc_u32 s41, {s(SW+1)}, 0
          s_load_dword s42, s[40:41], 0
          s_mov_b32 s3, {EPOCH_OFF}
          s_add_u32 s42, s42, 1
          s_or_b32 s42, s42, 1
          v_mov_b32 {v(gn)}, s42
          s_mov_b64 exec, 1
          buffer_store_dword {v(gn)}, {v(gz)}, {s(SD,4)}, 0 offen sc1
          buffer_store_dword {v(gn)}, {v(gz)}, {s(SW,4)}, s3 offen sc1
          s_mov_b64 exec, -1""")
    a.label("K1_NOEPOCH")
    a.restore(keep)
    a(f"""v_mov_b32 {v(ones)}, 0x3f803f80
          v_mov_b32 {v(ones+1)}, 0x3f803f80
          v_and_b32 {v(t1)}, 1, {v(lane)}
          v_cmp_eq_u32 s[58:59], 1, {v(t1)}
          v_bfe_u32 {v(key)}, {v(lane)}, 1, 3
          v_and_b32 {v(t0)}, 31, {v(lane)}
          v_lshlrev_b32 {v(t0)}, 7, {v(t0)}
          v_add_u32 {v(t0)}, {s(sL)}, {v(t0)}""")
    uid = [0]
    def produce():
        if OPT["est"]: st.mark(); a("s_waitcnt vmcnt(0)"); st.mark()
        if OPT["early"]: a(f"s_waitcnt vmcnt(0)\nbuffer_load_dword {v(gn)}, {v(gz)}, {s(SD,4)}, 0 offen sc1")
        for i in range(4):
            for r in range(2):
                c0 = "0" if i == 0 else None
                a(f"v_dot2_f32_bf16 {v(gq+2*r)}, {v(rw+4*r+i)}, {v(rw+4*r+i)}, {c0 or v(gq+2*r)}\nv_dot2_f32_bf16 {v(gq+2*r+1)}, {v(rw+4*r+i)}, {v(ones)}, {c0 or v(gq+2*r+1)}")
        a("s_nop 2")
        for m in ("row_shr:1 row_mask:0xf", "row_shr:2 row_mask:0xf", "row_shr:4 row_mask:0xf", "row_shr:8 row_mask:0xf", "row_bcast:15 row_mask:0xa", "row_bcast:31 row_mask:0xc"):
            for i in range(4): a(f"v_add_f32_dpp {v(gq+i)}, {v(gq+i)}, {v(gq+i)} {m} bank_mask:0xf bound_ctrl:0")
        for i in range(4): a(f"v_readlane_b32 s{16+i}, {v(gq+i)}, 63")
        a(f"""v_mov_b32 {v(gq)}, s16
              v_mov_b32 {v(gq+1)}, s17
              v_mov_b32 {v(gq+2)}, s18
              v_mov_b32 {v(gq+3)}, s19
              v_cndmask_b32 {v(gq)}, {v(gq)}, {v(gq+2)}, s[58:59]
              v_cndmask_b32 {v(gq+1)}, {v(gq+1)}, {v(gq+3)}, s[58:59]""")
        for r in finish_stats(gq, gq + 1, t4, t5): a(r)
        a(f"""s_lshl_b32 s3, {s(sV)}, 4
              s_add_u32 s3, s3, {PRS}
              v_lshl_add_u32 {v(t4)}, {v(lane)}, 3, s3
              s_mov_b64 exec, 3
              ds_write_b64 {v(t4)}, {v(gq,2)}
              s_mov_b64 exec, -1""")
        if OPT["est"]: st.mark()
        if OPT["pfm"] & 2: linear_pf(30, 1792 * 1024, 2)
        if OPT["pfm"] & 4: linear_pf(26, 2048 * 514, 1); linear_pf(22, 2048 * 514, 1)
        if OPT["early"]:
            uid[0] += 1
            a(f"""v_readfirstlane_b32 s3, {v(gn)}
                  s_cmp_eq_u32 s3, 0
                  s_cbranch_scc1 K1_NOEARLY{uid[0]}""")
            a(f"""v_mov_b32 {v(gq+2)}, s3
                  v_mov_b32 {v(gq+3)}, s3
                  v_lshlrev_b32 {v(gz)}, 4, {v(lane)}
                  s_mov_b64 exec, 3
                  buffer_store_dwordx4 {v(gq,4)}, {v(gz)}, {s(SW,4)}, s53 offen sc1
                  s_mov_b64 exec, -1""")
            a.label(f"K1_NOEARLY{uid[0]}")
    def bar():
        a.waitlg(); a("s_barrier")
    a(f"s_cmp_eq_u32 {s(sCJ)}, 7\ns_cbranch_scc1 K1_DFT")
    snap = a.snapshot(); V0 = V.n; stc = st.n
    xa = [[V.get(4), V.get(4)] for _ in range(2)]
    wa = [[V.get(), V.get()] for _ in range(2)]
    ad1, ad2, ad3, ad4, ad5, l16 = [V.get() for _ in range(6)]
    cs = V.get(4)
    a(f"v_xor_b32 {v(t1)}, {v(t3)}, {v(key)}")
    for i in range(4):
        a(f"""v_xor_b32 {v(t2)}, {2*i}, {v(t1)}
              v_lshl_add_u32 {v(xa[0][0]+i)}, {v(t2)}, 4, {v(t0)}
              v_xor_b32 {v(xa[0][1]+i)}, 0x1000, {v(xa[0][0]+i)}
              v_add_u32 {v(xa[1][0]+i)}, 65536, {v(xa[0][0]+i)}
              v_add_u32 {v(xa[1][1]+i)}, 65536, {v(xa[0][1]+i)}""")
    a(f"""s_lshr_b32 {s(sWR_)}, {s(sV)}, 1
          s_and_b32 {s(sWC)}, {s(sV)}, 1
          v_and_b32 {v(t1)}, 2, {v(lane)}
          v_cmp_eq_u32 s[62:63], 2, {v(t1)}
          v_bfe_u32 {v(t0)}, {v(lane)}, 2, 2
          v_lshl_add_u32 {v(t1)}, {v(t3)}, 3, {v(t0)}
          v_lshlrev_b32 {v(t1)}, 8, {v(t1)}
          s_lshl_b32 s3, {s(sWC)}, 1
          s_add_u32 s54, s3, {s(sWR_)}
          v_xor_b32 {v(t0)}, s54, {v(t0)}
          v_lshl_add_u32 {v(t1)}, {v(t0)}, 6, {v(t1)}
          v_bfe_u32 {v(t0)}, {v(lane)}, 4, 1
          v_lshl_add_u32 {v(t1)}, {v(t0)}, 5, {v(t1)}
          v_and_b32 {v(t0)}, 1, {v(lane)}
          v_lshl_add_u32 {v(t1)}, {v(t0)}, 4, {v(t1)}
          v_bfe_u32 {v(t0)}, {v(lane)}, 1, 1
          v_lshl_add_u32 {v(t1)}, {v(t0)}, 3, {v(t1)}
          v_add_u32 {v(wa[0][0])}, 16384, {v(t1)}
          v_xor_b32 {v(wa[0][1])}, 64, {v(wa[0][0])}
          v_add_u32 {v(wa[1][0])}, 65536, {v(wa[0][0])}
          v_add_u32 {v(wa[1][1])}, 65536, {v(wa[0][1])}
          v_and_b32 {v(t0)}, 31, {v(lane)}
          s_lshl_b32 s3, {s(sV)}, 8
          s_add_u32 s3, s3, {SCR}
          v_lshl_add_u32 {v(ad1)}, {v(t0)}, 3, s3
          v_xor_b32 {v(ad3)}, 0x100, {v(ad1)}
          s_lshl_b32 s3, s54, 7
          s_add_u32 s40, s3, {PCS}
          v_lshl_add_u32 {v(ad2)}, {v(t0)}, 2, s40
          s_add_u32 s3, s3, {CSF}
          v_lshl_add_u32 {v(ad4)}, {v(t3)}, 4, s3
          v_xor_b32 {v(ad5)}, 0x80, {v(ad4)}
          s_mov_b32 s60, {fbits(-LOG2E)}
          s_mov_b32 s61, {fbits(-LOG2E)}
          v_lshlrev_b32 {v(l16)}, 4, {v(lane)}
          s_lshl_b32 s3, {s(sW)}, 2
          s_add_u32 s3, s3, {s(sLO)}
          s_lshl_b32 s3, s3, 2
          s_add_u32 s40, s3, {s(sV)}
          s_xor_b32 s41, s40, 1
          s_mul_i32 s40, s40, {112*1024}
          s_mul_i32 s41, s41, {112*1024}
          s_mul_i32 s3, {s(sHF)}, 7
          s_add_u32 s3, s3, {s(sCJ)}
          s_lshl_b32 s3, s3, 13
          s_lshl_b32 s42, s54, 11
          s_add_u32 s42, s42, s3
          s_xor_b32 s43, s42, 0x800
          s_add_u32 s44, s40, s42
          s_add_u32 s45, s41, s42
          s_add_u32 s46, s40, s43
          s_add_u32 s47, s41, s43""")
    acc = [[V.get(16) for _ in range(2)] for _ in range(2)]
    xf = [[V.get(4) for _ in range(2)] for _ in range(3)]
    wf = [[V.get(4) for _ in range(2)] for _ in range(3)]
    a12 = [V.get(2), V.get(2)]; cv = [V.get(16), V.get(16)]
    def reads_ffn(n):
        if n >= 32: return []
        slab, t = divmod(n, 4); slot = slab % NS; se, off = slot >> 1, (slot & 1) * 32768; b = n % 3
        r = []
        for T in range(2):
            r.append(f"ds_read_b128 {v(xf[b][T],4)}, {v(xa[se][T]+t)} offset:{off}")
            r.append(f"ds_read_b64_tr_b16 {v(wf[b][T],2)}, {v(wa[se][T])} offset:{off + t*4096}")
            r.append(f"ds_read_b64_tr_b16 {v(wf[b][T]+2,2)}, {v(wa[se][T])} offset:{off + t*4096 + 1024}")
        return r
    produce()
    bar(); st.mark()
    for r in reads_ffn(0) + reads_ffn(1): a(r)
    for n in range(32):
        b = n % 3; z = "0" if n == 0 else None
        mfs = [(lambda F=F, S=S: mf32(a, acc[F][S], wf[b][F], xf[b][S], z)) for (F, S) in ((0, 0), (1, 0), (0, 1), (1, 1))]
        fill = reads_ffn(n + 2); per = [3, 3, 0, 0]
        if n % 4 == 2 and n < 28: fill = [bar] + fill; per = [3, 2, 2, 0]
        if n == 4:
            fill += [f"v_cndmask_b32 {v(cs)}, {v(cs)}, {v(cs+1)}, s[58:59]", f"v_cndmask_b32 {v(cs+2)}, {v(cs+2)}, {v(cs+3)}, s[58:59]",
                     f"v_cndmask_b32 {v(cs+1)}, {v(cs)}, {v(cs+2)}, s[62:63]", f"v_cndmask_b32 {v(cs)}, {v(cs)}, {v(cs+2)}, s[62:63]"]
            per = [3, 3, 2, 2]
        if n == 5:
            fill += [f"v_permlane32_swap_b32 {v(cs)}, {v(cs+1)}", f"v_add_f32 {v(cs)}, {v(cs)}, {v(cs+1)}", f"ds_write_b32 {v(ad2)}, {v(cs)}"]
            per = [3, 4, 1, 1]
        if n == OPT["e1step"]:
            fill = [bar, f"ds_read_b64 {v(a12[0],2)}, {v(ad1)}", f"ds_read_b64 {v(a12[1],2)}, {v(ad3)}"] + \
                   [f"ds_read_b128 {v(cv[F]+4*jj,4)}, {v(ad)} offset:{32*jj}" for F, ad in ((0, ad4), (1, ad5)) for jj in range(4)]
            per = [4, 4, 3, 0]
            if MG: fill += [f"v_mov_b32 {v(gz)}, {NON}", f"ds_read_b32 {v(gn)}, {v(gz)}"]; per[3] = 2
        interleave(a, mfs, fill, per)
        if n < 4:
            for h in (0, 2): mf4(a, cs, ones, wf[b][0]+h, "0" if (n == 0 and h == 0) else None)
        if n == 10: few()
    st.mark()
    tmp = xf[0][0]; ee = tmp + 16; pk = [ee + 16, ee + 24]
    assert wf[2][1] + 4 == tmp + 48
    k = 0
    for S in range(2):
        for F in range(2):
            A_ = acc[F][S]; pp = pk[k & 1]; k += 1
            for i in range(0, 16, 2): a(f"v_pk_mul_f32 {v(tmp+i,2)}, {v(cv[F]+i,2)}, {v(a12[S],2)} op_sel:[0,1] op_sel_hi:[1,1]")
            for i in range(0, 16, 2): a(f"v_pk_fma_f32 {v(A_+i,2)}, {v(A_+i,2)}, {v(a12[S],2)}, {v(tmp+i,2)} op_sel:[0,0,0] op_sel_hi:[1,0,1]")
            for i in range(16): a(f"v_exp_f32 {v(ee+i)}, {v(A_+i)}")
            for i in range(0, 16, 2): a(f"v_pk_fma_f32 {v(ee+i,2)}, {v(ee+i,2)}, s[60:61], s[60:61]")
            for i in range(16): a(f"v_rcp_f32 {v(ee+i)}, {v(ee+i)}")
            for i in range(0, 16, 2): a(f"v_pk_mul_f32 {v(A_+i,2)}, {v(A_+i,2)}, {v(ee+i,2)}")
            for u in range(2):
                for i in range(4): a(f"v_cvt_pk_bf16_f32 {v(pp+4*u+i)}, {v(A_+8*u+2*i)}, {v(A_+8*u+2*i+1)}")
                if 2*(k-1) + u >= OPT["noH"]: a(f"buffer_store_dwordx4 {v(pp+4*u,4)}, {v(l16)}, {s(SW,4)}, s{44+2*F+S} offen offset:{1024*u} {'sc1' if 2*(k-1) + u < OPT['nsc1'] else ''}")
    st.mark()
    nc = st.n
    if MG: a(f"v_readfirstlane_b32 s66, {v(gn)}\ns_branch P2_COMPUTE")
    else:
        st.flush(SW, tmp, tid)
        a("s_endpgm")
    vmax = max(V.hi, Vx.hi, rw + 12)
    a.restore(snap); V.n = V0; st.n = stc
    a.label("K1_DFT")
    xa = [V.get(4), V.get(4)]; ta = [V.get(), V.get()]; ad2 = V.get(); wad = [V.get(), V.get()]
    Vo = VAlloc(V.get(6))
    acc = [[V.get(16) for _ in range(2)] for _ in range(4)]
    sq = [V.get(4), V.get(4)]; sm = [V.get(4), V.get(4)]; ad1 = V.get()
    xr = V.get(16); xe = [V.get(4) for _ in range(4)]; tf = [[V.get(4) for _ in range(2)] for _ in range(4)]
    assert rw >= xr
    def st4d(first):
        for i in range(8):
            z = "0" if first and i < 2 else None
            mf4(a, sq[i & 1], xr + 2*i, xr + 2*i, z); mf4(a, sm[i & 1], ones, xr + 2*i, z)
    a(f"v_lshlrev_b32 {v(t1)}, 2, {v(t3)}\nv_xor_b32 {v(t1)}, {v(t1)}, {v(key)}")
    for i in range(4):
        a(f"v_xor_b32 {v(t2)}, {i}, {v(t1)}\nv_lshl_add_u32 {v(xa[0]+i)}, {v(t2)}, 4, {v(t0)}\nv_add_u32 {v(xa[1]+i)}, 65536, {v(xa[0]+i)}")
    a(f"""v_lshlrev_b32 {v(ta[0])}, 4, {v(lane)}
          v_add_u32 {v(ta[0])}, 16384, {v(ta[0])}
          v_add_u32 {v(ta[1])}, 65536, {v(ta[0])}
          s_mov_b32 s62, 0x05040100
          s_mov_b32 s63, 0x07060302
          s_lshl_b32 s3, {s(sV)}, 7
          s_add_u32 s3, s3, {SCR}
          v_lshl_add_u32 {v(ad2)}, {v(t3)}, 4, s3
          v_and_b32 {v(t1)}, 2, {v(lane)}
          v_cmp_eq_u32 s[48:49], 2, {v(t1)}
          v_and_b32 {v(t1)}, 31, {v(lane)}
          v_lshl_add_u32 {v(ad1)}, {v(t1)}, 2, s3
          v_cmp_eq_u32 s[64:65], 0, {v(t1)}
          v_lshlrev_b32 {v(t5)}, 9, {v(t1)}
          v_and_b32 {v(t1)}, 7, {v(lane)}
          v_xor_b32 {v(t1)}, {v(t1)}, {v(t3)}
          s_lshl_b32 s3, {s(sV)}, 2
          v_xor_b32 {v(t1)}, s3, {v(t1)}
          v_lshl_add_u32 {v(wad[0])}, {v(t1)}, 4, {v(t5)}
          v_xor_b32 {v(wad[1])}, 32, {v(wad[0])}
          s_mov_b32 s60, 2.0
          s_mov_b32 s61, 2.0
          s_mov_b32 s32, 0.5
          s_mov_b32 s33, 0.5""")
    class R2:
        def __init__(s_): s_.k = 0
        def get(s_, n=1):
            return acc[0][0] if n == 32 else Vo.get(n)
    x1pre, x1post = x1_out(R2())
    a(x1pre)
    def loc(sl): slot = sl % NS; return slot >> 1, (slot & 1) * 32768
    def rd_x(sl): se, off = loc(sl); return [f"ds_read_b128 {v(xr+4*b,4)}, {v(xa[se]+b)} offset:{off}" for b in range(4)]
    def rd_t(sl, r): se, off = loc(sl); return [f"ds_read_b128 {v(tf[r][c],4)}, {v(ta[se])} offset:{off + (2*r + c)*1024}" for c in range(2)]
    def perms(r): return [f"v_perm_b32 {v(xe[r]+i)}, {v(xr+4*i+2+(r>>1))}, {v(xr+4*i+(r>>1))}, s{62+(r&1)}" for i in range(4)]
    produce()
    bar(); st.mark()
    for r in rd_x(0) + sum((rd_t(0, r) for r in range(4)), []): a(r)
    for r in range(4):
        for p in perms(r): a(p)
    st4d(True)
    rs = xr
    for sl in range(8):
        z = "0" if sl == 0 else None
        mfs = [(lambda r=r, c=c: mf32(a, acc[r][c], xe[r], tf[r][c], z)) for r in range(4) for c in range(2)]
        if sl < 7:
            bar()
            fill = rd_x(sl + 1); per = [4]
            for r in range(4):
                nx = rd_t(sl + 1, r) + (perms(r - 1) if r else [])
                fill += nx; per += [len(nx), 0]
            fill += perms(3) + [lambda: st4d(False)]; per = per[:8]
        else:
            fill = [f"v_add_f32 {v(q[0]+i)}, {v(q[0]+i)}, {v(q[1]+i)}" for q in (sq, sm) for i in range(4)]
            for q, d in ((sq[0], t0), (sm[0], t1)):
                fill += [f"v_cndmask_b32 {v(q)}, {v(q)}, {v(q+1)}, s[58:59]", f"v_cndmask_b32 {v(q+2)}, {v(q+2)}, {v(q+3)}, s[58:59]",
                         f"v_cndmask_b32 {v(d)}, {v(q)}, {v(q+2)}, s[48:49]", f"v_cndmask_b32 {v(q)}, {v(q)}, {v(q+2)}, s[48:49]"]
            fill += [f"v_permlane32_swap_b32 {v(t0)}, {v(sq[0])}", f"v_permlane32_swap_b32 {v(t1)}, {v(sm[0])}",
                     f"v_add_f32 {v(t0)}, {v(t0)}, {v(sq[0])}", f"v_add_f32 {v(t1)}, {v(t1)}, {v(sm[0])}"] + finish_stats(t0, t1, t4, t5)
            fill += [f"ds_write_b32 {v(ad1)}, {v(t0)}", "s_waitcnt lgkmcnt(0)"] + [f"ds_read_b128 {v(rs+4*jj,4)}, {v(ad2)} offset:{32*jj}" for jj in range(4)]
            per = [5] * 8
        interleave(a, mfs, fill, per)
        if sl == 2: few()
    st.mark()
    if OPT["pfd"]:
        n = 14 * OPT["pfd"]
        srd(a, SB, 30, 31, 1792 * 1024)
        if OPT["pfd"] == 1: a(f"s_and_b32 s3, s2, 31\ns_lshl_b32 s3, s3, 2")
        else: a(f"s_lshl_b32 s3, {s(sW)}, 2\ns_add_u32 s3, s3, {s(sLO)}\ns_lshl_b32 s3, s3, 2")
        a(f"s_add_u32 s3, s3, {s(sV)}\ns_mul_i32 s3, s3, {n*1024}\nv_lshlrev_b32 {v(pf)}, 4, {v(lane)}")
        for j in range(n):
            if j and j % 4 == 0: a("s_add_u32 s3, s3, 4096")
            a(f"buffer_load_dwordx4 {v(rw+8,4)}, {v(pf)}, {s(SB,4)}, s3 offen offset:{1024*(j & 3)}"); untracked(a)
    tmp = xe[0]; pk = [tf[0][0], tf[0][1]]
    ng = lambda *n: f" neg_lo:[{n[0]},{n[1]},{n[2]}] neg_hi:[{n[0]},{n[1]},{n[2]}]"
    for i in range(0, 16, 2):
        r = v(rs+i, 2); P = lambda q, c: v(acc[q][c]+i, 2)
        for q in range(2):
            for c in range(2): a(f"v_pk_mul_f32 {v(tmp+4*q+2*c,2)}, {P(q,c)}, {r}")
        for q in range(2):
            for c in range(2):
                a(f"v_pk_fma_f32 {P(q,c)}, {P(q+2,c)}, {r}, {v(tmp+4*q+2*c,2)}\nv_pk_fma_f32 {P(q+2,c)}, {P(q+2,c)}, {r}, {v(tmp+4*q+2*c,2)}{ng(1,0,0)}")
        a(f"""v_pk_add_f32 {P(0,0)}, {P(0,0)}, {P(1,0)}
              v_pk_add_f32 {P(0,1)}, {P(0,1)}, {P(1,1)}
              v_pk_add_f32 {P(2,0)}, {P(2,0)}, {P(3,1)}
              v_pk_add_f32 {P(2,1)}, {P(2,1)}, {P(3,0)} neg_lo:[0,1] neg_hi:[0,1]
              v_pk_fma_f32 {P(1,0)}, {P(1,0)}, s[60:61], {P(0,0)}{ng(1,0,0)}
              v_pk_fma_f32 {P(1,1)}, {P(1,1)}, s[60:61], {P(0,1)}{ng(0,0,1)}
              v_pk_fma_f32 {P(3,1)}, {P(3,1)}, s[60:61], {P(2,0)}{ng(1,0,0)}
              v_pk_fma_f32 {P(3,0)}, {P(3,0)}, s[60:61], {P(2,1)}{ng(1,0,1)}""")
    a(f"s_cmp_lg_u32 {s(sHF)}, 0\ns_cbranch_scc1 K1_NOSPEC\ns_mov_b64 exec, s[64:65]")
    for i in range(0, 16, 2):
        P = lambda q, c: v(acc[q][c]+i, 2); T = lambda k: v(tmp+2*k, 2); n2 = " neg_lo:[0,1] neg_hi:[0,1]"
        a(f"""v_pk_add_f32 {T(0)}, {P(2,0)}, {P(3,1)}{n2}
              v_pk_add_f32 {T(1)}, {P(2,1)}, {P(3,0)}{n2}
              v_pk_add_f32 {T(2)}, {P(0,1)}, {P(1,1)}
              v_pk_add_f32 {T(3)}, {P(0,1)}, {P(1,1)}{n2}
              v_pk_add_f32 {P(2,0)}, {P(2,0)}, {P(3,1)}
              v_pk_add_f32 {P(2,1)}, {P(2,1)}, {P(3,0)}
              v_pk_add_f32 {T(4)}, {T(3)}, {T(1)}
              v_pk_add_f32 {T(5)}, {T(3)}, {T(1)}{n2}
              v_pk_mul_f32 {P(2,0)}, {P(2,0)}, s[32:33]
              v_pk_mul_f32 {P(2,1)}, {P(2,1)}, s[32:33]
              v_pk_add_f32 {P(0,0)}, {T(4)}, {T(0)}
              v_pk_add_f32 {P(0,1)}, {T(5)}, {T(2)} neg_lo:[1,1] neg_hi:[1,1]
              v_pk_add_f32 {P(3,1)}, {T(4)}, {T(0)}{n2}
              v_pk_add_f32 {P(3,0)}, {T(5)}, {T(2)}{n2}
              v_mov_b32 {v(acc[1][1]+i)}, 0
              v_mov_b32 {v(acc[1][1]+i+1)}, 0""")
    a("s_mov_b64 exec, -1")
    a.label("K1_NOSPEC")
    few()
    k = 0
    for ty in range(4):
        for c in range(2):
            src = acc[ty][c if ty < 3 else 1 - c]
            for u in range(2):
                pp = pk[k & 1]; k += 1
                for i in range(4): a(f"v_cvt_pk_bf16_f32 {v(pp+i)}, {v(src+8*u+2*i)}, {v(src+8*u+2*i+1)}")
                a(f"ds_write_b128 {v(wad[u])}, {v(pp,4)} offset:{ty*16384 + c*256}")
    few()
    x1post()
    st.mark()
    if MG:
        import genp
        assert st.n == nc
        a(f"v_mov_b32 {v(gz)}, {NON}\nds_read_b32 {v(gn)}, {v(gz)}\nv_readfirstlane_b32 s66, {v(gn)}\ns_waitcnt vmcnt(0)\ns_barrier")
        a.vm, a.lg, a.hist = [("?", set())], [], []
        vmax = max(vmax, genp.compute23(a, st))
        a.vm, a.lg, a.hist = [("?", set())], [], []; st.n = nl
        vmax = max(vmax, genp.loader23(a, st))
    else: st.flush(SW, tmp, tid)
    a.label("K1_END")
    a("s_endpgm")
    return a, max(vmax, V.hi), (163840 if MG else 139264, 512)
```

```python
from asmfw import Asm, VAlloc, v, s
import __main__ as M
G = M if hasattr(M, "dft_table") else __import__("gen")
OPT = G.OPT; fbits = G.fbits; srd = G.srd; mf32 = G.mf32; mf16 = G.mf16
H_OFF, X1_OFF, WT_OFF, Y1_OFF, PART_OFF, WS_END = G.H_OFF, G.X1_OFF, G.WT_OFF, G.Y1_OFF, G.PART_OFF, G.WS_END
F1_OFF, F2_OFF, F3_OFF, FW_OFF, FX_OFF = G.F1_OFF, G.F2_OFF, G.F3_OFF, G.FW_OFF, G.FX_OFF
SW, S2, SX, SO = 12, 8, 4, 16
sN = 66
XB, WB, EX = 135168, 143360, 151552
OWN, YB, RED = 0, 65536, 131072
NS2 = 5
tid, lane, t0, t1, t2, t3, t4, t5 = range(8)
sV, sQ, sRB, sNB, sL, sHo, s2o, sWR_, sWC, sRT, sCB = 37, 35, 36, 34, 38, 39, 40, 41, 42, 52, 53

def put_flag(a, off, va, vd, per_wave=False):
    a(f"s_lshl_b32 s3, s2, 2\ns_add_u32 s3, s3, {s(sV)}\ns_lshl_b32 s3, s3, 7" if per_wave else "s_lshl_b32 s3, s2, 7")
    a(f"""s_add_u32 s3, s3, {off}
          v_lshlrev_b32 {v(va)}, 2, {v(lane)}
          v_mov_b32 {v(vd)}, {s(sN)}
          s_mov_b64 exec, 0xffffffff
          buffer_store_dword {v(vd)}, {v(va)}, {s(SW,4)}, s3 offen sc1
          s_mov_b64 exec, -1""")
def wait_flags(a, name, pairs, sleep=0):
    if sleep: a(f"s_sleep {sleep}")
    for va, vd in pairs: a(f"buffer_load_dword {v(vd)}, {v(va)}, {s(SW,4)}, 0 offen sc1")
    for i, (va, vd) in enumerate(pairs):
        a(f"v_cmp_ne_u32 vcc, {s(sN)}, {v(vd)}\ns_cbranch_vccz {name}_OK{i}\ns_mov_b32 s67, 0")
        keep = a.snapshot()
        a.label(f"{name}_SPIN{i}")
        a("s_mov_b64 exec, vcc")
        if OPT["slS"]: a(f"s_sleep {OPT['slS']}")
        a(f"""buffer_load_dword {v(vd)}, {v(va)}, {s(SW,4)}, 0 offen sc1
              s_add_u32 s67, s67, 1
              s_cmp_gt_u32 s67, {OPT['spinf']}
              s_waitcnt vmcnt(0)
              s_cbranch_scc1 {name}_END{i}
              v_cmp_ne_u32 vcc, {s(sN)}, {v(vd)}
              s_cbranch_vccnz {name}_SPIN{i}""")
        a.label(f"{name}_END{i}")
        a("s_mov_b64 exec, -1")
        a.label(f"{name}_OK{i}")
        a.restore(keep); a.hist = []

def decode2(a, l16):
    a(f"""v_lshlrev_b32 {v(l16)}, 4, {v(lane)}
          v_lshrrev_b32 {v(t1)}, 4, {v(lane)}
          s_bfe_u32 {s(sQ)}, s2, 0x20001
          s_and_b32 s3, s2, 1
          s_lshl_b32 s3, s3, 3
          s_lshr_b32 {s(sRB)}, s2, 5
          s_add_u32 {s(sRB)}, {s(sRB)}, s3
          s_bfe_u32 {s(sNB)}, s2, 0x20003
          s_lshl_b32 {s(sRT)}, {s(sRB)}, 1
          s_lshr_b32 s3, {s(sQ)}, 1
          s_add_u32 {s(sRT)}, {s(sRT)}, s3
          s_lshl_b32 {s(sCB)}, {s(sNB)}, 1
          s_and_b32 s3, {s(sQ)}, 1
          s_add_u32 {s(sCB)}, {s(sCB)}, s3""")

def loader23(a, st):
    a.label("P2_LOADER")
    V = VAlloc(8); l16 = V.get(); v2 = V.get(4); fa, fd, fa2, fd2 = [V.get() for _ in range(4)]
    a("s_load_dwordx2 s[26:27], s[0:1], 40\ns_load_dwordx2 s[28:29], s[0:1], 0\ns_load_dwordx2 s[30:31], s[0:1], 48")
    decode2(a, l16)
    a(f"""s_lshl_b32 s43, s2, 13
          s_lshl_b32 s44, {s(sV)}, 11
          s_add_u32 s43, s43, s44""")
    a(f"""s_add_u32 s47, s43, {X1_OFF}
          s_add_u32 s48, s43, {WT_OFF}
          s_lshl_b32 {s(sL)}, {s(sV)}, 12
          s_lshl_b32 s3, {s(sRB)}, 2
          s_add_u32 s3, s3, {s(sV)}
          s_mul_i32 s3, s3, 112
          s_mul_i32 s43, {s(sQ)}, 28
          s_add_u32 s3, s3, s43
          s_lshl_b32 {s(sHo)}, s3, 10
          s_mul_i32 s3, {s(sQ)}, 448
          s_lshl_b32 s43, {s(sV)}, 4
          s_add_u32 s3, s3, s43
          s_lshl_b32 s3, s3, 10
          s_lshl_b32 s43, {s(sNB)}, 7
          s_add_u32 {s(s2o)}, s3, s43
          v_and_b32 {v(t0)}, 15, {v(lane)}
          v_lshlrev_b32 {v(t2)}, 2, {v(t1)}
          v_xor_b32 {v(t0)}, {v(t0)}, {v(t2)}
          v_lshrrev_b32 {v(t2)}, 3, {v(t0)}
          v_and_b32 {v(t0)}, 7, {v(t0)}
          v_lshlrev_b32 {v(t0)}, 4, {v(t0)}
          v_lshl_add_u32 {v(t0)}, {v(t2)}, 9, {v(t0)}
          v_lshl_add_u32 {v(v2)}, {v(t1)}, 10, {v(t0)}
          v_add_u32 {v(v2+1)}, 3072, {v(v2)}
          v_add_u32 {v(v2+2)}, 6144, {v(v2)}
          v_add_u32 {v(v2+3)}, 9216, {v(v2)}""")
    a(f"""s_lshr_b32 s3, s2, 4
          s_lshl_b32 s3, s3, 7
          s_add_u32 s3, s3, {FW_OFF}
          v_lshl_add_u32 {v(fa)}, {v(lane)}, 11, s3
          s_add_u32 s3, s2, 1
          s_and_b32 s3, s3, 127
          s_sub_u32 s43, 128, s3
          s_min_u32 s3, s3, s43
          s_bfe_u32 s3, s3, 0x10005
          s_add_u32 s3, s3, 224
          s_lshl_b32 s3, s3, 7
          s_add_u32 s3, s3, {FX_OFF}
          v_and_b32 {v(t0)}, 15, {v(lane)}
          v_lshl_add_u32 {v(fa2)}, {v(t0)}, 8, s3""")
    a.waitlg()
    srd(a, S2, 26, 27, 1792 * 1024)
    st.mark()
    a("s_barrier")
    def dma(slab, q):
        slot = slab % NS2; part, hf = q >> 1, q & 1
        if hf == 0: a(f"s_add_u32 m0, {s(sL)}, {slot*32768 + part*16384}")
        for j in (2*hf, 2*hf + 1):
            if part == 0: a(f"buffer_load_dwordx4 {v(l16)}, {s(SW,4)}, {s(sHo)} offen offset:{1024*j} sc1 lds", tag=f"S{slab}")
            else: a(f"buffer_load_dwordx4 {v(v2+j)}, {s(S2,4)}, {s(s2o)} offen offset:{1024*j} lds", tag=f"S{slab}")
        if hf == 1:
            reg, step = (sHo, 4096) if part == 0 else (s2o, 65536)
            a(f"s_add_u32 {s(reg)}, {s(reg)}, {step}")
    npre = OPT["k2sched"][0] // 4
    if not OPT["w2late"]:
        for sl in range(npre): dma(sl, 2); dma(sl, 3)
    wait_flags(a, "P2_FX", [(fa, fd), (fa2, fd2)], OPT["slX"])
    st.mark()
    for base, so in ((XB, 47), (WB, 48)):
        a(f"s_add_u32 m0, s44, {base}")
        for j in range(2): a(f"buffer_load_dwordx4 {v(l16)}, {s(SW,4)}, s{so} offen offset:{1024*j} sc1 lds", tag="X")
    a(f"""s_and_b32 s3, {s(sRB)}, 3
          s_lshl_b32 s3, s3, 3
          s_lshr_b32 s43, {s(sRB)}, 2
          s_lshl_b32 s43, s43, 1
          s_add_u32 s3, s3, s43
          s_lshr_b32 s43, {s(sQ)}, 1
          s_add_u32 s3, s3, s43
          s_and_b32 s43, {s(sQ)}, 1
          s_mul_i32 s43, s43, 96
          s_add_u32 s3, s3, s43
          s_lshl_b32 s3, s3, 2
          s_and_b32 s43, {s(sV)}, 2
          s_add_u32 s3, s3, s43
          s_lshl_b32 s3, s3, 7
          s_add_u32 s3, s3, {F1_OFF}
          v_and_b32 {v(t0)}, 3, {v(lane)}
          v_lshl_add_u32 {v(fa)}, {v(t0)}, 14, s3
          v_bfe_u32 {v(t0)}, {v(lane)}, 2, 1
          v_lshl_add_u32 {v(fa)}, {v(t0)}, 7, {v(fa)}""")
    a.waitvm("X"); a("s_barrier")
    if OPT["w2late"]:
        for sl in range(npre): dma(sl, 2); dma(sl, 3)
    wait_flags(a, "P2_FH", [(fa, fd)], OPT["slH"])
    st.mark()
    for sl in range(npre): dma(sl, 0); dma(sl, 1)
    a("s_barrier")
    quarters = [(i >> 2, i & 3) for i in range(28)]; pos = 0
    for ph, cnt in enumerate(OPT["k2sched"]):
        if ph == 2:
            a(f"s_cmp_lg_u32 {s(sV)}, 0\ns_cbranch_scc1 P2_NOFLAG")
            keep = a.snapshot(); put_flag(a, F3_OFF, t0, t2); a.label("P2_NOFLAG"); a.restore(keep)
        for (sl, part) in quarters[pos:pos+cnt]:
            assert sl < NS2 or sl - NS2 <= ph - 2, (sl, ph)
            if ph: dma(sl, part)
        pos += cnt
        if ph == 6:
            vy = V.get(4); vxo = V.get(); pt = V.get(24); xv = V.get(8); rr = V.get(2); sYo = 39
            a(f"""v_lshrrev_b32 {v(t3)}, 5, {v(lane)}
                  s_lshl_b32 {s(sL)}, {s(sV)}, 14
                  s_add_u32 {s(sL)}, {s(sL)}, {YB}
                  v_lshrrev_b32 {v(t1)}, 3, {v(lane)}
                  v_bfe_u32 {v(t2)}, {v(lane)}, 4, 1
                  v_lshlrev_b32 {v(t2)}, 2, {v(t2)}
                  v_and_b32 {v(t0)}, 7, {v(lane)}
                  v_xor_b32 {v(t0)}, {v(t0)}, {v(t2)}
                  v_lshlrev_b32 {v(t0)}, 4, {v(t0)}
                  v_lshl_add_u32 {v(vy)}, {v(t1)}, 12, {v(t0)}
                  v_add_u32 {v(vy+1)}, 31744, {v(vy)}
                  v_add_u32 {v(vy+2)}, {2*31744}, {v(vy)}
                  v_add_u32 {v(vy+3)}, {3*31744}, {v(vy)}
                  s_lshl_b32 s3, {s(sV)}, 19
                  s_lshl_b32 s40, {s(sRT)}, 7
                  s_add_u32 s3, s3, s40
                  s_add_u32 {s(sYo)}, s3, {Y1_OFF}
                  s_and_b32 s3, {s(sV)}, 1
                  s_lshl_b32 s3, s3, 7
                  s_lshr_b32 s40, {s(sV)}, 1
                  s_add_u32 s3, s3, s40
                  s_lshl_b32 s3, s3, 7
                  s_add_u32 s3, s3, {F3_OFF}
                  v_lshl_add_u32 {v(fa)}, {v(lane)}, 8, s3""")
        a.waitvm(f"S{ph}")
        a("s_barrier")
        if ph in (0, 6): st.mark()
    assert pos == 28 and len(OPT["k2sched"]) == 7 and OPT["k2sched"][6] == 0
    wait_flags(a, "P3_FY", [(fa, fd)], OPT["slY"])
    a("s_barrier")
    for g in range(4):
        a(f"s_add_u32 m0, {s(sL)}, {g*4096}")
        for j in range(4): a(f"buffer_load_dwordx4 {v(vy+j)}, {s(SW,4)}, {s(sYo)} offen offset:{1024*j} sc1 lds", tag="Y")
        if g < 3: a(f"s_add_u32 {s(sYo)}, {s(sYo)}, 131072")
    srd(a, SX, 28, 29, 0x200000); srd(a, SO, 30, 31, 0x200000)
    a(f"""v_bfe_u32 {v(t0)}, {v(lane)}, 4, 1
          v_bfe_u32 {v(t1)}, {v(lane)}, 2, 2
          v_lshl_add_u32 {v(t0)}, {v(t0)}, 4, {v(t1)}
          v_lshl_add_u32 {v(t0)}, {v(t3)}, 5, {v(t0)}
          v_and_b32 {v(t2)}, 3, {v(lane)}
          v_lshlrev_b32 {v(t2)}, 4, {v(t2)}
          v_lshl_add_u32 {v(vxo)}, {v(t0)}, 10, {v(t2)}
          s_lshr_b32 s3, {s(sRT)}, 3
          s_lshl_b32 s3, s3, 9
          s_and_b32 s40, {s(sRT)}, 1
          s_lshl_b32 s40, s40, 8
          s_add_u32 s3, s3, s40
          s_lshl_b32 s40, {s(sV)}, 6
          s_add_u32 s3, s3, s40
          s_bfe_u32 s40, {s(sRT)}, 0x20001
          s_lshl_b32 s40, s40, 2
          s_add_u32 s3, s3, s40
          s_lshl_b32 s3, s3, 10
          s_lshl_b32 s40, {s(sCB)}, 6
          s_add_u32 s45, s3, s40""")
    for lh in range(2): a(f"buffer_load_dwordx4 {v(xv+4*lh,4)}, {v(vxo)}, {s(SX,4)}, s45 offen offset:{512*lh}", tag="P")
    a(f"""s_lshl_b32 s3, {s(sRT)}, 1
          s_lshr_b32 s40, {s(sV)}, 1
          s_add_u32 s3, s3, s40
          s_lshl_b32 s3, s3, 4
          s_add_u32 s3, s3, {s(sCB)}
          s_lshl_b32 s3, s3, 1
          s_and_b32 s40, {s(sV)}, 1
          s_add_u32 s3, s3, s40
          s_lshl_b32 s3, s3, 10
          s_add_u32 s43, s3, {PART_OFF}
          v_and_b32 {v(t0)}, 3, {v(lane)}
          v_max_u32 {v(t0)}, 1, {v(t0)}
          v_add_u32 {v(t0)}, {s(sQ)}, {v(t0)}
          v_and_b32 {v(t0)}, 3, {v(t0)}
          s_andn2_b32 s3, s2, 6
          s_lshl_b32 s3, s3, 2
          s_and_b32 s40, {s(sQ)}, 2
          s_add_u32 s3, s3, s40
          s_lshl_b32 s3, s3, 7
          s_add_u32 s3, s3, {F2_OFF}
          v_lshl_add_u32 {v(fa)}, {v(t0)}, 10, s3
          v_bfe_u32 {v(t0)}, {v(lane)}, 2, 1
          v_lshl_add_u32 {v(fa)}, {v(t0)}, 7, {v(fa)}
          v_lshrrev_b32 {v(t0)}, 2, {v(lane)}
          s_lshl_b32 s3, {s(sV)}, 11
          v_lshl_add_u32 {v(t2)}, {v(t0)}, 7, s3
          v_and_b32 {v(t0)}, 7, {v(t0)}
          v_and_b32 {v(t4)}, 3, {v(lane)}
          v_lshlrev_b32 {v(t4)}, 1, {v(t4)}
          v_xor_b32 {v(t0)}, {v(t0)}, {v(t4)}
          v_lshl_add_u32 {v(rr)}, {v(t0)}, 4, {v(t2)}
          v_xor_b32 {v(rr+1)}, 16, {v(rr)}
          v_add_u32 {v(fa2)}, {RED}, {v(rr)}
          v_add_u32 {v(fd2)}, {RED}, {v(rr+1)}
          s_mov_b32 s46, 0xffff0000
          s_mov_b32 s48, {fbits(1/256)}
          s_mov_b32 s49, {fbits(1/256)}""")
    a.waitvm("Y"); a("s_barrier")
    st.mark()
    bs = [V.get(8), V.get(8)]; u0 = V.get(8); red = V.get(32); pk = V.get(8)
    for lh in range(2):
        for b in range(2): a(f"ds_read_b128 {v(bs[lh]+4*b,4)}, {v(rr+b)} offset:{OWN + 8192*lh}")
    def add_bf16(src):
        for lh in range(2):
            for i in range(4): a(f"v_lshlrev_b32 {v(u0+2*i)}, 16, {v(src+4*lh+i)}\nv_and_b32 {v(u0+2*i+1)}, s46, {v(src+4*lh+i)}")
            for i in range(8): a(f"v_add_f32 {v(bs[lh]+i)}, {v(bs[lh]+i)}, {v(u0+i)}")
    add_bf16(xv)
    wait_flags(a, "P3_FP", [(fa, fd)], OPT["slP"])
    st.mark()
    for q in range(3):
        a(f"s_add_u32 s3, {s(sQ)}, {q+1}\ns_and_b32 s3, s3, 3\ns_lshl_b32 s3, s3, 21\ns_add_u32 s40, s43, s3\ns_add_u32 s41, s40, 16384")
        for lh in range(2): a(f"buffer_load_dwordx4 {v(pt + 8*q + 4*lh,4)}, {v(l16)}, {s(SW,4)}, s{40+lh} offen sc1", tag="P")
    a("s_barrier")
    for b in range(2):
        for w in range(4): a(f"ds_read_b128 {v(red+8*w+4*b,4)}, {v(fd2 if b else fa2)} offset:{8192*w}")
    for i in range(0, 8, 2):
        a(f"""v_pk_add_f32 {v(red+i,2)}, {v(red+i,2)}, {v(red+8+i,2)}
              v_pk_add_f32 {v(red+16+i,2)}, {v(red+16+i,2)}, {v(red+24+i,2)}
              v_pk_fma_f32 {v(bs[0]+i,2)}, {v(red+16+i,2)}, s[48:49], {v(bs[0]+i,2)}
              v_pk_fma_f32 {v(bs[1]+i,2)}, {v(red+16+i,2)}, s[48:49], {v(bs[1]+i,2)}
              v_pk_fma_f32 {v(bs[0]+i,2)}, {v(red+i,2)}, s[48:49], {v(bs[0]+i,2)}
              v_pk_fma_f32 {v(bs[1]+i,2)}, {v(red+i,2)}, s[48:49], {v(bs[1]+i,2)} neg_lo:[1,0,0] neg_hi:[1,0,0]""")
    st.mark()
    for q in range(3):
        for lh in range(2):
            for i in range(4): a(f"v_lshlrev_b32 {v(u0+2*i)}, 16, {v(pt+8*q+4*lh+i)}\nv_and_b32 {v(u0+2*i+1)}, s46, {v(pt+8*q+4*lh+i)}")
            for i in range(0, 8, 2): a(f"v_pk_add_f32 {v(bs[lh]+i,2)}, {v(bs[lh]+i,2)}, {v(u0+i,2)}")
            if q == 2:
                for i in range(4): a(f"v_cvt_pk_bf16_f32 {v(pk+4*lh+i)}, {v(bs[lh]+2*i)}, {v(bs[lh]+2*i+1)}")
                a(f"buffer_store_dwordx4 {v(pk+4*lh,4)}, {v(vxo)}, {s(SO,4)}, s45 offen offset:{512*lh} {OPT['stO']}")
    st.mark()
    st.flush(SW, red, tid, 256, 1)
    a("s_endpgm")
    return V.hi

def compute23(a, st):
    a.label("P2_COMPUTE")
    a("s_barrier")
    V = VAlloc(8); l16 = V.get()
    decode2(a, l16)
    a(f"""s_lshr_b32 {s(sWR_)}, {s(sV)}, 1
          s_and_b32 {s(sWC)}, {s(sV)}, 1""")
    xrd, exw, exr0, exr1, pad, wrd = [V.get() for _ in range(6)]
    ha = [V.get(), V.get(), V.get()]; wa = [[V.get(), V.get()] for _ in range(3)]
    ow = V.get(4)
    acc = [[V.get(16) for _ in range(2)] for _ in range(2)]
    hf = [[V.get(4) for _ in range(2)] for _ in range(3)]
    wf = [[V.get(4) for _ in range(2)] for _ in range(3)]
    V3 = V.n
    C64 = [V.get(4) for _ in range(2)]; S64 = [V.get(4) for _ in range(2)]; N64 = [V.get(4) for _ in range(2)]
    C32 = [V.get(4) for _ in range(2)]; S32 = [V.get(4) for _ in range(2)]; N32 = [V.get(4) for _ in range(2)]
    c1 = V.get(8); s1 = V.get(8); c2 = V.get(8); s2_ = V.get(8)
    P = [V.get(4), V.get(4)]
    fr = hf[0][0]; assert wf[2][1] + 4 == fr + 48
    fj, fg, fk, ang = fr, fr + 1, fr + 2, fr + 3; cb = fr + 4; sb = fr + 12
    xin = [[[fr + 4*((c*2 + m)*2 + t) for t in range(2)] for m in range(2)] for c in range(2)]
    D = [acc[0][0], acc[0][0] + 8]; E = [acc[0][1], acc[0][1] + 8]; wr = acc[1][0]; wi = acc[1][0] + 8; wd = acc[1][1]
    a(f"""v_and_b32 {v(t0)}, 15, {v(lane)}
          v_cvt_f32_u32 {v(fj)}, {v(t0)}
          v_cvt_f32_u32 {v(fg)}, {v(t1)}
          s_lshl_b32 s3, {s(sV)}, 4
          v_add_u32 {v(t0)}, s3, {v(t0)}
          v_cvt_f32_u32 {v(fk)}, {v(t0)}
          s_mov_b32 s47, 0x80008000""")
    def frag(step, base, offs, Cd, Sd, Nd):
        for e in range(8):
            a(f"v_mov_b32 {v(t4)}, {fbits(float(offs[e]))}\nv_fma_f32 {v(ang)}, {v(t4)}, {v(step)}, {v(base)}" if offs[e] not in (0, 1, 2, 4) else
              (f"v_mov_b32 {v(ang)}, {v(base)}" if offs[e] == 0 else f"v_fma_f32 {v(ang)}, {float(offs[e])}, {v(step)}, {v(base)}"))
            a(f"v_cos_f32 {v(cb+e)}, {v(ang)}\nv_sin_f32 {v(sb+e)}, {v(ang)}")
        for i in range(4):
            a(f"v_cvt_pk_bf16_f32 {v(Cd+i)}, {v(cb+2*i)}, {v(cb+2*i+1)}\nv_cvt_pk_bf16_f32 {v(Sd+i)}, {v(sb+2*i)}, {v(sb+2*i+1)}\nv_xor_b32 {v(Nd+i)}, s47, {v(Sd+i)}")
    a(f"v_mul_f32 {v(t2)}, {fbits(1/64)}, {v(fk)}\nv_mul_f32 {v(t3)}, {fbits(8.0)}, {v(fg)}\nv_mul_f32 {v(t5)}, {v(t3)}, {v(t2)}")
    frag(t2, t5, list(range(8)), C64[0], S64[0], N64[0])
    a(f"v_add_f32 {v(t3)}, {fbits(32.0)}, {v(t3)}\nv_mul_f32 {v(t5)}, {v(t3)}, {v(t2)}")
    frag(t2, t5, list(range(8)), C64[1], S64[1], N64[1])
    o32 = [0, 1, 2, 3, 16, 17, 18, 19]
    a(f"v_mul_f32 {v(t3)}, 4.0, {v(fg)}")
    for m in range(2):
        a(f"v_mul_f32 {v(t2)}, {fbits(1/32)}, {v(fj)}")
        if m: a(f"v_add_f32 {v(t2)}, 0.5, {v(t2)}")
        a(f"v_mul_f32 {v(t5)}, {v(t3)}, {v(t2)}")
        frag(t2, t5, o32, C32[m], S32[m], N32[m])
    a(f"v_mul_f32 {v(t2)}, {fbits(1/2048)}, {v(fk)}\nv_mul_f32 {v(t5)}, {v(t3)}, {v(t2)}")
    for e in range(8):
        a(f"v_mov_b32 {v(t4)}, {fbits(float(o32[e]))}\nv_fma_f32 {v(ang)}, {v(t4)}, {v(t2)}, {v(t5)}\nv_cos_f32 {v(c1+e)}, {v(ang)}\nv_sin_f32 {v(s1+e)}, {v(ang)}")
    a(f"v_cvt_f32_u32 {v(t4)}, s3\nv_add_f32 {v(t3)}, {v(t3)}, {v(t4)}")
    for m in range(2):
        a(f"v_mul_f32 {v(t2)}, {fbits(1/2048)}, {v(fj)}")
        if m: a(f"v_add_f32 {v(t2)}, {fbits(16/2048)}, {v(t2)}")
        a(f"v_mul_f32 {v(ang)}, {v(t3)}, {v(t2)}")
        for r in range(4):
            if r: a(f"v_add_f32 {v(ang)}, {v(ang)}, {v(t2)}")
            a(f"v_cos_f32 {v(c2+4*m+r)}, {v(ang)}\nv_sin_f32 {v(s2_+4*m+r)}, {v(ang)}")
    a(f"s_mov_b32 s48, {fbits(1/2048)}\ns_mov_b32 s49, {fbits(1/2048)}")
    for i in range(0, 8, 2): a(f"v_pk_mul_f32 {v(c2+i,2)}, {v(c2+i,2)}, s[48:49]\nv_pk_mul_f32 {v(s2_+i,2)}, {v(s2_+i,2)}, s[48:49]")
    a(f"""v_and_b32 {v(t0)}, 15, {v(lane)}
          v_lshrrev_b32 {v(t2)}, 1, {v(t1)}
          v_and_b32 {v(t3)}, 1, {v(t1)}
          v_lshlrev_b32 {v(t4)}, 5, {v(t0)}
          v_lshl_add_u32 {v(t4)}, {v(t2)}, 9, {v(t4)}
          v_lshl_add_u32 {v(t4)}, {v(t3)}, 4, {v(t4)}
          v_add_u32 {v(xrd)}, {XB}, {v(t4)}
          v_lshrrev_b32 {v(t4)}, 1, {v(t0)}
          v_lshlrev_b32 {v(t0)}, 7, {v(t0)}
          v_add_u32 {v(t0)}, {EX}, {v(t0)}
          v_xor_b32 {v(t5)}, {v(t4)}, {v(t1)}
          v_lshl_add_u32 {v(exr0)}, {v(t5)}, 4, {v(t0)}
          v_xor_b32 {v(exr1)}, 64, {v(exr0)}
          s_lshl_b32 s3, {s(sV)}, 1
          v_add_u32 {v(t2)}, s3, {v(t2)}
          v_xor_b32 {v(t2)}, {v(t2)}, {v(t4)}
          v_lshl_add_u32 {v(t2)}, {v(t2)}, 4, {v(t0)}
          v_lshl_add_u32 {v(exw)}, {v(t3)}, 3, {v(t2)}""")
    a(f"s_lshl_b32 s3, {s(sV)}, 11\ns_add_u32 s3, s3, {WB}\nv_add_u32 {v(wrd)}, s3, {v(l16)}")
    a(f"""s_lshl_b32 s3, {s(sWR_)}, 13
          v_add_u32 {v(ha[0])}, s3, {v(l16)}
          v_add_u32 {v(ha[1])}, 65536, {v(ha[0])}
          v_lshrrev_b32 {v(t3)}, 5, {v(lane)}
          v_bfe_u32 {v(t0)}, {v(lane)}, 2, 2
          v_lshl_add_u32 {v(t1)}, {v(t3)}, 3, {v(t0)}
          v_lshlrev_b32 {v(t1)}, 8, {v(t1)}
          s_lshl_b32 s3, {s(sWC)}, 1
          s_and_b32 s43, {s(sQ)}, 1
          s_add_u32 s3, s3, s43
          v_xor_b32 {v(t0)}, s3, {v(t0)}
          v_lshl_add_u32 {v(t1)}, {v(t0)}, 6, {v(t1)}
          v_bfe_u32 {v(t0)}, {v(lane)}, 4, 1
          v_lshl_add_u32 {v(t1)}, {v(t0)}, 5, {v(t1)}
          v_and_b32 {v(t0)}, 1, {v(lane)}
          v_lshl_add_u32 {v(t1)}, {v(t0)}, 4, {v(t1)}
          v_bfe_u32 {v(t0)}, {v(lane)}, 1, 1
          v_lshl_add_u32 {v(t1)}, {v(t0)}, 3, {v(t1)}
          v_add_u32 {v(wa[0][0])}, 16384, {v(t1)}
          v_xor_b32 {v(wa[0][1])}, 64, {v(wa[0][0])}
          v_add_u32 {v(wa[1][0])}, 65536, {v(wa[0][0])}
          v_add_u32 {v(wa[1][1])}, 65536, {v(wa[0][1])}
          v_add_u32 {v(ha[2])}, 131072, {v(ha[0])}
          v_add_u32 {v(wa[2][0])}, 131072, {v(wa[0][0])}
          v_add_u32 {v(wa[2][1])}, 131072, {v(wa[0][1])}""")
    a(f"""v_and_b32 {v(t0)}, 15, {v(lane)}
          v_lshlrev_b32 {v(t0)}, 6, {v(t0)}
          v_lshl_add_u32 {v(t0)}, {v(t3)}, 4, {v(t0)}
          v_bfe_u32 {v(t1)}, {v(lane)}, 4, 1
          v_lshl_add_u32 {v(pad)}, {v(t1)}, 5, {v(t0)}
          s_lshl_b32 s3, {s(sRB)}, 2
          s_lshl_b32 s43, {s(sWR_)}, 1
          s_add_u32 s3, s3, s43
          s_lshl_b32 s3, s3, 4
          s_lshl_b32 s43, {s(sWC)}, 3
          s_add_u32 s3, s3, s43
          s_add_u32 s3, s3, {s(sCB)}
          s_lshl_b32 s3, s3, 11
          s_lshl_b32 s43, {s(sQ)}, 21
          s_add_u32 s3, s3, s43
          s_add_u32 s54, s3, {PART_OFF}
          s_add_u32 s55, s54, 32768
          s_xor_b32 s56, s54, 2048
          s_xor_b32 s57, s55, 2048
          v_and_b32 {v(t0)}, 31, {v(lane)}
          s_lshl_b32 s3, {s(sWC)}, 13
          v_lshl_add_u32 {v(t0)}, {v(t0)}, 7, s3
          v_and_b32 {v(t2)}, 7, {v(lane)}
          v_lshlrev_b32 {v(t4)}, 1, {v(t3)}
          v_xor_b32 {v(t2)}, {v(t2)}, {v(t4)}""")
    for k in range(4): a(f"v_xor_b32 {v(t4)}, {(k >> 1)*4 + (k & 1)}, {v(t2)}\nv_lshl_add_u32 {v(ow+k)}, {v(t4)}, 4, {v(t0)}")
    a(f"""s_and_b32 s3, s2, 1
          s_lshl_b32 s3, s3, 7
          s_lshr_b32 s43, s2, 1
          s_add_u32 s3, s3, s43
          s_lshl_b32 s3, s3, 13
          s_lshl_b32 s43, {s(sV)}, 10
          s_add_u32 s3, s3, s43
          s_add_u32 s44, s3, {Y1_OFF}
          s_add_u32 s45, s44, 4096""")
    a("s_waitcnt vmcnt(0)")
    put_flag(a, F1_OFF, t0, t2, True)
    st.mark()
    a("s_barrier")
    st.mark()
    for m in range(2):
        for t in range(2):
            for c in range(2): a(f"ds_read_b128 {v(xin[c][m][t],4)}, {v(xrd)} offset:{c*4096 + m*2048 + t*1024}")
    for j in range(2): a(f"ds_read_b128 {v(wd+4*j,4)}, {v(wrd)} offset:{1024*j}")
    def big(src, Cc, Sre, Sim, fill=()):
        mfs = []
        for m in range(2):
            for t in range(2):
                z = "0" if t == 0 else None
                mfs += [lambda m=m, t=t, z=z: mf16(a, D[0]+4*m, src[0][m][t], Cc[t], z), lambda m=m, t=t, z=z: mf16(a, D[1]+4*m, src[0][m][t], Sim[t], z),
                        lambda m=m, t=t: mf16(a, D[0]+4*m, src[1][m][t], Sre[t]), lambda m=m, t=t: mf16(a, D[1]+4*m, src[1][m][t], Cc[t])]
        G.interleave(a, mfs, fill, [0] * 8 + [2] * 8)
    def cmul(cc, ss, nre, nim):
        ng = lambda n: " neg_lo:[0,1,0] neg_hi:[0,1,0]" if n < 0 else ""
        for i in range(0, 8, 2):
            a(f"""v_pk_mul_f32 {v(E[0]+i,2)}, {v(D[0]+i,2)}, {v(cc+i,2)}
                  v_pk_mul_f32 {v(E[1]+i,2)}, {v(D[1]+i,2)}, {v(cc+i,2)}
                  v_pk_fma_f32 {v(E[0]+i,2)}, {v(D[1]+i,2)}, {v(ss+i,2)}, {v(E[0]+i,2)}{ng(nre)}
                  v_pk_fma_f32 {v(E[1]+i,2)}, {v(D[0]+i,2)}, {v(ss+i,2)}, {v(E[1]+i,2)}{ng(nim)}""")
        for c in range(2):
            for i in range(4): a(f"v_cvt_pk_bf16_f32 {v(P[c]+i)}, {v(E[c]+2*i)}, {v(E[c]+2*i+1)}")
    a("s_mov_b32 s46, 0xffff0000")
    big(xin, C64, S64, N64, sum(([f"v_lshlrev_b32 {v(wr+i)}, 16, {v(wd+i)}", f"v_and_b32 {v(wi+i)}, s46, {v(wd+i)}"] for i in range(8)), []))
    cmul(c1, s1, +1, -1)
    for m in range(2):
        mf16(a, D[0]+4*m, C32[m], P[0], "0"); mf16(a, D[1]+4*m, N32[m], P[0], "0")
        mf16(a, D[0]+4*m, S32[m], P[1]); mf16(a, D[1]+4*m, C32[m], P[1])
    cmul(wr, wi, -1, +1)
    for m in range(2):
        mf16(a, D[0]+4*m, P[0], C32[m], "0"); mf16(a, D[1]+4*m, P[0], S32[m], "0")
        mf16(a, D[0]+4*m, P[1], N32[m]); mf16(a, D[1]+4*m, P[1], C32[m])
    cmul(c2, s2_, -1, +1)
    for c in range(2):
        for m in range(2): a(f"ds_write_b64 {v(exw)}, {v(P[c]+2*m,2)} offset:{c*4096 + m*2048}")
    a.waitlg(); a("s_barrier")
    for m in range(2):
        for t in range(2):
            for c in range(2): a(f"ds_read_b128 {v(xin[c][m][t],4)}, {v(exr1 if t else exr0)} offset:{c*4096 + m*2048}")
    big(xin, C64, N64, S64)
    for c in range(2):
        for i in range(4): a(f"v_cvt_pk_bf16_f32 {v(P[c]+i)}, {v(D[c]+2*i)}, {v(D[c]+2*i+1)}")
        a(f"buffer_store_dwordx4 {v(P[c],4)}, {v(l16)}, {s(SW,4)}, s{44+c} offen {OPT['stY']}", tag="st")
    st.mark()
    def reads(n):
        if n >= 28: return []
        slab, t = divmod(n, 4); slot = slab % NS2; se, off = slot >> 1, (slot & 1) * 32768; b = n % 3
        r = []
        for T in range(2):
            r.append(f"ds_read_b128 {v(hf[b][T],4)}, {v(ha[se])} offset:{off + T*4096 + t*1024}")
            r.append(f"ds_read_b64_tr_b16 {v(wf[b][T],2)}, {v(wa[se][T])} offset:{off + t*4096}")
            r.append(f"ds_read_b64_tr_b16 {v(wf[b][T]+2,2)}, {v(wa[se][T])} offset:{off + t*4096 + 1024}")
        return r
    def bar():
        a.waitvm(None, lg0=True); a("s_barrier")
    a("s_barrier")
    st.mark()
    for r in reads(0) + reads(1): a(r)
    for n in range(28):
        b = n % 3; z = "0" if n == 0 else None
        mfs = [(lambda F=F, S=S: mf32(a, acc[F][S], wf[b][F], hf[b][S], z)) for (F, S) in ((1, 0), (1, 1), (0, 0), (0, 1))]
        fill = reads(n + 2); per = [3, 3, 0, 0]
        if n % 4 == 2 and n < 24: fill = [bar] + fill; per = [3, 2, 2, 0]
        G.interleave(a, mfs, fill, per)
    st.mark()
    def part(F, S, pp):
        for i in range(8): a(f"v_cvt_pk_bf16_f32 {v(pp+i)}, {v(acc[F][S]+2*i)}, {v(acc[F][S]+2*i+1)}")
        for i in range(4): a(f"v_permlane16_swap_b32 {v(pp+i)}, {v(pp+4+i)}")
        for u in range(2): a(f"buffer_store_dwordx4 {v(pp+4*u,4)}, {v(pad)}, {s(SW,4)}, s{54+2*F+S} offen offset:{1024*u} {OPT['stP']}")
    for S in range(2): part(1, S, fr + 8 + 8*S)
    a(f"s_lshr_b32 s3, {s(sQ)}, 1\ns_cmp_eq_u32 s3, {s(sWR_)}\ns_cbranch_scc1 P3_OWN")
    keep = a.snapshot()
    for S in range(2): part(0, S, fr + 32 + 8*S)
    a("s_branch P3_JOIN")
    a.restore(keep)
    a.label("P3_OWN")
    for S in range(2):
        for k in range(4): a(f"ds_write_b128 {v(ow+k)}, {v(acc[0][S]+4*k,4)} offset:{OWN + 4096*S}")
    a.label("P3_JOIN")
    a("s_barrier")
    vmax = V.hi; V = VAlloc(V3); fa, fd = V.get(), V.get()
    df = V.get(32); cs_ = V.get(4); ang, dd, hf_ = V.get(), V.get(), V.get()
    gen = [f"v_and_b32 {v(t0)}, 31, {v(lane)}", f"s_lshl_b32 s3, {s(sCB)}, 5", f"v_add_u32 {v(t0)}, s3, {v(t0)}", f"v_cvt_f32_u32 {v(dd)}, {v(t0)}",
           f"s_and_b32 s3, {s(sV)}, 1", f"s_lshl_b32 s3, s3, 7", f"s_lshr_b32 s40, {s(sV)}, 1", f"s_add_u32 s3, s3, s40", f"s_add_u32 s3, s3, 1",
           f"v_lshl_add_u32 {v(t0)}, {v(t3)}, 3, s3", f"v_cvt_f32_u32 {v(ang)}, {v(t0)}", f"v_mul_f32 {v(dd)}, {fbits(1/256)}, {v(dd)}",
           f"v_mul_f32 {v(ang)}, {v(ang)}, {v(dd)}", f"v_mul_f32 {v(ang)}, 0.5, {v(ang)}",
           f"v_cmp_eq_u32 vcc, {256 - 118}, {v(t0)}", f"v_mov_b32 {v(hf_)}, 1.0", f"v_mul_f32 {v(t1)}, {fbits(5.0)}, {v(dd)}", f"v_cndmask_b32 {v(hf_)}, {v(hf_)}, 0.5, vcc"]
    for t in range(8):
        for e in range(4):
            c, s_ = cs_ + 2 * (e & 1), cs_ + 2 * (e & 1) + 1
            gen += [f"v_cos_f32 {v(c)}, {v(ang)}", f"v_sin_f32 {v(s_)}, {v(ang)}"]
            if (t, e) == (7, 3): gen += [f"v_mul_f32 {v(c)}, {v(c)}, {v(hf_)}"]
            else: gen += [f"v_add_f32 {v(ang)}, {v(ang)}, {v(dd if e < 3 else t1)}"]
            gen += [f"v_cvt_pk_bf16_f32 {v(df+4*t+e)}, {v(c)}, -{v(s_)}"]
    half = OPT["ghalf"]
    for r in gen[:half]: a(r)
    a("s_waitcnt vmcnt(0)")
    put_flag(a, F2_OFF, fa, fd, True)
    st.mark()
    for r in gen[half:]: a(r)
    ya = [V.get(), V.get()]; yf = [[V.get(4) for _ in range(2)] for _ in range(3)]; acc = [acc[1][0], acc[1][1]]
    rw = V.get(4)
    a(f"""v_bfe_u32 {v(t1)}, {v(lane)}, 2, 2
          v_lshl_add_u32 {v(t0)}, {v(t3)}, 3, {v(t1)}
          v_lshlrev_b32 {v(t0)}, 7, {v(t0)}
          v_lshrrev_b32 {v(t2)}, 1, {v(t1)}
          v_lshl_add_u32 {v(t0)}, {v(t2)}, 6, {v(t0)}
          v_bfe_u32 {v(t2)}, {v(lane)}, 4, 1
          v_lshl_add_u32 {v(t0)}, {v(t2)}, 5, {v(t0)}
          v_and_b32 {v(t2)}, 3, {v(lane)}
          v_lshl_add_u32 {v(t0)}, {v(t2)}, 3, {v(t0)}
          s_lshl_b32 s3, {s(sV)}, 14
          s_add_u32 s3, s3, {YB}
          v_add_u32 {v(ya[0])}, s3, {v(t0)}
          v_xor_b32 {v(ya[1])}, 64, {v(ya[0])}
          v_and_b32 {v(t0)}, 31, {v(lane)}
          s_lshl_b32 s3, {s(sV)}, 13
          s_add_u32 s3, s3, {RED}
          v_lshl_add_u32 {v(t0)}, {v(t0)}, 7, s3
          v_and_b32 {v(t2)}, 7, {v(lane)}
          v_xor_b32 {v(t2)}, {v(t2)}, {v(t3)}""")
    for jj in range(4): a(f"v_xor_b32 {v(t4)}, {2*jj}, {v(t2)}\nv_lshl_add_u32 {v(rw+jj)}, {v(t4)}, 4, {v(t0)}")
    def yreads(t):
        return [f"ds_read_b64_tr_b16 {v(yf[t%3][T]+2*aa,2)}, {v(ya[T])} offset:{t*2048 + aa*512}" for T in range(2) for aa in range(2)]
    a("s_waitcnt lgkmcnt(0)\ns_barrier")
    st.mark()
    for r in yreads(0) + yreads(1): a(r)
    for t in range(8):
        if t < 6:
            for r in yreads(t + 2): a(r)
        for T in range(2): mf32(a, acc[T], df + 4*t, yf[t % 3][T], "0" if t == 0 else None)
    for T in range(2):
        for jj in range(4): a(f"ds_write_b128 {v(rw+jj)}, {v(acc[T]+4*jj,4)} offset:{4096*T}")
    a.waitlg(); a("s_barrier")
    st.mark()
    st.flush(SW, df, tid)
    a("s_endpgm")
    return max(vmax, V.hi)
```

```python
import sys, os, math, struct
sys.path.insert(0, os.path.dirname(os.path.abspath(__file__)))
from asmfw import Asm, VAlloc, v, s, align64
import numpy as np

H_OFF, X1_OFF, WT_OFF, Y1_OFF, PART_OFF, CS_OFF, STATS_OFF, EPOCH_OFF, WS_END = 0, 0x700000, 0x900000, 0xB00000, 0xD00000, 0x1500000, 0x1540000, 0x1548000, 0x1548080
F1_OFF, F2_OFF, FW_OFF, F3_OFF, FX_OFF = 0x1550000, 0x1570000, 0x1590000, 0x15b0000, 0x15b8000
WS_END = 0x15c0000
STAMP_OFF = 0x1600000
NAME = "parallel_sum__spectral_gfnet__dense_activation_silu__prompt_kernel"
OPT = dict(stamp=False, wsb=0, merge=1, spinf=20000, ghalf=60, pfs=[], e1first=0, warm=1, w2late=0, rmask=7, norow=0, pfx=-1, pfl=6, pfd=0, pfm=0, rotc=0, est=0, fline=1, touch=0, slP=0, slS=4, slY=0, slH=0, slX=0, nsc1=8, stX="sc1", stW="sc1", stY="sc1", stP="sc1", stO="sc1", pf=1, pft=0, pfw2=0, pf3=8, prio=0, nodma=0, cyc=0, align=2,
           k1sched=[12,4,4,4,4,4,0,0], phN=1, phG=6, phGD=8, phW=[5,5], phWD=[8,8], e1step=31, noX=0, noW=0, noH=0, phS=7, early=0, spin=4000, forcefb=0,
           k2sched=[12,4,4,4,4,0,0], phX=4, plead=14, pper=2, rot2=0, k3mix=0, k3prio=0, rot3=0)
LOG2E = 1.4426950408889634
def fbits(x): return "0x%08x" % struct.unpack("<I", struct.pack("<f", x))[0]

def ws_base(a, r, lo):
    if OPT["wsb"]: a(f"s_add_u32 {s(r)}, {s(lo)}, {OPT['wsb'] << 20}\ns_addc_u32 {s(r+1)}, {s(lo+1)}, 0")
    else: a(f"s_mov_b64 {s(r,2)}, {s(lo,2)}")
def srd(a, r, lo, hi, nbytes, bias=0):
    if nbytes == WS_END:
        ws_base(a, r, lo); a(f"s_mov_b32 {s(r+2)}, {nbytes}\ns_mov_b32 {s(r+3)}, 0x20000"); return
    if bias: a(f"s_sub_u32 {s(r)}, {s(lo)}, {bias}\ns_subb_u32 {s(r+1)}, {s(hi)}, 0")
    else: a(f"s_mov_b64 {s(r,2)}, {s(lo,2)}")
    a(f"s_mov_b32 {s(r+2)}, {nbytes + bias}\ns_mov_b32 {s(r+3)}, 0x20000")

class Stamps:
    REG = list(range(70, 88, 2)) + [96, 98, 100]
    def __init__(self, a, kidx): self.a, self.k, self.n = a, kidx, 0
    def mark(self):
        if not OPT["stamp"]: return
        if self.n >= 12: return
        r = self.REG[self.n]
        self.a.raw(f"    {'s_memtime' if OPT['cyc'] else 's_memrealtime'} s[{r}:{r+1}]"); self.n += 1
    def flush(self, ws_srd, vtmp, tid0, who=0, rec=0):
        if not OPT["stamp"]: return
        a = self.a
        a("s_waitcnt lgkmcnt(0)")
        a(f"s_lshl_b32 s3, s2, 7\ns_add_u32 s3, s3, {STAMP_OFF + (self.k * 2 + rec) * 32768}")
        a(f"s_mov_b32 {s(ws_srd+2)}, {STAMP_OFF + 0x100000}")
        a(f"v_cmp_eq_u32 vcc, {who}, {v(tid0)}\ns_and_saveexec_b64 s[68:69], vcc")
        a(f"v_mov_b32 {v(vtmp+4)}, s3")
        for q in range(self.n, 12): a(f"s_mov_b64 s[{self.REG[q]}:{self.REG[q]+1}], 0")
        for q in range(6):
            for j in range(4): a(f"v_mov_b32 {v(vtmp+j)}, s{self.REG[2*q + (j >> 1)] + (j & 1)}")
            a(f"buffer_store_dwordx4 {v(vtmp,4)}, {v(vtmp+4)}, {s(ws_srd,4)}, 0 offen offset:{16*q}")
        a("s_mov_b64 exec, s[68:69]")

def header(a, name): a.raw(f".globl {name}\n.p2align 8\n.type {name},@function\n{name}:")
def mf32(a, d, x, y, c=None): a(f"v_mfma_f32_32x32x16_bf16 {v(d,16)}, {v(x,4)}, {v(y,4)}, {v(d,16) if c is None else c}")
def mf16(a, d, x, y, c=None): a(f"v_mfma_f32_16x16x32_bf16 {v(d,4)}, {v(x,4)}, {v(y,4)}, {v(d,4) if c is None else c}")
def mf4(a, d, x, y, c=None): a(f"v_mfma_f32_4x4x4_16b_bf16 {v(d,4)}, {v(x,2)}, {v(y,2)}, {v(d,4) if c is None else c}")
def untracked(a):
    a.vm[-1] = ("pf", set())

def code_prefetch(a, srdr, vtmp, first, last):
    a.raw(f"    s_getpc_b64 {s(srdr,2)}\n    s_add_u32 {s(srdr)}, {s(srdr)}, {first}@rel32@lo+4\n    s_addc_u32 {s(srdr+1)}, {s(srdr+1)}, {first}@rel32@hi+12")
    a.raw(f"    s_mov_b32 {s(srdr+2)}, {last}-{first}")
    a(f"""s_mov_b32 {s(srdr+3)}, 0x20000
          s_and_b32 s3, s2, 0xf8
          s_lshl_b32 s3, s3, 7
          v_lshlrev_b32 {v(vtmp)}, 1, v0
          v_and_b32 {v(vtmp)}, 0x3fc, {v(vtmp)}
          buffer_load_dword {v(vtmp)}, {v(vtmp)}, {s(srdr,4)}, s3 offen""")
    untracked(a)

def interleave(a, mfs, fill, per=None, lead=0):
    n = len(mfs); fill = list(fill)
    for f in fill[:lead]: a(f)
    fill = fill[lead:]
    per = per or [-(-len(fill) // n)] * n
    k = 0
    for i, m in enumerate(mfs):
        m()
        for f in fill[k:k+per[i]]:
            f() if callable(f) else a(f)
        k += per[i]
    for f in fill[k:]:
        f() if callable(f) else a(f)

def finish_stats(q, m, ta, tb):
    return [f"v_mov_b32 {v(tb)}, {fbits(1/512)}", f"v_mul_f32 {v(m)}, {v(tb)}, {v(m)}", f"v_mul_f32 {v(ta)}, {v(m)}, {v(m)}",
            f"v_fma_f32 {v(q)}, {v(q)}, {v(tb)}, -{v(ta)}", f"v_max_f32 {v(q)}, 0, {v(q)}", f"v_add_f32 {v(q)}, {fbits(1e-5)}, {v(q)}", f"v_rsq_f32 {v(q)}, {v(q)}"]

def dft_table():
    cosb = []
    for i in range(512):
        f = np.float32(math.cos(2 * math.pi * i / 512)) if i % 128 else np.float32([1, 0, -1, 0][i // 128])
        u = int(np.array([f]).view(np.uint32)[0]); cosb.append(((u + 0x7FFF + ((u >> 16) & 1)) >> 16) & 0xFFFF)
    t = [".p2align 8", ".type dft_table,@object", "dft_table:", ".altmacro",
         ".macro E8 a,b,c,d,e,f,g,h", ".short C\\a,C\\b,C\\c,C\\d,C\\e,C\\f,C\\g,C\\h", ".endm"]
    cosb += [0x3e80, 0xbe80, 0x3eb5, 0xbeb5]
    t += [f".set C{i},{cosb[i]:#x}" for i in range(516)]
    t.append(""".set blk,0
.rept 128
.set ln,0
.rept 64
.set cl,(blk>>1)&3
.set kap,32*(blk>>6)+(ln&31)
.set ph,128*(blk&1)+(64*((blk>>3)&7)+32*(ln>>5)+cl)*kap
.if (kap==0)&&(blk&1)
E8 %(512+2*(cl&1)),%(513+2*(cl&1)),%(512+2*(cl&1)),%(513+2*(cl&1)),%(512+2*(cl&1)),%(513+2*(cl&1)),%(512+2*(cl&1)),%(513+2*(cl&1))
.else
E8 %(ph&511),%((ph+4*kap)&511),%((ph+8*kap)&511),%((ph+12*kap)&511),%((ph+16*kap)&511),%((ph+20*kap)&511),%((ph+24*kap)&511),%((ph+28*kap)&511)
.endif
.set ln,ln+1
.endr
.set blk,blk+1
.endr
.noaltmacro
.size dft_table,131072""")
    return "\n".join(t)

def descriptor(name, nv):
    nv = (nv + 7) // 8 * 8
    return f""".p2align 6
.amdhsa_kernel {name}
  .amdhsa_next_free_vgpr {nv}
  .amdhsa_next_free_sgpr 102
  .amdhsa_accum_offset {nv}
  .amdhsa_group_segment_fixed_size 0
  .amdhsa_kernarg_size 72
  .amdhsa_user_sgpr_count 2
  .amdhsa_user_sgpr_kernarg_segment_ptr 1
  .amdhsa_system_sgpr_workgroup_id_x 1
  .amdhsa_float_denorm_mode_32 3
.end_amdhsa_kernel"""

def build(kernels, extra_empty=0):
    out = ["; x + irfft2(rfft2(LN x) * W) + silu(LN x @ w1) @ w2 in three launches (k1map2; written with my own generator script)"]
    for name, _, _, (lds, blk) in kernels: out.append(f"; @launch {'' if len(kernels) == 1 else 'kernel=' + name + ' '}grid=(256,1,1) block=({blk},1,1) lds={lds}")
    for i in range(extra_empty): out.append("; @launch kernel=kz_kernel grid=(256,1,1) block=(256,1,1) lds=0")
    out.append('.amdgcn_target "amdgcn-amd-amdhsa--gfx950"\n.text')
    info = []
    for name, a, nv, _ in kernels:
        txt = a.text()
        if OPT["align"]:
            ext = "\n".join(f"{l}:" for l in ("k1_kernel", "k2_kernel", "k3_kernel", "code_end", "dft_table") if l != name)
            txt, fx, nn, size = align64(txt, ext + "\n", OPT["align"] == 1); info.append((fx, nn, size))
        out.append(txt)
    out.append("code_end:")
    if extra_empty: out.append(".globl kz_kernel\n.p2align 8\n.type kz_kernel,@function\nkz_kernel:\n    s_endpgm")
    out.append('.section .rodata,"a"')
    for name, a, nv, _ in kernels: out.append(descriptor(name, nv))
    if extra_empty: out.append(descriptor("kz_kernel", 8))
    out.append(dft_table())
    return "\n".join(out) + "\n", info

if __name__ == "__main__":
    import argparse, json
    ap = argparse.ArgumentParser(); ap.add_argument("out"); ap.add_argument("--stamp", action="store_true")
    ap.add_argument("--empty", type=int, default=0); ap.add_argument("-o", action="append", default=[])
    args = ap.parse_args(); OPT["stamp"] = args.stamp
    for kv in args.o:
        k, val = kv.split("=", 1); assert k in OPT, k
        OPT[k] = val if isinstance(OPT[k], str) else json.loads(val)
    from gen1 import gen_k1
    from gen23 import gen_k2, gen_k3
    if OPT["merge"]: ks = [(NAME, *gen_k1(NAME))]
    else: ks = [(n, *g()) for n, g in (("k1_kernel", gen_k1), ("k2_kernel", gen_k2), ("k3_kernel", gen_k3))]
    txt, info = build(ks, args.empty)
    open(args.out, "w").write(txt)
    print("vgprs", [k[2] for k in ks], "nops", [k[1].nops for k in ks], "align(fixed,nop,size)", info)
```

```python
from asmfw import Asm, VAlloc, v, s
import __main__ as M
G = M if hasattr(M, "dft_table") else __import__("gen")
OPT = G.OPT; fbits = G.fbits; srd = G.srd; mf32 = G.mf32; mf4 = G.mf4; Stamps = G.Stamps; header = G.header
untracked = G.untracked; interleave = G.interleave; finish_stats = G.finish_stats; LOG2E = G.LOG2E
X1_OFF, WT_OFF, STATS_OFF, CS_OFF, EPOCH_OFF, WS_END = G.X1_OFF, G.WT_OFF, G.STATS_OFF, G.CS_OFF, G.EPOCH_OFF, G.WS_END

def table_srd(a, r):
    a.raw(f"    s_getpc_b64 {s(r,2)}\n    s_add_u32 {s(r)}, {s(r)}, dft_table@rel32@lo+4\n    s_addc_u32 {s(r+1)}, {s(r+1)}, dft_table@rel32@hi+12")
    a(f"s_mov_b32 {s(r+2)}, 0x20000\ns_mov_b32 {s(r+3)}, 0x20000")

def gen_k1(name="k1_kernel"):
    import genp
    a = Asm(); st = Stamps(a, 0)
    few = st.mark if OPT["est"] else (lambda: None)
    header(a, name)
    st.mark()
    SX, SB, SW, SWR, SWI, SPF, sN = 4, 8, 12, 16, 20, 92, 66
    NS = 4
    SCR = 131072; CSF = SCR + 1024; PRS = SCR + 2048; PCS = SCR + 2304
    a("s_cmp_ge_u32 s2, 256\ns_cbranch_scc1 K1_END")
    a("s_load_dwordx4 s[24:27], s[0:1], 0\ns_load_dwordx4 s[28:31], s[0:1], 32\ns_load_dwordx2 s[22:23], s[0:1], 16\ns_load_dwordx2 s[90:91], s[0:1], 64")
    V = VAlloc(0); tid = V.get(); lane = V.get()
    t0, t1, t2, t3, t4, t5 = [V.get() for _ in range(6)]
    pf = V.get()
    if OPT["pf"]: G.code_prefetch(a, SPF, pf, name, "code_end")
    sW, sLO, sCJ, sV, sWR_, sWC, sL, sHF = 34, 35, 36, 37, 38, 39, 51, 55
    a(f"""v_lshrrev_b32 {v(t0)}, 6, v0
          v_and_b32 {v(lane)}, 63, v0
          v_readfirstlane_b32 s56, {v(t0)}
          s_bfe_u32 {s(sW)}, s2, 0x20001
          s_and_b32 {s(sHF)}, s2, 1
          s_lshr_b32 {s(sCJ)}, s2, 5
          s_bfe_u32 {s(sLO)}, s2, 0x20003
          s_and_b32 {s(sV)}, s56, 3
          s_lshl_b32 {s(sL)}, {s(sV)}, 12
          v_lshrrev_b32 {v(t3)}, 5, {v(lane)}
          s_cmp_lt_u32 s56, 4
          s_cbranch_scc1 K1_COMPUTE""")
    snap0 = a.snapshot(); Vbase = V.n
    def epoch_load():
        a(f"s_add_u32 s88, s90, {EPOCH_OFF & 0xfff00000}\ns_addc_u32 s89, s91, 0\ns_load_dword {s(sN)}, s[88:89], {EPOCH_OFF & 0xfffff}")
    def nonce():
        a(f"s_add_u32 {s(sN)}, {s(sN)}, 1\ns_or_b32 {s(sN)}, {s(sN)}, 1")

    def x1_out(regs):
        rad = regs.get(4); vo = regs.get(); vo0 = regs.get(); buf = regs.get(32)
        pre = f"""v_and_b32 {v(t0)}, 15, {v(lane)}
              v_xor_b32 {v(t0)}, {v(t0)}, {v(t3)}
              v_bfe_u32 {v(t1)}, {v(lane)}, 4, 2
              s_lshl_b32 s3, s56, 13
              v_lshl_add_u32 {v(t2)}, {v(t1)}, 8, s3\n"""
        for i in range(4): pre += f"v_xor_b32 {v(t4)}, {2*i}, {v(t0)}\nv_lshl_add_u32 {v(rad+i)}, {v(t4)}, 4, {v(t2)}\n"
        pre += f"""s_bfe_u32 s46, s56, 0x10001
              s_lshr_b32 s47, s56, 2
              v_and_b32 {v(t0)}, 15, {v(lane)}
              v_lshlrev_b32 {v(t0)}, 4, {v(t0)}
              v_bfe_u32 {v(t1)}, {v(lane)}, 4, 1
              v_lshl_add_u32 {v(t0)}, {v(t1)}, 12, {v(t0)}
              v_xor_b32 {v(t1)}, s46, {v(t3)}
              v_lshl_add_u32 {v(vo)}, {v(t1)}, 13, {v(t0)}
              s_lshl_b32 s40, {s(sHF)}, 1
              s_and_b32 s41, s56, 1
              s_add_u32 s40, s40, s41
              s_lshl_b32 s40, s40, 4
              s_lshl_b32 s42, s47, 7
              s_add_u32 s41, s40, s42
              s_add_u32 s42, s42, s40
              s_sub_u32 s42, 253, s42
              s_cmp_eq_u32 s46, 0
              s_cselect_b32 s41, s41, s42
              s_movk_i32 s43, 0x4000
              s_cselect_b32 s43, s43, 0xffffc000
              s_lshl_b32 s41, s41, 13
              s_lshr_b32 s42, {s(sLO)}, 1
              s_lshl_b32 s42, s42, 11
              s_add_u32 s41, s41, s42
              s_lshl_b32 s42, {s(sW)}, 9
              s_add_u32 s41, s41, s42
              s_and_b32 s42, {s(sLO)}, 1
              s_lshl_b32 s42, s42, 8
              s_add_u32 s41, s41, s42
              s_add_u32 s41, s41, {X1_OFF}
              s_lshl_b32 s42, s47, 6
              s_add_u32 s40, s40, s42
              v_add_u32 {v(t1)}, s40, {v(t3)}
              v_cmp_eq_u32 vcc, {64 + 48 + 1}, {v(t1)}
              v_add_u32 {v(t0)}, {64*8192}, {v(vo)}
              v_cndmask_b32 {v(vo0)}, {v(vo)}, {v(t0)}, vcc"""
        def post():
            a.waitlg(); a("s_barrier")
            for jx in range(8): a(f"ds_read_b128 {v(buf+4*jx,4)}, {v(rad + (jx & 3))} offset:{1024*jx}")
            for jx in range(8):
                a(f"buffer_store_dwordx4 {v(buf+4*jx,4)}, {v(vo0 if jx == 7 else vo)}, {s(SW,4)}, s41 offen {OPT['stX']}")
                if jx < 7: a("s_add_u32 s41, s41, s43")
        return pre, post

    def w_job(wl, vW, so, tm):
        def j_wload(part):
            if part == 0:
                srd(a, SWR, 26, 27, 2048 * 514)
                a(f"s_mov_b64 {s(so,2)}, s[22:23]")
                srd(a, SWI, so, so + 1, 2048 * 514)
                a(f"""s_and_b32 s84, s2, 3
                      s_lshl_b32 s84, s84, 2
                      s_add_u32 s84, s84, {s(sV)}
                      s_lshl_b32 {s(so+1)}, s84, 5
                      s_add_u32 {s(so+1)}, {s(so+1)}, 2
                      v_and_b32 {v(t0)}, 7, {v(lane)}
                      v_lshl_add_u32 {v(t0)}, {v(t0)}, 2, {s(so+1)}
                      v_lshrrev_b32 {v(t1)}, 3, {v(lane)}
                      s_movk_i32 {s(so+1)}, 514
                      v_mad_u32_u24 {v(vW)}, {v(t1)}, {s(so+1)}, {v(t0)}
                      s_bfe_u32 {s(so+1)}, s2, 0x30002
                      s_lshl_b32 {s(tm)}, {s(so+1)}, 3
                      s_lshl_b32 {s(so)}, {s(sCJ)}, 8
                      s_add_u32 {s(tm)}, {s(tm)}, {s(so)}
                      s_mul_i32 {s(so)}, {s(tm)}, 514
                      s_add_u32 {s(so+1)}, {s(so)}, 32896
                      s_add_u32 {s(so+2)}, {s(so)}, 65792
                      s_add_u32 {s(so+3)}, {s(so)}, 98688""")
            for r in (2*part, 2*part + 1):
                a(f"buffer_load_dword {v(wl + r)}, {v(vW)}, {s(SWR,4)}, s{so+r} offen {OPT['ntW']}", tag="W")
                a(f"buffer_load_dword {v(wl + 4 + r)}, {v(vW)}, {s(SWI,4)}, s{so+r} offen {OPT['ntW']}", tag="W")
        pre = f"""s_lshl_b32 s84, s84, 17
          s_lshl_b32 {s(tm)}, {s(sLO)}, 11
          s_add_u32 s84, s84, {s(tm)}
          s_lshr_b32 {s(tm)}, s2, 7
          s_lshl_b32 {s(tm)}, {s(tm)}, 10
          s_add_u32 s84, s84, {s(tm)}
          s_bfe_u32 {s(tm)}, s2, 0x20005
          s_lshl_b32 {s(tm)}, {s(tm)}, 8
          s_add_u32 s84, s84, {s(tm)}
          s_bfe_u32 {s(tm)}, s2, 0x10002
          s_lshl_b32 {s(tm)}, {s(tm)}, 7
          s_add_u32 s84, s84, {s(tm)}
          s_add_u32 s84, s84, {WT_OFF}
          s_add_u32 s85, s84, 8192
          s_mov_b32 s86, 0x05040100
          s_mov_b32 s87, 0x07060302
          v_and_b32 {v(t0)}, 7, {v(lane)}
          v_lshrrev_b32 {v(t1)}, 3, {v(lane)}
          v_lshlrev_b32 {v(t1)}, 4, {v(t1)}
          v_lshl_add_u32 {v(vW+1)}, {v(t0)}, 14, {v(t1)}"""
        post = []
        for kk in range(2):
            post += [f"v_perm_b32 {v(wl+8+4*kk+r)}, {v(wl+4+r)}, {v(wl+r)}, s{86+kk}" for r in range(4)]
            post += [f"buffer_store_dwordx4 {v(wl+8+4*kk,4)}, {v(vW+1)}, {s(SW,4)}, s{85 if kk else 84} offen {OPT['stW']}"]
        return j_wload, pre, post

    vX = V.get(4); vB = V.get(4)
    wl = V.get(16); vW = V.get(2); l16 = V.get(); dmy = V.get(4); gr = V.get(4); gc = V.get(8); gq = V.get(4)
    grow, gad, gz, pad = [V.get() for _ in range(4)]
    Vx = VAlloc(V.n)
    sXb, sBb, sK, sXo, sBo, sCB, sR0 = 48, 49, 50, 52, 53, 57, 58
    a(f"""v_bfe_u32 {v(t0)}, {v(lane)}, 3, 2
          v_lshrrev_b32 {v(t1)}, 4, {v(lane)}
          v_and_b32 {v(t2)}, 7, {v(lane)}
          v_xor_b32 {v(t2)}, {v(t2)}, {v(t1)}
          v_lshlrev_b32 {v(t2)}, 4, {v(t2)}
          s_lshl_b32 {s(sR0)}, {s(sW)}, 1
          s_lshr_b32 s3, {s(sLO)}, 1
          s_add_u32 {s(sR0)}, {s(sR0)}, s3
          s_mul_i32 s3, {s(sCJ)}, {OPT["rotc"]}
          s_add_u32 {s(sR0)}, {s(sR0)}, s3
          s_and_b32 {s(sR0)}, {s(sR0)}, 7
          s_mov_b32 {s(sK)}, {s(sR0)}
          s_lshl_b32 {s(sXo)}, {s(sK)}, 7
          s_mov_b32 {s(SX+2)}, {0x200000 + 4096}
          s_mov_b32 {s(SX+3)}, 0x20000
          s_mov_b32 m0, {s(sL)}
          s_cmp_eq_u32 {s(sCJ)}, 7
          s_cbranch_scc1 K1_LD""")
    snapL = a.snapshot(); stn = st.n
    def loader(D):
        X = "D" if D else "F"
        if not D:
            a(f"""v_lshl_add_u32 {v(t0)}, {v(t3)}, 4, {v(t0)}
                  v_lshl_add_u32 {v(t0)}, {v(t0)}, 10, {v(t2)}
                  v_add_u32 {v(vX)}, 4096, {v(t0)}
                  v_xor_b32 {v(t0)}, 64, {v(t0)}
                  v_add_u32 {v(vX+1)}, {4096 + 31744}, {v(t0)}
                  v_add_u32 {v(vX+2)}, {2*31744}, {v(vX)}
                  v_add_u32 {v(vX+3)}, {2*31744}, {v(vX+1)}
                  s_lshl_b32 s3, {s(sW)}, 7
                  s_lshl_b32 s40, {s(sV)}, 5
                  s_add_u32 s3, s3, s40
                  s_add_u32 s3, s3, {s(sLO)}
                  s_lshl_b32 {s(sXb)}, s3, 12""")
        else:
            a(f"""v_lshl_add_u32 {v(t0)}, {v(t3)}, 3, {v(t0)}
                  v_lshl_add_u32 {v(t0)}, {v(t0)}, 15, {v(t2)}
                  v_add_u32 {v(vX)}, 4096, {v(t0)}
                  v_add_u32 {v(vX+2)}, {4096 - 1024}, {v(t0)}
                  v_xor_b32 {v(t0)}, 64, {v(t0)}
                  v_add_u32 {v(vX+1)}, {4096 + 131072 - 1024}, {v(t0)}
                  v_add_u32 {v(vX+3)}, {4096 + 131072 + 1024 - 3072}, {v(t0)}
                  s_lshl_b32 s3, {s(sW)}, 8
                  s_lshl_b32 s40, {s(sLO)}, 2
                  s_add_u32 s3, s3, s40
                  s_add_u32 s3, s3, {s(sV)}
                  s_lshl_b32 {s(sXb)}, s3, 11""")
        a(f"s_add_u32 {s(sXo)}, {s(sXo)}, {s(sXb)}")
        a.waitlg()
        a(f"s_sub_u32 {s(SX)}, s24, 4096\ns_subb_u32 {s(SX+1)}, s25, 0")
        def b_setup():
            epoch_load()
            a(f"v_lshlrev_b32 {v(l16)}, 4, {v(lane)}")
            if not D:
                srd(a, SB, 28, 29, 512 * 3584)
                a(f"""v_and_b32 {v(t0)}, 15, {v(lane)}
                      v_lshlrev_b32 {v(t2)}, 2, {v(t1)}
                      v_xor_b32 {v(t0)}, {v(t0)}, {v(t2)}
                      v_lshlrev_b32 {v(t0)}, 4, {v(t0)}
                      s_movk_i32 s3, 3584
                      v_mad_u32_u24 {v(vB)}, {v(t1)}, s3, {v(t0)}
                      v_add_u32 {v(vB+1)}, 13312, {v(vB)}
                      v_add_u32 {v(vB+2)}, {2*13312}, {v(vB)}
                      v_add_u32 {v(vB+3)}, {3*13312}, {v(vB)}
                      s_mul_i32 {s(sCB)}, {s(sHF)}, 7
                      s_add_u32 {s(sCB)}, {s(sCB)}, {s(sCJ)}
                      s_lshl_b32 s3, {s(sCB)}, 8
                      s_mul_i32 {s(sBb)}, {s(sV)}, {16*3584}
                      s_add_u32 {s(sBb)}, {s(sBb)}, s3""")
            else:
                table_srd(a, SB)
                a(f"""s_lshl_b32 s3, {s(sHF)}, 16
                      s_lshl_b32 s59, {s(sV)}, 11
                      s_add_u32 {s(sBb)}, s3, s59""")
        BSTEP = 8192 if D else 64 * 3584
        def dma(slab, q):
            slot = slab % NS; part, hf = q >> 1, q & 1
            if (slab, q) == (0, 2): b_setup()
            if OPT["nodma"] or (D and q == 3): pass
            elif part == 0:
                if hf == 0 and slab: a(f"s_add_u32 m0, {s(sL)}, {slot*32768}")
                for j in (2*hf, 2*hf + 1): a(f"buffer_load_dwordx4 {v(vX+j)}, {s(SX,4)}, {s(sXo)} offen offset:{1024*j} {'nt' if slab < OPT['ntx'] else ''} lds", tag=f"S{slab}")
            else:
                if hf == 0: a(f"s_mul_i32 {s(sBo)}, {s(sK)}, {BSTEP}\ns_add_u32 m0, {'s59' if D else s(sL)}, {slot*32768 + 16384}\ns_add_u32 {s(sBo)}, {s(sBo)}, {s(sBb)}")
                for j in (2*hf, 2*hf + 1): a(f"buffer_load_dwordx4 {v(l16 if D else vB+j)}, {s(SB,4)}, {s(sBo)} offen offset:{1024*j} {'nt' if slab < OPT['ntw'] else ''} lds", tag=f"S{slab}")
            if q == 3 and slab < 7:
                a(f"s_add_u32 {s(sK)}, {s(sK)}, 1\ns_and_b32 {s(sK)}, {s(sK)}, 7\ns_lshl_b32 {s(sXo)}, {s(sK)}, 7\ns_add_u32 {s(sXo)}, {s(sXo)}, {s(sXb)}")
        def j_nonce():
            srd(a, SW, 90, 91, WS_END); nonce()
            a(f"v_mov_b32 {v(gz)}, 0")
        def j_warm():
            a(f"""s_lshl_b32 s3, s2, 2
                  s_add_u32 s3, s3, {s(sV)}
                  s_lshl_b32 s3, s3, 7
                  s_add_u32 s3, s3, {G.FW_OFF}
                  s_lshl_b32 s40, s2, 7
                  s_add_u32 s40, s40, {G.F3_OFF}
                  s_cmp_eq_u32 {s(sV)}, 0
                  s_cselect_b32 s41, -1, 0
                  v_and_b32 {v(t0)}, 31, {v(lane)}
                  v_mov_b32 {v(t1)}, s3
                  v_mov_b32 {v(t2)}, s40
                  v_cmp_gt_u32 vcc, 32, {v(lane)}
                  s_mov_b32 s40, {0 if OPT["wc"] and not D else -1}
                  v_cndmask_b32 {v(t1)}, {v(t2)}, {v(t1)}, vcc
                  v_lshl_add_u32 {v(t1)}, {v(t0)}, 2, {v(t1)}
                  s_mov_b64 exec, s[40:41]""")
            if OPT["wc"] and not D: a("s_cbranch_execz K1_NOWARMF")
            keep = a.snapshot()
            a(f"buffer_store_dword {v(gz)}, {v(t1)}, {s(SW,4)}, 0 offen sc1")
            if OPT["wc"] and not D: a.label("K1_NOWARMF"); a.restore(keep)
            if D:
                a(f"s_mov_b32 s40, 0\ns_mov_b32 s3, {G.FX_OFF - G.F3_OFF}\ns_cbranch_scc0 K1_NOWARM")
                keep = a.snapshot()
                a(f"s_mov_b64 exec, s[40:41]\nbuffer_store_dword {v(gz)}, {v(t1)}, {s(SW,4)}, s3 offen sc1")
                a.label("K1_NOWARM"); a.restore(keep)
            a("s_mov_b64 exec, -1")
        def j_publish():
            a(f"""v_and_b32 {v(t0)}, 15, {v(lane)}
                  v_cmp_gt_u32 vcc, 16, {v(lane)}
                  s_lshl_b32 s3, {s(sV)}, 7
                  s_add_u32 s3, s3, {PCS}
                  v_mov_b32 {v(t1)}, s3
                  v_mov_b32 {v(t2)}, {PRS}
                  v_cndmask_b32 {v(t1)}, {v(t2)}, {v(t1)}, vcc
                  v_lshl_add_u32 {v(t1)}, {v(t0)}, 3, {v(t1)}
                  ds_read_b64 {v(gq,2)}, {v(t1)}
                  s_lshl_b32 s3, {s(sW)}, 2
                  s_add_u32 s3, s3, {s(sLO)}
                  s_lshl_b32 s3, s3, 1
                  s_add_u32 s3, s3, {s(sHF)}
                  s_lshl_b32 s3, s3, 3
                  s_add_u32 s3, s3, {s(sCJ)}
                  s_lshl_b32 s3, s3, 7
                  s_add_u32 s3, s3, {STATS_OFF}
                  v_mov_b32 {v(t2)}, s3""")
            if not D:
                a(f"""s_lshl_b32 s3, {s(sCB)}, 3
                      s_add_u32 s3, s3, {s(sR0)}
                      s_lshl_b32 s3, s3, 2
                      s_add_u32 s3, s3, {s(sV)}
                      s_lshl_b32 s3, s3, 8
                      s_add_u32 s3, s3, {CS_OFF}
                      v_mov_b32 {v(t1)}, s3
                      v_cndmask_b32 {v(t2)}, {v(t2)}, {v(t1)}, vcc""")
            a(f"v_lshl_add_u32 {v(pad)}, {v(t0)}, 4, {v(t2)}")
            a(f"""v_mov_b32 {v(gq+2)}, {s(sN)}
                  v_mov_b32 {v(gq+3)}, {s(sN)}
                  s_cmp_eq_u32 {s(sV)}, 0
                  s_cselect_b32 s40, 0xff0000, 0
                  s_mov_b32 s41, 0""")
            if D: a(f"s_cbranch_scc0 K1_NOPUBD")
            else: a("s_or_b32 s40, s40, 0xffff")
            keep = a.snapshot()
            a(f"""s_mov_b64 exec, s[40:41]
                  buffer_store_dwordx4 {v(gq,4)}, {v(pad)}, {s(SW,4)}, 0 offen sc1
                  s_mov_b64 exec, -1""")
            if D: a.label("K1_NOPUBD"); a.restore(keep)
        def gather_loads():
            a(f"buffer_load_dwordx4 {v(gr,4)}, {v(gad)}, {s(SW,4)}, s62 offen sc1")
            if not D:
                for j in range(2): a(f"buffer_load_dwordx4 {v(gc+4*j,4)}, {v(pad)}, {s(SW,4)}, s{32+j} offen sc1")
        def j_gather():
            a(f"""v_bfe_u32 {v(t0)}, {v(lane)}, 3, 2
                  v_bfe_u32 {v(t1)}, {v(lane)}, 2, 1
                  v_and_b32 {v(t2)}, 3, {v(lane)}""")
            if not D:
                a(f"""v_lshl_add_u32 {v(t0)}, {v(t0)}, 1, {v(t1)}
                      v_lshl_add_u32 {v(grow)}, {v(t0)}, 4, {v(t2)}
                      s_lshl_b32 s3, {s(sV)}, 7
                      s_lshl_b32 s40, {s(sLO)}, 2
                      v_lshrrev_b32 {v(t0)}, 4, {v(lane)}
                      v_and_b32 {v(t1)}, 15, {v(lane)}
                      v_lshlrev_b32 {v(t1)}, 4, {v(t1)}
                      v_lshl_add_u32 {v(pad)}, {v(t0)}, 10, {v(t1)}
                      s_lshl_b32 s32, {s(sCB)}, 5
                      s_add_u32 s32, s32, {s(sV)}
                      s_lshl_b32 s32, s32, 8
                      s_add_u32 s32, s32, {CS_OFF}
                      s_add_u32 s33, s32, 4096""")
            a(f"""s_add_u32 s3, s3, s40
                  s_lshl_b32 s40, {s(sW)}, 9
                  s_add_u32 s3, s3, s40
                  v_add_u32 {v(grow)}, s3, {v(grow)}
                  v_lshlrev_b32 {v(gad)}, 4, {v(grow)}
                  s_mov_b32 s62, {STATS_OFF}""")
            gather_loads()
        def j_check():
            tags = [gr + 2, gr + 3] + ([] if D else [gc + 2, gc + 3, gc + 6, gc + 7])
            a("s_mov_b32 s61, 0")
            a(f"v_xor_b32 {v(t0)}, {s(sN)}, {v(tags[-1])}")
            a.label(f"K1_CHECK{X}")
            for t in tags[:-1]: a(f"v_xor_b32 {v(t1)}, {s(sN)}, {v(t)}\nv_or_b32 {v(t0)}, {v(t0)}, {v(t1)}")
            a(f"""v_cmp_ne_u32 vcc, 0, {v(t0)}
                  {"s_nop 0" if OPT["forcefb"] else "s_cbranch_vccz K1_GOT" + X}
                  s_add_u32 s61, s61, 1
                  s_cmp_gt_u32 s61, {OPT["spin"]}
                  s_cbranch_scc1 K1_FALLBACK{X}""")
            keep = a.snapshot()
            a(f"s_sleep {OPT['slS']}")
            gather_loads()
            a(f"s_waitcnt vmcnt(0)\nv_xor_b32 {v(t0)}, {s(sN)}, {v(tags[-1])}\ns_branch K1_CHECK{X}")
            a.label(f"K1_FALLBACK{X}")
            a(f"""v_lshl_add_u32 {v(gad)}, {v(grow)}, 10, 0
                  v_add_u32 {v(gad)}, 4096, {v(gad)}
                  v_mov_b32 {v(t0)}, 0
                  v_mov_b32 {v(t1)}, 0
                  v_mov_b32 {v(t2)}, 0x3f803f80
                  s_mov_b32 s61, 0""")
            a.label(f"K1_FBLOOP{X}")
            a(f"buffer_load_dwordx4 {v(gr,4)}, {v(gad)}, {s(SX,4)}, s61 offen\ns_waitcnt vmcnt(0)")
            for i in range(4): a(f"v_dot2_f32_bf16 {v(t0)}, {v(gr+i)}, {v(gr+i)}, {v(t0)}\nv_dot2_f32_bf16 {v(t1)}, {v(gr+i)}, {v(t2)}, {v(t1)}\ns_nop 2")
            a(f"s_add_u32 s61, s61, 16\ns_cmp_lt_u32 s61, 1024\ns_cbranch_scc1 K1_FBLOOP{X}")
            a("s_nop 4")
            for r in finish_stats(t0, t1, t4, t5): a(r)
            a(f"s_nop 1\nv_mov_b32 {v(gr)}, {v(t0)}\nv_mov_b32 {v(gr+1)}, {v(t1)}")
            if not D:
                a(f"""v_and_b32 {v(t0)}, 9, {v(lane)}
                      v_bfe_u32 {v(t1)}, {v(lane)}, 1, 1
                      v_lshl_or_b32 {v(t0)}, {v(t1)}, 2, {v(t0)}
                      v_bfe_u32 {v(t1)}, {v(lane)}, 2, 1
                      v_lshl_or_b32 {v(t0)}, {v(t1)}, 1, {v(t0)}
                      v_lshlrev_b32 {v(t0)}, 2, {v(t0)}
                      v_lshrrev_b32 {v(t1)}, 4, {v(lane)}
                      s_mov_b32 s3, {128*3584}
                      v_mad_u32_u24 {v(t0)}, {v(t1)}, s3, {v(t0)}
                      s_lshl_b32 s61, {s(sCB)}, 2
                      s_add_u32 s61, s61, {s(sV)}
                      s_lshl_b32 s61, s61, 6
                      s_mov_b32 s3, 0
                      v_mov_b32 {v(gc)}, 0
                      v_mov_b32 {v(gc+1)}, 0
                      v_mov_b32 {v(gc+4)}, 0
                      v_mov_b32 {v(gc+5)}, 0""")
                a.label("K1_FBLOOPC")
                a(f"""buffer_load_dword {v(t1)}, {v(t0)}, {s(SB,4)}, s61 offen
                      s_waitcnt vmcnt(0)
                      v_lshlrev_b32 {v(t2)}, 16, {v(t1)}
                      v_and_b32 {v(t1)}, 0xffff0000, {v(t1)}
                      v_add_f32 {v(gc)}, {v(gc)}, {v(t2)}
                      v_add_f32 {v(gc+1)}, {v(gc+1)}, {v(t1)}
                      s_add_u32 s61, s61, 3584
                      s_add_u32 s3, s3, 1
                      s_cmp_lt_u32 s3, 128
                      s_cbranch_scc1 K1_FBLOOPC""")
            a.label(f"K1_GOT{X}")
            a.restore(keep); a.hist = []
            a(f"v_and_b32 {v(t0)}, 31, {v(lane)}")
            if not D:
                a(f"""v_add_f32 {v(gc)}, {v(gc)}, {v(gc+4)}
                      v_add_f32 {v(gc+1)}, {v(gc+1)}, {v(gc+5)}
                      s_lshl_b32 s3, {s(sV)}, 8
                      s_add_u32 s3, s3, {SCR}
                      v_lshl_add_u32 {v(t0)}, {v(t0)}, 3, s3
                      v_mov_b32 {v(gc+2)}, {v(gc)}
                      v_mov_b32 {v(gc+3)}, {v(gc+1)}
                      v_mul_f32 {v(gr)}, {fbits(-LOG2E)}, {v(gr)}
                      v_mul_f32 {v(gr+1)}, {v(gr+1)}, {v(gr)}
                      v_permlane32_swap_b32 {v(gc)}, {v(gc+2)}
                      v_permlane32_swap_b32 {v(gc+1)}, {v(gc+3)}
                      v_sub_f32 {v(gr+1)}, 0, {v(gr+1)}
                      v_add_f32 {v(gc)}, {v(gc)}, {v(gc+2)}
                      v_add_f32 {v(gc+1)}, {v(gc+1)}, {v(gc+3)}
                      ds_write_b64 {v(t0)}, {v(gr,2)}
                      v_mov_b32 {v(gc+2)}, {v(gc)}
                      v_mov_b32 {v(gc+3)}, {v(gc+1)}
                      v_and_b32 {v(t1)}, 15, {v(lane)}
                      s_lshl_b32 s3, {s(sV)}, 7
                      v_permlane16_swap_b32 {v(gc)}, {v(gc+2)}
                      v_permlane16_swap_b32 {v(gc+1)}, {v(gc+3)}
                      s_add_u32 s3, s3, {CSF}
                      v_lshl_add_u32 {v(t1)}, {v(t1)}, 3, s3
                      v_add_f32 {v(gc)}, {v(gc)}, {v(gc+2)}
                      v_add_f32 {v(gc+1)}, {v(gc+1)}, {v(gc+3)}
                      ds_write_b64 {v(t1)}, {v(gc,2)}""")
        j_wload, wst_pre, wst_post = w_job(wl, vW, 44, 59)
        def j_wstore():
            a(wst_pre); [a(r, tag="WS") for r in wst_post]
        def j_pfl():
            srd(a, SPF, 30, 31, 1792 * 1024)
            a(f"s_lshl_b32 s3, s2, 2\ns_add_u32 s3, s3, {s(sV)}\ns_mul_i32 s3, s3, 1792")
            for j in range(2):
                a(f"buffer_load_dwordx4 {v(dmy,4)}, {v(l16)}, {s(SPF,4)}, s3 offen offset:{1024*j}"); untracked(a)
        pre, post = {}, {}
        for ph, j in ((1, j_nonce), (1, j_warm), (3, j_publish)) + (() if D else ((OPT["phG"], j_gather),)): pre.setdefault(ph, []).append(j)
        for p, ph in enumerate(OPT["phWD"] if D else [] if OPT["wc"] else OPT["phW"]): post.setdefault(ph, []).append(lambda p=p: j_wload(p))
        post.setdefault(OPT["pfl"], []).append(j_pfl)
        if not D and not OPT["wc"]: post.setdefault(OPT["phS"], []).append(j_wstore)
        quarters = [(i >> 2, i & 3) for i in range(32)]; pos = 0
        few()
        for ph, cnt in enumerate(OPT["k1sched"]):
            for j in pre.get(ph, []): j()
            for (sl, q) in quarters[pos:pos+cnt]:
                assert sl < NS or sl - NS <= ph - 2, (sl, ph)
                dma(sl, q)
            pos += cnt
            for j in post.get(ph, []): j()
            a.waitvm(f"S{ph}", lg0=True); a("s_barrier")
            (st.mark if ph in (0, 7) else few)()
        assert pos == 32
        if D:
            for j in post.get(8, []): j()
            p, q = x1_out(Vx); a(p)
            j_wstore()
            q()
            a(f"s_waitcnt vmcnt(0)\ns_barrier\ns_cmp_lg_u32 {s(sV)}, 0\ns_cbranch_scc1 K1_NOFX")
            keep = a.snapshot(); genp.put_flag(a, G.FX_OFF, t0, t2); a.label("K1_NOFX"); a.restore(keep)
        else:
            j_check()
            a.waitlg(); a("s_barrier")
            for j in post.get(8, []): j()
            a.waitvm("WS")
        if D or not OPT["wc"]: genp.put_flag(a, G.FW_OFF, t0, t2, True)
        a("s_branch P2_LOADER")
        return st.n
    nl = loader(False)
    a.restore(snapL); st.n = stn
    a.label("K1_LD")
    assert loader(True) == nl
    a.restore(snap0); V.n = Vbase; st.n = 1 if OPT["stamp"] else 0
    a.label("K1_COMPUTE")
    if OPT["est"]: st.mark()
    if OPT["prio"]: a(f"s_setprio {OPT['prio']}")
    ones = V.get(2); gq = V.get(4); gz = V.get()
    key = t4
    rw = 240
    a(f"""s_lshl_b32 s3, {s(sW)}, 2
          s_add_u32 s3, s3, {s(sLO)}
          s_lshl_b32 s3, s3, 1
          s_add_u32 s3, s3, {s(sHF)}
          s_lshl_b32 s3, s3, 3
          s_add_u32 s3, s3, {s(sCJ)}
          s_lshl_b32 s3, s3, 2
          s_add_u32 s3, s3, {s(sV)}
          s_lshl_b32 s3, s3, 11
          v_lshlrev_b32 {v(t0)}, 4, {v(lane)}
          s_mov_b32 {s(SX+2)}, 0x200000
          s_mov_b32 {s(SX+3)}, 0x20000""")
    a.waitlg()
    a(f"""s_mov_b64 {s(SX,2)}, s[24:25]
          buffer_load_dwordx4 {v(rw,4)}, {v(t0)}, {s(SX,4)}, s3 offen {OPT['ntr']}
          buffer_load_dwordx4 {v(rw+4,4)}, {v(t0)}, {s(SX,4)}, s3 offen offset:1024 {OPT['ntr']}
          v_mov_b32 {v(gz)}, 0""")
    few()
    epoch_load()
    srd(a, SW, 90, 91, WS_END)
    assert G.F2_OFF - G.F1_OFF == 1 << 17
    a(f"""s_lshl_b32 s3, s2, 2
          s_add_u32 s3, s3, {s(sV)}
          s_lshl_b32 s3, s3, 7
          s_add_u32 s3, s3, {G.F1_OFF}
          v_and_b32 {v(t1)}, 31, {v(lane)}
          v_lshlrev_b32 {v(t1)}, 2, {v(t1)}
          v_lshl_add_u32 {v(t1)}, {v(t3)}, 17, {v(t1)}
          buffer_store_dword {v(gz)}, {v(t1)}, {s(SW,4)}, s3 offen sc1""")
    a(f"""v_mov_b32 {v(ones)}, 0x3f803f80
          v_mov_b32 {v(ones+1)}, 0x3f803f80
          v_and_b32 {v(t1)}, 1, {v(lane)}
          v_cmp_eq_u32 s[58:59], 1, {v(t1)}
          v_bfe_u32 {v(key)}, {v(lane)}, 1, 3
          v_and_b32 {v(t0)}, 31, {v(lane)}
          v_lshlrev_b32 {v(t0)}, 7, {v(t0)}
          v_add_u32 {v(t0)}, {s(sL)}, {v(t0)}""")
    def produce():
        if OPT["est"]: st.mark(); a("s_waitcnt vmcnt(0)"); st.mark()
        for i in range(4):
            for r in range(2):
                c0 = "0" if i == 0 else None
                a(f"v_dot2_f32_bf16 {v(gq+2*r)}, {v(rw+4*r+i)}, {v(rw+4*r+i)}, {c0 or v(gq+2*r)}\nv_dot2_f32_bf16 {v(gq+2*r+1)}, {v(rw+4*r+i)}, {v(ones)}, {c0 or v(gq+2*r+1)}")
        a("s_nop 2")
        for m in ("row_shr:1 row_mask:0xf", "row_shr:2 row_mask:0xf", "row_shr:4 row_mask:0xf", "row_shr:8 row_mask:0xf", "row_bcast:15 row_mask:0xa", "row_bcast:31 row_mask:0xc"):
            for i in range(4): a(f"v_add_f32_dpp {v(gq+i)}, {v(gq+i)}, {v(gq+i)} {m} bank_mask:0xf bound_ctrl:0")
        for i in range(4): a(f"v_readlane_b32 s{16+i}, {v(gq+i)}, 63")
        a(f"""v_mov_b32 {v(gq)}, s16
              v_mov_b32 {v(gq+1)}, s17
              v_mov_b32 {v(gq+2)}, s18
              v_mov_b32 {v(gq+3)}, s19
              v_cndmask_b32 {v(gq)}, {v(gq)}, {v(gq+2)}, s[58:59]
              v_cndmask_b32 {v(gq+1)}, {v(gq+1)}, {v(gq+3)}, s[58:59]""")
        for r in finish_stats(gq, gq + 1, t4, t5): a(r)
        a(f"""s_lshl_b32 s3, {s(sV)}, 4
              s_add_u32 s3, s3, {PRS}
              v_lshl_add_u32 {v(t4)}, {v(lane)}, 3, s3
              s_mov_b64 exec, 3
              ds_write_b64 {v(t4)}, {v(gq,2)}
              s_mov_b64 exec, -1""")
        nonce()
        few()
    def bar():
        a.waitlg(); a("s_barrier")
    a(f"s_cmp_eq_u32 {s(sCJ)}, 7\ns_cbranch_scc1 K1_DFT")
    snap = a.snapshot(); V0 = V.n; stc = st.n
    xa = [[V.get(4), V.get(4)] for _ in range(2)]
    wa = [[V.get(), V.get()] for _ in range(2)]
    ad1, ad2, ad3, ad4, ad5, l16 = [V.get() for _ in range(6)]
    cs = V.get(4)
    a(f"v_xor_b32 {v(t1)}, {v(t3)}, {v(key)}")
    for i in range(4):
        a(f"""v_xor_b32 {v(t2)}, {2*i}, {v(t1)}
              v_lshl_add_u32 {v(xa[0][0]+i)}, {v(t2)}, 4, {v(t0)}
              v_xor_b32 {v(xa[0][1]+i)}, 0x1000, {v(xa[0][0]+i)}
              v_add_u32 {v(xa[1][0]+i)}, 65536, {v(xa[0][0]+i)}
              v_add_u32 {v(xa[1][1]+i)}, 65536, {v(xa[0][1]+i)}""")
    a(f"""s_lshr_b32 {s(sWR_)}, {s(sV)}, 1
          s_and_b32 {s(sWC)}, {s(sV)}, 1
          v_and_b32 {v(t1)}, 2, {v(lane)}
          v_cmp_eq_u32 s[62:63], 2, {v(t1)}
          v_bfe_u32 {v(t0)}, {v(lane)}, 2, 2
          v_lshl_add_u32 {v(t1)}, {v(t3)}, 3, {v(t0)}
          v_lshlrev_b32 {v(t1)}, 8, {v(t1)}
          s_lshl_b32 s3, {s(sWC)}, 1
          s_add_u32 s54, s3, {s(sWR_)}
          v_xor_b32 {v(t0)}, s54, {v(t0)}
          v_lshl_add_u32 {v(t1)}, {v(t0)}, 6, {v(t1)}
          v_bfe_u32 {v(t0)}, {v(lane)}, 4, 1
          v_lshl_add_u32 {v(t1)}, {v(t0)}, 5, {v(t1)}
          v_and_b32 {v(t0)}, 1, {v(lane)}
          v_lshl_add_u32 {v(t1)}, {v(t0)}, 4, {v(t1)}
          v_bfe_u32 {v(t0)}, {v(lane)}, 1, 1
          v_lshl_add_u32 {v(t1)}, {v(t0)}, 3, {v(t1)}
          v_add_u32 {v(wa[0][0])}, 16384, {v(t1)}
          v_xor_b32 {v(wa[0][1])}, 64, {v(wa[0][0])}
          v_add_u32 {v(wa[1][0])}, 65536, {v(wa[0][0])}
          v_add_u32 {v(wa[1][1])}, 65536, {v(wa[0][1])}
          v_and_b32 {v(t0)}, 31, {v(lane)}
          s_lshl_b32 s3, {s(sV)}, 8
          s_add_u32 s3, s3, {SCR}
          v_lshl_add_u32 {v(ad1)}, {v(t0)}, 3, s3
          v_xor_b32 {v(ad3)}, 0x100, {v(ad1)}
          s_lshl_b32 s3, s54, 7
          s_add_u32 s40, s3, {PCS}
          v_lshl_add_u32 {v(ad2)}, {v(t0)}, 2, s40
          s_add_u32 s3, s3, {CSF}
          v_lshl_add_u32 {v(ad4)}, {v(t3)}, 4, s3
          v_xor_b32 {v(ad5)}, 0x80, {v(ad4)}
          s_mov_b32 s60, {fbits(-LOG2E)}
          s_mov_b32 s61, {fbits(-LOG2E)}
          v_lshlrev_b32 {v(l16)}, 4, {v(lane)}
          s_lshl_b32 s3, {s(sW)}, 2
          s_add_u32 s3, s3, {s(sLO)}
          s_lshl_b32 s3, s3, 2
          s_add_u32 s40, s3, {s(sV)}
          s_xor_b32 s41, s40, 1
          s_mul_i32 s40, s40, {112*1024}
          s_mul_i32 s41, s41, {112*1024}
          s_mul_i32 s3, {s(sHF)}, 7
          s_add_u32 s3, s3, {s(sCJ)}
          s_lshl_b32 s3, s3, 13
          s_lshl_b32 s42, s54, 11
          s_add_u32 s42, s42, s3
          s_xor_b32 s43, s42, 0x800
          s_add_u32 s44, s40, s42
          s_add_u32 s45, s41, s42
          s_add_u32 s46, s40, s43
          s_add_u32 s47, s41, s43""")
    acc = [[V.get(16) for _ in range(2)] for _ in range(2)]
    xf = [[V.get(4) for _ in range(2)] for _ in range(3)]
    wf = [[V.get(4) for _ in range(2)] for _ in range(3)]
    a12 = [V.get(2), V.get(2)]; cv = [V.get(16), V.get(16)]
    def reads_ffn(n):
        if n >= 32: return []
        slab, t = divmod(n, 4); slot = slab % NS; se, off = slot >> 1, (slot & 1) * 32768; b = n % 3
        r = []
        for T in range(2):
            r.append(f"ds_read_b128 {v(xf[b][T],4)}, {v(xa[se][T]+t)} offset:{off}")
            r.append(f"ds_read_b64_tr_b16 {v(wf[b][T],2)}, {v(wa[se][T])} offset:{off + t*4096}")
            r.append(f"ds_read_b64_tr_b16 {v(wf[b][T]+2,2)}, {v(wa[se][T])} offset:{off + t*4096 + 1024}")
        return r
    if OPT["wc"]:
        cwl = V.get(16); cvW = V.get(2); fz = V.get(2); assert V.n <= rw
        wld, wpre, wpost = w_job(cwl, cvW, 48, 43)
        wld(0); wld(1); a(wpre)
        a(f"s_lshl_b32 s3, s2, 2\ns_add_u32 s3, s3, {s(sV)}\ns_lshl_b32 s3, s3, 7\ns_add_u32 s33, s3, {G.FW_OFF}\nv_and_b32 {v(fz)}, 31, {v(lane)}\nv_lshlrev_b32 {v(fz)}, 2, {v(fz)}")
        a(f"buffer_store_dword {v(gz)}, {v(fz)}, {s(SW,4)}, s33 offen sc1")
    produce()
    if OPT["wc"]: a(f"v_mov_b32 {v(fz+1)}, {s(sN)}")
    bar(); st.mark()
    for r in reads_ffn(0) + reads_ffn(1): a(r)
    for n in range(32):
        b = n % 3; z = "0" if n == 0 else None
        mfs = [(lambda F=F, S=S: mf32(a, acc[F][S], wf[b][F], xf[b][S], z)) for (F, S) in ((0, 0), (1, 0), (0, 1), (1, 1))]
        fill = reads_ffn(n + 2); per = [3, 3, 0, 0]
        if n % 4 == 2 and n < 28: fill = [bar] + fill; per = [3, 2, 2, 0]
        if n == 4:
            fill += [f"v_cndmask_b32 {v(cs)}, {v(cs)}, {v(cs+1)}, s[58:59]", f"v_cndmask_b32 {v(cs+2)}, {v(cs+2)}, {v(cs+3)}, s[58:59]",
                     f"v_cndmask_b32 {v(cs+1)}, {v(cs)}, {v(cs+2)}, s[62:63]", f"v_cndmask_b32 {v(cs)}, {v(cs)}, {v(cs+2)}, s[62:63]"]
            per = [3, 3, 2, 2]
        if n == 5:
            fill += [f"v_permlane32_swap_b32 {v(cs)}, {v(cs+1)}", f"v_add_f32 {v(cs)}, {v(cs)}, {v(cs+1)}", f"ds_write_b32 {v(ad2)}, {v(cs)}"]
            per = [3, 4, 1, 1]
        if OPT["wc"] and n == OPT["wc"]: fill += wpost; per = [3, 3, 5, 5]
        if OPT["wc"] and n == OPT["wcf"]: fill += ["s_waitcnt vmcnt(0)", f"buffer_store_dword {v(fz+1)}, {v(fz)}, {s(SW,4)}, s33 offen sc1"]; per[3] += 2
        if n == OPT["e1step"]:
            fill = [bar, f"ds_read_b64 {v(a12[0],2)}, {v(ad1)}", f"ds_read_b64 {v(a12[1],2)}, {v(ad3)}"] + \
                   [f"ds_read_b128 {v(cv[F]+4*jj,4)}, {v(ad)} offset:{32*jj}" for F, ad in ((0, ad4), (1, ad5)) for jj in range(4)]
            per = [4, 4, 3, 0]
        interleave(a, mfs, fill, per)
        if n < 4:
            for h in (0, 2): mf4(a, cs, ones, wf[b][0]+h, "0" if (n == 0 and h == 0) else None)
        if n == 10: few()
    st.mark()
    tmp = xf[0][0]; ee = tmp + 16; pk = [ee + 16, ee + 24]
    assert wf[2][1] + 4 == tmp + 48
    k = 0
    for S in range(2):
        for F in range(2):
            A_ = acc[F][S]; pp = pk[k & 1]; k += 1
            for i in range(0, 16, 2): a(f"v_pk_mul_f32 {v(tmp+i,2)}, {v(cv[F]+i,2)}, {v(a12[S],2)} op_sel:[0,1] op_sel_hi:[1,1]")
            for i in range(0, 16, 2): a(f"v_pk_fma_f32 {v(A_+i,2)}, {v(A_+i,2)}, {v(a12[S],2)}, {v(tmp+i,2)} op_sel:[0,0,0] op_sel_hi:[1,0,1]")
            for i in range(16): a(f"v_exp_f32 {v(ee+i)}, {v(A_+i)}")
            for i in range(0, 16, 2): a(f"v_pk_fma_f32 {v(ee+i,2)}, {v(ee+i,2)}, s[60:61], s[60:61]")
            for i in range(16): a(f"v_rcp_f32 {v(ee+i)}, {v(ee+i)}")
            for i in range(0, 16, 2): a(f"v_pk_mul_f32 {v(A_+i,2)}, {v(A_+i,2)}, {v(ee+i,2)}")
            for u in range(2):
                for i in range(4): a(f"v_cvt_pk_bf16_f32 {v(pp+4*u+i)}, {v(A_+8*u+2*i)}, {v(A_+8*u+2*i+1)}")
                a(f"buffer_store_dwordx4 {v(pp+4*u,4)}, {v(l16)}, {s(SW,4)}, s{44+2*F+S} offen offset:{1024*u} sc1")
    st.mark()
    nc = st.n
    a("s_branch P2_COMPUTE")
    vmax = max(V.hi, Vx.hi, rw + 8)
    a.restore(snap); V.n = V0; st.n = stc
    a.label("K1_DFT")
    xa = [V.get(4), V.get(4)]; ta = [V.get(), V.get()]; ad2 = V.get(); wad = [V.get(), V.get()]
    Vo = VAlloc(V.get(6))
    acc = [[V.get(16) for _ in range(2)] for _ in range(4)]
    sq = V.get(4); sm = [V.get(4) for _ in range(4)]; ad1 = V.get(); spa = V.get()
    xr = V.get(16); xe = [V.get(4) for _ in range(4)]; tf = [[V.get(4) for _ in range(2)] for _ in range(4)]
    assert rw >= xr
    def st4d(first):
        for i in range(8):
            r, h = i & 3, 2 * (i >> 2)
            mf4(a, sq, xe[r] + h, xe[r] + h, "0" if first and i == 0 else None)
            mf4(a, sm[r], ones, xe[r] + h, "0" if first and i < 4 else None)
            if i < 7: a("s_nop 0")
    a(f"v_lshlrev_b32 {v(t1)}, 2, {v(t3)}\nv_xor_b32 {v(t1)}, {v(t1)}, {v(key)}")
    for i in range(4):
        a(f"v_xor_b32 {v(t2)}, {i}, {v(t1)}\nv_lshl_add_u32 {v(xa[0]+i)}, {v(t2)}, 4, {v(t0)}\nv_add_u32 {v(xa[1]+i)}, 65536, {v(xa[0]+i)}")
    a(f"""v_lshlrev_b32 {v(ta[0])}, 4, {v(lane)}
          v_add_u32 {v(ta[0])}, 16384, {v(ta[0])}
          v_add_u32 {v(ta[1])}, 65536, {v(ta[0])}
          s_mov_b32 s62, 0x05040100
          s_mov_b32 s63, 0x07060302
          s_lshl_b32 s3, {s(sV)}, 7
          s_add_u32 s3, s3, {SCR}
          v_lshl_add_u32 {v(ad2)}, {v(t3)}, 4, s3
          v_and_b32 {v(t1)}, 2, {v(lane)}
          v_cmp_eq_u32 s[48:49], 2, {v(t1)}
          v_and_b32 {v(t1)}, 31, {v(lane)}
          v_lshl_add_u32 {v(ad1)}, {v(t1)}, 2, s3
          v_lshlrev_b32 {v(t5)}, 9, {v(t1)}
          v_and_b32 {v(t1)}, 7, {v(lane)}
          v_xor_b32 {v(t1)}, {v(t1)}, {v(t3)}
          s_lshl_b32 s3, {s(sV)}, 2
          v_xor_b32 {v(t1)}, s3, {v(t1)}
          v_lshl_add_u32 {v(wad[0])}, {v(t1)}, 4, {v(t5)}
          v_xor_b32 {v(wad[1])}, 32, {v(wad[0])}
          s_mov_b32 s60, 2.0
          s_mov_b32 s61, 2.0
          v_bfe_u32 {v(t1)}, {v(lane)}, 4, 1
          v_lshlrev_b32 {v(t1)}, 1, {v(t1)}
          v_bfe_u32 {v(t2)}, {v(lane)}, 2, 1
          v_add3_u32 {v(t1)}, {v(t1)}, {v(t2)}, s3
          v_xor_b32 {v(t1)}, 7, {v(t1)}
          v_bfe_u32 {v(t2)}, {v(lane)}, 3, 1
          v_lshl_add_u32 {v(t1)}, {v(t1)}, 1, {v(t2)}
          v_and_b32 {v(t2)}, 3, {v(lane)}
          v_lshl_add_u32 {v(t1)}, {v(t1)}, 2, {v(t2)}
          v_lshlrev_b32 {v(spa)}, 1, {v(t1)}""")
    class R2:
        def __init__(s_): s_.k = 0
        def get(s_, n=1):
            return acc[0][0] if n == 32 else Vo.get(n)
    x1pre, x1post = x1_out(R2())
    a(x1pre)
    def loc(sl): slot = sl % NS; return slot >> 1, (slot & 1) * 32768
    def rd_x(sl): se, off = loc(sl); return [f"ds_read_b128 {v(xr+4*b,4)}, {v(xa[se]+b)} offset:{off}" for b in range(4)]
    def rd_t(sl, r): se, off = loc(sl); return [f"ds_read_b128 {v(tf[r][c],4)}, {v(ta[se])} offset:{off + (2*r + c)*1024}" for c in range(2)]
    def perms(r): return [f"v_perm_b32 {v(xe[r]+i)}, {v(xr+4*i+2+(r>>1))}, {v(xr+4*i+(r>>1))}, s{62+(r&1)}" for i in range(4)]
    produce()
    bar(); st.mark()
    for r in rd_x(0) + sum((rd_t(0, r) for r in range(4)), []): a(r)
    for r in range(4):
        for p in perms(r): a(p)
    st4d(True)
    rs = xr
    for sl in range(8):
        z = "0" if sl == 0 else None
        mfs = [(lambda r=r, c=c: mf32(a, acc[r][c], xe[r], tf[r][c], z)) for r in range(4) for c in range(2)]
        if sl < 7:
            bar()
            fill = rd_x(sl + 1); per = [4]
            for r in range(4):
                nx = rd_t(sl + 1, r) + (perms(r - 1) if r else [])
                fill += nx; per += [len(nx), 0]
            fill += perms(3) + [lambda: st4d(False)]; per = per[:8]
        else:
            fill = []
            for q in [sq] + sm:
                fill += [f"v_cndmask_b32 {v(q)}, {v(q)}, {v(q+1)}, s[58:59]", f"v_cndmask_b32 {v(q+2)}, {v(q+2)}, {v(q+3)}, s[58:59]"]
            for q in [sq] + sm:
                fill += [f"v_cndmask_b32 {v(q+1)}, {v(q)}, {v(q+2)}, s[48:49]", f"v_cndmask_b32 {v(q)}, {v(q)}, {v(q+2)}, s[48:49]"]
            fill += [f"v_permlane32_swap_b32 {v(q)}, {v(q+1)}" for q in [sq] + sm]
            fill += [f"v_add_f32 {v(q)}, {v(q)}, {v(q+1)}" for q in sm] + [f"v_add_f32 {v(t0)}, {v(sq)}, {v(sq+1)}"]
            fill += [f"v_add_f32 {v(sq)}, {v(sm[0])}, {v(sm[2])}", f"v_add_f32 {v(sq+1)}, {v(sm[1])}, {v(sm[3])}", f"v_add_f32 {v(t1)}, {v(sq)}, {v(sq+1)}"]
            fill += finish_stats(t0, t1, t4, t5)
            fill += [f"ds_write_b32 {v(ad1)}, {v(t0)}", "s_waitcnt lgkmcnt(0)"] + [f"ds_read_b128 {v(rs+4*jj,4)}, {v(ad2)} offset:{32*jj}" for jj in range(4)]
            per = [6] * 8
        interleave(a, mfs, fill, per)
        if sl == 2: few()
    st.mark()
    tmp = xe[0]; pk = [tf[0][0], tf[0][1]]
    ng = lambda *n: f" neg_lo:[{n[0]},{n[1]},{n[2]}] neg_hi:[{n[0]},{n[1]},{n[2]}]"
    for i in range(0, 16, 2):
        r = v(rs+i, 2); P = lambda q, c: v(acc[q][c]+i, 2)
        for q in range(2):
            for c in range(2): a(f"v_pk_mul_f32 {v(tmp+4*q+2*c,2)}, {P(q,c)}, {r}")
        for q in range(2):
            for c in range(2):
                a(f"v_pk_fma_f32 {P(q,c)}, {P(q+2,c)}, {r}, {v(tmp+4*q+2*c,2)}\nv_pk_fma_f32 {P(q+2,c)}, {P(q+2,c)}, {r}, {v(tmp+4*q+2*c,2)}{ng(1,0,0)}")
        a(f"""v_pk_add_f32 {P(0,0)}, {P(0,0)}, {P(1,0)}
              v_pk_add_f32 {P(0,1)}, {P(0,1)}, {P(1,1)}
              v_pk_add_f32 {P(2,0)}, {P(2,0)}, {P(3,1)}
              v_pk_add_f32 {P(2,1)}, {P(2,1)}, {P(3,0)} neg_lo:[0,1] neg_hi:[0,1]
              v_pk_fma_f32 {P(1,0)}, {P(1,0)}, s[60:61], {P(0,0)}{ng(1,0,0)}
              v_pk_fma_f32 {P(1,1)}, {P(1,1)}, s[60:61], {P(0,1)}{ng(0,0,1)}
              v_pk_fma_f32 {P(3,1)}, {P(3,1)}, s[60:61], {P(2,0)}{ng(1,0,0)}
              v_pk_fma_f32 {P(3,0)}, {P(3,0)}, s[60:61], {P(2,1)}{ng(1,0,1)}""")
    few()
    k = 0
    for ty in range(4):
        for c in range(2):
            src = acc[ty][c if ty < 3 else 1 - c]
            for u in range(2):
                pp = pk[k & 1]; k += 1
                for i in range(4): a(f"v_cvt_pk_bf16_f32 {v(pp+i)}, {v(src+8*u+2*i)}, {v(src+8*u+2*i+1)}")
                a(f"ds_write_b128 {v(wad[u])}, {v(pp,4)} offset:{ty*16384 + c*256}")
    a(f"s_cmp_eq_u32 {s(sHF)}, 0\ns_cbranch_scc1 K1_NOSPEC")
    keep = a.snapshot()
    a(f"""v_sub_f32 {v(sq)}, {v(sq)}, {v(sq+1)}
          v_sub_f32 {v(sq+1)}, {v(sm[0])}, {v(sm[2])}
          v_sub_f32 {v(sq+2)}, {v(sm[3])}, {v(sm[1])}
          v_mul_f32 {v(sq)}, {v(sq)}, {v(t0)}
          v_mul_f32 {v(sq+1)}, {v(sq+1)}, {v(t0)}
          v_mul_f32 {v(sq+2)}, {v(sq+2)}, {v(t0)}
          v_cvt_pk_bf16_f32 {v(sq)}, {v(sq)}, 0
          v_cvt_pk_bf16_f32 {v(sq+1)}, {v(sq+1)}, {v(sq+2)}
          ds_write_b16 {v(spa)}, {v(sq)} offset:{2*16384 + 31*512}
          ds_write_b16_d16_hi {v(spa)}, {v(sq)} offset:{2*16384 + 31*512 + 256}
          ds_write_b16 {v(spa)}, {v(sq+1)} offset:{3*16384 + 31*512}
          ds_write_b16_d16_hi {v(spa)}, {v(sq+1)} offset:{3*16384 + 31*512 + 256}""")
    a.label("K1_NOSPEC")
    few()
    x1post()
    st.mark()
    st.n = nc
    a("s_waitcnt vmcnt(0)\ns_barrier")
    a.vm, a.lg, a.hist = [("?", set())], [], []
    vmax = max(vmax, genp.compute23(a, st))
    a.vm, a.lg, a.hist = [("?", set())], [], []; st.n = nl
    vmax = max(vmax, genp.loader23(a, st))
    a.label("K1_END")
    a("s_endpgm")
    return a, max(vmax, V.hi), (163840, 512)
```

```python
from asmfw import Asm, VAlloc, v, s
import __main__ as M
G = M if hasattr(M, "dft_table") else __import__("gen")
OPT = G.OPT; fbits = G.fbits; srd = G.srd; mf32 = G.mf32; mf16 = G.mf16
H_OFF, X1_OFF, WT_OFF, Y1_OFF, PART_OFF, WS_END = G.H_OFF, G.X1_OFF, G.WT_OFF, G.Y1_OFF, G.PART_OFF, G.WS_END
F1_OFF, F2_OFF, F3_OFF, FW_OFF, FX_OFF = G.F1_OFF, G.F2_OFF, G.F3_OFF, G.FW_OFF, G.FX_OFF
SW, S2, SX, SO = 12, 8, 4, 16
sN = 66
XB, WB, EX = 135168, 143360, 151552
OWN, YB, RED = 0, 65536, 131072
NS2 = 5
tid, lane, t0, t1, t2, t3, t4, t5 = range(8)
sV, sQ, sRB, sNB, sL, sHo, s2o, sWR_, sWC, sRT, sCB = 37, 35, 36, 34, 38, 39, 40, 41, 42, 52, 53

def put_flag(a, off, va, vd, per_wave=False):
    a(f"s_lshl_b32 s3, s2, 2\ns_add_u32 s3, s3, {s(sV)}\ns_lshl_b32 s3, s3, 7" if per_wave else "s_lshl_b32 s3, s2, 7")
    a(f"""s_add_u32 s3, s3, {off}
          v_lshlrev_b32 {v(va)}, 2, {v(lane)}
          v_mov_b32 {v(vd)}, {s(sN)}
          s_mov_b64 exec, 0xffffffff
          buffer_store_dword {v(vd)}, {v(va)}, {s(SW,4)}, s3 offen sc1
          s_mov_b64 exec, -1""")
def wait_flags(a, name, pairs, sleep=0, atomic=0):
    def rd(va, vd):
        if atomic: a(f"v_mov_b32 {v(vd)}, 0\nbuffer_atomic_or {v(vd)}, {v(va)}, {s(SW,4)}, 0 offen sc0 sc1"); a.vm[-1] = (None, {('v', vd)})
        else: a(f"buffer_load_dword {v(vd)}, {v(va)}, {s(SW,4)}, 0 offen sc1")
    if sleep: a(f"s_sleep {sleep}")
    if atomic: a(f"s_mov_b64 exec, {(1 << atomic) - 1}")
    for va, vd in pairs: rd(va, vd)
    for i, (va, vd) in enumerate(pairs):
        a(f"v_cmp_ne_u32 vcc, {s(sN)}, {v(vd)}\ns_cbranch_vccz {name}_END{i}\ns_mov_b32 s67, 0")
        keep = a.snapshot()
        a.label(f"{name}_SPIN{i}")
        a("s_mov_b64 exec, vcc")
        if OPT["slS"]: a(f"s_sleep {OPT['slS']}")
        rd(va, vd)
        a(f"""s_add_u32 s67, s67, 1
              s_cmp_gt_u32 s67, {OPT['spinf']}
              s_waitcnt vmcnt(0)
              s_cbranch_scc1 {name}_END{i}
              v_cmp_ne_u32 vcc, {s(sN)}, {v(vd)}
              s_cbranch_vccnz {name}_SPIN{i}""")
        a.label(f"{name}_END{i}")
        a.restore(keep); a.hist = []
        a("s_mov_b64 exec, -1")

def decode2(a, l16):
    a(f"""v_lshlrev_b32 {v(l16)}, 4, {v(lane)}
          v_lshrrev_b32 {v(t1)}, 4, {v(lane)}
          s_bfe_u32 {s(sQ)}, s2, 0x20001
          s_and_b32 s3, s2, 1
          s_lshl_b32 s3, s3, 3
          s_lshr_b32 {s(sRB)}, s2, 5
          s_add_u32 {s(sRB)}, {s(sRB)}, s3
          s_bfe_u32 {s(sNB)}, s2, 0x20003
          s_lshl_b32 {s(sRT)}, {s(sRB)}, 2
          s_add_u32 {s(sRT)}, {s(sRT)}, {s(sQ)}""")

def loader23(a, st):
    a.label("P2_LOADER")
    V = VAlloc(8); l16 = V.get(); v2 = V.get(4); fa, fd, fa2, fd2 = [V.get() for _ in range(4)]
    a("s_load_dwordx2 s[26:27], s[0:1], 40\ns_load_dwordx2 s[28:29], s[0:1], 0\ns_load_dwordx2 s[30:31], s[0:1], 48")
    decode2(a, l16)
    a(f"""s_lshl_b32 s43, s2, 13
          s_lshl_b32 s44, {s(sV)}, 11
          s_add_u32 s43, s43, s44""")
    a(f"""s_add_u32 s47, s43, {X1_OFF}
          s_add_u32 s48, s43, {WT_OFF}
          s_lshl_b32 {s(sL)}, {s(sV)}, 12
          s_lshl_b32 s3, {s(sRB)}, 2
          s_add_u32 s3, s3, {s(sV)}
          s_mul_i32 s3, s3, 112
          s_mul_i32 s43, {s(sQ)}, 28
          s_add_u32 s3, s3, s43
          s_lshl_b32 {s(sHo)}, s3, 10
          s_mul_i32 s3, {s(sQ)}, 448
          s_lshl_b32 s43, {s(sV)}, 4
          s_add_u32 s3, s3, s43
          s_lshl_b32 s3, s3, 10
          s_lshl_b32 s43, {s(sNB)}, 7
          s_add_u32 {s(s2o)}, s3, s43
          v_and_b32 {v(t0)}, 15, {v(lane)}
          v_lshlrev_b32 {v(t2)}, 2, {v(t1)}
          v_xor_b32 {v(t0)}, {v(t0)}, {v(t2)}
          v_lshrrev_b32 {v(t2)}, 3, {v(t0)}
          v_and_b32 {v(t0)}, 7, {v(t0)}
          v_lshlrev_b32 {v(t0)}, 4, {v(t0)}
          v_lshl_add_u32 {v(t0)}, {v(t2)}, 9, {v(t0)}
          v_lshl_add_u32 {v(v2)}, {v(t1)}, 10, {v(t0)}
          v_add_u32 {v(v2+1)}, 3072, {v(v2)}
          v_add_u32 {v(v2+2)}, 6144, {v(v2)}
          v_add_u32 {v(v2+3)}, 9216, {v(v2)}""")
    a(f"""s_lshr_b32 s3, s2, 4
          s_lshl_b32 s3, s3, 7
          s_add_u32 s3, s3, {FW_OFF}
          v_lshl_add_u32 {v(fa)}, {v(lane)}, 11, s3
          s_add_u32 s3, s2, 1
          s_and_b32 s3, s3, 127
          s_sub_u32 s43, 128, s3
          s_min_u32 s3, s3, s43
          s_sub_u32 s3, s3, 1
          s_bfe_u32 s3, s3, 0x10005
          s_add_u32 s3, s3, 224
          s_lshl_b32 s3, s3, 7
          s_add_u32 s3, s3, {FX_OFF}
          v_and_b32 {v(t0)}, 15, {v(lane)}
          v_lshl_add_u32 {v(fa2)}, {v(t0)}, 8, s3""")
    a.waitlg()
    srd(a, S2, 26, 27, 1792 * 1024)
    st.mark()
    a("s_barrier")
    def dma(slab, q):
        slot = slab % NS2; part, hf = q >> 1, q & 1
        if hf == 0: a(f"s_add_u32 m0, {s(sL)}, {slot*32768 + part*16384}")
        for j in (2*hf, 2*hf + 1):
            if part == 0: a(f"buffer_load_dwordx4 {v(l16)}, {s(SW,4)}, {s(sHo)} offen offset:{1024*j} sc1 lds", tag=f"S{slab}")
            else: a(f"buffer_load_dwordx4 {v(v2+j)}, {s(S2,4)}, {s(s2o)} offen offset:{1024*j} lds", tag=f"S{slab}")
        if hf == 1:
            reg, step = (sHo, 4096) if part == 0 else (s2o, 65536)
            a(f"s_add_u32 {s(reg)}, {s(reg)}, {step}")
    npre = OPT["k2sched"][0] // 4
    for sl in range(OPT["w2pre"]): dma(sl, 2); dma(sl, 3)
    if OPT["f1bar"]: a("s_barrier")
    wait_flags(a, "P2_FX", [(fa, fd), (fa2, fd2)], OPT["slX"])
    st.mark()
    for base, so in ((XB, 47), (WB, 48)):
        a(f"s_add_u32 m0, s44, {base}")
        for j in range(2): a(f"buffer_load_dwordx4 {v(l16)}, {s(SW,4)}, s{so} offen offset:{1024*j} sc1 lds", tag="X")
    for sl in range(OPT["w2pre"], npre): dma(sl, 2); dma(sl, 3)
    a(f"""s_and_b32 s3, {s(sRB)}, 3
          s_lshl_b32 s3, s3, 3
          s_lshr_b32 s43, {s(sRB)}, 2
          s_lshl_b32 s43, s43, 1
          s_add_u32 s3, s3, s43
          s_lshr_b32 s43, {s(sQ)}, 1
          s_add_u32 s3, s3, s43
          s_and_b32 s43, {s(sQ)}, 1
          s_mul_i32 s43, s43, 96
          s_add_u32 s3, s3, s43
          s_lshl_b32 s3, s3, 2
          s_and_b32 s43, {s(sV)}, 2
          s_add_u32 s3, s3, s43
          s_lshl_b32 s3, s3, 7
          s_add_u32 s3, s3, {F1_OFF}
          v_and_b32 {v(t0)}, 3, {v(lane)}
          v_lshl_add_u32 {v(fa)}, {v(t0)}, 14, s3
          v_bfe_u32 {v(t0)}, {v(lane)}, 2, 1
          v_lshl_add_u32 {v(fa)}, {v(t0)}, 7, {v(fa)}""")
    a.waitvm("X"); a("s_barrier")
    wait_flags(a, "P2_FH", [(fa, fd)], OPT["slH"], 8 * (OPT["atm"] & 1))
    st.mark()
    for sl in range(npre): dma(sl, 0); dma(sl, 1)
    a("s_barrier")
    quarters = [(i >> 2, i & 3) for i in range(28)]; pos = 0
    for ph, cnt in enumerate(OPT["k2sched"]):
        if ph == 2:
            a(f"s_cmp_lg_u32 {s(sV)}, 0\ns_cbranch_scc1 P2_NOFLAG")
            keep = a.snapshot(); put_flag(a, F3_OFF, t0, t2); a.label("P2_NOFLAG"); a.restore(keep)
        for (sl, part) in quarters[pos:pos+cnt]:
            assert sl < NS2 or sl - NS2 <= ph - 2, (sl, ph)
            if ph: dma(sl, part)
        pos += cnt
        if ph == 6:
            vy = V.get(4); vxo = V.get(); vpo = V.get(); pt = V.get(24); xv = V.get(8); rr = V.get(2); sYo = 39
            a(f"""s_lshl_b32 {s(sL)}, {s(sV)}, 13
                  s_add_u32 {s(sL)}, {s(sL)}, {YB}
                  v_and_b32 {v(t0)}, 3, {v(lane)}
                  v_lshlrev_b32 {v(t0)}, 4, {v(t0)}
                  v_bfe_u32 {v(t2)}, {v(lane)}, 2, 1
                  v_lshl_add_u32 {v(t0)}, {v(t2)}, 12, {v(t0)}
                  v_lshrrev_b32 {v(t1)}, 3, {v(lane)}
                  v_lshl_add_u32 {v(vy)}, {v(t1)}, 14, {v(t0)}
                  v_add_u32 {v(vy+1)}, 130048, {v(vy)}
                  v_add_u32 {v(vy+2)}, {2*130048}, {v(vy)}
                  v_add_u32 {v(vy+3)}, {3*130048}, {v(vy)}
                  s_and_b32 s3, {s(sV)}, 1
                  s_lshl_b32 s3, s3, 7
                  s_lshr_b32 s40, {s(sV)}, 1
                  s_add_u32 s3, s3, s40
                  s_lshl_b32 s41, s3, 7
                  s_add_u32 s41, s41, {F3_OFF}
                  v_lshl_add_u32 {v(fa)}, {v(lane)}, 8, s41
                  s_lshl_b32 s3, s3, 13
                  s_lshl_b32 s40, {s(sRT)}, 6
                  s_add_u32 s3, s3, s40
                  s_add_u32 {s(sYo)}, s3, {Y1_OFF}""")
        a.waitvm(f"S{ph}")
        a("s_barrier")
        if ph in (0, 6): st.mark()
    assert pos == 28 and len(OPT["k2sched"]) == 7 and OPT["k2sched"][6] == 0
    wait_flags(a, "P3_FY", [(fa, fd)], OPT["slY"])
    a("s_barrier")
    def epoch():
        a(f"s_or_b32 s3, s2, {s(sV)}\ns_cmp_lg_u32 s3, 0\ns_cbranch_scc1 P3_NOEPOCH")
        keep = a.snapshot()
        a(f"""v_mov_b32 {v(t0)}, {G.EPOCH_OFF}
              v_mov_b32 {v(t2)}, {s(sN)}
              s_mov_b64 exec, 1
              buffer_store_dword {v(t2)}, {v(t0)}, {s(SW,4)}, 0 offen sc1
              s_mov_b64 exec, -1""")
        a.label("P3_NOEPOCH"); a.restore(keep)
    if OPT["ep"] == 0: epoch()
    for g in range(2):
        a(f"s_add_u32 m0, {s(sL)}, {g*4096}")
        for j in range(4): a(f"buffer_load_dwordx4 {v(vy+j)}, {s(SW,4)}, {s(sYo)} offen offset:{1024*j} sc1 lds", tag="Y")
        if g == 0: a(f"s_add_u32 {s(sYo)}, {s(sYo)}, 524288")
    srd(a, SX, 28, 29, 0x200000); srd(a, SO, 30, 31, 0x200000)
    a(f"""v_lshrrev_b32 {v(t3)}, 5, {v(lane)}
          v_bfe_u32 {v(t1)}, {v(lane)}, 3, 2
          v_lshl_add_u32 {v(t0)}, {v(t3)}, 4, {v(t1)}
          v_and_b32 {v(t2)}, 7, {v(lane)}
          v_lshlrev_b32 {v(t4)}, 4, {v(t2)}
          v_lshl_add_u32 {v(vxo)}, {v(t0)}, 10, {v(t4)}
          s_lshr_b32 s3, {s(sRB)}, 2
          s_lshl_b32 s3, s3, 2
          s_add_u32 s3, s3, {s(sQ)}
          s_lshl_b32 s3, s3, 2
          s_add_u32 s3, s3, {s(sV)}
          s_lshl_b32 s3, s3, 3
          s_and_b32 s40, {s(sRB)}, 3
          s_add_u32 s3, s3, s40
          s_lshl_b32 s3, s3, 5
          s_add_u32 s3, s3, {s(sNB)}
          s_lshl_b32 s45, s3, 7""")
    for lh in range(2): a(f"buffer_load_dwordx4 {v(xv+4*lh,4)}, {v(vxo)}, {s(SX,4)}, s45 offen offset:{512*lh}", tag="P")
    a(f"""s_lshl_b32 s3, {s(sRT)}, 3
          s_add_u32 s3, s3, {s(sNB)}
          s_lshl_b32 s3, s3, 3
          s_add_u32 s3, s3, {s(sV)}
          s_lshl_b32 s3, s3, 9
          s_add_u32 s43, s3, {PART_OFF}
          v_lshrrev_b32 {v(t0)}, 3, {v(lane)}
          v_and_b32 {v(t1)}, 3, {v(lane)}
          v_lshlrev_b32 {v(t4)}, 4, {v(t1)}
          v_lshl_add_u32 {v(t4)}, {v(t0)}, 6, {v(t4)}
          v_bfe_u32 {v(t5)}, {v(lane)}, 2, 1
          v_lshl_add_u32 {v(vpo)}, {v(t5)}, 11, {v(t4)}
          v_max_u32 {v(t1)}, 1, {v(t1)}
          v_add_u32 {v(t1)}, {s(sQ)}, {v(t1)}
          v_and_b32 {v(t1)}, 3, {v(t1)}
          s_andn2_b32 s3, s2, 6
          s_lshl_b32 s3, s3, 2
          s_and_b32 s40, {s(sQ)}, 2
          s_add_u32 s3, s3, s40
          s_lshl_b32 s3, s3, 7
          s_add_u32 s3, s3, {F2_OFF}
          v_lshl_add_u32 {v(fa)}, {v(t1)}, 10, s3
          v_lshl_add_u32 {v(fa)}, {v(t5)}, 7, {v(fa)}
          s_lshl_b32 s3, {s(sV)}, 11
          v_lshl_add_u32 {v(t4)}, {v(t0)}, 8, s3
          v_lshlrev_b32 {v(t2)}, 1, {v(t2)}
          v_xor_b32 {v(t0)}, {v(t0)}, {v(t2)}
          v_lshl_add_u32 {v(rr)}, {v(t0)}, 4, {v(t4)}
          v_xor_b32 {v(rr+1)}, 16, {v(rr)}
          v_add_u32 {v(fa2)}, {RED}, {v(rr)}
          v_add_u32 {v(fd2)}, {RED}, {v(rr+1)}
          s_mov_b32 s46, 0xffff0000
          s_mov_b32 s48, {fbits(1/256)}
          s_mov_b32 s49, {fbits(1/256)}""")
    a.waitvm("Y"); a("s_barrier")
    st.mark()
    bs = [V.get(8), V.get(8)]; u0 = V.get(8); red = V.get(32); pk = V.get(8)
    for lh in range(2):
        for b in range(2): a(f"ds_read_b128 {v(bs[lh]+4*b,4)}, {v(rr+b)} offset:{OWN + 8192*lh}")
    def add_bf16(src):
        for lh in range(2):
            for i in range(4): a(f"v_lshlrev_b32 {v(u0+2*i)}, 16, {v(src+4*lh+i)}\nv_and_b32 {v(u0+2*i+1)}, s46, {v(src+4*lh+i)}")
            for i in range(8): a(f"v_add_f32 {v(bs[lh]+i)}, {v(bs[lh]+i)}, {v(u0+i)}")
    add_bf16(xv)
    wait_flags(a, "P3_FP", [(fa, fd)], OPT["slP"], 4 * (OPT["atm"] & 2))
    st.mark()
    for q in range(3):
        a(f"s_add_u32 s3, {s(sQ)}, {q+1}\ns_and_b32 s3, s3, 3\ns_lshl_b32 s3, s3, 21\ns_add_u32 s40, s43, s3\ns_add_u32 s41, s40, 16384")
        for lh in range(2): a(f"buffer_load_dwordx4 {v(pt + 8*q + 4*lh,4)}, {v(vpo)}, {s(SW,4)}, s{40+lh} offen sc1", tag="P")
    a("s_barrier")
    for b in range(2):
        for w in range(4): a(f"ds_read_b128 {v(red+8*w+4*b,4)}, {v(fd2 if b else fa2)} offset:{8192*w}")
    for i in range(0, 8, 2):
        a(f"""v_pk_add_f32 {v(red+i,2)}, {v(red+i,2)}, {v(red+8+i,2)}
              v_pk_add_f32 {v(red+16+i,2)}, {v(red+16+i,2)}, {v(red+24+i,2)}
              v_pk_fma_f32 {v(bs[0]+i,2)}, {v(red+16+i,2)}, s[48:49], {v(bs[0]+i,2)}
              v_pk_fma_f32 {v(bs[1]+i,2)}, {v(red+16+i,2)}, s[48:49], {v(bs[1]+i,2)}
              v_pk_fma_f32 {v(bs[0]+i,2)}, {v(red+i,2)}, s[48:49], {v(bs[0]+i,2)}
              v_pk_fma_f32 {v(bs[1]+i,2)}, {v(red+i,2)}, s[48:49], {v(bs[1]+i,2)} neg_lo:[1,0,0] neg_hi:[1,0,0]""")
    st.mark()
    for q in range(3):
        for lh in range(2):
            for i in range(4): a(f"v_lshlrev_b32 {v(u0+2*i)}, 16, {v(pt+8*q+4*lh+i)}\nv_and_b32 {v(u0+2*i+1)}, s46, {v(pt+8*q+4*lh+i)}")
            for i in range(0, 8, 2): a(f"v_pk_add_f32 {v(bs[lh]+i,2)}, {v(bs[lh]+i,2)}, {v(u0+i,2)}")
            if q == 2:
                for i in range(4): a(f"v_cvt_pk_bf16_f32 {v(pk+4*lh+i)}, {v(bs[lh]+2*i)}, {v(bs[lh]+2*i+1)}")
                a(f"buffer_store_dwordx4 {v(pk+4*lh,4)}, {v(vxo)}, {s(SO,4)}, s45 offen offset:{512*lh} {OPT['stO']}")
    if OPT["ep"] == 1: epoch()
    st.mark()
    st.flush(SW, red, tid, 256, 1)
    a("s_endpgm")
    return V.hi

def compute23(a, st):
    a.label("P2_COMPUTE")
    a("s_barrier")
    V = VAlloc(8); l16 = V.get()
    decode2(a, l16)
    a(f"""s_lshr_b32 {s(sWR_)}, {s(sV)}, 1
          s_and_b32 {s(sWC)}, {s(sV)}, 1""")
    xrd, exw, exr0, exr1, pad, wrd = [V.get() for _ in range(6)]
    ha = [[V.get(), V.get()] for _ in range(3)]; wa = [[V.get(), V.get()] for _ in range(3)]
    ow = V.get(4)
    acc = [[V.get(16) for _ in range(2)] for _ in range(2)]
    hf = [[V.get(4) for _ in range(2)] for _ in range(3)]
    wf = [[V.get(4) for _ in range(2)] for _ in range(3)]
    V3 = V.n
    C64 = [V.get(4) for _ in range(2)]; S64 = [V.get(4) for _ in range(2)]; N64 = [V.get(4) for _ in range(2)]
    C32 = [V.get(4) for _ in range(2)]; S32 = [V.get(4) for _ in range(2)]; N32 = [V.get(4) for _ in range(2)]
    c1 = V.get(8); s1 = V.get(8); c2 = V.get(8); s2_ = V.get(8)
    P = [V.get(4), V.get(4)]
    fr = hf[0][0]; assert wf[2][1] + 4 == fr + 48
    fj, fg, fk, ang = fr, fr + 1, fr + 2, fr + 3; cb = fr + 4; sb = fr + 12
    xin = [[[fr + 4*((c*2 + m)*2 + t) for t in range(2)] for m in range(2)] for c in range(2)]
    D = [acc[0][0], acc[0][0] + 8]; E = [acc[0][1], acc[0][1] + 8]; wr = acc[1][0]; wi = acc[1][0] + 8; wd = acc[1][1]
    a(f"""v_and_b32 {v(t0)}, 15, {v(lane)}
          v_cvt_f32_u32 {v(fj)}, {v(t0)}
          v_cvt_f32_u32 {v(fg)}, {v(t1)}
          s_lshl_b32 s3, {s(sV)}, 4
          v_add_u32 {v(t0)}, s3, {v(t0)}
          v_cvt_f32_u32 {v(fk)}, {v(t0)}
          s_mov_b32 s47, 0x80008000""")
    def frag(step, base, offs, Cd, Sd, Nd):
        for e in range(8):
            a(f"v_mov_b32 {v(t4)}, {fbits(float(offs[e]))}\nv_fma_f32 {v(ang)}, {v(t4)}, {v(step)}, {v(base)}" if offs[e] not in (0, 1, 2, 4) else
              (f"v_mov_b32 {v(ang)}, {v(base)}" if offs[e] == 0 else f"v_fma_f32 {v(ang)}, {float(offs[e])}, {v(step)}, {v(base)}"))
            a(f"v_cos_f32 {v(cb+e)}, {v(ang)}\nv_sin_f32 {v(sb+e)}, {v(ang)}")
        for i in range(4):
            a(f"v_cvt_pk_bf16_f32 {v(Cd+i)}, {v(cb+2*i)}, {v(cb+2*i+1)}\nv_cvt_pk_bf16_f32 {v(Sd+i)}, {v(sb+2*i)}, {v(sb+2*i+1)}\nv_xor_b32 {v(Nd+i)}, s47, {v(Sd+i)}")
    a(f"v_mul_f32 {v(t2)}, {fbits(1/64)}, {v(fk)}\nv_mul_f32 {v(t3)}, {fbits(8.0)}, {v(fg)}\nv_mul_f32 {v(t5)}, {v(t3)}, {v(t2)}")
    frag(t2, t5, list(range(8)), C64[0], S64[0], N64[0])
    a(f"v_add_f32 {v(t3)}, {fbits(32.0)}, {v(t3)}\nv_mul_f32 {v(t5)}, {v(t3)}, {v(t2)}")
    frag(t2, t5, list(range(8)), C64[1], S64[1], N64[1])
    o32 = [0, 1, 2, 3, 16, 17, 18, 19]
    a(f"v_mul_f32 {v(t3)}, 4.0, {v(fg)}")
    for m in range(2):
        a(f"v_mul_f32 {v(t2)}, {fbits(1/32)}, {v(fj)}")
        if m: a(f"v_add_f32 {v(t2)}, 0.5, {v(t2)}")
        a(f"v_mul_f32 {v(t5)}, {v(t3)}, {v(t2)}")
        frag(t2, t5, o32, C32[m], S32[m], N32[m])
    a(f"v_mul_f32 {v(t2)}, {fbits(1/2048)}, {v(fk)}\nv_mul_f32 {v(t5)}, {v(t3)}, {v(t2)}")
    for e in range(8):
        a(f"v_mov_b32 {v(t4)}, {fbits(float(o32[e]))}\nv_fma_f32 {v(ang)}, {v(t4)}, {v(t2)}, {v(t5)}\nv_cos_f32 {v(c1+e)}, {v(ang)}\nv_sin_f32 {v(s1+e)}, {v(ang)}")
    a(f"v_cvt_f32_u32 {v(t4)}, s3\nv_add_f32 {v(t3)}, {v(t3)}, {v(t4)}")
    for m in range(2):
        a(f"v_mul_f32 {v(t2)}, {fbits(1/2048)}, {v(fj)}")
        if m: a(f"v_add_f32 {v(t2)}, {fbits(16/2048)}, {v(t2)}")
        a(f"v_mul_f32 {v(ang)}, {v(t3)}, {v(t2)}")
        for r in range(4):
            if r: a(f"v_add_f32 {v(ang)}, {v(ang)}, {v(t2)}")
            a(f"v_cos_f32 {v(c2+4*m+r)}, {v(ang)}\nv_sin_f32 {v(s2_+4*m+r)}, {v(ang)}")
    a(f"s_mov_b32 s48, {fbits(1/2048)}\ns_mov_b32 s49, {fbits(1/2048)}")
    for i in range(0, 8, 2): a(f"v_pk_mul_f32 {v(c2+i,2)}, {v(c2+i,2)}, s[48:49]\nv_pk_mul_f32 {v(s2_+i,2)}, {v(s2_+i,2)}, s[48:49]")
    a(f"""v_and_b32 {v(t0)}, 15, {v(lane)}
          v_lshrrev_b32 {v(t2)}, 1, {v(t1)}
          v_and_b32 {v(t3)}, 1, {v(t1)}
          v_lshlrev_b32 {v(t4)}, 5, {v(t0)}
          v_lshl_add_u32 {v(t4)}, {v(t2)}, 9, {v(t4)}
          v_lshl_add_u32 {v(t4)}, {v(t3)}, 4, {v(t4)}
          v_add_u32 {v(xrd)}, {XB}, {v(t4)}
          v_lshrrev_b32 {v(t4)}, 1, {v(t0)}
          v_lshlrev_b32 {v(t0)}, 7, {v(t0)}
          v_add_u32 {v(t0)}, {EX}, {v(t0)}
          v_xor_b32 {v(t5)}, {v(t4)}, {v(t1)}
          v_lshl_add_u32 {v(exr0)}, {v(t5)}, 4, {v(t0)}
          v_xor_b32 {v(exr1)}, 64, {v(exr0)}
          s_lshl_b32 s3, {s(sV)}, 1
          v_add_u32 {v(t2)}, s3, {v(t2)}
          v_xor_b32 {v(t2)}, {v(t2)}, {v(t4)}
          v_lshl_add_u32 {v(t2)}, {v(t2)}, 4, {v(t0)}
          v_lshl_add_u32 {v(exw)}, {v(t3)}, 3, {v(t2)}""")
    a(f"s_lshl_b32 s3, {s(sV)}, 11\ns_add_u32 s3, s3, {WB}\nv_add_u32 {v(wrd)}, s3, {v(l16)}")
    a(f"""s_lshl_b32 s3, {s(sWR_)}, 1
          s_and_b32 s50, {s(sQ)}, 1
          s_add_u32 s50, s50, s3
          s_lshl_b32 s3, s50, 12
          v_add_u32 {v(ha[0][0])}, s3, {v(l16)}
          v_xor_b32 {v(ha[0][1])}, 0x1000, {v(ha[0][0])}
          v_add_u32 {v(ha[1][0])}, 65536, {v(ha[0][0])}
          v_add_u32 {v(ha[1][1])}, 65536, {v(ha[0][1])}
          v_add_u32 {v(ha[2][1])}, 131072, {v(ha[0][1])}
          v_lshrrev_b32 {v(t3)}, 5, {v(lane)}
          v_bfe_u32 {v(t0)}, {v(lane)}, 2, 2
          v_lshl_add_u32 {v(t1)}, {v(t3)}, 3, {v(t0)}
          v_lshlrev_b32 {v(t1)}, 8, {v(t1)}
          s_lshl_b32 s3, {s(sWC)}, 1
          v_xor_b32 {v(t0)}, s3, {v(t0)}
          v_lshl_add_u32 {v(t1)}, {v(t0)}, 6, {v(t1)}
          v_bfe_u32 {v(t0)}, {v(lane)}, 4, 1
          v_lshl_add_u32 {v(t1)}, {v(t0)}, 5, {v(t1)}
          v_and_b32 {v(t0)}, 1, {v(lane)}
          v_lshl_add_u32 {v(t1)}, {v(t0)}, 4, {v(t1)}
          v_bfe_u32 {v(t0)}, {v(lane)}, 1, 1
          v_lshl_add_u32 {v(t1)}, {v(t0)}, 3, {v(t1)}
          v_add_u32 {v(wa[0][0])}, 16384, {v(t1)}
          v_xor_b32 {v(wa[0][1])}, 64, {v(wa[0][0])}
          v_add_u32 {v(wa[1][0])}, 65536, {v(wa[0][0])}
          v_add_u32 {v(wa[1][1])}, 65536, {v(wa[0][1])}
          v_add_u32 {v(ha[2][0])}, 131072, {v(ha[0][0])}
          v_add_u32 {v(wa[2][0])}, 131072, {v(wa[0][0])}
          v_add_u32 {v(wa[2][1])}, 131072, {v(wa[0][1])}""")
    a(f"""v_and_b32 {v(t0)}, 15, {v(lane)}
          v_lshlrev_b32 {v(t0)}, 6, {v(t0)}
          v_lshl_add_u32 {v(t0)}, {v(t3)}, 4, {v(t0)}
          v_bfe_u32 {v(t1)}, {v(lane)}, 4, 1
          v_lshl_add_u32 {v(pad)}, {v(t1)}, 5, {v(t0)}
          s_lshl_b32 s3, {s(sRB)}, 2
          s_add_u32 s3, s3, s50
          s_lshl_b32 s3, s3, 1
          s_add_u32 s3, s3, {s(sWC)}
          s_lshl_b32 s3, s3, 2
          s_add_u32 s3, s3, {s(sNB)}
          s_lshl_b32 s3, s3, 12
          s_lshl_b32 s43, {s(sQ)}, 21
          s_add_u32 s3, s3, s43
          s_add_u32 s54, s3, {PART_OFF}
          s_xor_b32 s55, s54, 32768
          v_and_b32 {v(t0)}, 31, {v(lane)}
          s_lshl_b32 s3, {s(sWC)}, 13
          v_lshl_add_u32 {v(t0)}, {v(t0)}, 8, s3
          v_and_b32 {v(t2)}, 7, {v(lane)}
          v_lshlrev_b32 {v(t4)}, 1, {v(t3)}
          v_xor_b32 {v(t2)}, {v(t2)}, {v(t4)}""")
    for k in range(4): a(f"v_xor_b32 {v(t4)}, {(k >> 1)*4 + (k & 1)}, {v(t2)}\nv_lshl_add_u32 {v(ow+k)}, {v(t4)}, 4, {v(t0)}")
    a(f"""s_lshl_b32 s3, s2, 13
          s_lshl_b32 s43, {s(sV)}, 10
          s_add_u32 s3, s3, s43
          s_add_u32 s44, s3, {Y1_OFF}
          s_add_u32 s45, s44, 4096""")
    a("s_waitcnt vmcnt(0)")
    put_flag(a, F1_OFF, t0, t2, True)
    if OPT["f1bar"]: a("s_barrier")
    st.mark()
    a("s_barrier")
    st.mark()
    for m in range(2):
        for t in range(2):
            for c in range(2): a(f"ds_read_b128 {v(xin[c][m][t],4)}, {v(xrd)} offset:{c*4096 + m*2048 + t*1024}")
    for j in range(2): a(f"ds_read_b128 {v(wd+4*j,4)}, {v(wrd)} offset:{1024*j}")
    def big(src, Cc, Sre, Sim, fill=()):
        mfs = []
        for m in range(2):
            for t in range(2):
                z = "0" if t == 0 else None
                mfs += [lambda m=m, t=t, z=z: mf16(a, D[0]+4*m, src[0][m][t], Cc[t], z), lambda m=m, t=t, z=z: mf16(a, D[1]+4*m, src[0][m][t], Sim[t], z),
                        lambda m=m, t=t: mf16(a, D[0]+4*m, src[1][m][t], Sre[t]), lambda m=m, t=t: mf16(a, D[1]+4*m, src[1][m][t], Cc[t])]
        G.interleave(a, mfs, fill, [0] * 8 + [2] * 8)
    def cmul(cc, ss, nre, nim):
        ng = lambda n: " neg_lo:[0,1,0] neg_hi:[0,1,0]" if n < 0 else ""
        for i in range(0, 8, 2):
            a(f"""v_pk_mul_f32 {v(E[0]+i,2)}, {v(D[0]+i,2)}, {v(cc+i,2)}
                  v_pk_mul_f32 {v(E[1]+i,2)}, {v(D[1]+i,2)}, {v(cc+i,2)}
                  v_pk_fma_f32 {v(E[0]+i,2)}, {v(D[1]+i,2)}, {v(ss+i,2)}, {v(E[0]+i,2)}{ng(nre)}
                  v_pk_fma_f32 {v(E[1]+i,2)}, {v(D[0]+i,2)}, {v(ss+i,2)}, {v(E[1]+i,2)}{ng(nim)}""")
        for c in range(2):
            for i in range(4): a(f"v_cvt_pk_bf16_f32 {v(P[c]+i)}, {v(E[c]+2*i)}, {v(E[c]+2*i+1)}")
    a("s_mov_b32 s46, 0xffff0000")
    big(xin, C64, S64, N64, sum(([f"v_lshlrev_b32 {v(wr+i)}, 16, {v(wd+i)}", f"v_and_b32 {v(wi+i)}, s46, {v(wd+i)}"] for i in range(8)), []))
    cmul(c1, s1, +1, -1)
    for m in range(2):
        mf16(a, D[0]+4*m, C32[m], P[0], "0"); mf16(a, D[1]+4*m, N32[m], P[0], "0")
        mf16(a, D[0]+4*m, S32[m], P[1]); mf16(a, D[1]+4*m, C32[m], P[1])
    cmul(wr, wi, -1, +1)
    for m in range(2):
        mf16(a, D[0]+4*m, P[0], C32[m], "0"); mf16(a, D[1]+4*m, P[0], S32[m], "0")
        mf16(a, D[0]+4*m, P[1], N32[m]); mf16(a, D[1]+4*m, P[1], C32[m])
    cmul(c2, s2_, -1, +1)
    for c in range(2):
        for m in range(2): a(f"ds_write_b64 {v(exw)}, {v(P[c]+2*m,2)} offset:{c*4096 + m*2048}")
    a.waitlg(); a("s_barrier")
    for m in range(2):
        for t in range(2):
            for c in range(2): a(f"ds_read_b128 {v(xin[c][m][t],4)}, {v(exr1 if t else exr0)} offset:{c*4096 + m*2048}")
    big(xin, C64, N64, S64)
    for c in range(2):
        for i in range(4): a(f"v_cvt_pk_bf16_f32 {v(P[c]+i)}, {v(D[c]+2*i)}, {v(D[c]+2*i+1)}")
        a(f"buffer_store_dwordx4 {v(P[c],4)}, {v(l16)}, {s(SW,4)}, s{44+c} offen {OPT['stY']}", tag="st")
    st.mark()
    def reads(n):
        if n >= 28: return []
        slab, t = divmod(n, 4); slot = slab % NS2; se, off = slot >> 1, (slot & 1) * 32768; b = n % 3
        r = []
        for T in range(2):
            r.append(f"ds_read_b128 {v(hf[b][T],4)}, {v(ha[se][T])} offset:{off + t*1024}")
            r.append(f"ds_read_b64_tr_b16 {v(wf[b][T],2)}, {v(wa[se][T])} offset:{off + t*4096}")
            r.append(f"ds_read_b64_tr_b16 {v(wf[b][T]+2,2)}, {v(wa[se][T])} offset:{off + t*4096 + 1024}")
        return r
    def bar():
        a.waitvm(None, lg0=True); a("s_barrier")
    a("s_barrier")
    st.mark()
    for r in reads(0) + reads(1): a(r)
    for n in range(28):
        b = n % 3; z = "0" if n == 0 else None
        mfs = [(lambda F=F, S=S: mf32(a, acc[F][S], wf[b][F], hf[b][S], z)) for (F, S) in ((0, 1), (1, 1), (0, 0), (1, 0))]
        fill = reads(n + 2); per = [3, 3, 0, 0]
        if n % 4 == 2 and n < 24: fill = [bar] + fill; per = [3, 2, 2, 0]
        G.interleave(a, mfs, fill, per)
    st.mark()
    def part(F, S, pp):
        for i in range(8): a(f"v_cvt_pk_bf16_f32 {v(pp+i)}, {v(acc[F][S]+2*i)}, {v(acc[F][S]+2*i+1)}")
        for i in range(4): a(f"v_permlane16_swap_b32 {v(pp+i)}, {v(pp+4+i)}")
        for u in range(2): a(f"buffer_store_dwordx4 {v(pp+4*u,4)}, {v(pad)}, {s(SW,4)}, s{54+S} offen offset:{2048*F + 1024*u} {OPT['stP']}")
    for F in range(2): part(F, 1, fr + 8 + 8*F)
    a(f"s_lshr_b32 s3, {s(sQ)}, 1\ns_cmp_eq_u32 s3, {s(sWR_)}\ns_cbranch_scc1 P3_OWN")
    keep = a.snapshot()
    for F in range(2): part(F, 0, fr + 32 + 8*F)
    a("s_branch P3_JOIN")
    a.restore(keep)
    a.label("P3_OWN")
    for F in range(2):
        for k in range(4): a(f"ds_write_b128 {v(ow+k)}, {v(acc[F][0]+4*k,4)} offset:{OWN + 128*F}")
    a.label("P3_JOIN")
    a("s_barrier")
    vmax = V.hi; V = VAlloc(V3); fa, fd = V.get(), V.get()
    df = [V.get(32), V.get(32)]; cs_ = V.get(4); ang = [V.get(), V.get()]; dd = [V.get(), V.get()]; d5 = [V.get(), V.get()]; hf_ = V.get()
    gen = [f"v_and_b32 {v(t0)}, 31, {v(lane)}", f"s_lshl_b32 s3, {s(sNB)}, 6", f"v_add_u32 {v(t0)}, s3, {v(t0)}", f"v_cvt_f32_u32 {v(dd[0])}, {v(t0)}",
           f"s_and_b32 s3, {s(sV)}, 1", f"s_lshl_b32 s3, s3, 7", f"s_lshr_b32 s40, {s(sV)}, 1", f"s_add_u32 s3, s3, s40", f"s_add_u32 s3, s3, 1",
           f"v_lshl_add_u32 {v(t0)}, {v(t3)}, 3, s3", f"v_cvt_f32_u32 {v(t1)}, {v(t0)}", f"v_mul_f32 {v(dd[0])}, {fbits(1/256)}, {v(dd[0])}",
           f"v_mul_f32 {v(t1)}, 0.5, {v(t1)}", f"v_add_f32 {v(dd[1])}, {fbits(0.125)}, {v(dd[0])}",
           f"v_cmp_eq_u32 vcc, {256 - 118}, {v(t0)}", f"v_mov_b32 {v(hf_)}, 1.0"]
    for T in range(2): gen += [f"v_mul_f32 {v(ang[T])}, {v(t1)}, {v(dd[T])}", f"v_mul_f32 {v(d5[T])}, {fbits(5.0)}, {v(dd[T])}"]
    gen += [f"v_cndmask_b32 {v(hf_)}, {v(hf_)}, 0.5, vcc"]
    for t in range(8):
        for e in range(4):
            for T in range(2):
                c, s_ = cs_ + 2 * T, cs_ + 2 * T + 1
                gen += [f"v_cos_f32 {v(c)}, {v(ang[T])}", f"v_sin_f32 {v(s_)}, {v(ang[T])}"]
                if (t, e) == (7, 3): gen += [f"v_mul_f32 {v(c)}, {v(c)}, {v(hf_)}"]
                else: gen += [f"v_add_f32 {v(ang[T])}, {v(ang[T])}, {v(dd[T] if e < 3 else d5[T])}"]
                gen += [f"v_cvt_pk_bf16_f32 {v(df[T]+4*t+e)}, {v(c)}, -{v(s_)}"]
    half = OPT["ghalf"]
    for r in gen[:half]: a(r)
    a("s_waitcnt vmcnt(0)")
    put_flag(a, F2_OFF, fa, fd, True)
    st.mark()
    for r in gen[half:]: a(r)
    ya = V.get(); yf = [fr + 4*i for i in range(8)]; acc = [acc[0][1], acc[1][1]]
    rw = V.get(4)
    a(f"""v_bfe_u32 {v(t1)}, {v(lane)}, 2, 2
          v_lshl_add_u32 {v(t0)}, {v(t3)}, 3, {v(t1)}
          v_lshlrev_b32 {v(t0)}, 6, {v(t0)}
          v_bfe_u32 {v(t2)}, {v(lane)}, 4, 1
          v_lshl_add_u32 {v(t0)}, {v(t2)}, 5, {v(t0)}
          v_and_b32 {v(t2)}, 3, {v(lane)}
          v_lshl_add_u32 {v(t0)}, {v(t2)}, 3, {v(t0)}
          s_lshl_b32 s3, {s(sV)}, 13
          s_add_u32 s40, s3, {YB}
          v_add_u32 {v(ya)}, s40, {v(t0)}
          v_and_b32 {v(t0)}, 31, {v(lane)}
          s_add_u32 s3, s3, {RED}
          v_lshl_add_u32 {v(t0)}, {v(t0)}, 8, s3
          v_and_b32 {v(t2)}, 7, {v(lane)}
          v_xor_b32 {v(t2)}, {v(t2)}, {v(t3)}""")
    for jj in range(4): a(f"v_xor_b32 {v(t4)}, {2*jj}, {v(t2)}\nv_lshl_add_u32 {v(rw+jj)}, {v(t4)}, 4, {v(t0)}")
    a("s_waitcnt lgkmcnt(0)\ns_barrier")
    st.mark()
    yr = lambda t: [f"ds_read_b64_tr_b16 {v(yf[t]+2*aa,2)}, {v(ya)} offset:{t*1024 + aa*256}" for aa in range(2)]
    for t in range(4):
        for r in yr(t): a(r)
    for t in range(8):
        for T in range(2):
            mf32(a, acc[T], df[T] + 4*t, yf[t], "0" if t == 0 else None)
            if t < 4: a(yr(t + 4)[T])
    for T in range(2):
        for jj in range(4): a(f"ds_write_b128 {v(rw+jj)}, {v(acc[T]+4*jj,4)} offset:{128*T}")
    a.waitlg(); a("s_barrier")
    st.mark()
    st.flush(SW, df[0], tid)
    a("s_endpgm")
    return max(vmax, V.hi)
```

```python
import sys, os, math, struct
sys.path.insert(0, os.path.dirname(os.path.abspath(__file__)))
from asmfw import Asm, VAlloc, v, s, align64
import numpy as np

H_OFF, X1_OFF, WT_OFF, Y1_OFF, PART_OFF, CS_OFF, STATS_OFF, EPOCH_OFF, WS_END = 0, 0x700000, 0x900000, 0xB00000, 0xD00000, 0x1500000, 0x1540000, 0x1548000, 0x1548080
F1_OFF, F2_OFF, FW_OFF, F3_OFF, FX_OFF = 0x1550000, 0x1570000, 0x1590000, 0x15b0000, 0x15b8000
WS_END = 0x15c0000
STAMP_OFF = 0x1600000
NAME = "parallel_sum__spectral_gfnet__dense_activation_silu__prompt_kernel"
OPT = dict(stamp=False, cyc=0, est=0, align=2, pf=1, prio=0, nodma=0, forcefb=0, spin=4000, spinf=20000,
           stX="sc1", stW="sc1", stY="sc1", stP="sc1", stO="sc1",
           k1sched=[12,4,4,4,4,4,0,0], rotc=0, phG=6, phW=[5,5], phWD=[8,8], phS=7, pfl=6, e1step=31,
           k2sched=[12,4,4,4,4,0,0], ghalf=240, ep=1, atm=0, ntx=0, ntw=0, ntr='', ntW='', w2pre=3, f1bar=1, wc=0, wcf=29, slS=4, slX=0, slH=0, slY=0, slP=0)
LOG2E = 1.4426950408889634
def fbits(x): return "0x%08x" % struct.unpack("<I", struct.pack("<f", x))[0]

def srd(a, r, lo, hi, nbytes, bias=0):
    if bias: a(f"s_sub_u32 {s(r)}, {s(lo)}, {bias}\ns_subb_u32 {s(r+1)}, {s(hi)}, 0")
    else: a(f"s_mov_b64 {s(r,2)}, {s(lo,2)}")
    a(f"s_mov_b32 {s(r+2)}, {nbytes + bias}\ns_mov_b32 {s(r+3)}, 0x20000")

class Stamps:
    REG = list(range(70, 84, 2)) + [64, 94, 96, 98, 100]
    def __init__(self, a, kidx): self.a, self.k, self.n = a, kidx, 0
    def mark(self):
        if not OPT["stamp"]: return
        if self.n >= 12: return
        r = self.REG[self.n]
        self.a.raw(f"    {'s_memtime' if OPT['cyc'] else 's_memrealtime'} s[{r}:{r+1}]"); self.n += 1
    def flush(self, ws_srd, vtmp, tid0, who=0, rec=0):
        if not OPT["stamp"]: return
        a = self.a
        a("s_waitcnt lgkmcnt(0)")
        a(f"s_lshl_b32 s3, s2, 7\ns_add_u32 s3, s3, {STAMP_OFF + (self.k * 2 + rec) * 32768}")
        a(f"s_mov_b32 {s(ws_srd+2)}, {STAMP_OFF + 0x100000}")
        a(f"v_cmp_eq_u32 vcc, {who}, {v(tid0)}\ns_and_saveexec_b64 s[68:69], vcc")
        a(f"v_mov_b32 {v(vtmp+4)}, s3")
        for q in range(self.n, 12): a(f"s_mov_b64 s[{self.REG[q]}:{self.REG[q]+1}], 0")
        for q in range(6):
            for j in range(4): a(f"v_mov_b32 {v(vtmp+j)}, s{self.REG[2*q + (j >> 1)] + (j & 1)}")
            a(f"buffer_store_dwordx4 {v(vtmp,4)}, {v(vtmp+4)}, {s(ws_srd,4)}, 0 offen offset:{16*q}")
        a("s_mov_b64 exec, s[68:69]")

def header(a, name): a.raw(f".globl {name}\n.p2align 8\n.type {name},@function\n{name}:")
def mf32(a, d, x, y, c=None): a(f"v_mfma_f32_32x32x16_bf16 {v(d,16)}, {v(x,4)}, {v(y,4)}, {v(d,16) if c is None else c}")
def mf16(a, d, x, y, c=None): a(f"v_mfma_f32_16x16x32_bf16 {v(d,4)}, {v(x,4)}, {v(y,4)}, {v(d,4) if c is None else c}")
def mf4(a, d, x, y, c=None): a(f"v_mfma_f32_4x4x4_16b_bf16 {v(d,4)}, {v(x,2)}, {v(y,2)}, {v(d,4) if c is None else c}")
def untracked(a):
    a.vm[-1] = ("pf", set())

def code_prefetch(a, srdr, vtmp, first, last):
    a.raw(f"    s_getpc_b64 {s(srdr,2)}\n    s_add_u32 {s(srdr)}, {s(srdr)}, {first}@rel32@lo+4\n    s_addc_u32 {s(srdr+1)}, {s(srdr+1)}, {first}@rel32@hi+12")
    a.raw(f"    s_mov_b32 {s(srdr+2)}, {last}-{first}")
    a(f"""s_mov_b32 {s(srdr+3)}, 0x20000
          s_and_b32 s3, s2, 0xf8
          s_lshl_b32 s3, s3, 7
          v_lshlrev_b32 {v(vtmp)}, 1, v0
          v_and_b32 {v(vtmp)}, 0x3fc, {v(vtmp)}
          buffer_load_dword {v(vtmp)}, {v(vtmp)}, {s(srdr,4)}, s3 offen""")
    untracked(a)

def interleave(a, mfs, fill, per=None, lead=0):
    n = len(mfs); fill = list(fill)
    for f in fill[:lead]: a(f)
    fill = fill[lead:]
    per = per or [-(-len(fill) // n)] * n
    k = 0
    for i, m in enumerate(mfs):
        m()
        for f in fill[k:k+per[i]]:
            f() if callable(f) else a(f)
        k += per[i]
    for f in fill[k:]:
        f() if callable(f) else a(f)

def finish_stats(q, m, ta, tb):
    return [f"v_mov_b32 {v(tb)}, {fbits(1/512)}", f"v_mul_f32 {v(m)}, {v(tb)}, {v(m)}", f"v_mul_f32 {v(ta)}, {v(m)}, {v(m)}",
            f"v_fma_f32 {v(q)}, {v(q)}, {v(tb)}, -{v(ta)}", f"v_max_f32 {v(q)}, 0, {v(q)}", f"v_add_f32 {v(q)}, {fbits(1e-5)}, {v(q)}", f"v_rsq_f32 {v(q)}, {v(q)}"]

def dft_table():
    cosb = []
    for i in range(512):
        f = np.float32(math.cos(2 * math.pi * i / 512)) if i % 128 else np.float32([1, 0, -1, 0][i // 128])
        u = int(np.array([f]).view(np.uint32)[0]); cosb.append(((u + 0x7FFF + ((u >> 16) & 1)) >> 16) & 0xFFFF)
    t = [".p2align 8", ".type dft_table,@object", "dft_table:", ".altmacro",
         ".macro E8 a,b,c,d,e,f,g,h", ".short C\\a,C\\b,C\\c,C\\d,C\\e,C\\f,C\\g,C\\h", ".endm"]
    t += [f".set C{i},{cosb[i]:#x}" for i in range(512)]
    t.append(""".set blk,0
.rept 128
.set ln,0
.rept 64
.set cl,(blk>>1)&3
.set kap,1+32*(blk>>6)+(ln&31)
.set ph,128*(blk&1)+(64*((blk>>3)&7)+32*(ln>>5)+cl)*kap
E8 %(ph&511),%((ph+4*kap)&511),%((ph+8*kap)&511),%((ph+12*kap)&511),%((ph+16*kap)&511),%((ph+20*kap)&511),%((ph+24*kap)&511),%((ph+28*kap)&511)
.set ln,ln+1
.endr
.set blk,blk+1
.endr
.noaltmacro
.size dft_table,131072""")
    return "\n".join(t)

def descriptor(name, nv):
    nv = (nv + 7) // 8 * 8
    return f""".p2align 6
.amdhsa_kernel {name}
  .amdhsa_next_free_vgpr {nv}
  .amdhsa_next_free_sgpr 102
  .amdhsa_accum_offset {nv}
  .amdhsa_group_segment_fixed_size 0
  .amdhsa_kernarg_size 72
  .amdhsa_user_sgpr_count 2
  .amdhsa_user_sgpr_kernarg_segment_ptr 1
  .amdhsa_system_sgpr_workgroup_id_x 1
  .amdhsa_float_denorm_mode_32 3
.end_amdhsa_kernel"""

def build(kernels, extra_empty=0):
    out = ["; x + irfft2(rfft2(LN x) * W) + silu(LN x @ w1) @ w2 in three launches (k1map2; written with my own generator script)"]
    for name, _, _, (lds, blk) in kernels: out.append(f"; @launch {'' if len(kernels) == 1 else 'kernel=' + name + ' '}grid=(256,1,1) block=({blk},1,1) lds={lds}")
    for i in range(extra_empty): out.append("; @launch kernel=kz_kernel grid=(256,1,1) block=(256,1,1) lds=0")
    out.append('.amdgcn_target "amdgcn-amd-amdhsa--gfx950"\n.text')
    info = []
    for name, a, nv, _ in kernels:
        txt = a.text()
        if OPT["align"]:
            ext = "\n".join(f"{l}:" for l in ("k1_kernel", "k2_kernel", "k3_kernel", "code_end", "dft_table") if l != name)
            txt, fx, nn, size = align64(txt, ext + "\n", OPT["align"] == 1); info.append((fx, nn, size))
        out.append(txt)
    out.append("code_end:")
    if extra_empty: out.append(".globl kz_kernel\n.p2align 8\n.type kz_kernel,@function\nkz_kernel:\n    s_endpgm")
    out.append('.section .rodata,"a"')
    for name, a, nv, _ in kernels: out.append(descriptor(name, nv))
    if extra_empty: out.append(descriptor("kz_kernel", 8))
    out.append(dft_table())
    return "\n".join(out) + "\n", info

if __name__ == "__main__":
    import argparse, json
    ap = argparse.ArgumentParser(); ap.add_argument("out"); ap.add_argument("--stamp", action="store_true")
    ap.add_argument("--empty", type=int, default=0); ap.add_argument("-o", action="append", default=[])
    args = ap.parse_args(); OPT["stamp"] = args.stamp
    for kv in args.o:
        k, val = kv.split("=", 1); assert k in OPT, k
        OPT[k] = val if isinstance(OPT[k], str) else json.loads(val)
    from gen1 import gen_k1
    ks = [(NAME, *gen_k1(NAME))]
    txt, info = build(ks, args.empty)
    open(args.out, "w").write(txt)
    print("vgprs", [k[2] for k in ks], "nops", [k[1].nops for k in ks], "align(fixed,nop,size)", info)
```

```python
from asmfw import Asm, VAlloc, v, s
import __main__ as M
G = M if hasattr(M, "dft_table") else __import__("gen2")
OPT = G.OPT; fbits = G.fbits; srd = G.srd; mf32 = G.mf32; mf4 = G.mf4; Stamps = G.Stamps; header = G.header
untracked = G.untracked; interleave = G.interleave; finish_stats = G.finish_stats; LOG2E = G.LOG2E
X1_OFF, WT_OFF, STATS_OFF, CS_OFF, EPOCH_OFF, WS_END = G.X1_OFF, G.WT_OFF, G.STATS_OFF, G.CS_OFF, G.EPOCH_OFF, G.WS_END

def table_srd(a, r):
    a.raw(f"    s_getpc_b64 {s(r,2)}\n    s_add_u32 {s(r)}, {s(r)}, dft_table@rel32@lo+4\n    s_addc_u32 {s(r+1)}, {s(r+1)}, dft_table@rel32@hi+12")
    a(f"s_mov_b32 {s(r+2)}, 0x20000\ns_mov_b32 {s(r+3)}, 0x20000")

def gen_k1(name):
    import k2 as genp
    a = Asm(); st = Stamps(a, 0)
    few = st.mark if OPT["est"] else (lambda: None)
    header(a, name)
    st.mark()
    SX, SB, SW, SWR, SWI, SPF, sN = 4, 8, 12, 16, 20, 92, 66
    NS = 4
    XR = 131072; SCR = 155648; CSF = SCR + 1024; PRS = SCR + 2048; PCS = SCR + 2304; CNT = SCR + 2816
    a("s_cmp_ge_u32 s2, 256\ns_cbranch_scc1 K1_END")
    a("s_load_dwordx4 s[24:27], s[0:1], 0\ns_load_dwordx4 s[28:31], s[0:1], 32\ns_load_dwordx2 s[22:23], s[0:1], 16\ns_load_dwordx2 s[90:91], s[0:1], 64")
    V = VAlloc(0); tid = V.get(); lane = V.get()
    t0, t1, t2, t3, t4, t5 = [V.get() for _ in range(6)]
    pf = V.get()
    if OPT["pf"]: G.code_prefetch(a, SPF, pf, name, "code_end")
    sW, sLO, sCJ, sV, sWR_, sWC, sL, sHF = 34, 35, 36, 37, 38, 39, 51, 55
    a(f"""v_lshrrev_b32 {v(t0)}, 6, v0
          v_and_b32 {v(lane)}, 63, v0
          v_readfirstlane_b32 s56, {v(t0)}
          s_bfe_u32 {s(sW)}, s2, 0x20001
          s_and_b32 {s(sHF)}, s2, 1
          s_lshr_b32 {s(sCJ)}, s2, 5
          s_bfe_u32 {s(sLO)}, s2, 0x20003
          s_and_b32 {s(sV)}, s56, 3
          s_lshl_b32 {s(sL)}, {s(sV)}, 12
          v_lshrrev_b32 {v(t3)}, 5, {v(lane)}
          s_cmp_lt_u32 s56, 4
          s_cbranch_scc1 K1_COMPUTE""")
    XLOC = [5*16384, 6*16384, 6*16384 + 8192, 7*16384, XR, XR + 8192, XR + 16384, XR, XR + 8192, XR + 16384, XR, 0, 8192, 16384, 24576, 32768]
    XMIN = [0, 0, 0, 0, 0, 0, 0, 6, 7, 8, 9, 10, 10, 11, 11, 12]
    WMIN = [0, 0, 0, 0, 0, 2, 4, 5]
    snap0 = a.snapshot(); Vbase = V.n
    def epoch_load():
        a(f"s_add_u32 s88, s90, {EPOCH_OFF & 0xfff00000}\ns_addc_u32 s89, s91, 0\ns_load_dword {s(sN)}, s[88:89], {EPOCH_OFF & 0xfffff}")
    def nonce():
        a(f"s_add_u32 {s(sN)}, {s(sN)}, 1\ns_or_b32 {s(sN)}, {s(sN)}, 1")

    def x1_out(regs, u):
        rad = regs.get(2); vo = regs.get(); vo0 = regs.get(); buf = regs.get(32)
        pre = f"""v_lshrrev_b32 {v(t1)}, 4, {v(lane)}
              v_and_b32 {v(t0)}, 7, {v(lane)}
              v_xor_b32 {v(t2)}, {v(t0)}, {v(t1)}
              v_lshrrev_b32 {v(t4)}, 3, {v(lane)}
              s_lshl_b32 s3, {s(sV)}, 13
              s_add_u32 s3, s3, {32768*u}
              v_lshl_add_u32 {v(t4)}, {v(t4)}, 7, s3
              v_lshl_add_u32 {v(rad)}, {v(t2)}, 4, {v(t4)}
              v_xor_b32 {v(rad+1)}, 64, {v(rad)}
              s_and_b32 s46, {s(sV)}, 1
              s_lshr_b32 s47, {s(sV)}, 1
              v_lshlrev_b32 {v(t0)}, 4, {v(t0)}
              v_bfe_u32 {v(t2)}, {v(lane)}, 3, 1
              v_lshl_add_u32 {v(t0)}, {v(t2)}, 12, {v(t0)}
              s_mul_i32 s3, s46, 3
              v_xor_b32 {v(t2)}, s3, {v(t1)}
              v_lshl_add_u32 {v(vo)}, {v(t2)}, 13, {v(t0)}
              s_lshl_b32 s40, {s(sHF)}, 5
              s_lshl_b32 s42, s47, 7
              s_add_u32 s41, s40, s42
              s_sub_u32 s42, 251, s41
              s_cmp_eq_u32 s46, 0
              s_cselect_b32 s41, s41, s42
              s_mov_b32 s43, 0x8000
              s_cselect_b32 s43, s43, 0xffff8000
              s_lshl_b32 s41, s41, 13
              s_lshr_b32 s42, {s(sLO)}, 1
              s_lshl_b32 s42, s42, 11
              s_add_u32 s41, s41, s42
              s_lshl_b32 s42, {s(sW)}, 9
              s_add_u32 s41, s41, s42
              s_and_b32 s42, {s(sLO)}, 1
              s_lshl_b32 s42, s42, 8
              s_add_u32 s41, s41, s42
              s_add_u32 s41, s41, {X1_OFF + 128*u}
              s_lshl_b32 s42, s47, 6
              s_add_u32 s40, s40, s42
              v_add_u32 {v(t1)}, s40, {v(t1)}
              v_cmp_eq_u32 vcc, {64 + 32 + 3}, {v(t1)}
              v_add_u32 {v(t0)}, {64*8192}, {v(vo)}
              v_cndmask_b32 {v(vo0)}, {v(vo)}, {v(t0)}, vcc"""
        def post():
            for jx in range(8): a(f"ds_read_b128 {v(buf+4*jx,4)}, {v(rad + (jx & 1))} offset:{1024*jx}")
            for jx in range(8):
                a(f"buffer_store_dwordx4 {v(buf+4*jx,4)}, {v(vo0 if jx == 7 else vo)}, {s(SW,4)}, s41 offen sc1")
                if jx < 7: a("s_add_u32 s41, s41, s43")
        return pre, post

    def w_job(wl, vW, so, tm, lds):
        def load(part=None):
            if part in (None, 0): setup()
            for r in range(4) if part is None else (2*part, 2*part + 1):
                a(f"buffer_load_dword {v(wl + r)}, {v(vW)}, {s(SWR,4)}, s{so+r} offen", tag="W")
                a(f"buffer_load_dword {v(wl + 4 + r)}, {v(vW)}, {s(SWI,4)}, s{so+r} offen", tag="W")
        def setup():
            srd(a, SWR, 26, 27, 2048 * 514)
            a(f"s_mov_b64 {s(so,2)}, s[22:23]")
            srd(a, SWI, so, so + 1, 2048 * 514)
            a(f"""s_and_b32 s84, s2, 3
                  s_lshl_b32 {s(so+1)}, s84, 7
                  s_add_u32 {s(so+1)}, {s(so+1)}, 2
                  v_and_b32 {v(t0)}, 31, {v(lane)}
                  v_lshl_add_u32 {v(t1)}, {v(t0)}, 2, {s(so+1)}
                  s_movk_i32 {s(so+1)}, 514
                  v_mad_u32_u24 {v(vW)}, {v(t3)}, {s(so+1)}, {v(t1)}
                  s_bfe_u32 {s(so+1)}, s2, 0x30002
                  s_lshl_b32 {s(tm)}, {s(so+1)}, 2
                  s_add_u32 {s(tm)}, {s(tm)}, {s(sV)}
                  s_lshl_b32 {s(tm)}, {s(tm)}, 1
                  s_lshl_b32 {s(so)}, {s(sCJ)}, 8
                  s_add_u32 {s(tm)}, {s(tm)}, {s(so)}
                  s_mul_i32 {s(so)}, {s(tm)}, 514
                  s_add_u32 {s(so+1)}, {s(so)}, 32896
                  s_add_u32 {s(so+2)}, {s(so)}, 65792
                  s_add_u32 {s(so+3)}, {s(so)}, 98688""")
        def put():
            a(f"""s_mov_b32 s86, 0x05040100
                  s_mov_b32 s87, 0x07060302
                  s_lshl_b32 s3, {s(sV)}, 1
                  v_and_b32 {v(t0)}, 7, {v(lane)}
                  v_xor_b32 {v(t0)}, {v(t0)}, {v(t3)}
                  v_xor_b32 {v(t0)}, s3, {v(t0)}
                  v_and_b32 {v(t1)}, 31, {v(lane)}
                  v_lshlrev_b32 {v(t1)}, 8, {v(t1)}
                  v_lshl_add_u32 {v(vW)}, {v(t0)}, 4, {v(t1)}""")
            for kk in range(2):
                for r in range(4): a(f"v_perm_b32 {v(wl+8+4*kk+r)}, {v(wl+4+r)}, {v(wl+r)}, s{86+kk}")
                a(f"ds_write_b128 {v(vW)}, {v(wl+8+4*kk,4)} offset:{lds + 128*kk}")
        def store():
            a(f"""s_lshl_b32 s84, s84, 2
                  s_add_u32 s84, s84, {s(sV)}
                  s_lshl_b32 s84, s84, 17
                  s_lshl_b32 {s(tm)}, {s(sLO)}, 11
                  s_add_u32 s84, s84, {s(tm)}
                  s_lshr_b32 {s(tm)}, s2, 7
                  s_lshl_b32 {s(tm)}, {s(tm)}, 10
                  s_add_u32 s84, s84, {s(tm)}
                  s_bfe_u32 {s(tm)}, s2, 0x20005
                  s_lshl_b32 {s(tm)}, {s(tm)}, 8
                  s_add_u32 s84, s84, {s(tm)}
                  s_bfe_u32 {s(tm)}, s2, 0x10002
                  s_lshl_b32 {s(tm)}, {s(tm)}, 7
                  s_add_u32 s84, s84, {s(tm)}
                  s_add_u32 s84, s84, {WT_OFF}
                  s_add_u32 s85, s84, 65536
                  v_lshrrev_b32 {v(t1)}, 4, {v(lane)}
                  v_and_b32 {v(t0)}, 7, {v(lane)}
                  v_xor_b32 {v(t1)}, {v(t1)}, {v(t0)}
                  v_lshrrev_b32 {v(t2)}, 3, {v(lane)}
                  s_lshl_b32 s3, {s(sV)}, 11
                  v_lshl_add_u32 {v(vW)}, {v(t2)}, 7, s3
                  v_lshl_add_u32 {v(vW)}, {v(t1)}, 4, {v(vW)}
                  v_xor_b32 {v(t1)}, 64, {v(vW)}
                  ds_read_b128 {v(wl,4)}, {v(vW)} offset:{lds}
                  ds_read_b128 {v(wl+4,4)}, {v(t1)} offset:{lds + 1024}
                  v_lshlrev_b32 {v(t0)}, 4, {v(t0)}
                  v_lshl_add_u32 {v(vW+1)}, {v(t2)}, 13, {v(t0)}""")
            for j in range(2): a(f"buffer_store_dwordx4 {v(wl+4*j,4)}, {v(vW+1)}, {s(SW,4)}, s{84+j} offen sc1", tag="WS")
        return load, put, store

    V.n = genp.LV0
    vX = V.get(4); vB = V.get(4)
    wl = V.get(16); vW = V.get(2); l16 = genp.L16; dmy = V.get(4); gr = V.get(4); gc = V.get(8); gq = V.get(4)
    grow, gad, gz, pad = [V.get() for _ in range(4)]
    Vx = VAlloc(V.n)
    sXb, sBb, sK, sXo, sBo, sCB, sR0 = 48, 49, 50, 52, 53, 57, 58
    a(f"""v_bfe_u32 {v(t0)}, {v(lane)}, 3, 2
          v_lshrrev_b32 {v(t1)}, 4, {v(lane)}
          v_and_b32 {v(t2)}, 7, {v(lane)}
          v_xor_b32 {v(t2)}, {v(t2)}, {v(t1)}
          v_lshlrev_b32 {v(t2)}, 4, {v(t2)}
          s_lshl_b32 {s(sR0)}, {s(sW)}, 1
          s_lshr_b32 s3, {s(sLO)}, 1
          s_add_u32 {s(sR0)}, {s(sR0)}, s3
          s_lshl_b32 {s(sXo)}, {s(sR0)}, 7
          s_mov_b32 {s(SX+2)}, {0x200000 + 4096}
          s_mov_b32 {s(SX+3)}, 0x20000
          s_cmp_eq_u32 {s(sCJ)}, 7
          s_cbranch_scc1 K1_LD""")
    snapL = a.snapshot(); stn = st.n
    def loader(D):
        X = "D" if D else "F"
        if not D:
            a(f"""v_lshl_add_u32 {v(t0)}, {v(t3)}, 4, {v(t0)}
                  v_lshl_add_u32 {v(t0)}, {v(t0)}, 10, {v(t2)}
                  v_add_u32 {v(vX)}, 4096, {v(t0)}
                  v_xor_b32 {v(t0)}, 64, {v(t0)}
                  v_add_u32 {v(vX+1)}, {4096 + 31744}, {v(t0)}
                  s_lshl_b32 s3, {s(sW)}, 7
                  s_lshl_b32 s40, {s(sV)}, 4
                  s_add_u32 s3, s3, s40
                  s_add_u32 s3, s3, {s(sLO)}
                  s_lshl_b32 {s(sXb)}, s3, 12
                  s_lshl_b32 s59, {s(sV)}, 11
                  s_add_u32 m0, s59, {XLOC[0]}""")
        else:
            a(f"""v_lshl_add_u32 {v(t0)}, {v(t3)}, 3, {v(t0)}
                  v_lshl_add_u32 {v(t0)}, {v(t0)}, 15, {v(t2)}
                  v_add_u32 {v(vX)}, 4096, {v(t0)}
                  v_add_u32 {v(vX+2)}, {4096 + 4096 - 2048}, {v(t0)}
                  v_xor_b32 {v(t0)}, 64, {v(t0)}
                  v_add_u32 {v(vX+1)}, {4096 + 131072 - 1024}, {v(t0)}
                  v_add_u32 {v(vX+3)}, {4096 + 131072 + 4096 - 3072}, {v(t0)}
                  s_lshl_b32 s3, {s(sW)}, 6
                  s_add_u32 s3, s3, {s(sLO)}
                  s_lshl_b32 s3, s3, 3
                  s_add_u32 s3, s3, {s(sV)}
                  s_lshl_b32 {s(sXb)}, s3, 10
                  s_lshl_b32 s59, {s(sV)}, 11
                  s_mov_b32 m0, {s(sL)}""")
        a(f"s_add_u32 {s(sXo)}, {s(sXo)}, {s(sXb)}")
        a.waitlg()
        a(f"s_sub_u32 {s(SX)}, s24, 4096\ns_subb_u32 {s(SX+1)}, s25, 0")
        def b_setup():
            epoch_load()
            a(f"v_lshlrev_b32 {v(l16)}, 4, {v(lane)}")
            if not D:
                srd(a, SB, 28, 29, 512 * 3584)
                a(f"""v_and_b32 {v(t0)}, 15, {v(lane)}
                      v_lshlrev_b32 {v(t2)}, 2, {v(t1)}
                      v_xor_b32 {v(t0)}, {v(t0)}, {v(t2)}
                      v_lshlrev_b32 {v(t0)}, 4, {v(t0)}
                      s_movk_i32 s3, 3584
                      v_mad_u32_u24 {v(vB)}, {v(t1)}, s3, {v(t0)}
                      v_add_u32 {v(vB+1)}, 13312, {v(vB)}
                      v_add_u32 {v(vB+2)}, {2*13312}, {v(vB)}
                      v_add_u32 {v(vB+3)}, {3*13312}, {v(vB)}
                      s_mul_i32 {s(sCB)}, {s(sHF)}, 7
                      s_add_u32 {s(sCB)}, {s(sCB)}, {s(sCJ)}
                      s_lshl_b32 s3, {s(sCB)}, 8
                      s_mul_i32 {s(sBb)}, {s(sV)}, {16*3584}
                      s_add_u32 {s(sBb)}, {s(sBb)}, s3""")
            else:
                table_srd(a, SB)
                a(f"s_lshl_b32 s3, {s(sHF)}, 16\ns_add_u32 {s(sBb)}, s3, s59")
        def dma_x(m):
            if m:
                a(f"s_add_u32 s3, {s(sR0)}, {m & 7}\ns_and_b32 s3, s3, 7\ns_lshl_b32 s3, s3, 7\ns_add_u32 {s(sXo)}, s3, {s(sXb)}")
                a(f"s_add_u32 m0, {s(sL)}, {(m % NS)*32768}" if D else f"s_add_u32 m0, s59, {XLOC[m]}")
            for j in range(4 if D else 2): a(f"buffer_load_dwordx4 {v(vX+j)}, {s(SX,4)}, {s(sXo)} offen offset:{1024*j} lds", tag=f"S{m}")
            if m == 0: b_setup()
            if m == 7 and not D: a(f"s_add_u32 {s(sXb)}, {s(sXb)}, {8*32768}")
        def dma_b(i):
            a(f"s_add_u32 s3, {s(sR0)}, {i}\ns_and_b32 s3, s3, 7\ns_mul_i32 s3, s3, {8192 if D else 64*3584}\ns_add_u32 {s(sBo)}, s3, {s(sBb)}")
            a(f"s_add_u32 m0, s59, {(i % NS)*32768 + 16384}" if D else f"s_add_u32 m0, {s(sL)}, {i*16384}")
            for j in range(2 if D else 4): a(f"buffer_load_dwordx4 {v(l16 if D else vB+j)}, {s(SB,4)}, {s(sBo)} offen offset:{1024*j} lds", tag=f"S{i}")
        def j_nonce():
            srd(a, SW, 90, 91, WS_END); nonce()
            a(f"""v_mov_b32 {v(gz)}, 0
                  v_mov_b32 {v(t0)}, {CNT}
                  ds_write_b32 {v(t0)}, {v(gz)}
                  ds_write_b32 {v(t0)}, {v(gz)} offset:4
                  s_lshl_b32 s3, s2, 2
                  s_add_u32 s3, s3, {s(sV)}
                  s_lshl_b32 s3, s3, 7
                  s_add_u32 s3, s3, {G.FW_OFF}
                  s_lshl_b32 s40, {s(sV)}, 8
                  s_add_u32 s40, s40, s2
                  s_lshl_b32 s40, s40, 7
                  s_add_u32 s40, s40, {G.F3_OFF}
                  v_and_b32 {v(t0)}, 31, {v(lane)}
                  v_mov_b32 {v(t1)}, s3
                  v_mov_b32 {v(t2)}, s40
                  v_cmp_gt_u32 vcc, 32, {v(lane)}
                  v_cndmask_b32 {v(t1)}, {v(t2)}, {v(t1)}, vcc
                  v_lshl_add_u32 {v(t1)}, {v(t0)}, 2, {v(t1)}
                  buffer_store_dword {v(gz)}, {v(t1)}, {s(SW,4)}, 0 offen sc1""")
        def j_publish():
            a(f"""v_and_b32 {v(t0)}, 15, {v(lane)}
                  v_cmp_gt_u32 vcc, 16, {v(lane)}
                  s_lshl_b32 s3, {s(sV)}, 7
                  s_add_u32 s3, s3, {PCS}
                  v_mov_b32 {v(t1)}, s3
                  v_mov_b32 {v(t2)}, {PRS}
                  v_cndmask_b32 {v(t1)}, {v(t2)}, {v(t1)}, vcc
                  v_lshl_add_u32 {v(t1)}, {v(t0)}, 3, {v(t1)}
                  ds_read_b64 {v(gq,2)}, {v(t1)}
                  s_lshl_b32 s3, {s(sW)}, 2
                  s_add_u32 s3, s3, {s(sLO)}
                  s_lshl_b32 s3, s3, 1
                  s_add_u32 s3, s3, {s(sHF)}
                  s_lshl_b32 s3, s3, 3
                  s_add_u32 s3, s3, {s(sCJ)}
                  s_lshl_b32 s3, s3, 7
                  s_add_u32 s3, s3, {STATS_OFF}
                  v_mov_b32 {v(t2)}, s3""")
            if not D:
                a(f"""s_lshl_b32 s3, {s(sCB)}, 3
                      s_add_u32 s3, s3, {s(sR0)}
                      s_lshl_b32 s3, s3, 2
                      s_add_u32 s3, s3, {s(sV)}
                      s_lshl_b32 s3, s3, 8
                      s_add_u32 s3, s3, {CS_OFF}
                      v_mov_b32 {v(t1)}, s3
                      v_cndmask_b32 {v(t2)}, {v(t2)}, {v(t1)}, vcc""")
            a(f"v_lshl_add_u32 {v(pad)}, {v(t0)}, 4, {v(t2)}")
            a(f"""v_mov_b32 {v(gq+2)}, {s(sN)}
                  v_mov_b32 {v(gq+3)}, {s(sN)}
                  s_cmp_eq_u32 {s(sV)}, 0
                  s_cselect_b32 s40, 0xff0000, 0
                  s_mov_b32 s41, 0""")
            if D: a(f"s_cbranch_scc0 K1_NOPUBD")
            else: a("s_or_b32 s40, s40, 0xffff")
            keep = a.snapshot()
            a(f"""s_mov_b64 exec, s[40:41]
                  buffer_store_dwordx4 {v(gq,4)}, {v(pad)}, {s(SW,4)}, 0 offen sc1
                  s_mov_b64 exec, -1""")
            if D: a.label("K1_NOPUBD"); a.restore(keep)
        def gather_loads():
            a(f"buffer_load_dwordx4 {v(gr,4)}, {v(gad)}, {s(SW,4)}, s62 offen sc1")
            if not D:
                for j in range(2): a(f"buffer_load_dwordx4 {v(gc+4*j,4)}, {v(pad)}, {s(SW,4)}, s{32+j} offen sc1")
        def j_gather():
            a(f"""v_bfe_u32 {v(t0)}, {v(lane)}, 3, 2
                  v_bfe_u32 {v(t1)}, {v(lane)}, 2, 1
                  v_and_b32 {v(t2)}, 3, {v(lane)}""")
            if not D:
                a(f"""v_lshl_add_u32 {v(t0)}, {v(t0)}, 1, {v(t1)}
                      v_lshl_add_u32 {v(grow)}, {v(t0)}, 4, {v(t2)}
                      s_lshl_b32 s3, {s(sV)}, 7
                      s_lshl_b32 s40, {s(sLO)}, 2
                      v_lshrrev_b32 {v(t0)}, 4, {v(lane)}
                      v_and_b32 {v(t1)}, 15, {v(lane)}
                      v_lshlrev_b32 {v(t1)}, 4, {v(t1)}
                      v_lshl_add_u32 {v(pad)}, {v(t0)}, 10, {v(t1)}
                      s_lshl_b32 s32, {s(sCB)}, 5
                      s_add_u32 s32, s32, {s(sV)}
                      s_lshl_b32 s32, s32, 8
                      s_add_u32 s32, s32, {CS_OFF}
                      s_add_u32 s33, s32, 4096""")
            a(f"""s_add_u32 s3, s3, s40
                  s_lshl_b32 s40, {s(sW)}, 9
                  s_add_u32 s3, s3, s40
                  v_add_u32 {v(grow)}, s3, {v(grow)}
                  v_lshlrev_b32 {v(gad)}, 4, {v(grow)}
                  s_mov_b32 s62, {STATS_OFF}""")
            gather_loads()
        def j_check():
            tags = [gr + 2, gr + 3] + ([] if D else [gc + 2, gc + 3, gc + 6, gc + 7])
            a("s_mov_b32 s61, 0")
            a(f"v_xor_b32 {v(t0)}, {s(sN)}, {v(tags[-1])}")
            a.label(f"K1_CHECK{X}")
            for t in tags[:-1]: a(f"v_xor_b32 {v(t1)}, {s(sN)}, {v(t)}\nv_or_b32 {v(t0)}, {v(t0)}, {v(t1)}")
            a(f"""v_cmp_ne_u32 vcc, 0, {v(t0)}
                  {"s_nop 0" if OPT["forcefb"] else "s_cbranch_vccz K1_GOT" + X}
                  s_add_u32 s61, s61, 1
                  s_cmp_gt_u32 s61, {OPT["spin"]}
                  s_cbranch_scc1 K1_FALLBACK{X}""")
            keep = a.snapshot()
            a(f"s_sleep {OPT['slS']}")
            gather_loads()
            a(f"s_waitcnt vmcnt(0)\nv_xor_b32 {v(t0)}, {s(sN)}, {v(tags[-1])}\ns_branch K1_CHECK{X}")
            a.label(f"K1_FALLBACK{X}")
            a(f"""v_lshl_add_u32 {v(gad)}, {v(grow)}, 10, 0
                  v_add_u32 {v(gad)}, 4096, {v(gad)}
                  v_mov_b32 {v(t0)}, 0
                  v_mov_b32 {v(t1)}, 0
                  v_mov_b32 {v(t2)}, 0x3f803f80
                  s_mov_b32 s61, 0""")
            a.label(f"K1_FBLOOP{X}")
            a(f"buffer_load_dwordx4 {v(gr,4)}, {v(gad)}, {s(SX,4)}, s61 offen\ns_waitcnt vmcnt(0)")
            for i in range(4): a(f"v_dot2_f32_bf16 {v(t0)}, {v(gr+i)}, {v(gr+i)}, {v(t0)}\nv_dot2_f32_bf16 {v(t1)}, {v(gr+i)}, {v(t2)}, {v(t1)}\ns_nop 2")
            a(f"s_add_u32 s61, s61, 16\ns_cmp_lt_u32 s61, 1024\ns_cbranch_scc1 K1_FBLOOP{X}")
            a("s_nop 4")
            for r in finish_stats(t0, t1, t4, t5): a(r)
            a(f"s_nop 1\nv_mov_b32 {v(gr)}, {v(t0)}\nv_mov_b32 {v(gr+1)}, {v(t1)}")
            if not D:
                a(f"""v_and_b32 {v(t0)}, 9, {v(lane)}
                      v_bfe_u32 {v(t1)}, {v(lane)}, 1, 1
                      v_lshl_or_b32 {v(t0)}, {v(t1)}, 2, {v(t0)}
                      v_bfe_u32 {v(t1)}, {v(lane)}, 2, 1
                      v_lshl_or_b32 {v(t0)}, {v(t1)}, 1, {v(t0)}
                      v_lshlrev_b32 {v(t0)}, 2, {v(t0)}
                      v_lshrrev_b32 {v(t1)}, 4, {v(lane)}
                      s_mov_b32 s3, {128*3584}
                      v_mad_u32_u24 {v(t0)}, {v(t1)}, s3, {v(t0)}
                      s_lshl_b32 s61, {s(sCB)}, 2
                      s_add_u32 s61, s61, {s(sV)}
                      s_lshl_b32 s61, s61, 6
                      s_mov_b32 s3, 0
                      v_mov_b32 {v(gc)}, 0
                      v_mov_b32 {v(gc+1)}, 0
                      v_mov_b32 {v(gc+4)}, 0
                      v_mov_b32 {v(gc+5)}, 0""")
                a.label("K1_FBLOOPC")
                a(f"""buffer_load_dword {v(t1)}, {v(t0)}, {s(SB,4)}, s61 offen
                      s_waitcnt vmcnt(0)
                      v_lshlrev_b32 {v(t2)}, 16, {v(t1)}
                      v_and_b32 {v(t1)}, 0xffff0000, {v(t1)}
                      v_add_f32 {v(gc)}, {v(gc)}, {v(t2)}
                      v_add_f32 {v(gc+1)}, {v(gc+1)}, {v(t1)}
                      s_add_u32 s61, s61, 3584
                      s_add_u32 s3, s3, 1
                      s_cmp_lt_u32 s3, 128
                      s_cbranch_scc1 K1_FBLOOPC""")
            a.label(f"K1_GOT{X}")
            a.restore(keep); a.hist = []
            a(f"v_and_b32 {v(t0)}, 31, {v(lane)}")
            if not D:
                a(f"""v_add_f32 {v(gc)}, {v(gc)}, {v(gc+4)}
                      v_add_f32 {v(gc+1)}, {v(gc+1)}, {v(gc+5)}
                      s_lshl_b32 s3, {s(sV)}, 8
                      s_add_u32 s3, s3, {SCR}
                      v_lshl_add_u32 {v(t0)}, {v(t0)}, 3, s3
                      v_mov_b32 {v(gc+2)}, {v(gc)}
                      v_mov_b32 {v(gc+3)}, {v(gc+1)}
                      v_mul_f32 {v(gr)}, {fbits(-LOG2E)}, {v(gr)}
                      v_mul_f32 {v(gr+1)}, {v(gr+1)}, {v(gr)}
                      v_permlane32_swap_b32 {v(gc)}, {v(gc+2)}
                      v_permlane32_swap_b32 {v(gc+1)}, {v(gc+3)}
                      v_sub_f32 {v(gr+1)}, 0, {v(gr+1)}
                      v_add_f32 {v(gc)}, {v(gc)}, {v(gc+2)}
                      v_add_f32 {v(gc+1)}, {v(gc+1)}, {v(gc+3)}
                      ds_write_b64 {v(t0)}, {v(gr,2)}
                      v_mov_b32 {v(gc+2)}, {v(gc)}
                      v_mov_b32 {v(gc+3)}, {v(gc+1)}
                      v_and_b32 {v(t1)}, 15, {v(lane)}
                      s_lshl_b32 s3, {s(sV)}, 7
                      v_permlane16_swap_b32 {v(gc)}, {v(gc+2)}
                      v_permlane16_swap_b32 {v(gc+1)}, {v(gc+3)}
                      s_add_u32 s3, s3, {CSF}
                      v_lshl_add_u32 {v(t1)}, {v(t1)}, 3, s3
                      v_add_f32 {v(gc)}, {v(gc)}, {v(gc+2)}
                      v_add_f32 {v(gc+1)}, {v(gc+1)}, {v(gc+3)}
                      ds_write_b64 {v(t1)}, {v(gc,2)}""")
        j_wload, j_wput, j_wstore = w_job(wl, vW, 44, 63, 0 if D else 40960)
        def j_pfl(part=None):
            if OPT["pfl"][0] < 0: return
            if part in (None, 0):
                srd(a, SPF, 30, 31, 1792 * 1024)
                a(f"s_lshl_b32 s3, s2, 2\ns_add_u32 s3, s3, {s(sV)}\ns_mul_i32 s54, s3, 1792")
            for j in range(2) if part is None else (part,):
                a(f"buffer_load_dwordx4 {v(dmy,4)}, {v(l16)}, {s(SPF,4)}, s54 offen offset:{1024*j}"); untracked(a)
        few()
        if D:
            for ph in range(8):
                if ph == 1: j_nonce()
                if ph == 3: j_publish()
                for m in ([0, 1, 2] if ph == 0 else [ph + 2] if ph < 6 else []): dma_x(m); dma_b(m)
                for (lo, nbytes, p0, per) in OPT["dpf"]:
                    tot = nbytes // 128 // 1024; k0 = (ph - p0) * per
                    if ph >= p0 and k0 < tot:
                        srd(a, SPF, lo, lo + 1, nbytes)
                        a(f"s_and_b32 s3, s2, 31\ns_lshl_b32 s3, s3, 2\ns_add_u32 s3, s3, {s(sV)}\ns_mul_i32 s3, s3, {tot*1024}\ns_add_u32 s3, s3, {k0*1024}")
                        for j in range(min(per, tot - k0) if ph < 7 else tot - k0):
                            if j and j % 4 == 0: a("s_add_u32 s3, s3, 4096")
                            a(f"buffer_load_dwordx4 {v(dmy,4)}, {v(l16)}, {s(SPF,4)}, s3 offen offset:{1024*(j & 3)}"); untracked(a)
                a.waitvm(f"S{ph}", lg0=True); a("s_barrier")
                (st.mark if ph in (0, 7) else few)()
            j_wload(); j_pfl()
            p, q = x1_out(Vx, 0); a(p)
            a("s_barrier")
            q(); a.waitlg(); a("s_barrier")
            j_wput(); a.waitlg(); a("s_barrier")
            j_wstore()
            genp.p2_setup(a)
            a("s_waitcnt vmcnt(0)\ns_barrier")
            genp.wg_flag(a, 3, "K1_FX"); genp.put_flag(a, G.FW_OFF, t0, t2, True)
            for j in range(genp.NW2): genp.w2_dma(a, j)
            genp.p2_pre(a, "D")
        else:
            E = OPT["bE"]; dep = OPT["dep"]
            def j_fw(): a.waitvm("WS"); genp.put_flag(a, G.FW_OFF, t0, t2, True)
            def j_wx():
                if OPT["phS"] > OPT["lastB"]:
                    a.waitlg()
                    a(f"v_mov_b32 {v(gad)}, 1\ns_mov_b64 exec, 1\nds_add_u32 {v(grow)}, {v(gad)} offset:4\ns_mov_b64 exec, -1")
                    consumed(1, 4)
                j_wstore()
            assert OPT["phS"] >= 12
            pre, post = {}, {}
            for d, ph, j in ((pre, 1, j_nonce), (pre, 3, j_publish), (pre, OPT["phG"], j_gather), (post, E, j_check),
                             (post, OPT["phW"][0], lambda: j_wload(0)), (post, OPT["phW"][1], lambda: j_wload(1)),
                             (post, OPT["pfl"][0], lambda: j_pfl(0)), (post, OPT["pfl"][1], lambda: j_pfl(1)), (post, OPT["phS"], j_wput), (pre, OPT["phS"] + 1, j_wx),
                             (post, OPT["phF"], j_fw if OPT["phF"] else (lambda: None)), (pre, OPT["bA"] + 1, lambda: genp.wg_flag(a, 1, "K1_F1A")),
                             (post, max(OPT["lastB"] + 1, OPT["phW"][1]), lambda: genp.p2_setup(a))):
                d.setdefault(ph, []).append(j)
            LB = OPT["lastB"]
            nx = nb = 0
            for ph in range(LB + 1):
                for j in pre.get(ph, []): j()
                while True:
                    if nx < 16 and XMIN[nx] <= ph and (nx < ph + dep or nx > 8) and (nx <= nb or nb == 8 or WMIN[nb] > ph): dma_x(nx); nx += 1
                    elif nb < 8 and WMIN[nb] <= ph and nb < ph + dep: dma_b(nb); nb += 1
                    else: break
                assert nx > min(ph, 15) and nb > min(ph, 7)
                for j in post.get(ph, []): j()
                a.waitvm(f"S{15 if ph == LB else ph}", lg0=True); a("s_barrier")
                (st.mark if ph == 0 else few)()
            assert nx == 16 and OPT["bA"] <= LB
            a(f"v_mov_b32 {v(grow)}, {CNT}")
            def consumed(k, off=0):
                a("s_mov_b32 s67, 0"); n = k; k = f"{k}_{off}"
                a.label(f"K1_CNT{k}")
                a(f"""s_sleep 1
                      ds_read_b32 {v(gad)}, {v(grow)} offset:{off}
                      s_add_u32 s67, s67, 1
                      s_cmp_gt_u32 s67, 100000
                      s_cbranch_scc1 K1_CNTE{k}
                      v_readfirstlane_b32 s3, {v(gad)}
                      s_cmp_lt_u32 s3, {4*n}
                      s_cbranch_scc1 K1_CNT{k}""")
                a.label(f"K1_CNTE{k}")
                a.waitlg()
            for ph in range(LB + 1, 19):
                for j in pre.get(ph, []) + post.get(ph, []): j()
                jw = ph - 13
                if ph == 17: genp.p2_pre(a, "F")
                if ph > LB + 1 and ph <= 17 and (jw < genp.NW2 or ph == 17): consumed(ph - LB - 1); few()
                for j in range(genp.NW2):
                    if j == jw or (ph == LB + 1 and j < jw): genp.w2_dma(a, j)
            st.mark()
        a("s_branch P2_LOADER")
        return st.n
    nl = loader(False)
    a.restore(snapL); st.n = stn
    a.label("K1_LD")
    loader(True)
    a.restore(snap0); V.n = Vbase; st.n = 1 if OPT["stamp"] else 0
    a.label("K1_COMPUTE")
    if OPT["est"]: st.mark()
    if OPT["prio"]: a(f"s_setprio {OPT['prio']}")
    ones = V.get(2); gq = V.get(4); gz = V.get()
    key = t4
    rw = 80
    a(f"""s_lshl_b32 s3, {s(sW)}, 2
          s_add_u32 s3, s3, {s(sLO)}
          s_lshl_b32 s3, s3, 1
          s_add_u32 s3, s3, {s(sHF)}
          s_lshl_b32 s3, s3, 3
          s_add_u32 s3, s3, {s(sCJ)}
          s_lshl_b32 s3, s3, 2
          s_add_u32 s3, s3, {s(sV)}
          s_lshl_b32 s3, s3, 11
          v_lshlrev_b32 {v(t0)}, 4, {v(lane)}
          s_mov_b32 {s(SX+2)}, 0x200000
          s_mov_b32 {s(SX+3)}, 0x20000""")
    a.waitlg()
    a(f"""s_mov_b64 {s(SX,2)}, s[24:25]
          buffer_load_dwordx4 {v(rw,4)}, {v(t0)}, {s(SX,4)}, s3 offen
          buffer_load_dwordx4 {v(rw+4,4)}, {v(t0)}, {s(SX,4)}, s3 offen offset:1024
          v_mov_b32 {v(gz)}, 0""")
    few()
    epoch_load()
    srd(a, SW, 90, 91, WS_END)
    assert G.F2B_OFF - G.F2A_OFF == 1 << 17
    a(f"""s_lshl_b32 s3, s2, 2
          s_add_u32 s3, s3, {s(sV)}
          s_lshl_b32 s3, s3, 7
          s_add_u32 s3, s3, {G.F2A_OFF}
          v_and_b32 {v(t1)}, 31, {v(lane)}
          v_lshlrev_b32 {v(t1)}, 2, {v(t1)}
          v_lshl_add_u32 {v(t1)}, {v(t3)}, 17, {v(t1)}
          buffer_store_dword {v(gz)}, {v(t1)}, {s(SW,4)}, s3 offen sc1""")
    a(f"""v_mov_b32 {v(ones)}, 0x3f803f80
          v_mov_b32 {v(ones+1)}, 0x3f803f80
          v_and_b32 {v(t1)}, 1, {v(lane)}
          v_cmp_eq_u32 s[58:59], 1, {v(t1)}
          v_bfe_u32 {v(key)}, {v(lane)}, 1, 3
          v_and_b32 {v(t0)}, 31, {v(lane)}
          v_lshlrev_b32 {v(t0)}, 7, {v(t0)}""")
    def produce():
        if OPT["est"]: st.mark(); a("s_waitcnt vmcnt(0)"); st.mark()
        for i in range(4):
            for r in range(2):
                c0 = "0" if i == 0 else None
                a(f"v_dot2_f32_bf16 {v(gq+2*r)}, {v(rw+4*r+i)}, {v(rw+4*r+i)}, {c0 or v(gq+2*r)}\nv_dot2_f32_bf16 {v(gq+2*r+1)}, {v(rw+4*r+i)}, {v(ones)}, {c0 or v(gq+2*r+1)}")
        a("s_nop 2")
        for m in ("row_shr:1 row_mask:0xf", "row_shr:2 row_mask:0xf", "row_shr:4 row_mask:0xf", "row_shr:8 row_mask:0xf", "row_bcast:15 row_mask:0xa", "row_bcast:31 row_mask:0xc"):
            for i in range(4): a(f"v_add_f32_dpp {v(gq+i)}, {v(gq+i)}, {v(gq+i)} {m} bank_mask:0xf bound_ctrl:0")
        for i in range(4): a(f"v_readlane_b32 s{16+i}, {v(gq+i)}, 63")
        a(f"""v_mov_b32 {v(gq)}, s16
              v_mov_b32 {v(gq+1)}, s17
              v_mov_b32 {v(gq+2)}, s18
              v_mov_b32 {v(gq+3)}, s19
              v_cndmask_b32 {v(gq)}, {v(gq)}, {v(gq+2)}, s[58:59]
              v_cndmask_b32 {v(gq+1)}, {v(gq+1)}, {v(gq+3)}, s[58:59]""")
        for r in finish_stats(gq, gq + 1, t4, t5): a(r)
        a(f"""s_lshl_b32 s3, {s(sV)}, 4
              s_add_u32 s3, s3, {PRS}
              v_lshl_add_u32 {v(t4)}, {v(lane)}, 3, s3
              s_mov_b64 exec, 3
              ds_write_b64 {v(t4)}, {v(gq,2)}
              s_mov_b64 exec, -1""")
        nonce()
        few()
    def bar():
        a.waitlg(); a("s_barrier")
    a(f"s_cmp_eq_u32 {s(sCJ)}, 7\ns_cbranch_scc1 K1_DFT")
    snap = a.snapshot(); V0 = V.n; stc = st.n
    xa = [V.get(4) for _ in range(3)]; wa = [[V.get(), V.get()] for _ in range(2)]
    l16 = V.get(); a12 = [V.get(2), V.get(2)]
    acc = [[V.get(16) for _ in range(2)] for _ in range(2)]
    xf = [V.get(4) for _ in range(3)]; wf = [[V.get(4) for _ in range(2)] for _ in range(3)]
    cv = [V.get(16), V.get(16)]; ee = V.get(16)
    cs = ee; ad1, ad2, ad4, ad5 = ee + 4, ee + 5, ee + 6, ee + 7
    a(f"""s_lshr_b32 {s(sWR_)}, {s(sV)}, 1
          s_and_b32 {s(sWC)}, {s(sV)}, 1
          s_lshl_b32 s3, {s(sWR_)}, 12
          v_add_u32 {v(t0)}, s3, {v(t0)}
          v_xor_b32 {v(t1)}, {v(t3)}, {v(key)}""")
    for i in range(4):
        a(f"v_xor_b32 {v(t2)}, {2*i}, {v(t1)}\nv_lshl_add_u32 {v(xa[0]+i)}, {v(t2)}, 4, {v(t0)}\nv_add_u32 {v(xa[1]+i)}, 65536, {v(xa[0]+i)}\nv_add_u32 {v(xa[2]+i)}, 131072, {v(xa[0]+i)}")
    a(f"""v_and_b32 {v(t1)}, 2, {v(lane)}
          v_cmp_eq_u32 s[62:63], 2, {v(t1)}
          v_bfe_u32 {v(t0)}, {v(lane)}, 2, 2
          v_lshl_add_u32 {v(t1)}, {v(t3)}, 3, {v(t0)}
          v_lshlrev_b32 {v(t1)}, 8, {v(t1)}
          s_lshl_b32 s3, {s(sWC)}, 1
          s_add_u32 s54, s3, {s(sWR_)}
          v_xor_b32 {v(t0)}, s54, {v(t0)}
          v_lshl_add_u32 {v(t1)}, {v(t0)}, 6, {v(t1)}
          v_bfe_u32 {v(t0)}, {v(lane)}, 4, 1
          v_lshl_add_u32 {v(t1)}, {v(t0)}, 5, {v(t1)}
          v_and_b32 {v(t0)}, 1, {v(lane)}
          v_lshl_add_u32 {v(t1)}, {v(t0)}, 4, {v(t1)}
          v_bfe_u32 {v(t0)}, {v(lane)}, 1, 1
          v_lshl_add_u32 {v(wa[0][0])}, {v(t0)}, 3, {v(t1)}
          v_xor_b32 {v(wa[0][1])}, 64, {v(wa[0][0])}
          v_add_u32 {v(wa[1][0])}, 65536, {v(wa[0][0])}
          v_add_u32 {v(wa[1][1])}, 65536, {v(wa[0][1])}
          v_and_b32 {v(t0)}, 31, {v(lane)}
          s_lshl_b32 s3, {s(sWR_)}, 8
          s_add_u32 s3, s3, {SCR}
          v_lshl_add_u32 {v(ad1)}, {v(t0)}, 3, s3
          s_lshl_b32 s3, s54, 7
          s_add_u32 s40, s3, {PCS}
          v_lshl_add_u32 {v(ad2)}, {v(t0)}, 2, s40
          s_add_u32 s3, s3, {CSF}
          v_lshl_add_u32 {v(ad4)}, {v(t3)}, 4, s3
          v_xor_b32 {v(ad5)}, 0x80, {v(ad4)}
          s_mov_b32 s60, {fbits(-LOG2E)}
          s_mov_b32 s61, {fbits(-LOG2E)}
          v_lshlrev_b32 {v(l16)}, 4, {v(lane)}
          s_lshl_b32 s3, {s(sW)}, 2
          s_add_u32 s3, s3, {s(sLO)}
          s_lshl_b32 s3, s3, 2
          s_add_u32 s40, s3, {s(sWR_)}
          s_mul_i32 s40, s40, {112*1024}
          s_mul_i32 s3, {s(sHF)}, 7
          s_add_u32 s3, s3, {s(sCJ)}
          s_lshl_b32 s3, s3, 13
          s_lshl_b32 s42, s54, 11
          s_add_u32 s42, s42, s3
          s_xor_b32 s43, s42, 0x800
          s_add_u32 s44, s40, s42
          s_add_u32 s45, s40, s43
          s_add_u32 s46, s44, {2*112*1024}
          s_add_u32 s47, s45, {2*112*1024}""")
    assert V.n <= genp.CST and acc[0][0] + 21 <= rw and rw + 8 <= acc[1][1] + 16
    genp.fft_consts(a, acc[0][0])
    def reads_ffn(n):
        if n >= 64: return []
        m, t = divmod(n, 4); i = m & 7; b = n % 3; off = (i & 3) * 16384 + t * 4096
        r = [f"ds_read_b128 {v(xf[b],4)}, {v(xa[XLOC[m] >> 16]+t)} offset:{XLOC[m] & 0xffff}"]
        for T in range(2): r += [f"ds_read_b64_tr_b16 {v(wf[b][T]+2*h,2)}, {v(wa[i >> 2][T])} offset:{off + 1024*h}" for h in range(2)]
        return r
    def silu_out(P):
        for F in range(2):
            A_ = acc[P][F]
            for i in range(0, 16, 2): a(f"v_pk_mul_f32 {v(ee+i,2)}, {v(cv[F]+i,2)}, {v(a12[P],2)} op_sel:[0,1] op_sel_hi:[1,1]")
            for i in range(0, 16, 2): a(f"v_pk_fma_f32 {v(A_+i,2)}, {v(A_+i,2)}, {v(a12[P],2)}, {v(ee+i,2)} op_sel:[0,0,0] op_sel_hi:[1,0,1]")
            for i in range(16): a(f"v_exp_f32 {v(ee+i)}, {v(A_+i)}")
            for i in range(0, 16, 2): a(f"v_pk_fma_f32 {v(ee+i,2)}, {v(ee+i,2)}, s[60:61], s[60:61]")
            for i in range(16): a(f"v_rcp_f32 {v(ee+i)}, {v(ee+i)}")
            for i in range(0, 16, 2): a(f"v_pk_mul_f32 {v(ee+i,2)}, {v(A_+i,2)}, {v(ee+i,2)}")
            for u in range(2):
                for i in range(4): a(f"v_cvt_pk_bf16_f32 {v(A_+4*u+i)}, {v(ee+8*u+2*i)}, {v(ee+8*u+2*i+1)}")
                a(f"buffer_store_dwordx4 {v(A_+4*u,4)}, {v(l16)}, {s(SW,4)}, s{44+2*P+F} offen offset:{1024*u} sc1")
    def pfc(k):
        lo, nb, share, off = ((26, 2048*514, 1024, 0), (22, 2048*514, 1024, 0), (30, 1792*1024, 1792, 0), (30, 1792*1024, 1792, 1024))[k]
        def go():
            srd(a, SB, lo, lo + 1, nb)
            a(f"s_mul_i32 s3, s33, {share}\nbuffer_load_dwordx4 {v(cv[0],4)}, {v(l16)}, {s(SB,4)}, s3 offen offset:{off}"); untracked(a)
        return go
    a(f"s_lshl_b32 s33, s2, 2\ns_add_u32 s33, s33, {s(sV)}")
    def signal():
        a.waitlg(); a(f"s_mov_b64 exec, 1\nds_add_u32 {v(gq)}, {v(gq+1)}\ns_mov_b64 exec, -1")
    def barv():
        a.waitvm(None, lg0=True); a("s_barrier")
    produce()
    bar(); st.mark()
    a(f"v_mov_b32 {v(gq)}, {CNT}\nv_mov_b32 {v(gq+1)}, 1")
    for r in reads_ffn(0) + reads_ffn(1): a(r)
    E = OPT["bE"]
    for n in range(64):
        b = n % 3; P = n >> 5; z = "0" if n % 32 == 0 else None
        mfs = [(lambda F=F: mf32(a, acc[P][F], wf[b][F], xf[b], z)) for F in range(2)]
        fill = reads_ffn(n + 2); per = [3, 2]
        if n % 4 == 2: fill = [signal if n // 4 + 1 > OPT["lastB"] else barv if n // 4 + 1 == OPT["bA"] else bar] + fill; per = [3, 3]
        if n == 4:
            fill += [f"v_cndmask_b32 {v(cs)}, {v(cs)}, {v(cs+1)}, s[58:59]", f"v_cndmask_b32 {v(cs+2)}, {v(cs+2)}, {v(cs+3)}, s[58:59]",
                     f"v_cndmask_b32 {v(cs+1)}, {v(cs)}, {v(cs+2)}, s[62:63]", f"v_cndmask_b32 {v(cs)}, {v(cs)}, {v(cs+2)}, s[62:63]"]
            per = [4, 5]
        if n == 5:
            fill += [f"v_permlane32_swap_b32 {v(cs)}, {v(cs+1)}", f"v_add_f32 {v(cs)}, {v(cs)}, {v(cs+1)}", f"ds_write_b32 {v(ad2)}, {v(cs)}"]
            per = [4, 4]
        for k, nn in enumerate(OPT["pfc"]):
            if nn == n: fill = fill + [pfc(k)]; per[1] += 1
        if n == 4 * E - 1:
            if OPT["pfc"]: fill += ["s_waitcnt vmcnt(0)"]
            fill += [f"ds_read_b64 {v(a12[p],2)}, {v(ad1)} offset:{512*p}" for p in range(2)] + \
                    [f"ds_read_b128 {v(cv[F]+4*jj,4)}, {v(ad)} offset:{32*jj}" for F, ad in ((0, ad4), (1, ad5)) for jj in range(4)]
            per = [7, 9]
        interleave(a, mfs, fill, per)
        if n < 4:
            for h in (0, 2): mf4(a, cs, ones, wf[b][0]+h, "0" if (n == 0 and h == 0) else None)
        if n == 31: st.mark()
        if n == max(4 * E - 1, 31) + OPT["eAlag"]: silu_out(0); few()
    st.mark()
    silu_out(1)
    st.mark()
    nc = st.n
    a("s_branch P2_COMPUTE")
    vmax = 256
    a.restore(snap); V.n = V0; st.n = stc
    a.label("K1_DFT")
    xa = [V.get(4), V.get(4)]; ta = [V.get(), V.get()]; ad2 = V.get(); wad = V.get()
    Vo = VAlloc(V.get(4))
    acc = [[V.get(16) for _ in range(2)] for _ in range(4)]
    sq = V.get(4); sm = [V.get(4) for _ in range(4)]; ad1 = V.get(); spa = V.get()
    xr = V.get(16); xe = [V.get(4) for _ in range(4)]; tf = [[V.get(4) for _ in range(2)] for _ in range(4)]
    assert V.n <= 256 and acc[0][0] <= rw and rw + 8 <= acc[3][1]
    def st4d(first):
        for i in range(8):
            r, h = i & 3, 2 * (i >> 2)
            mf4(a, sq, xe[r] + h, xe[r] + h, "0" if first and i == 0 else None)
            mf4(a, sm[r], ones, xe[r] + h, "0" if first and i < 4 else None)
            if i < 7: a("s_nop 0")
    a(f"v_add_u32 {v(t0)}, {s(sL)}, {v(t0)}\nv_lshlrev_b32 {v(t1)}, 2, {v(t3)}\nv_xor_b32 {v(t1)}, {v(t1)}, {v(key)}")
    for i in range(4):
        a(f"v_xor_b32 {v(t2)}, {i}, {v(t1)}\nv_lshl_add_u32 {v(xa[0]+i)}, {v(t2)}, 4, {v(t0)}\nv_add_u32 {v(xa[1]+i)}, 65536, {v(xa[0]+i)}")
    a(f"""v_lshlrev_b32 {v(ta[0])}, 4, {v(lane)}
          v_add_u32 {v(ta[0])}, 16384, {v(ta[0])}
          v_add_u32 {v(ta[1])}, 65536, {v(ta[0])}
          s_mov_b32 s62, 0x05040100
          s_mov_b32 s63, 0x07060302
          s_lshl_b32 s3, {s(sV)}, 7
          s_add_u32 s3, s3, {SCR}
          v_lshl_add_u32 {v(ad2)}, {v(t3)}, 4, s3
          v_and_b32 {v(t1)}, 2, {v(lane)}
          v_cmp_eq_u32 s[48:49], 2, {v(t1)}
          v_and_b32 {v(t1)}, 31, {v(lane)}
          v_lshl_add_u32 {v(ad1)}, {v(t1)}, 2, s3
          v_lshlrev_b32 {v(t5)}, 8, {v(t1)}
          v_and_b32 {v(t1)}, 7, {v(lane)}
          v_xor_b32 {v(t1)}, {v(t1)}, {v(t3)}
          s_lshl_b32 s3, {s(sV)}, 1
          v_xor_b32 {v(t1)}, s3, {v(t1)}
          v_lshl_add_u32 {v(wad)}, {v(t1)}, 4, {v(t5)}
          s_mov_b32 s60, 2.0
          s_mov_b32 s61, 2.0
          v_bfe_u32 {v(t1)}, {v(lane)}, 2, 1
          v_add_u32 {v(t1)}, s3, {v(t1)}
          v_xor_b32 {v(t1)}, 7, {v(t1)}
          v_bfe_u32 {v(t2)}, {v(lane)}, 3, 1
          v_lshl_add_u32 {v(t1)}, {v(t1)}, 1, {v(t2)}
          v_and_b32 {v(t2)}, 3, {v(lane)}
          v_lshl_add_u32 {v(t1)}, {v(t1)}, 2, {v(t2)}
          v_lshlrev_b32 {v(spa)}, 1, {v(t1)}""")
    class R2:
        def __init__(s_): s_.k = 0
        def get(s_, n=1):
            return acc[0][0] if n == 32 else Vo.get(n)
    x1pre, x1post = x1_out(R2(), 1)
    a(x1pre)
    def loc(sl): slot = sl % NS; return slot >> 1, (slot & 1) * 32768
    def rd_x(sl): se, off = loc(sl); return [f"ds_read_b128 {v(xr+4*b,4)}, {v(xa[se]+b)} offset:{off}" for b in range(4)]
    def rd_t(sl, r): se, off = loc(sl); return [f"ds_read_b128 {v(tf[r][c],4)}, {v(ta[se])} offset:{off + (2*r + c)*1024}" for c in range(2)]
    def perms(r): return [f"v_perm_b32 {v(xe[r]+i)}, {v(xr+4*i+2+(r>>1))}, {v(xr+4*i+(r>>1))}, s{62+(r&1)}" for i in range(4)]
    produce()
    bar(); st.mark()
    for r in rd_x(0) + sum((rd_t(0, r) for r in range(4)), []): a(r)
    for r in range(4):
        for p in perms(r): a(p)
    st4d(True)
    rs = xr
    for sl in range(8):
        z = "0" if sl == 0 else None
        mfs = [(lambda r=r, c=c: mf32(a, acc[r][c], xe[r], tf[r][c], z)) for r in range(4) for c in range(2)]
        if sl < 7:
            bar()
            fill = rd_x(sl + 1); per = [4]
            for r in range(4):
                nx = rd_t(sl + 1, r) + (perms(r - 1) if r else [])
                fill += nx; per += [len(nx), 0]
            fill += perms(3) + [lambda: st4d(False)]; per = per[:8]
        else:
            fill = []
            for q in [sq] + sm:
                fill += [f"v_cndmask_b32 {v(q)}, {v(q)}, {v(q+1)}, s[58:59]", f"v_cndmask_b32 {v(q+2)}, {v(q+2)}, {v(q+3)}, s[58:59]"]
            for q in [sq] + sm:
                fill += [f"v_cndmask_b32 {v(q+1)}, {v(q)}, {v(q+2)}, s[48:49]", f"v_cndmask_b32 {v(q)}, {v(q)}, {v(q+2)}, s[48:49]"]
            fill += [f"v_permlane32_swap_b32 {v(q)}, {v(q+1)}" for q in [sq] + sm]
            fill += [f"v_add_f32 {v(q)}, {v(q)}, {v(q+1)}" for q in sm] + [f"v_add_f32 {v(t0)}, {v(sq)}, {v(sq+1)}"]
            fill += [f"v_add_f32 {v(sq)}, {v(sm[0])}, {v(sm[2])}", f"v_add_f32 {v(sq+1)}, {v(sm[1])}, {v(sm[3])}", f"v_add_f32 {v(t1)}, {v(sq)}, {v(sq+1)}"]
            fill += finish_stats(t0, t1, t4, t5)
            fill += [f"ds_write_b32 {v(ad1)}, {v(t0)}", "s_waitcnt lgkmcnt(0)"] + [f"ds_read_b128 {v(rs+4*jj,4)}, {v(ad2)} offset:{32*jj}" for jj in range(4)]
            per = [6] * 8
        interleave(a, mfs, fill, per)
        if sl == 2: few()
    st.mark()
    tmp = xe[0]; pk = [tf[0][0], tf[0][1]]
    ng = lambda *n: f" neg_lo:[{n[0]},{n[1]},{n[2]}] neg_hi:[{n[0]},{n[1]},{n[2]}]"
    a(f"""v_sub_f32 {v(sq)}, {v(sq)}, {v(sq+1)}
          v_sub_f32 {v(sq+1)}, {v(sm[0])}, {v(sm[2])}
          v_sub_f32 {v(sq+2)}, {v(sm[3])}, {v(sm[1])}
          v_mul_f32 {v(sq)}, {v(sq)}, {v(t0)}
          v_mul_f32 {v(sq+1)}, {v(sq+1)}, {v(t0)}
          v_mul_f32 {v(sq+2)}, {v(sq+2)}, {v(t0)}
          v_cvt_pk_bf16_f32 {v(sq)}, {v(sq)}, 0
          v_cvt_pk_bf16_f32 {v(sq+1)}, {v(sq+1)}, {v(sq+2)}""")
    k = 0
    for u in range(2):
        for i in range(8*u, 8*u + 8, 2):
            r = v(rs+i, 2); P = lambda q, c: v(acc[q][c]+i, 2)
            for q in range(2):
                for c in range(2): a(f"v_pk_mul_f32 {v(tmp+4*q+2*c,2)}, {P(q,c)}, {r}")
            for q in range(2):
                for c in range(2):
                    a(f"v_pk_fma_f32 {P(q,c)}, {P(q+2,c)}, {r}, {v(tmp+4*q+2*c,2)}\nv_pk_fma_f32 {P(q+2,c)}, {P(q+2,c)}, {r}, {v(tmp+4*q+2*c,2)}{ng(1,0,0)}")
            a(f"""v_pk_add_f32 {P(0,0)}, {P(0,0)}, {P(1,0)}
                  v_pk_add_f32 {P(0,1)}, {P(0,1)}, {P(1,1)}
                  v_pk_add_f32 {P(2,0)}, {P(2,0)}, {P(3,1)}
                  v_pk_add_f32 {P(2,1)}, {P(2,1)}, {P(3,0)} neg_lo:[0,1] neg_hi:[0,1]
                  v_pk_fma_f32 {P(1,0)}, {P(1,0)}, s[60:61], {P(0,0)}{ng(1,0,0)}
                  v_pk_fma_f32 {P(1,1)}, {P(1,1)}, s[60:61], {P(0,1)}{ng(0,0,1)}
                  v_pk_fma_f32 {P(3,1)}, {P(3,1)}, s[60:61], {P(2,0)}{ng(1,0,0)}
                  v_pk_fma_f32 {P(3,0)}, {P(3,0)}, s[60:61], {P(2,1)}{ng(1,0,1)}""")
        for ty in range(4):
            for c in range(2):
                src = acc[ty][c if ty < 3 else 1 - c]; pp = pk[k & 1]; k += 1
                for i in range(4): a(f"v_cvt_pk_bf16_f32 {v(pp+i)}, {v(src+8*u+2*i)}, {v(src+8*u+2*i+1)}")
                a(f"ds_write_b128 {v(wad)}, {v(pp,4)} offset:{u*32768 + ty*8192 + c*128}")
        a(f"s_cmp_eq_u32 {s(sHF)}, 0\ns_cbranch_scc1 K1_NOSPEC{u}\ns_mov_b64 exec, {0xffff << (16*u)}")
        for ty in (2, 3):
            a(f"ds_write_b16 {v(spa)}, {v(sq+ty-2)} offset:{u*32768 + ty*8192 + 31*256}\nds_write_b16_d16_hi {v(spa)}, {v(sq+ty-2)} offset:{u*32768 + ty*8192 + 31*256 + 128}")
        a("s_mov_b64 exec, -1")
        a.label(f"K1_NOSPEC{u}")
        bar()
    x1post()
    a("s_barrier")
    st.mark()
    genp.fft_consts(a, acc[2][0])
    st.mark()
    st.n = nc
    a("s_waitcnt vmcnt(0)\ns_barrier")
    a.vm, a.lg, a.hist = [("?", set())], [], []
    vmax = max(vmax, genp.compute23(a, st))
    a.vm, a.lg, a.hist = [], [], []; st.n = nl
    vmax = max(vmax, genp.loader23(a, st))
    a.label("K1_END")
    a("s_endpgm")
    return a, max(vmax, V.hi), (163840, 512)
```

```python
from asmfw import Asm, VAlloc, v, s
import __main__ as M
G = M if hasattr(M, "dft_table") else __import__("gen2")
OPT = G.OPT; fbits = G.fbits; srd = G.srd; mf32 = G.mf32; mf16 = G.mf16
H_OFF, X1_OFF, WT_OFF, Y1_OFF, PART_OFF, WS_END = G.H_OFF, G.X1_OFF, G.WT_OFF, G.Y1_OFF, G.PART_OFF, G.WS_END
F1A_OFF, F1B_OFF, F2A_OFF, F2B_OFF, F3_OFF, FW_OFF, FX_OFF = G.F1A_OFF, G.F1B_OFF, G.F2A_OFF, G.F2B_OFF, G.F3_OFF, G.FW_OFF, G.FX_OFF
SW, S2, SX, SO = 12, 16, 4, 16
sN = 66
HR, XB, WB, EX = 114688, 139264, 147456, 155648
YB, OWN, RED = 49152, 98304, 0
HLOC = [HR, HR + 8192, HR + 16384, EX, HR, HR + 8192, HR + 16384, HR, HR + 8192, HR + 16384, XB, WB, EX, HR]
CST = 192
W2R = [3, 4, 5, 6, 0, 1, 2]
NW2 = OPT["nw2"]
L16, V2, FH, LV0 = 9, 10, 18, 20
tid, lane, t0, t1, t2, t3, t4, t5 = range(8)
sV, sQ, sRB, sNB, sRT, sL, sHo, s2o, sWR_, sWC = 37, 32, 33, 64, 65, 51, 60, 61, 38, 39

def put_flag(a, off, va, vd, per_wave=False):
    a(f"s_lshl_b32 s3, s2, 2\ns_add_u32 s3, s3, {s(sV)}\ns_lshl_b32 s3, s3, 7" if per_wave else "s_lshl_b32 s3, s2, 7")
    a(f"""s_add_u32 s3, s3, {off}
          v_lshlrev_b32 {v(va)}, 2, {v(lane)}
          v_mov_b32 {v(vd)}, {s(sN)}
          s_mov_b64 exec, 0xffffffff
          buffer_store_dword {v(vd)}, {v(va)}, {s(SW,4)}, s3 offen sc1
          s_mov_b64 exec, -1""")
def wait_flags(a, name, pairs, sleep=0, atomic=0, lanes=0, between=None, only=None):
    def rd(va, vd):
        if atomic: a(f"v_mov_b32 {v(vd)}, 0\nbuffer_atomic_or {v(vd)}, {v(va)}, {s(SW,4)}, 0 offen sc0 sc1"); a.vm[-1] = (None, {('v', vd)})
        else: a(f"buffer_load_dword {v(vd)}, {v(va)}, {s(SW,4)}, 0 offen sc1")
    if sleep and only != "check": a(f"s_sleep {sleep}")
    if atomic or lanes: a(f"s_mov_b64 exec, {(1 << (atomic or lanes)) - 1}")
    if only != "check":
        for va, vd in pairs: rd(va, vd)
    if only == "issue":
        a("s_mov_b64 exec, -1"); return
    if between:
        a("s_mov_b64 exec, -1"); between(); a(f"s_mov_b64 exec, {(1 << lanes) - 1}")
    for i, (va, vd) in enumerate(pairs):
        a(f"v_cmp_ne_u32 vcc, {s(sN)}, {v(vd)}\ns_cbranch_vccz {name}_END{i}\ns_mov_b32 s67, 0")
        keep = a.snapshot()
        a.label(f"{name}_SPIN{i}")
        a("s_mov_b64 exec, vcc")
        if OPT["slS"]: a(f"s_sleep {OPT['slS']}")
        rd(va, vd)
        a(f"""s_add_u32 s67, s67, 1
              s_cmp_gt_u32 s67, {OPT['spinf']}
              s_waitcnt vmcnt(0)
              s_cbranch_scc1 {name}_END{i}
              v_cmp_ne_u32 vcc, {s(sN)}, {v(vd)}
              s_cbranch_vccnz {name}_SPIN{i}""")
        a.label(f"{name}_END{i}")
        a.restore(keep); a.hist = []
        a("s_mov_b64 exec, -1")

C64 = [CST, CST + 4]; S64 = [CST + 8, CST + 12]; C32 = [CST + 16, CST + 20]; S32 = [CST + 24, CST + 28]
c1, s1, c2, s2_ = CST + 32, CST + 40, CST + 48, CST + 56

def wg_flag(a, w, name, off=None, wide=False):
    a(f"s_cmp_lg_u32 {s(sV)}, {w}\ns_cbranch_scc1 {name}")
    keep = a.snapshot()
    if wide:
        a(f"""s_lshl_b32 s3, s2, 9
              s_add_u32 s3, s3, {off}
              v_lshlrev_b32 {v(t0)}, 3, {v(lane)}
              v_mov_b32 {v(t2)}, {s(sN)}
              v_mov_b32 {v(t3)}, {s(sN)}
              buffer_store_dwordx2 {v(t2,2)}, {v(t0)}, {s(SW,4)}, s3 offen sc1""")
    else: put_flag(a, F3_OFF + 32768 * w, t0, t2)
    a.label(name); a.restore(keep)

def fft_consts(a, fr):
    fj, fg, fk, ang = fr, fr + 1, fr + 2, fr + 3; cb = fr + 4; sb = fr + 12; u3 = fr + 20
    a(f"""v_lshrrev_b32 {v(t1)}, 4, {v(lane)}
          v_and_b32 {v(t0)}, 15, {v(lane)}
          v_cvt_f32_u32 {v(fj)}, {v(t0)}
          v_cvt_f32_u32 {v(fg)}, {v(t1)}
          s_lshl_b32 s3, {s(sV)}, 4
          v_add_u32 {v(t0)}, s3, {v(t0)}
          v_cvt_f32_u32 {v(fk)}, {v(t0)}""")
    def frag(step, base, offs, Cd, Sd):
        for e in range(8):
            a(f"v_mov_b32 {v(t4)}, {fbits(float(offs[e]))}\nv_fma_f32 {v(ang)}, {v(t4)}, {v(step)}, {v(base)}" if offs[e] not in (0, 1, 2, 4) else
              (f"v_mov_b32 {v(ang)}, {v(base)}" if offs[e] == 0 else f"v_fma_f32 {v(ang)}, {float(offs[e])}, {v(step)}, {v(base)}"))
            a(f"v_cos_f32 {v(cb+e)}, {v(ang)}\nv_sin_f32 {v(sb+e)}, {v(ang)}")
        for i in range(4):
            a(f"v_cvt_pk_bf16_f32 {v(Cd+i)}, {v(cb+2*i)}, {v(cb+2*i+1)}\nv_cvt_pk_bf16_f32 {v(Sd+i)}, {v(sb+2*i)}, {v(sb+2*i+1)}")
    a(f"v_mul_f32 {v(t2)}, {fbits(1/64)}, {v(fk)}\nv_mul_f32 {v(u3)}, {fbits(8.0)}, {v(fg)}\nv_mul_f32 {v(t5)}, {v(u3)}, {v(t2)}")
    frag(t2, t5, list(range(8)), C64[0], S64[0])
    a(f"v_add_f32 {v(u3)}, {fbits(32.0)}, {v(u3)}\nv_mul_f32 {v(t5)}, {v(u3)}, {v(t2)}")
    frag(t2, t5, list(range(8)), C64[1], S64[1])
    o32 = [0, 1, 2, 3, 16, 17, 18, 19]
    a(f"v_mul_f32 {v(u3)}, 4.0, {v(fg)}")
    for m in range(2):
        a(f"v_mul_f32 {v(t2)}, {fbits(1/32)}, {v(fj)}")
        if m: a(f"v_add_f32 {v(t2)}, 0.5, {v(t2)}")
        a(f"v_mul_f32 {v(t5)}, {v(u3)}, {v(t2)}")
        frag(t2, t5, o32, C32[m], S32[m])
    a(f"v_mul_f32 {v(t2)}, {fbits(1/2048)}, {v(fk)}\nv_mul_f32 {v(t5)}, {v(u3)}, {v(t2)}")
    for e in range(8):
        a(f"v_mov_b32 {v(t4)}, {fbits(float(o32[e]))}\nv_fma_f32 {v(ang)}, {v(t4)}, {v(t2)}, {v(t5)}\nv_cos_f32 {v(c1+e)}, {v(ang)}\nv_sin_f32 {v(s1+e)}, {v(ang)}")
    a(f"v_cvt_f32_u32 {v(t4)}, s3\nv_add_f32 {v(u3)}, {v(u3)}, {v(t4)}")
    for m in range(2):
        a(f"v_mul_f32 {v(t2)}, {fbits(1/2048)}, {v(fj)}")
        if m: a(f"v_add_f32 {v(t2)}, {fbits(16/2048)}, {v(t2)}")
        a(f"v_mul_f32 {v(ang)}, {v(u3)}, {v(t2)}")
        for r in range(4):
            if r: a(f"v_add_f32 {v(ang)}, {v(ang)}, {v(t2)}")
            a(f"v_cos_f32 {v(c2+4*m+r)}, {v(ang)}\nv_sin_f32 {v(s2_+4*m+r)}, {v(ang)}")
    a(f"s_mov_b32 s16, {fbits(1/2048)}\ns_mov_b32 s17, {fbits(1/2048)}")
    for i in range(0, 8, 2): a(f"v_pk_mul_f32 {v(c2+i,2)}, {v(c2+i,2)}, s[16:17]\nv_pk_mul_f32 {v(s2_+i,2)}, {v(s2_+i,2)}, s[16:17]")

def decode2(a):
    a(f"""s_bfe_u32 {s(sQ)}, s2, 0x20001
          s_and_b32 s3, s2, 1
          s_lshl_b32 s3, s3, 3
          s_lshr_b32 {s(sRB)}, s2, 5
          s_add_u32 {s(sRB)}, {s(sRB)}, s3
          s_bfe_u32 {s(sNB)}, s2, 0x20003
          s_lshl_b32 {s(sRT)}, {s(sRB)}, 2
          s_add_u32 {s(sRT)}, {s(sRT)}, {s(sQ)}""")
def p2_setup(a):
    decode2(a)
    srd(a, S2, 30, 31, 1792 * 1024)
    a(f"""s_mul_i32 s3, {s(sQ)}, 448
          s_lshl_b32 s40, {s(sV)}, 4
          s_add_u32 s3, s3, s40
          s_lshl_b32 s3, s3, 3
          s_add_u32 s3, s3, {s(sNB)}
          s_lshl_b32 {s(s2o)}, s3, 7
          v_lshrrev_b32 {v(t1)}, 4, {v(lane)}
          v_and_b32 {v(t0)}, 15, {v(lane)}
          v_lshlrev_b32 {v(t2)}, 2, {v(t1)}
          v_xor_b32 {v(t0)}, {v(t0)}, {v(t2)}
          v_lshrrev_b32 {v(t2)}, 3, {v(t0)}
          v_and_b32 {v(t0)}, 7, {v(t0)}
          v_lshlrev_b32 {v(t0)}, 4, {v(t0)}
          v_lshl_add_u32 {v(t0)}, {v(t2)}, 9, {v(t0)}
          v_lshl_add_u32 {v(V2)}, {v(t1)}, 10, {v(t0)}
          v_add_u32 {v(V2+1)}, 3072, {v(V2)}
          v_add_u32 {v(V2+2)}, 6144, {v(V2)}
          v_add_u32 {v(V2+3)}, 9216, {v(V2)}""")
def w2_dma(a, j):
    a(f"s_add_u32 m0, {s(sL)}, {W2R[j]*16384}")
    for i in range(4): a(f"buffer_load_dwordx4 {v(V2+i)}, {s(S2,4)}, {s(s2o)} offen offset:{1024*i} lds", tag=f"W{j}")
    a(f"s_add_u32 {s(s2o)}, {s(s2o)}, 65536")

def p2_pre(a, X):
    l16 = L16; fa, fd, fa2, fd2 = 14, 15, 16, 17
    fh = FH
    a(f"""s_and_b32 s3, {s(sRB)}, 3
          s_lshl_b32 s3, s3, 3
          s_lshr_b32 s43, {s(sRB)}, 2
          s_lshl_b32 s43, s43, 1
          s_add_u32 s3, s3, s43
          s_lshr_b32 s43, {s(sQ)}, 1
          s_add_u32 s3, s3, s43
          s_and_b32 s43, {s(sQ)}, 1
          s_mul_i32 s43, s43, 96
          s_add_u32 s3, s3, s43
          s_lshl_b32 s3, s3, 7
          s_add_u32 s3, s3, {F1A_OFF}
          v_and_b32 {v(t0)}, 3, {v(lane)}
          v_lshl_add_u32 {v(fh)}, {v(t0)}, 12, s3""")
    def setup():
        a(f"""s_lshl_b32 s3, {s(sRB)}, 2
              s_lshr_b32 s43, {s(sV)}, 1
              s_add_u32 s3, s3, s43
              s_mul_i32 s3, s3, 112
              s_mul_i32 s43, {s(sQ)}, 28
              s_add_u32 s3, s3, s43
              s_and_b32 s43, {s(sV)}, 1
              s_lshl_b32 s43, s43, 1
              s_add_u32 s3, s3, s43
              s_lshl_b32 {s(sHo)}, s3, 10
              s_lshl_b32 s44, {s(sV)}, 11
              s_lshl_b32 s43, s2, 13
              s_add_u32 s43, s43, s44
              s_add_u32 s47, s43, {X1_OFF}
              s_add_u32 s48, s43, {WT_OFF}""")
        a(f"""s_lshr_b32 s3, s2, 4
              s_lshl_b32 s43, {s(sV)}, 5
              s_add_u32 s3, s3, s43
              s_lshl_b32 s3, s3, 7
              s_add_u32 s3, s3, {FW_OFF}
              v_and_b32 {v(t0)}, 1, {v(lane)}
              v_lshl_add_u32 {v(fa)}, {v(t0)}, 11, s3
              v_bfe_u32 {v(t0)}, {v(lane)}, 1, 3
              v_lshl_add_u32 {v(fa)}, {v(t0)}, 14, {v(fa)}
              s_add_u32 s3, s2, 1
              s_and_b32 s3, s3, 127
              s_sub_u32 s43, 128, s3
              s_min_u32 s3, s3, s43
              s_sub_u32 s3, s3, 1
              s_bfe_u32 s3, s3, 0x10005
              s_and_b32 s43, {s(sV)}, 1
              s_lshl_b32 s43, s43, 4
              s_add_u32 s3, s3, s43
              s_add_u32 s3, s3, 224
              s_lshl_b32 s3, s3, 7
              s_add_u32 s3, s3, {FX_OFF}
              v_and_b32 {v(t0)}, 7, {v(lane)}
              v_lshl_add_u32 {v(fa2)}, {v(t0)}, 8, s3
              v_cmp_gt_u32 vcc, 16, {v(lane)}
              v_cndmask_b32 {v(fa)}, {v(fa2)}, {v(fa)}, vcc""")
    wait_flags(a, "P2_FA" + X, [(fh, fd)], OPT["slH"], lanes=4, between=setup)

def loader23(a, st):
    a.label("P2_LOADER")
    l16 = L16; fa, fd, fa2, fd2 = 14, 15, 16, 17; fh = FH
    V = VAlloc(LV0)
    def h_dma(m):
        a(f"s_add_u32 m0, s44, {HLOC[m]}")
        for j in range(2): a(f"buffer_load_dwordx4 {v(l16)}, {s(SW,4)}, {s(sHo)} offen offset:{1024*j} sc1 lds", tag=f"H{m}")
        a(f"s_add_u32 {s(sHo)}, {s(sHo)}, {4096 if m != 6 else (2*112 - 24)*1024}")
    st.mark()
    def x_dma():
        wait_flags(a, "P2_FX", [(fa, fd2)], lanes=24, only="check")
        st.mark()
        for base, so in ((XB, 47), (WB, 48)):
            a(f"s_add_u32 m0, s44, {base}")
            for j in range(2): a(f"buffer_load_dwordx4 {v(l16)}, {s(SW,4)}, s{so} offen offset:{1024*j} sc1 lds", tag="X")
    LA = OPT["lastA"]
    for ph in range(LA + 2):
        if ph == OPT["bB"] + 1: wg_flag(a, 2, "P2_F1B")
        if ph == OPT["phP"]: wait_flags(a, "P2_FX", [(fa, fd2)], lanes=24, only="issue")
        for m in ([0, 1, 2, 3] if ph == 0 else [ph + 2] if 2 <= ph <= 4 else []): h_dma(m)
        for j in ([NW2, NW2 + 1][:OPT["w0"]] if ph == 0 else [ph + NW2 + OPT["w0"] - 1]):
            if j <= 6: w2_dma(a, j)
        if ph == OPT["phX"]: x_dma()
        if ph > LA: break
        a.waitvm(f"H{6 if ph == LA else ph}"); a.waitvm(f"W{6 if ph == LA else ph}")
        a("s_barrier")
        if ph == 0:
            st.mark()
            if not OPT["phF"]: put_flag(a, FW_OFF, t0, t2, True)
    assert OPT["bB"] <= LA and OPT["phP"] <= OPT["phX"] <= LA + 1 and LA >= 4 and LA + NW2 + OPT["w0"] - 1 >= 6
    a(f"v_add_u32 {v(fh)}, {F1B_OFF - F1A_OFF}, {v(fh)}")
    a.waitvm("X"); a("s_barrier")
    wait_flags(a, "P2_FB", [(fh, fd)], OPT["slB"], lanes=4)
    for m in (7, 8, 9): h_dma(m)
    a("s_barrier")
    vy = V.get(4); vxo = V.get(); vpo = V.get(); pt = V.get(24); xv = V.get(8); rr = V.get(2); sYo = 60
    h_dma(10); h_dma(11)
    LB = OPT["lastB2"]
    for ph in range(7, LB + 1):
        if ph in (8, 9): h_dma(ph + 4)
        if ph == LB:
            a(f"""s_lshl_b32 {s(sL)}, {s(sV)}, 13
                  s_add_u32 {s(sL)}, {s(sL)}, {YB}
                  v_and_b32 {v(t0)}, 3, {v(lane)}
                  v_lshlrev_b32 {v(t0)}, 4, {v(t0)}
                  v_bfe_u32 {v(t2)}, {v(lane)}, 2, 1
                  v_lshl_add_u32 {v(t0)}, {v(t2)}, 12, {v(t0)}
                  v_lshrrev_b32 {v(t1)}, 3, {v(lane)}
                  v_lshl_add_u32 {v(vy)}, {v(t1)}, 14, {v(t0)}
                  v_add_u32 {v(vy+1)}, 130048, {v(vy)}
                  v_add_u32 {v(vy+2)}, {2*130048}, {v(vy)}
                  v_add_u32 {v(vy+3)}, {3*130048}, {v(vy)}
                  s_and_b32 s3, {s(sV)}, 1
                  s_lshl_b32 s3, s3, 7
                  s_lshr_b32 s40, {s(sV)}, 1
                  s_add_u32 s3, s3, s40
                  s_lshl_b32 s41, s3, 7
                  s_add_u32 s41, s41, {F3_OFF}
                  v_lshl_add_u32 {v(fa)}, {v(lane)}, 8, s41
                  s_lshl_b32 s3, s3, 13
                  s_lshl_b32 s40, {s(sRT)}, 6
                  s_add_u32 s3, s3, s40
                  s_add_u32 {s(sYo)}, s3, {Y1_OFF}""")
        a.waitvm(f"H{13 if ph == LB else ph}")
        a("s_barrier")
        if ph == OPT["bY"]:
            wg_flag(a, 0, "P2_F3"); wg_flag(a, 1, "P2_F2A", F2A_OFF, True)
        if ph in (7, LB): st.mark()
    wait_flags(a, "P3_FY", [(fa, fd)], OPT["slY"])
    a("s_load_dwordx2 s[30:31], s[0:1], 48")
    def y_dma():
        for g in range(2):
            a(f"s_add_u32 m0, {s(sL)}, {g*4096}")
            for j in range(4): a(f"buffer_load_dwordx4 {v(vy+j)}, {s(SW,4)}, {s(sYo)} offen offset:{1024*j} sc1 lds", tag="Y")
            if g == 0: a(f"s_add_u32 {s(sYo)}, {s(sYo)}, 524288")
    if OPT["yfree"]: y_dma()
    srd(a, SX, 24, 25, 0x200000); srd(a, SO, 30, 31, 0x200000)
    a(f"""v_lshrrev_b32 {v(t3)}, 5, {v(lane)}
          v_bfe_u32 {v(t1)}, {v(lane)}, 3, 2
          v_lshl_add_u32 {v(t0)}, {v(t3)}, 4, {v(t1)}
          v_and_b32 {v(t2)}, 7, {v(lane)}
          v_lshlrev_b32 {v(t4)}, 4, {v(t2)}
          v_lshl_add_u32 {v(vxo)}, {v(t0)}, 10, {v(t4)}
          s_lshr_b32 s3, {s(sRB)}, 2
          s_lshl_b32 s3, s3, 2
          s_add_u32 s3, s3, {s(sQ)}
          s_lshl_b32 s3, s3, 2
          s_add_u32 s3, s3, {s(sV)}
          s_lshl_b32 s3, s3, 3
          s_and_b32 s40, {s(sRB)}, 3
          s_add_u32 s3, s3, s40
          s_lshl_b32 s3, s3, 5
          s_add_u32 s3, s3, {s(sNB)}
          s_lshl_b32 s45, s3, 7""")
    a(f"""s_lshl_b32 s3, {s(sRT)}, 3
          s_add_u32 s3, s3, {s(sNB)}
          s_lshl_b32 s3, s3, 3
          s_add_u32 s3, s3, {s(sV)}
          s_lshl_b32 s3, s3, 9
          s_add_u32 s43, s3, {PART_OFF}
          v_lshrrev_b32 {v(t0)}, 3, {v(lane)}
          v_and_b32 {v(t1)}, 3, {v(lane)}
          v_lshlrev_b32 {v(t4)}, 4, {v(t1)}
          v_lshl_add_u32 {v(t4)}, {v(t0)}, 6, {v(t4)}
          v_bfe_u32 {v(t5)}, {v(lane)}, 2, 1
          v_lshl_add_u32 {v(vpo)}, {v(t5)}, 11, {v(t4)}
          v_max_u32 {v(t1)}, 1, {v(t1)}
          v_add_u32 {v(t1)}, {s(sQ)}, {v(t1)}
          v_and_b32 {v(t1)}, 3, {v(t1)}
          s_andn2_b32 s3, s2, 6
          s_lshl_b32 s3, s3, 2
          s_and_b32 s40, {s(sQ)}, 1
          s_lshl_b32 s40, s40, 1
          s_add_u32 s3, s3, s40
          s_lshr_b32 s40, {s(sQ)}, 1
          s_lshl_b32 s40, s40, 10
          s_add_u32 s3, s3, s40
          s_lshl_b32 s3, s3, 7
          s_add_u32 s3, s3, {F2A_OFF}
          v_lshl_add_u32 {v(fa)}, {v(t1)}, 10, s3
          v_lshl_add_u32 {v(fa)}, {v(t5)}, 7, {v(fa)}
          s_lshl_b32 s3, {s(sV)}, 11
          v_lshl_add_u32 {v(t4)}, {v(t0)}, 8, s3
          v_lshlrev_b32 {v(t2)}, 1, {v(t2)}
          v_xor_b32 {v(t0)}, {v(t0)}, {v(t2)}
          v_lshl_add_u32 {v(rr)}, {v(t0)}, 4, {v(t4)}
          v_xor_b32 {v(rr+1)}, 16, {v(rr)}
          v_add_u32 {v(fa2)}, {OWN}, {v(rr)}
          v_add_u32 {v(fd2)}, {OWN}, {v(rr+1)}
          s_mov_b32 s46, 0xffff0000
          s_mov_b32 s48, {fbits(1/256)}
          s_mov_b32 s49, {fbits(1/256)}""")
    a("s_barrier")
    def epoch():
        a(f"s_or_b32 s3, s2, {s(sV)}\ns_cmp_lg_u32 s3, 0\ns_cbranch_scc1 P3_NOEPOCH")
        keep = a.snapshot()
        a(f"""v_mov_b32 {v(t0)}, {G.EPOCH_OFF}
              v_mov_b32 {v(t2)}, {s(sN)}
              s_mov_b64 exec, 1
              buffer_store_dword {v(t2)}, {v(t0)}, {s(SW,4)}, 0 offen sc1
              s_mov_b64 exec, -1""")
        a.label("P3_NOEPOCH"); a.restore(keep)
    if not OPT["yfree"]: y_dma()
    for lh in range(2): a(f"buffer_load_dwordx4 {v(xv+4*lh,4)}, {v(vxo)}, {s(SX,4)}, s45 offen offset:{512*lh}", tag="P")
    bs = [V.get(8), V.get(8)]; u0 = V.get(8); red = V.get(32); pk = V.get(8)
    def p_loads(between=None):
        wait_flags(a, "P3_FP", [(fa, fd)], OPT["slP"], lanes=8, between=between)
        st.mark()
        for q in range(3):
            a(f"s_add_u32 s3, {s(sQ)}, {q+1}\ns_and_b32 s3, s3, 3\ns_lshl_b32 s3, s3, 21\ns_add_u32 s40, s43, s3\ns_add_u32 s41, s40, 16384")
            for lh in range(2): a(f"buffer_load_dwordx4 {v(pt + 8*q + 4*lh,4)}, {v(vpo)}, {s(SW,4)}, s{40+lh} offen sc1", tag="P")
    def by():
        a.waitvm("Y"); a("s_barrier")
        st.mark()
    def own():
        for lh in range(2):
            for b in range(2): a(f"ds_read_b128 {v(bs[lh]+4*b,4)}, {v(fd2 if b else fa2)} offset:{8192*lh}")
        def add_bf16(src):
            for lh in range(2):
                for i in range(4): a(f"v_lshlrev_b32 {v(u0+2*i)}, 16, {v(src+4*lh+i)}\nv_and_b32 {v(u0+2*i+1)}, s46, {v(src+4*lh+i)}")
                for i in range(8): a(f"v_add_f32 {v(bs[lh]+i)}, {v(bs[lh]+i)}, {v(u0+i)}")
        add_bf16(xv)
    if OPT["pearly"]: p_loads(by); own()
    else: by(); own(); p_loads()
    a("s_barrier")
    for b in range(2):
        for w in range(4): a(f"ds_read_b128 {v(red+8*w+4*b,4)}, {v(rr+b)} offset:{RED + 8192*w}")
    for i in range(0, 8, 2):
        a(f"""v_pk_add_f32 {v(red+i,2)}, {v(red+i,2)}, {v(red+8+i,2)}
              v_pk_add_f32 {v(red+16+i,2)}, {v(red+16+i,2)}, {v(red+24+i,2)}
              v_pk_fma_f32 {v(bs[0]+i,2)}, {v(red+16+i,2)}, s[48:49], {v(bs[0]+i,2)}
              v_pk_fma_f32 {v(bs[1]+i,2)}, {v(red+16+i,2)}, s[48:49], {v(bs[1]+i,2)}
              v_pk_fma_f32 {v(bs[0]+i,2)}, {v(red+i,2)}, s[48:49], {v(bs[0]+i,2)}
              v_pk_fma_f32 {v(bs[1]+i,2)}, {v(red+i,2)}, s[48:49], {v(bs[1]+i,2)} neg_lo:[1,0,0] neg_hi:[1,0,0]""")
    st.mark()
    for q in range(3):
        for lh in range(2):
            for i in range(4): a(f"v_lshlrev_b32 {v(u0+2*i)}, 16, {v(pt+8*q+4*lh+i)}\nv_and_b32 {v(u0+2*i+1)}, s46, {v(pt+8*q+4*lh+i)}")
            for i in range(0, 8, 2): a(f"v_pk_add_f32 {v(bs[lh]+i,2)}, {v(bs[lh]+i,2)}, {v(u0+i,2)}")
            if q == 2:
                for i in range(4): a(f"v_cvt_pk_bf16_f32 {v(pk+4*lh+i)}, {v(bs[lh]+2*i)}, {v(bs[lh]+2*i+1)}")
                a(f"buffer_store_dwordx4 {v(pk+4*lh,4)}, {v(vxo)}, {s(SO,4)}, s45 offen offset:{512*lh} {OPT['stO']}")
    if OPT["ep"] == 1: epoch()
    st.mark()
    st.flush(SW, red, tid, 256, 1)
    a("s_endpgm")
    return V.hi

def compute23(a, st):
    a.label("P2_COMPUTE")
    V = VAlloc(8); l16, ha, xrd, exw, exr0, exr1, pad, wrd = [V.get() for _ in range(8)]
    wa = [[V.get(), V.get()] for _ in range(2)]; ow = V.get(4)
    acc = [[V.get(16) for _ in range(2)] for _ in range(2)]
    hf = [V.get(4) for _ in range(3)]; wf = [[V.get(4) for _ in range(2)] for _ in range(3)]
    fr = hf[0]; assert wf[2][1] + 4 == fr + 36
    ex = V.get(60); assert V.n <= CST
    xin = [[[fr + 4*((c*2 + m)*2 + t) for t in range(2)] for m in range(2)] for c in range(2)]
    D = [acc[1][0], acc[1][0] + 8]; E = [acc[1][1], acc[1][1] + 8]
    wr, wi, wd, P = ex, ex + 8, ex + 16, [ex + 24, ex + 28]; N64 = [ex + 32, ex + 36]; N32 = [ex + 40, ex + 44]; pk = ex
    a(f"""s_lshr_b32 {s(sWR_)}, {s(sV)}, 1
          s_and_b32 {s(sWC)}, {s(sV)}, 1
          v_lshlrev_b32 {v(l16)}, 4, {v(lane)}
          s_lshl_b32 s3, {s(sWR_)}, 12
          s_add_u32 s3, s3, {HR}
          v_add_u32 {v(ha)}, s3, {v(l16)}
          v_bfe_u32 {v(t0)}, {v(lane)}, 2, 2
          v_lshl_add_u32 {v(t1)}, {v(t3)}, 3, {v(t0)}
          v_lshlrev_b32 {v(t1)}, 8, {v(t1)}
          s_lshl_b32 s3, {s(sWC)}, 1
          v_xor_b32 {v(t0)}, s3, {v(t0)}
          v_lshl_add_u32 {v(t1)}, {v(t0)}, 6, {v(t1)}
          v_bfe_u32 {v(t0)}, {v(lane)}, 4, 1
          v_lshl_add_u32 {v(t1)}, {v(t0)}, 5, {v(t1)}
          v_and_b32 {v(t0)}, 1, {v(lane)}
          v_lshl_add_u32 {v(t1)}, {v(t0)}, 4, {v(t1)}
          v_bfe_u32 {v(t0)}, {v(lane)}, 1, 1
          v_lshl_add_u32 {v(wa[0][0])}, {v(t0)}, 3, {v(t1)}
          v_xor_b32 {v(wa[0][1])}, 64, {v(wa[0][0])}
          v_add_u32 {v(wa[1][0])}, 65536, {v(wa[0][0])}
          v_add_u32 {v(wa[1][1])}, 65536, {v(wa[0][1])}""")
    b = Asm(); real, a = a, b
    decode2(a)
    a(f"v_lshrrev_b32 {v(t1)}, 4, {v(lane)}")
    a(f"""v_and_b32 {v(t0)}, 15, {v(lane)}
          v_lshrrev_b32 {v(t2)}, 1, {v(t1)}
          v_and_b32 {v(pad)}, 1, {v(t1)}
          v_lshlrev_b32 {v(t4)}, 5, {v(t0)}
          v_lshl_add_u32 {v(t4)}, {v(t2)}, 9, {v(t4)}
          v_lshl_add_u32 {v(t4)}, {v(pad)}, 4, {v(t4)}
          v_add_u32 {v(xrd)}, {XB}, {v(t4)}
          v_lshrrev_b32 {v(t4)}, 1, {v(t0)}
          v_lshlrev_b32 {v(t0)}, 7, {v(t0)}
          v_add_u32 {v(t0)}, {EX}, {v(t0)}
          v_xor_b32 {v(t5)}, {v(t4)}, {v(t1)}
          v_lshl_add_u32 {v(exr0)}, {v(t5)}, 4, {v(t0)}
          v_xor_b32 {v(exr1)}, 64, {v(exr0)}
          s_lshl_b32 s3, {s(sV)}, 1
          v_add_u32 {v(t2)}, s3, {v(t2)}
          v_xor_b32 {v(t2)}, {v(t2)}, {v(t4)}
          v_lshl_add_u32 {v(t2)}, {v(t2)}, 4, {v(t0)}
          v_lshl_add_u32 {v(exw)}, {v(pad)}, 3, {v(t2)}""")
    a(f"s_lshl_b32 s3, {s(sV)}, 11\ns_add_u32 s3, s3, {WB}\nv_add_u32 {v(wrd)}, s3, {v(l16)}")
    a(f"""v_and_b32 {v(t0)}, 15, {v(lane)}
          v_lshlrev_b32 {v(t0)}, 6, {v(t0)}
          v_lshl_add_u32 {v(t0)}, {v(t3)}, 4, {v(t0)}
          v_bfe_u32 {v(t1)}, {v(lane)}, 4, 1
          v_lshl_add_u32 {v(pad)}, {v(t1)}, 5, {v(t0)}
          s_lshl_b32 s3, {s(sRB)}, 2
          s_add_u32 s3, s3, {s(sWR_)}
          s_lshl_b32 s3, s3, 1
          s_add_u32 s3, s3, {s(sWC)}
          s_lshl_b32 s3, s3, 2
          s_add_u32 s3, s3, {s(sNB)}
          s_lshl_b32 s3, s3, 12
          s_lshl_b32 s43, {s(sQ)}, 21
          s_add_u32 s3, s3, s43
          s_add_u32 s54, s3, {PART_OFF}
          s_add_u32 s55, s54, 65536
          s_sub_u32 s50, {s(sQ)}, {s(sWR_)}
          v_and_b32 {v(t0)}, 31, {v(lane)}
          s_lshl_b32 s3, {s(sWC)}, 13
          s_add_u32 s3, s3, {OWN}
          v_lshl_add_u32 {v(t0)}, {v(t0)}, 8, s3
          v_and_b32 {v(t2)}, 7, {v(lane)}
          v_lshlrev_b32 {v(t4)}, 1, {v(t3)}
          v_xor_b32 {v(t2)}, {v(t2)}, {v(t4)}""")
    for k in range(4): a(f"v_xor_b32 {v(t4)}, {(k >> 1)*4 + (k & 1)}, {v(t2)}\nv_lshl_add_u32 {v(ow+k)}, {v(t4)}, 4, {v(t0)}")
    a(f"""s_lshl_b32 s3, s2, 13
          s_lshl_b32 s43, {s(sV)}, 10
          s_add_u32 s3, s3, s43
          s_add_u32 s44, s3, {Y1_OFF}
          s_add_u32 s45, s44, 4096
          s_mov_b32 s47, 0x80008000""")
    for i in range(8): a(f"v_xor_b32 {v(N64[0]+i)}, s47, {v(S64[0]+i)}\nv_xor_b32 {v(N32[0]+i)}, s47, {v(S32[0]+i)}")
    late = [l.strip() for l in b.out]; a = real
    def reads(n):
        m, t = divmod(n, 4); j = W2R[m % 7]; bb = n % 3; off = (j & 3) * 16384 + t * 4096
        r = [f"ds_read_b128 {v(hf[bb],4)}, {v(ha)} offset:{HLOC[m] - HR + t*1024}"]
        for T in range(2): r += [f"ds_read_b64_tr_b16 {v(wf[bb][T]+2*h,2)}, {v(wa[j >> 2][T])} offset:{off + 1024*h}" for h in range(2)]
        return r
    def bar(): a.waitlg(); a("s_barrier")
    def barv(): a.waitvm(None, lg0=True); a("s_barrier")
    def gemm(Pn):
        nonlocal late
        a("s_barrier")
        st.mark()
        for r in reads(28*Pn) + reads(28*Pn + 1): a(r)
        for n in range(28*Pn, 28*Pn + 28):
            bb = n % 3; z = "0" if n % 28 == 0 else None
            mfs = [(lambda F=F: mf32(a, acc[Pn][F], wf[bb][F], hf[bb], z)) for F in range(2)]
            fill = reads(n + 2) if n % 28 < 26 else []; per = [3, 2]
            if n % 4 == 2 and n % 28 < 24 and n // 4 + 1 <= (OPT["lastB2"] if Pn else OPT["lastA"]): fill = [barv if n // 4 + 1 in (OPT["bB"], OPT["bY"]) else bar] + fill; per = [3, 3]
            elif late: fill = fill[:3] + late[:2] + fill[3:] + late[2:5]; late = late[5:]; per = [5, 5]
            G.interleave(a, mfs, fill, per)
        assert not late
        st.mark()
    def part(Pn, name):
        a(f"s_nop 9\ns_cmp_eq_u32 s50, {2*Pn}\ns_cbranch_scc1 {name}")
        for F in range(2):
            pp = pk + 8*F
            for i in range(8): a(f"v_cvt_pk_bf16_f32 {v(pp+i)}, {v(acc[Pn][F]+2*i)}, {v(acc[Pn][F]+2*i+1)}")
            for i in range(4): a(f"v_permlane16_swap_b32 {v(pp+i)}, {v(pp+4+i)}")
            for u in range(2): a(f"buffer_store_dwordx4 {v(pp+4*u,4)}, {v(pad)}, {s(SW,4)}, s{54+Pn} offen offset:{2048*F + 1024*u} sc1")
        a.label(name)
    gemm(0)
    part(0, "P2_KEEPA")
    a("s_barrier")
    st.mark()
    for m in range(2):
        for t in range(2):
            for c in range(2): a(f"ds_read_b128 {v(xin[c][m][t],4)}, {v(xrd)} offset:{c*4096 + m*2048 + t*1024}")
    for j in range(2): a(f"ds_read_b128 {v(wd+4*j,4)}, {v(wrd)} offset:{1024*j}")
    def big(src, Cc, Sre, Sim, fill=()):
        mfs = []
        for m in range(2):
            for t in range(2):
                z = "0" if t == 0 else None
                mfs += [lambda m=m, t=t, z=z: mf16(a, D[0]+4*m, src[0][m][t], Cc[t], z), lambda m=m, t=t, z=z: mf16(a, D[1]+4*m, src[0][m][t], Sim[t], z),
                        lambda m=m, t=t: mf16(a, D[0]+4*m, src[1][m][t], Sre[t]), lambda m=m, t=t: mf16(a, D[1]+4*m, src[1][m][t], Cc[t])]
        G.interleave(a, mfs, fill, [0] * 8 + [2] * 8)
    def cmul(cc, ss, nre, nim):
        ng = lambda n: " neg_lo:[0,1,0] neg_hi:[0,1,0]" if n < 0 else ""
        for i in range(0, 8, 2):
            a(f"""v_pk_mul_f32 {v(E[0]+i,2)}, {v(D[0]+i,2)}, {v(cc+i,2)}
                  v_pk_mul_f32 {v(E[1]+i,2)}, {v(D[1]+i,2)}, {v(cc+i,2)}
                  v_pk_fma_f32 {v(E[0]+i,2)}, {v(D[1]+i,2)}, {v(ss+i,2)}, {v(E[0]+i,2)}{ng(nre)}
                  v_pk_fma_f32 {v(E[1]+i,2)}, {v(D[0]+i,2)}, {v(ss+i,2)}, {v(E[1]+i,2)}{ng(nim)}""")
        for c in range(2):
            for i in range(4): a(f"v_cvt_pk_bf16_f32 {v(P[c]+i)}, {v(E[c]+2*i)}, {v(E[c]+2*i+1)}")
    a("s_mov_b32 s46, 0xffff0000")
    big(xin, C64, S64, N64, sum(([f"v_lshlrev_b32 {v(wr+i)}, 16, {v(wd+i)}", f"v_and_b32 {v(wi+i)}, s46, {v(wd+i)}"] for i in range(8)), []))
    cmul(c1, s1, +1, -1)
    for m in range(2):
        mf16(a, D[0]+4*m, C32[m], P[0], "0"); mf16(a, D[1]+4*m, N32[m], P[0], "0")
        mf16(a, D[0]+4*m, S32[m], P[1]); mf16(a, D[1]+4*m, C32[m], P[1])
    cmul(wr, wi, -1, +1)
    for m in range(2):
        mf16(a, D[0]+4*m, P[0], C32[m], "0"); mf16(a, D[1]+4*m, P[0], S32[m], "0")
        mf16(a, D[0]+4*m, P[1], N32[m]); mf16(a, D[1]+4*m, P[1], C32[m])
    cmul(c2, s2_, -1, +1)
    for c in range(2):
        for m in range(2): a(f"ds_write_b64 {v(exw)}, {v(P[c]+2*m,2)} offset:{c*4096 + m*2048}")
    a.waitlg(); a("s_barrier")
    for m in range(2):
        for t in range(2):
            for c in range(2): a(f"ds_read_b128 {v(xin[c][m][t],4)}, {v(exr1 if t else exr0)} offset:{c*4096 + m*2048}")
    big(xin, C64, N64, S64)
    for c in range(2):
        for i in range(4): a(f"v_cvt_pk_bf16_f32 {v(P[c]+i)}, {v(D[c]+2*i)}, {v(D[c]+2*i+1)}")
        a(f"buffer_store_dwordx4 {v(P[c],4)}, {v(l16)}, {s(SW,4)}, s{44+c} offen sc1", tag="st")
    gemm(1)
    part(1, "P2_KEEPB")
    for Pn in range(2):
        a(f"s_cmp_lg_u32 s50, {2*Pn}\ns_cbranch_scc1 P3_NOWN{Pn}")
        for F in range(2):
            for k in range(4): a(f"ds_write_b128 {v(ow+k)}, {v(acc[Pn][F]+4*k,4)} offset:{128*F}")
        a.label(f"P3_NOWN{Pn}")
    if not OPT["f2bar"]: a("s_barrier")
    V = VAlloc(ex + 16); fa, fd = V.get(), V.get()
    df = [CST, CST + 32]; cs_ = V.get(4); ang = [V.get(), V.get()]; dd = [V.get(), V.get()]; d5 = [V.get(), V.get()]; hf_ = V.get()
    vmax = 256
    gen = [f"v_and_b32 {v(t0)}, 31, {v(lane)}", f"s_lshl_b32 s3, {s(sNB)}, 6", f"v_add_u32 {v(t0)}, s3, {v(t0)}", f"v_cvt_f32_u32 {v(dd[0])}, {v(t0)}",
           f"s_and_b32 s3, {s(sV)}, 1", f"s_lshl_b32 s3, s3, 7", f"s_lshr_b32 s40, {s(sV)}, 1", f"s_add_u32 s3, s3, s40", f"s_add_u32 s3, s3, 1",
           f"v_lshl_add_u32 {v(t0)}, {v(t3)}, 3, s3", f"v_cvt_f32_u32 {v(t1)}, {v(t0)}", f"v_mul_f32 {v(dd[0])}, {fbits(1/256)}, {v(dd[0])}",
           f"v_mul_f32 {v(t1)}, 0.5, {v(t1)}", f"v_add_f32 {v(dd[1])}, {fbits(0.125)}, {v(dd[0])}",
           f"v_cmp_eq_u32 vcc, {256 - 118}, {v(t0)}", f"v_mov_b32 {v(hf_)}, 1.0"]
    for T in range(2): gen += [f"v_mul_f32 {v(ang[T])}, {v(t1)}, {v(dd[T])}", f"v_mul_f32 {v(d5[T])}, {fbits(5.0)}, {v(dd[T])}"]
    gen += [f"v_cndmask_b32 {v(hf_)}, {v(hf_)}, 0.5, vcc"]
    for t in range(8):
        for e in range(4):
            for T in range(2):
                c, s_ = cs_ + 2 * T, cs_ + 2 * T + 1
                gen += [f"v_cos_f32 {v(c)}, {v(ang[T])}", f"v_sin_f32 {v(s_)}, {v(ang[T])}"]
                if (t, e) == (7, 3): gen += [f"v_mul_f32 {v(c)}, {v(c)}, {v(hf_)}"]
                else: gen += [f"v_add_f32 {v(ang[T])}, {v(ang[T])}, {v(dd[T] if e < 3 else d5[T])}"]
                gen += [f"v_cvt_pk_bf16_f32 {v(df[T]+4*t+e)}, {v(c)}, -{v(s_)}"]
    half = OPT["ghalf"]
    for r in gen[:half]: a(r)
    a("s_waitcnt vmcnt(0)")
    put_flag(a, F2B_OFF, fa, fd, True)
    if OPT["f2bar"]: a("s_barrier")
    st.mark()
    for r in gen[half:]: a(r)
    IA = 160; assert V.n + 6 <= IA
    ya = V.get(); yf = [fr + 4*i for i in range(8)]; acc = [IA, IA + 16]
    rw = V.get(4)
    a(f"""v_bfe_u32 {v(t1)}, {v(lane)}, 2, 2
          v_lshl_add_u32 {v(t0)}, {v(t3)}, 3, {v(t1)}
          v_lshlrev_b32 {v(t0)}, 6, {v(t0)}
          v_bfe_u32 {v(t2)}, {v(lane)}, 4, 1
          v_lshl_add_u32 {v(t0)}, {v(t2)}, 5, {v(t0)}
          v_and_b32 {v(t2)}, 3, {v(lane)}
          v_lshl_add_u32 {v(t0)}, {v(t2)}, 3, {v(t0)}
          s_lshl_b32 s3, {s(sV)}, 13
          s_add_u32 s40, s3, {YB}
          v_add_u32 {v(ya)}, s40, {v(t0)}
          v_and_b32 {v(t0)}, 31, {v(lane)}
          s_add_u32 s3, s3, {RED}
          v_lshl_add_u32 {v(t0)}, {v(t0)}, 8, s3
          v_and_b32 {v(t2)}, 7, {v(lane)}
          v_xor_b32 {v(t2)}, {v(t2)}, {v(t3)}""")
    for jj in range(4): a(f"v_xor_b32 {v(t4)}, {2*jj}, {v(t2)}\nv_lshl_add_u32 {v(rw+jj)}, {v(t4)}, 4, {v(t0)}")
    a("s_waitcnt lgkmcnt(0)\ns_barrier")
    yr = lambda t: [f"ds_read_b64_tr_b16 {v(yf[t]+2*aa,2)}, {v(ya)} offset:{t*1024 + aa*256}" for aa in range(2)]
    for t in range(4):
        for r in yr(t): a(r)
    for t in range(8):
        for T in range(2):
            mf32(a, acc[T], df[T] + 4*t, yf[t], "0" if t == 0 else None)
            if t < 4: a(yr(t + 4)[T])
    for T in range(2):
        for jj in range(4): a(f"ds_write_b128 {v(rw+jj)}, {v(acc[T]+4*jj,4)} offset:{128*T}")
    a.waitlg(); a("s_barrier")
    st.mark()
    st.flush(SW, df[0], tid)
    a("s_endpgm")
    return max(vmax, V.hi)
```

```python
import sys, os, math, struct
sys.path.insert(0, os.path.dirname(os.path.abspath(__file__)))
from asmfw import Asm, VAlloc, v, s, align64
import numpy as np

H_OFF, X1_OFF, WT_OFF, Y1_OFF, PART_OFF, CS_OFF, STATS_OFF, EPOCH_OFF, WS_END = 0, 0x700000, 0x900000, 0xB00000, 0xD00000, 0x1500000, 0x1540000, 0x1548000, 0x1548080
F2A_OFF, F2B_OFF, FW_OFF = 0x1550000, 0x1570000, 0x1590000
F3_OFF, F1A_OFF, F1B_OFF, FX_OFF = 0x15b0000, 0x15b8000, 0x15c0000, 0x15c8000
WS_END = 0x15d0000
STAMP_OFF = 0x1600000
NAME = "parallel_sum__spectral_gfnet__dense_activation_silu__prompt_kernel"
OPT = dict(stamp=False, cyc=0, est=0, skip=0, align=2, pf=1, prio=0, forcefb=0, spin=4000, spinf=20000, stO="sc1",
           dep=3, stag=[], rot1=1, rot2=0, nw2=3, w0=1, pfc=[], bE=9, eAlag=0, bA=13, phG=7, lastB=13, phW=[2,3], pfl=[4,5], dpf=[], phS=12, phF=15, lastB2=11,
           bB=4, lastA=4, phP=1, phX=5, bY=10, ghalf=140, yfree=1, ep=1, f2bar=1, pearly=1, slS=4, slX=0, slH=0, slB=0, slY=0, slP=4)
LOG2E = 1.4426950408889634
def fbits(x): return "0x%08x" % struct.unpack("<I", struct.pack("<f", x))[0]

def srd(a, r, lo, hi, nbytes, bias=0):
    if bias: a(f"s_sub_u32 {s(r)}, {s(lo)}, {bias}\ns_subb_u32 {s(r+1)}, {s(hi)}, 0")
    else: a(f"s_mov_b64 {s(r,2)}, {s(lo,2)}")
    a(f"s_mov_b32 {s(r+2)}, {nbytes + bias}\ns_mov_b32 {s(r+3)}, 0x20000")

class Stamps:
    REG = list(range(70, 84, 2)) + [96, 98, 100, 26, 22]
    def __init__(self, a, kidx): self.a, self.k, self.n = a, kidx, 0
    def mark(self):
        if not OPT["stamp"]: return
        k = self.n if self.n == 0 else self.n - OPT["skip"]
        if k >= (10 if OPT["est"] else 12) or (self.n and k <= 0): self.n += 1; return
        r = self.REG[k]
        self.a.raw(f"    {'s_memtime' if OPT['cyc'] else 's_memrealtime'} s[{r}:{r+1}]"); self.n += 1
    def flush(self, ws_srd, vtmp, tid0, who=0, rec=0):
        if not OPT["stamp"]: return
        a = self.a
        a("s_waitcnt lgkmcnt(0)")
        a(f"s_lshl_b32 s3, s2, 7\ns_add_u32 s3, s3, {STAMP_OFF + (self.k * 2 + rec) * 32768}")
        a(f"s_mov_b32 {s(ws_srd+2)}, {STAMP_OFF + 0x100000}")
        a(f"v_cmp_eq_u32 vcc, {who}, {v(tid0)}\ns_and_saveexec_b64 s[68:69], vcc")
        a(f"v_mov_b32 {v(vtmp+4)}, s3")
        for q in range(min(self.n - OPT["skip"], 10 if OPT["est"] else 12), 12): a(f"s_mov_b64 s[{self.REG[q]}:{self.REG[q]+1}], 0")
        for q in range(6):
            for j in range(4): a(f"v_mov_b32 {v(vtmp+j)}, s{self.REG[2*q + (j >> 1)] + (j & 1)}")
            a(f"buffer_store_dwordx4 {v(vtmp,4)}, {v(vtmp+4)}, {s(ws_srd,4)}, 0 offen offset:{16*q}")
        a("s_mov_b64 exec, s[68:69]")

def header(a, name): a.raw(f".globl {name}\n.p2align 8\n.type {name},@function\n{name}:")
def mf32(a, d, x, y, c=None): a(f"v_mfma_f32_32x32x16_bf16 {v(d,16)}, {v(x,4)}, {v(y,4)}, {v(d,16) if c is None else c}")
def mf16(a, d, x, y, c=None): a(f"v_mfma_f32_16x16x32_bf16 {v(d,4)}, {v(x,4)}, {v(y,4)}, {v(d,4) if c is None else c}")
def mf4(a, d, x, y, c=None): a(f"v_mfma_f32_4x4x4_16b_bf16 {v(d,4)}, {v(x,2)}, {v(y,2)}, {v(d,4) if c is None else c}")
def untracked(a):
    a.vm[-1] = ("pf", set())

def code_prefetch(a, srdr, vtmp, first, last):
    a.raw(f"    s_getpc_b64 {s(srdr,2)}\n    s_add_u32 {s(srdr)}, {s(srdr)}, {first}@rel32@lo+4\n    s_addc_u32 {s(srdr+1)}, {s(srdr+1)}, {first}@rel32@hi+12")
    a.raw(f"    s_mov_b32 {s(srdr+2)}, {last}-{first}")
    a(f"""s_mov_b32 {s(srdr+3)}, 0x20000
          s_and_b32 s3, s2, 0xf8
          s_lshl_b32 s3, s3, 8
          v_lshlrev_b32 {v(vtmp)}, 2, v0
          buffer_load_dword {v(vtmp)}, {v(vtmp)}, {s(srdr,4)}, s3 offen""")
    untracked(a)

def interleave(a, mfs, fill, per=None, lead=0):
    n = len(mfs); fill = list(fill)
    for f in fill[:lead]: a(f)
    fill = fill[lead:]
    per = per or [-(-len(fill) // n)] * n
    k = 0
    for i, m in enumerate(mfs):
        m()
        for f in fill[k:k+per[i]]:
            f() if callable(f) else a(f)
        k += per[i]
    for f in fill[k:]:
        f() if callable(f) else a(f)

def finish_stats(q, m, ta, tb):
    return [f"v_mov_b32 {v(tb)}, {fbits(1/512)}", f"v_mul_f32 {v(m)}, {v(tb)}, {v(m)}", f"v_mul_f32 {v(ta)}, {v(m)}, {v(m)}",
            f"v_fma_f32 {v(q)}, {v(q)}, {v(tb)}, -{v(ta)}", f"v_max_f32 {v(q)}, 0, {v(q)}", f"v_add_f32 {v(q)}, {fbits(1e-5)}, {v(q)}", f"v_rsq_f32 {v(q)}, {v(q)}"]

def dft_table():
    cosb = []
    for i in range(512):
        f = np.float32(math.cos(2 * math.pi * i / 512)) if i % 128 else np.float32([1, 0, -1, 0][i // 128])
        u = int(np.array([f]).view(np.uint32)[0]); cosb.append(((u + 0x7FFF + ((u >> 16) & 1)) >> 16) & 0xFFFF)
    t = [".p2align 8", ".type dft_table,@object", "dft_table:", ".altmacro",
         ".macro E8 a,b,c,d,e,f,g,h", ".short C\\a,C\\b,C\\c,C\\d,C\\e,C\\f,C\\g,C\\h", ".endm"]
    t += [f".set C{i},{cosb[i]:#x}" for i in range(512)]
    t.append(""".set blk,0
.rept 128
.set ln,0
.rept 64
.set cl,(blk>>1)&3
.set kap,1+32*(blk>>6)+(ln&31)
.set ph,128*(blk&1)+(64*((blk>>3)&7)+32*(ln>>5)+cl)*kap
E8 %(ph&511),%((ph+4*kap)&511),%((ph+8*kap)&511),%((ph+12*kap)&511),%((ph+16*kap)&511),%((ph+20*kap)&511),%((ph+24*kap)&511),%((ph+28*kap)&511)
.set ln,ln+1
.endr
.set blk,blk+1
.endr
.noaltmacro
.size dft_table,131072""")
    return "\n".join(t)

def descriptor(name, nv):
    nv = (nv + 7) // 8 * 8
    return f""".p2align 6
.amdhsa_kernel {name}
  .amdhsa_next_free_vgpr {nv}
  .amdhsa_next_free_sgpr 102
  .amdhsa_accum_offset {nv}
  .amdhsa_group_segment_fixed_size 0
  .amdhsa_kernarg_size 72
  .amdhsa_user_sgpr_count 2
  .amdhsa_user_sgpr_kernarg_segment_ptr 1
  .amdhsa_system_sgpr_workgroup_id_x 1
  .amdhsa_float_denorm_mode_32 3
.end_amdhsa_kernel"""

def build(kernels, extra_empty=0):
    out = ["; x + irfft2(rfft2(LN x) * W) + silu(LN x @ w1) @ w2 in three launches (k1map2; written with my own generator script)"]
    for name, _, _, (lds, blk) in kernels: out.append(f"; @launch {'' if len(kernels) == 1 else 'kernel=' + name + ' '}grid=(256,1,1) block=({blk},1,1) lds={lds}")
    for i in range(extra_empty): out.append("; @launch kernel=kz_kernel grid=(256,1,1) block=(256,1,1) lds=0")
    out.append('.amdgcn_target "amdgcn-amd-amdhsa--gfx950"\n.text')
    info = []
    for name, a, nv, _ in kernels:
        txt = a.text()
        if OPT["align"]:
            ext = "\n".join(f"{l}:" for l in ("k1_kernel", "k2_kernel", "k3_kernel", "code_end", "dft_table") if l != name)
            txt, fx, nn, size = align64(txt, ext + "\n", OPT["align"] == 1); info.append((fx, nn, size))
        out.append(txt)
    out.append("code_end:")
    if extra_empty: out.append(".globl kz_kernel\n.p2align 8\n.type kz_kernel,@function\nkz_kernel:\n    s_endpgm")
    out.append('.section .rodata,"a"')
    for name, a, nv, _ in kernels: out.append(descriptor(name, nv))
    if extra_empty: out.append(descriptor("kz_kernel", 8))
    out.append(dft_table())
    return "\n".join(out) + "\n", info

if __name__ == "__main__":
    import argparse, json
    ap = argparse.ArgumentParser(); ap.add_argument("out"); ap.add_argument("--stamp", action="store_true")
    ap.add_argument("--empty", type=int, default=0); ap.add_argument("-o", action="append", default=[])
    args = ap.parse_args(); OPT["stamp"] = args.stamp
    for kv in args.o:
        k, val = kv.split("=", 1); assert k in OPT, k
        OPT[k] = val if isinstance(OPT[k], str) else json.loads(val)
    from k1 import gen_k1
    ks = [(NAME, *gen_k1(NAME))]
    txt, info = build(ks, args.empty)
    open(args.out, "w").write(txt)
    print("vgprs", [k[2] for k in ks], "nops", [k[1].nops for k in ks], "align(fixed,nop,size)", info)
```

```python
from asmfw import Asm, VAlloc, v, s
import __main__ as M
G = M if hasattr(M, "dft_table") else __import__("gen2")
OPT = G.OPT; fbits = G.fbits; srd = G.srd; mf32 = G.mf32; mf4 = G.mf4; Stamps = G.Stamps; header = G.header
untracked = G.untracked; interleave = G.interleave; finish_stats = G.finish_stats; LOG2E = G.LOG2E
X1_OFF, WT_OFF, STATS_OFF, CS_OFF, EPOCH_OFF, WS_END = G.X1_OFF, G.WT_OFF, G.STATS_OFF, G.CS_OFF, G.EPOCH_OFF, G.WS_END

def table_srd(a, r):
    a.raw(f"    s_getpc_b64 {s(r,2)}\n    s_add_u32 {s(r)}, {s(r)}, dft_table@rel32@lo+4\n    s_addc_u32 {s(r+1)}, {s(r+1)}, dft_table@rel32@hi+12")
    a(f"s_mov_b32 {s(r+2)}, 0x20000\ns_mov_b32 {s(r+3)}, 0x20000")

def gen_k1(name):
    import k2 as genp
    a = Asm(); st = Stamps(a, 0)
    few = st.mark if OPT["est"] else (lambda: None)
    header(a, name)
    st.mark()
    SX, SB, SW, SWR, SWI, SPF, sN = 4, 8, 12, 16, 20, 92, 66
    NS = 4
    XR = 131072; SCR = 155648; CSF = SCR + 1024; PRS = SCR + 2048; PCS = SCR + 2304; CNT = SCR + 2816
    a("s_cmp_ge_u32 s2, 256\ns_cbranch_scc1 K1_END")
    a("s_load_dwordx4 s[24:27], s[0:1], 0\ns_load_dwordx4 s[28:31], s[0:1], 32\ns_load_dwordx2 s[22:23], s[0:1], 16\ns_load_dwordx2 s[90:91], s[0:1], 64")
    V = VAlloc(0); tid = V.get(); lane = V.get()
    t0, t1, t2, t3, t4, t5 = [V.get() for _ in range(6)]
    pf = V.get()
    if OPT["pf"]: G.code_prefetch(a, SPF, pf, name, "code_end")
    sW, sLO, sCJ, sV, sWR_, sWC, sL, sHF = 34, 35, 36, 37, 38, 39, 51, 55
    a(f"""v_lshrrev_b32 {v(t0)}, 6, v0
          v_and_b32 {v(lane)}, 63, v0
          v_readfirstlane_b32 s56, {v(t0)}
          s_bfe_u32 {s(sW)}, s2, 0x20001
          s_and_b32 {s(sHF)}, s2, 1
          s_lshr_b32 {s(sCJ)}, s2, 5
          s_bfe_u32 {s(sLO)}, s2, 0x20003
          s_and_b32 {s(sV)}, s56, 3
          s_lshl_b32 {s(sL)}, {s(sV)}, 12
          v_lshrrev_b32 {v(t3)}, 5, {v(lane)}
          s_cmp_lt_u32 s56, 4
          s_cbranch_scc1 K1_COMPUTE""")
    XLOC = [5*16384, 6*16384, 6*16384 + 8192, 7*16384, XR, XR + 8192, XR + 16384, XR, XR + 8192, XR + 16384, XR, 0, 8192, 16384, 24576, 32768]
    XMIN = [0, 0, 0, 0, 0, 0, 0, 6, 7, 8, 9, 10, 10, 11, 11, 12]
    WMIN = [0, 0, 0, 0, 0, 2, 4, 5]
    snap0 = a.snapshot(); Vbase = V.n
    def epoch_load():
        a(f"s_add_u32 s88, s90, {EPOCH_OFF & 0xfff00000}\ns_addc_u32 s89, s91, 0\ns_load_dword {s(sN)}, s[88:89], {EPOCH_OFF & 0xfffff}")
    def nonce():
        a(f"s_add_u32 {s(sN)}, {s(sN)}, 1\ns_or_b32 {s(sN)}, {s(sN)}, 1")

    def x1_out(regs, u):
        rad = regs.get(2); vo = regs.get(); vo0 = regs.get(); buf = regs.get(32)
        pre = f"""v_lshrrev_b32 {v(t1)}, 4, {v(lane)}
              v_and_b32 {v(t0)}, 7, {v(lane)}
              v_xor_b32 {v(t2)}, {v(t0)}, {v(t1)}
              v_lshrrev_b32 {v(t4)}, 3, {v(lane)}
              s_lshl_b32 s3, {s(sV)}, 13
              s_add_u32 s3, s3, {32768*u}
              v_lshl_add_u32 {v(t4)}, {v(t4)}, 7, s3
              v_lshl_add_u32 {v(rad)}, {v(t2)}, 4, {v(t4)}
              v_xor_b32 {v(rad+1)}, 64, {v(rad)}
              s_and_b32 s46, {s(sV)}, 1
              s_lshr_b32 s47, {s(sV)}, 1
              v_lshlrev_b32 {v(t0)}, 4, {v(t0)}
              v_bfe_u32 {v(t2)}, {v(lane)}, 3, 1
              v_lshl_add_u32 {v(t0)}, {v(t2)}, 12, {v(t0)}
              s_mul_i32 s3, s46, 3
              v_xor_b32 {v(t2)}, s3, {v(t1)}
              v_lshl_add_u32 {v(vo)}, {v(t2)}, 13, {v(t0)}
              s_lshl_b32 s40, {s(sHF)}, 5
              s_lshl_b32 s42, s47, 7
              s_add_u32 s41, s40, s42
              s_sub_u32 s42, 251, s41
              s_cmp_eq_u32 s46, 0
              s_cselect_b32 s41, s41, s42
              s_mov_b32 s43, 0x8000
              s_cselect_b32 s43, s43, 0xffff8000
              s_lshl_b32 s41, s41, 13
              s_lshr_b32 s42, {s(sLO)}, 1
              s_lshl_b32 s42, s42, 11
              s_add_u32 s41, s41, s42
              s_lshl_b32 s42, {s(sW)}, 9
              s_add_u32 s41, s41, s42
              s_and_b32 s42, {s(sLO)}, 1
              s_lshl_b32 s42, s42, 8
              s_add_u32 s41, s41, s42
              s_add_u32 s41, s41, {X1_OFF + 128*u}
              s_lshl_b32 s42, s47, 6
              s_add_u32 s40, s40, s42
              v_add_u32 {v(t1)}, s40, {v(t1)}
              v_cmp_eq_u32 vcc, {64 + 32 + 3}, {v(t1)}
              v_add_u32 {v(t0)}, {64*8192}, {v(vo)}
              v_cndmask_b32 {v(vo0)}, {v(vo)}, {v(t0)}, vcc"""
        def post():
            for jx in range(8): a(f"ds_read_b128 {v(buf+4*jx,4)}, {v(rad + (jx & 1))} offset:{1024*jx}")
            for jx in range(8):
                a(f"buffer_store_dwordx4 {v(buf+4*jx,4)}, {v(vo0 if jx == 7 else vo)}, {s(SW,4)}, s41 offen sc1")
                if jx < 7: a("s_add_u32 s41, s41, s43")
        return pre, post

    def w_job(wl, vW, so, tm, lds):
        def load(part=None):
            if part in (None, 0): setup()
            for r in range(4) if part in (None, 2) else (2*part, 2*part + 1):
                a(f"buffer_load_dword {v(wl + r)}, {v(vW)}, {s(SWR,4)}, s{so+r} offen", tag="W")
                a(f"buffer_load_dword {v(wl + 4 + r)}, {v(vW)}, {s(SWI,4)}, s{so+r} offen", tag="W")
        def setup():
            srd(a, SWR, 26, 27, 2048 * 514)
            a(f"s_mov_b64 {s(so,2)}, s[22:23]")
            srd(a, SWI, so, so + 1, 2048 * 514)
            a(f"""s_and_b32 s84, s2, 3
                  s_lshl_b32 {s(so+1)}, s84, 7
                  s_add_u32 {s(so+1)}, {s(so+1)}, 2
                  v_and_b32 {v(t0)}, 31, {v(lane)}
                  v_lshl_add_u32 {v(t1)}, {v(t0)}, 2, {s(so+1)}
                  s_movk_i32 {s(so+1)}, 514
                  v_mad_u32_u24 {v(vW)}, {v(t3)}, {s(so+1)}, {v(t1)}
                  s_bfe_u32 {s(so+1)}, s2, 0x30002
                  s_lshl_b32 {s(tm)}, {s(so+1)}, 2
                  s_add_u32 {s(tm)}, {s(tm)}, {s(sV)}
                  s_lshl_b32 {s(tm)}, {s(tm)}, 1
                  s_lshl_b32 {s(so)}, {s(sCJ)}, 8
                  s_add_u32 {s(tm)}, {s(tm)}, {s(so)}
                  s_mul_i32 {s(so)}, {s(tm)}, 514
                  s_add_u32 {s(so+1)}, {s(so)}, 32896
                  s_add_u32 {s(so+2)}, {s(so)}, 65792
                  s_add_u32 {s(so+3)}, {s(so)}, 98688""")
        def put():
            a(f"""s_mov_b32 s86, 0x05040100
                  s_mov_b32 s87, 0x07060302
                  s_lshl_b32 s3, {s(sV)}, 1
                  v_and_b32 {v(t0)}, 7, {v(lane)}
                  v_xor_b32 {v(t0)}, {v(t0)}, {v(t3)}
                  v_xor_b32 {v(t0)}, s3, {v(t0)}
                  v_and_b32 {v(t1)}, 31, {v(lane)}
                  v_lshlrev_b32 {v(t1)}, 8, {v(t1)}
                  v_lshl_add_u32 {v(vW)}, {v(t0)}, 4, {v(t1)}""")
            for kk in range(2):
                for r in range(4): a(f"v_perm_b32 {v(wl+8+4*kk+r)}, {v(wl+4+r)}, {v(wl+r)}, s{86+kk}")
                a(f"ds_write_b128 {v(vW)}, {v(wl+8+4*kk,4)} offset:{lds + 128*kk}")
        def store():
            a(f"""s_lshl_b32 s84, s84, 2
                  s_add_u32 s84, s84, {s(sV)}
                  s_lshl_b32 s84, s84, 17
                  s_lshl_b32 {s(tm)}, {s(sLO)}, 11
                  s_add_u32 s84, s84, {s(tm)}
                  s_lshr_b32 {s(tm)}, s2, 7
                  s_lshl_b32 {s(tm)}, {s(tm)}, 10
                  s_add_u32 s84, s84, {s(tm)}
                  s_bfe_u32 {s(tm)}, s2, 0x20005
                  s_lshl_b32 {s(tm)}, {s(tm)}, 8
                  s_add_u32 s84, s84, {s(tm)}
                  s_bfe_u32 {s(tm)}, s2, 0x10002
                  s_lshl_b32 {s(tm)}, {s(tm)}, 7
                  s_add_u32 s84, s84, {s(tm)}
                  s_add_u32 s84, s84, {WT_OFF}
                  s_add_u32 s85, s84, 65536
                  v_lshrrev_b32 {v(t1)}, 4, {v(lane)}
                  v_and_b32 {v(t0)}, 7, {v(lane)}
                  v_xor_b32 {v(t1)}, {v(t1)}, {v(t0)}
                  v_lshrrev_b32 {v(t2)}, 3, {v(lane)}
                  s_lshl_b32 s3, {s(sV)}, 11
                  v_lshl_add_u32 {v(vW)}, {v(t2)}, 7, s3
                  v_lshl_add_u32 {v(vW)}, {v(t1)}, 4, {v(vW)}
                  v_xor_b32 {v(t1)}, 64, {v(vW)}
                  ds_read_b128 {v(wl,4)}, {v(vW)} offset:{lds}
                  ds_read_b128 {v(wl+4,4)}, {v(t1)} offset:{lds + 1024}
                  v_lshlrev_b32 {v(t0)}, 4, {v(t0)}
                  v_lshl_add_u32 {v(vW+1)}, {v(t2)}, 13, {v(t0)}""")
            for j in range(2): a(f"buffer_store_dwordx4 {v(wl+4*j,4)}, {v(vW+1)}, {s(SW,4)}, s{84+j} offen sc1", tag="WS")
        return load, put, store, setup

    V.n = genp.LV0
    vX = V.get(4); vB = V.get(4)
    wl = V.get(16); vW = V.get(2); l16 = genp.L16; dmy = V.get(4); gr = V.get(4); gc = V.get(8); gq = V.get(4)
    grow, gad, gz, pad = [V.get() for _ in range(4)]
    Vx = VAlloc(V.n)
    sXb, sBb, sK, sXo, sBo, sCB, sR0 = 48, 49, 50, 52, 53, 57, 58
    rot = {0: f"s_lshl_b32 {s(sR0)}, {s(sW)}, 1\ns_lshr_b32 s3, {s(sLO)}, 1\ns_add_u32 {s(sR0)}, {s(sR0)}, s3",
           1: f"s_lshl_b32 {s(sR0)}, {s(sLO)}, 1\ns_and_b32 s3, {s(sW)}, 1\ns_add_u32 {s(sR0)}, {s(sR0)}, s3\ns_add_u32 {s(sR0)}, {s(sR0)}, {s(sCJ)}\ns_and_b32 {s(sR0)}, {s(sR0)}, 7",
           2: f"s_lshl_b32 {s(sR0)}, {s(sLO)}, 1\ns_and_b32 s3, {s(sW)}, 1\ns_add_u32 {s(sR0)}, {s(sR0)}, s3"}[OPT["rot1"]]
    a(f"""v_bfe_u32 {v(t0)}, {v(lane)}, 3, 2
          v_lshrrev_b32 {v(t1)}, 4, {v(lane)}
          v_and_b32 {v(t2)}, 7, {v(lane)}
          v_xor_b32 {v(t2)}, {v(t2)}, {v(t1)}
          v_lshlrev_b32 {v(t2)}, 4, {v(t2)}
          {rot}
          s_lshl_b32 {s(sXo)}, {s(sR0)}, 7
          s_mov_b32 {s(SX+2)}, {0x200000 + 4096}
          s_mov_b32 {s(SX+3)}, 0x20000
          s_cmp_eq_u32 {s(sCJ)}, 7
          s_cbranch_scc1 K1_LD""")
    snapL = a.snapshot(); stn = st.n
    def loader(D):
        X = "D" if D else "F"
        if not D:
            a(f"""v_lshl_add_u32 {v(t0)}, {v(t3)}, 4, {v(t0)}
                  v_lshl_add_u32 {v(t0)}, {v(t0)}, 10, {v(t2)}
                  v_add_u32 {v(vX)}, 4096, {v(t0)}
                  v_xor_b32 {v(t0)}, 64, {v(t0)}
                  v_add_u32 {v(vX+1)}, {4096 + 31744}, {v(t0)}
                  s_lshl_b32 s3, {s(sW)}, 7
                  s_lshl_b32 s40, {s(sV)}, 4
                  s_add_u32 s3, s3, s40
                  s_add_u32 s3, s3, {s(sLO)}
                  s_lshl_b32 {s(sXb)}, s3, 12
                  s_lshl_b32 s59, {s(sV)}, 11
                  s_add_u32 m0, s59, {XLOC[0]}""")
        else:
            a(f"""v_lshl_add_u32 {v(t0)}, {v(t3)}, 3, {v(t0)}
                  v_lshl_add_u32 {v(t0)}, {v(t0)}, 15, {v(t2)}
                  v_add_u32 {v(vX)}, 4096, {v(t0)}
                  v_add_u32 {v(vX+2)}, {4096 + 4096 - 2048}, {v(t0)}
                  v_xor_b32 {v(t0)}, 64, {v(t0)}
                  v_add_u32 {v(vX+1)}, {4096 + 131072 - 1024}, {v(t0)}
                  v_add_u32 {v(vX+3)}, {4096 + 131072 + 4096 - 3072}, {v(t0)}
                  s_lshl_b32 s3, {s(sW)}, 6
                  s_add_u32 s3, s3, {s(sLO)}
                  s_lshl_b32 s3, s3, 3
                  s_add_u32 s3, s3, {s(sV)}
                  s_lshl_b32 {s(sXb)}, s3, 10
                  s_lshl_b32 s59, {s(sV)}, 11
                  s_mov_b32 m0, {s(sL)}""")
        a(f"s_add_u32 {s(sXo)}, {s(sXo)}, {s(sXb)}")
        a.waitlg()
        a(f"s_sub_u32 {s(SX)}, s24, 4096\ns_subb_u32 {s(SX+1)}, s25, 0")
        def b_setup():
            epoch_load()
            a(f"v_lshlrev_b32 {v(l16)}, 4, {v(lane)}")
            if not D:
                srd(a, SB, 28, 29, 512 * 3584)
                a(f"""v_and_b32 {v(t0)}, 15, {v(lane)}
                      v_lshlrev_b32 {v(t2)}, 2, {v(t1)}
                      v_xor_b32 {v(t0)}, {v(t0)}, {v(t2)}
                      v_lshlrev_b32 {v(t0)}, 4, {v(t0)}
                      s_movk_i32 s3, 3584
                      v_mad_u32_u24 {v(vB)}, {v(t1)}, s3, {v(t0)}
                      v_add_u32 {v(vB+1)}, 13312, {v(vB)}
                      v_add_u32 {v(vB+2)}, {2*13312}, {v(vB)}
                      v_add_u32 {v(vB+3)}, {3*13312}, {v(vB)}
                      s_mul_i32 {s(sCB)}, {s(sHF)}, 7
                      s_add_u32 {s(sCB)}, {s(sCB)}, {s(sCJ)}
                      s_lshl_b32 s3, {s(sCB)}, 8
                      s_mul_i32 {s(sBb)}, {s(sV)}, {16*3584}
                      s_add_u32 {s(sBb)}, {s(sBb)}, s3""")
            else:
                table_srd(a, SB)
                a(f"s_lshl_b32 s3, {s(sHF)}, 16\ns_add_u32 {s(sBb)}, s3, s59")
        def dma_x(m):
            if m:
                a(f"s_add_u32 s3, {s(sR0)}, {m & 7}\ns_and_b32 s3, s3, 7\ns_lshl_b32 s3, s3, 7\ns_add_u32 {s(sXo)}, s3, {s(sXb)}")
                a(f"s_add_u32 m0, {s(sL)}, {(m % NS)*32768}" if D else f"s_add_u32 m0, s59, {XLOC[m]}")
            for j in range(4 if D else 2): a(f"buffer_load_dwordx4 {v(vX+j)}, {s(SX,4)}, {s(sXo)} offen offset:{1024*j} lds", tag=f"S{m}")
            if m == 0: b_setup()
            if m == 7 and not D: a(f"s_add_u32 {s(sXb)}, {s(sXb)}, {8*32768}")
        def dma_b(i):
            a(f"s_add_u32 s3, {s(sR0)}, {i}\ns_and_b32 s3, s3, 7\ns_mul_i32 s3, s3, {8192 if D else 64*3584}\ns_add_u32 {s(sBo)}, s3, {s(sBb)}")
            a(f"s_add_u32 m0, s59, {(i % NS)*32768 + 16384}" if D else f"s_add_u32 m0, {s(sL)}, {i*16384}")
            for j in range(2 if D else 4): a(f"buffer_load_dwordx4 {v(l16 if D else vB+j)}, {s(SB,4)}, {s(sBo)} offen offset:{1024*j} lds", tag=f"S{i}")
        def j_nonce():
            srd(a, SW, 90, 91, WS_END); nonce()
            a(f"""v_mov_b32 {v(gz)}, 0
                  v_mov_b32 {v(t0)}, {CNT}
                  ds_write_b32 {v(t0)}, {v(gz)}
                  ds_write_b32 {v(t0)}, {v(gz)} offset:4
                  s_lshl_b32 s3, s2, 2
                  s_add_u32 s3, s3, {s(sV)}
                  s_lshl_b32 s3, s3, 7
                  s_add_u32 s3, s3, {G.FW_OFF}
                  s_lshl_b32 s40, {s(sV)}, 8
                  s_add_u32 s40, s40, s2
                  s_lshl_b32 s40, s40, 7
                  s_add_u32 s40, s40, {G.F3_OFF}
                  v_and_b32 {v(t0)}, 31, {v(lane)}
                  v_mov_b32 {v(t1)}, s3
                  v_mov_b32 {v(t2)}, s40
                  v_cmp_gt_u32 vcc, 32, {v(lane)}
                  v_cndmask_b32 {v(t1)}, {v(t2)}, {v(t1)}, vcc
                  v_lshl_add_u32 {v(t1)}, {v(t0)}, 2, {v(t1)}
                  buffer_store_dword {v(gz)}, {v(t1)}, {s(SW,4)}, 0 offen sc1""")
        def j_publish():
            a(f"""v_and_b32 {v(t0)}, 15, {v(lane)}
                  v_cmp_gt_u32 vcc, 16, {v(lane)}
                  s_lshl_b32 s3, {s(sV)}, 7
                  s_add_u32 s3, s3, {PCS}
                  v_mov_b32 {v(t1)}, s3
                  v_mov_b32 {v(t2)}, {PRS}
                  v_cndmask_b32 {v(t1)}, {v(t2)}, {v(t1)}, vcc
                  v_lshl_add_u32 {v(t1)}, {v(t0)}, 3, {v(t1)}
                  ds_read_b64 {v(gq,2)}, {v(t1)}
                  s_lshl_b32 s3, {s(sW)}, 2
                  s_add_u32 s3, s3, {s(sLO)}
                  s_lshl_b32 s3, s3, 1
                  s_add_u32 s3, s3, {s(sHF)}
                  s_lshl_b32 s3, s3, 3
                  s_add_u32 s3, s3, {s(sCJ)}
                  s_lshl_b32 s3, s3, 7
                  s_add_u32 s3, s3, {STATS_OFF}
                  v_mov_b32 {v(t2)}, s3""")
            if not D:
                a(f"""s_lshl_b32 s3, {s(sCB)}, 3
                      s_add_u32 s3, s3, {s(sR0)}
                      s_lshl_b32 s3, s3, 2
                      s_add_u32 s3, s3, {s(sV)}
                      s_lshl_b32 s3, s3, 8
                      s_add_u32 s3, s3, {CS_OFF}
                      v_mov_b32 {v(t1)}, s3
                      v_cndmask_b32 {v(t2)}, {v(t2)}, {v(t1)}, vcc""")
            a(f"v_lshl_add_u32 {v(pad)}, {v(t0)}, 4, {v(t2)}")
            a(f"""v_mov_b32 {v(gq+2)}, {s(sN)}
                  v_mov_b32 {v(gq+3)}, {s(sN)}
                  s_cmp_eq_u32 {s(sV)}, 0
                  s_cselect_b32 s40, 0xff0000, 0
                  s_mov_b32 s41, 0""")
            if D: a(f"s_cbranch_scc0 K1_NOPUBD")
            else: a("s_or_b32 s40, s40, 0xffff")
            keep = a.snapshot()
            a(f"""s_mov_b64 exec, s[40:41]
                  buffer_store_dwordx4 {v(gq,4)}, {v(pad)}, {s(SW,4)}, 0 offen sc1
                  s_mov_b64 exec, -1""")
            if D: a.label("K1_NOPUBD"); a.restore(keep)
        def gather_loads():
            a(f"buffer_load_dwordx4 {v(gr,4)}, {v(gad)}, {s(SW,4)}, s62 offen sc1")
            if not D:
                for j in range(2): a(f"buffer_load_dwordx4 {v(gc+4*j,4)}, {v(pad)}, {s(SW,4)}, s{32+j} offen sc1")
        def j_gather():
            a(f"""v_bfe_u32 {v(t0)}, {v(lane)}, 3, 2
                  v_bfe_u32 {v(t1)}, {v(lane)}, 2, 1
                  v_and_b32 {v(t2)}, 3, {v(lane)}""")
            if not D:
                a(f"""v_lshl_add_u32 {v(t0)}, {v(t0)}, 1, {v(t1)}
                      v_lshl_add_u32 {v(grow)}, {v(t0)}, 4, {v(t2)}
                      s_lshl_b32 s3, {s(sV)}, 7
                      s_lshl_b32 s40, {s(sLO)}, 2
                      v_lshrrev_b32 {v(t0)}, 4, {v(lane)}
                      v_and_b32 {v(t1)}, 15, {v(lane)}
                      v_lshlrev_b32 {v(t1)}, 4, {v(t1)}
                      v_lshl_add_u32 {v(pad)}, {v(t0)}, 10, {v(t1)}
                      s_lshl_b32 s32, {s(sCB)}, 5
                      s_add_u32 s32, s32, {s(sV)}
                      s_lshl_b32 s32, s32, 8
                      s_add_u32 s32, s32, {CS_OFF}
                      s_add_u32 s33, s32, 4096""")
            a(f"""s_add_u32 s3, s3, s40
                  s_lshl_b32 s40, {s(sW)}, 9
                  s_add_u32 s3, s3, s40
                  v_add_u32 {v(grow)}, s3, {v(grow)}
                  v_lshlrev_b32 {v(gad)}, 4, {v(grow)}
                  s_mov_b32 s62, {STATS_OFF}""")
            gather_loads()
        def j_check():
            tags = [gr + 2, gr + 3] + ([] if D else [gc + 2, gc + 3, gc + 6, gc + 7])
            a("s_mov_b32 s61, 0")
            a(f"v_xor_b32 {v(t0)}, {s(sN)}, {v(tags[-1])}")
            a.label(f"K1_CHECK{X}")
            for t in tags[:-1]: a(f"v_xor_b32 {v(t1)}, {s(sN)}, {v(t)}\nv_or_b32 {v(t0)}, {v(t0)}, {v(t1)}")
            a(f"""v_cmp_ne_u32 vcc, 0, {v(t0)}
                  {"s_nop 0" if OPT["forcefb"] else "s_cbranch_vccz K1_GOT" + X}
                  s_add_u32 s61, s61, 1
                  s_cmp_gt_u32 s61, {OPT["spin"]}
                  s_cbranch_scc1 K1_FALLBACK{X}""")
            keep = a.snapshot()
            a(f"s_sleep {OPT['slS']}")
            gather_loads()
            a(f"s_waitcnt vmcnt(0)\nv_xor_b32 {v(t0)}, {s(sN)}, {v(tags[-1])}\ns_branch K1_CHECK{X}")
            a.label(f"K1_FALLBACK{X}")
            a(f"""v_lshl_add_u32 {v(gad)}, {v(grow)}, 10, 0
                  v_add_u32 {v(gad)}, 4096, {v(gad)}
                  v_mov_b32 {v(t0)}, 0
                  v_mov_b32 {v(t1)}, 0
                  v_mov_b32 {v(t2)}, 0x3f803f80
                  s_mov_b32 s61, 0""")
            a.label(f"K1_FBLOOP{X}")
            a(f"buffer_load_dwordx4 {v(gr,4)}, {v(gad)}, {s(SX,4)}, s61 offen\ns_waitcnt vmcnt(0)")
            for i in range(4): a(f"v_dot2_f32_bf16 {v(t0)}, {v(gr+i)}, {v(gr+i)}, {v(t0)}\nv_dot2_f32_bf16 {v(t1)}, {v(gr+i)}, {v(t2)}, {v(t1)}\ns_nop 2")
            a(f"s_add_u32 s61, s61, 16\ns_cmp_lt_u32 s61, 1024\ns_cbranch_scc1 K1_FBLOOP{X}")
            a("s_nop 4")
            for r in finish_stats(t0, t1, t4, t5): a(r)
            a(f"s_nop 1\nv_mov_b32 {v(gr)}, {v(t0)}\nv_mov_b32 {v(gr+1)}, {v(t1)}")
            if not D:
                a(f"""v_and_b32 {v(t0)}, 9, {v(lane)}
                      v_bfe_u32 {v(t1)}, {v(lane)}, 1, 1
                      v_lshl_or_b32 {v(t0)}, {v(t1)}, 2, {v(t0)}
                      v_bfe_u32 {v(t1)}, {v(lane)}, 2, 1
                      v_lshl_or_b32 {v(t0)}, {v(t1)}, 1, {v(t0)}
                      v_lshlrev_b32 {v(t0)}, 2, {v(t0)}
                      v_lshrrev_b32 {v(t1)}, 4, {v(lane)}
                      s_mov_b32 s3, {128*3584}
                      v_mad_u32_u24 {v(t0)}, {v(t1)}, s3, {v(t0)}
                      s_lshl_b32 s61, {s(sCB)}, 2
                      s_add_u32 s61, s61, {s(sV)}
                      s_lshl_b32 s61, s61, 6
                      s_mov_b32 s3, 0
                      v_mov_b32 {v(gc)}, 0
                      v_mov_b32 {v(gc+1)}, 0
                      v_mov_b32 {v(gc+4)}, 0
                      v_mov_b32 {v(gc+5)}, 0""")
                a.label("K1_FBLOOPC")
                a(f"""buffer_load_dword {v(t1)}, {v(t0)}, {s(SB,4)}, s61 offen
                      s_waitcnt vmcnt(0)
                      v_lshlrev_b32 {v(t2)}, 16, {v(t1)}
                      v_and_b32 {v(t1)}, 0xffff0000, {v(t1)}
                      v_add_f32 {v(gc)}, {v(gc)}, {v(t2)}
                      v_add_f32 {v(gc+1)}, {v(gc+1)}, {v(t1)}
                      s_add_u32 s61, s61, 3584
                      s_add_u32 s3, s3, 1
                      s_cmp_lt_u32 s3, 128
                      s_cbranch_scc1 K1_FBLOOPC""")
            a.label(f"K1_GOT{X}")
            a.restore(keep); a.hist = []
            a(f"v_and_b32 {v(t0)}, 31, {v(lane)}")
            if not D:
                a(f"""v_add_f32 {v(gc)}, {v(gc)}, {v(gc+4)}
                      v_add_f32 {v(gc+1)}, {v(gc+1)}, {v(gc+5)}
                      s_lshl_b32 s3, {s(sV)}, 8
                      s_add_u32 s3, s3, {SCR}
                      v_lshl_add_u32 {v(t0)}, {v(t0)}, 3, s3
                      v_mov_b32 {v(gc+2)}, {v(gc)}
                      v_mov_b32 {v(gc+3)}, {v(gc+1)}
                      v_mul_f32 {v(gr)}, {fbits(-LOG2E)}, {v(gr)}
                      v_mul_f32 {v(gr+1)}, {v(gr+1)}, {v(gr)}
                      v_permlane32_swap_b32 {v(gc)}, {v(gc+2)}
                      v_permlane32_swap_b32 {v(gc+1)}, {v(gc+3)}
                      v_sub_f32 {v(gr+1)}, 0, {v(gr+1)}
                      v_add_f32 {v(gc)}, {v(gc)}, {v(gc+2)}
                      v_add_f32 {v(gc+1)}, {v(gc+1)}, {v(gc+3)}
                      ds_write_b64 {v(t0)}, {v(gr,2)}
                      v_mov_b32 {v(gc+2)}, {v(gc)}
                      v_mov_b32 {v(gc+3)}, {v(gc+1)}
                      v_and_b32 {v(t1)}, 15, {v(lane)}
                      s_lshl_b32 s3, {s(sV)}, 7
                      v_permlane16_swap_b32 {v(gc)}, {v(gc+2)}
                      v_permlane16_swap_b32 {v(gc+1)}, {v(gc+3)}
                      s_add_u32 s3, s3, {CSF}
                      v_lshl_add_u32 {v(t1)}, {v(t1)}, 3, s3
                      v_add_f32 {v(gc)}, {v(gc)}, {v(gc+2)}
                      v_add_f32 {v(gc+1)}, {v(gc+1)}, {v(gc+3)}
                      ds_write_b64 {v(t1)}, {v(gc,2)}""")
        j_wload, j_wput, j_wstore, w_setup = w_job(wl, vW, 44, 63, 0 if D else 40960)
        def j_pfl(part=None):
            if OPT["pfl"][0] < 0: return
            if part in (None, 0):
                srd(a, SPF, 30, 31, 1792 * 1024)
                a(f"s_lshl_b32 s3, s2, 2\ns_add_u32 s3, s3, {s(sV)}\ns_mul_i32 s54, s3, 1792")
            for j in range(2) if part in (None, 2) else (part,):
                a(f"buffer_load_dwordx4 {v(dmy,4)}, {v(l16)}, {s(SPF,4)}, s54 offen offset:{1024*j}"); untracked(a)
        few()
        if D:
            for ph in range(8):
                if ph == 1: j_nonce()
                if ph == 3: j_publish()
                for m in ([0, 1, 2] if ph == 0 else [ph + 2] if ph < 6 else []): dma_x(m); dma_b(m)
                for (lo, nbytes, p0, per) in OPT["dpf"]:
                    tot = nbytes // 128 // 1024; k0 = (ph - p0) * per
                    if ph >= p0 and k0 < tot:
                        srd(a, SPF, lo, lo + 1, nbytes)
                        a(f"s_and_b32 s3, s2, 31\ns_lshl_b32 s3, s3, 2\ns_add_u32 s3, s3, {s(sV)}\ns_mul_i32 s3, s3, {tot*1024}\ns_add_u32 s3, s3, {k0*1024}")
                        for j in range(min(per, tot - k0) if ph < 7 else tot - k0):
                            if j and j % 4 == 0: a("s_add_u32 s3, s3, 4096")
                            a(f"buffer_load_dwordx4 {v(dmy,4)}, {v(l16)}, {s(SPF,4)}, s3 offen offset:{1024*(j & 3)}"); untracked(a)
                a.waitvm(f"S{ph}", lg0=True); a("s_barrier")
                (st.mark if ph in (0, 7) else few)()
            j_wload(); j_pfl()
            p, q = x1_out(Vx, 0); a(p)
            a("s_barrier")
            q(); a.waitlg(); a("s_barrier")
            j_wput(); a.waitlg(); a("s_barrier")
            j_wstore()
            genp.p2_setup(a)
            a("s_waitcnt vmcnt(0)\ns_barrier")
            genp.wg_flag(a, 3, "K1_FX"); genp.put_flag(a, G.FW_OFF, t0, t2, True)
            for j in range(genp.NW2): genp.w2_dma(a, j)
            genp.p2_pre(a, "D")
        else:
            E = OPT["bE"]; dep = OPT["dep"]
            def j_fw(): a.waitvm("WS"); genp.put_flag(a, G.FW_OFF, t0, t2, True)
            def j_wx():
                if OPT["phS"] > OPT["lastB"]:
                    a.waitlg()
                    a(f"v_mov_b32 {v(gad)}, 1\ns_mov_b64 exec, 1\nds_add_u32 {v(grow)}, {v(gad)} offset:4\ns_mov_b64 exec, -1")
                    consumed(1, 4)
                j_wstore()
            assert OPT["phS"] >= 12
            pre, post = {}, {}
            for d, ph, j in ((pre, 1, j_nonce), (pre, 3, j_publish), (pre, OPT["phG"], j_gather), (post, E, j_check),
                             (post, OPT["phW"][0], lambda: j_wload(0)), (post, OPT["phW"][1], lambda: j_wload(1)),
                             (post, OPT["pfl"][0], lambda: j_pfl(0)), (post, OPT["pfl"][1], lambda: j_pfl(1)), (post, OPT["phS"], j_wput), (pre, OPT["phS"] + 1, j_wx),
                             (post, OPT["phF"], j_fw if OPT["phF"] else (lambda: None)), (pre, OPT["bA"] + 1, lambda: genp.wg_flag(a, 1, "K1_F1A")),
                             (post, max(OPT["lastB"] + 1, OPT["phW"][1]), lambda: genp.p2_setup(a))):
                d.setdefault(ph, []).append(j)
            if OPT["stag"]:
                ng = len(OPT["stag"])
                def cold(i):
                    if i == 0:
                        w_setup(); srd(a, SPF, 30, 31, 1792 * 1024)
                        a(f"s_lshl_b32 s3, s2, 2\ns_add_u32 s3, s3, {s(sV)}\ns_mul_i32 s54, s3, 1792\ns_lshr_b32 s56, s2, 3\ns_and_b32 s56, s56, {ng - 1}")
                    a(f"s_cmp_lg_u32 s56, {i}\ns_cbranch_scc1 K1_COLD{i}")
                    keep = a.snapshot()
                    j_wload(2); j_pfl(2)
                    a.label(f"K1_COLD{i}"); a.restore(keep)
                for k in ("phW", "pfl"):
                    for ph in OPT[k]: post[ph] = []
                for i, ph in enumerate(OPT["stag"]): post.setdefault(ph, []).append(lambda i=i: cold(i))
            LB = OPT["lastB"]
            nx = nb = 0
            for ph in range(LB + 1):
                for j in pre.get(ph, []): j()
                while True:
                    if nx < 16 and XMIN[nx] <= ph and (nx < ph + dep or nx > 8) and (nx <= nb or nb == 8 or WMIN[nb] > ph): dma_x(nx); nx += 1
                    elif nb < 8 and WMIN[nb] <= ph and nb < ph + dep: dma_b(nb); nb += 1
                    else: break
                assert nx > min(ph, 15) and nb > min(ph, 7)
                for j in post.get(ph, []): j()
                a.waitvm(f"S{15 if ph == LB else ph}", lg0=True); a("s_barrier")
                (st.mark if ph == 0 else few)()
            assert nx == 16 and OPT["bA"] <= LB
            a(f"v_mov_b32 {v(grow)}, {CNT}")
            def consumed(k, off=0):
                a("s_mov_b32 s67, 0"); n = k; k = f"{k}_{off}"
                a.label(f"K1_CNT{k}")
                a(f"""s_sleep 1
                      ds_read_b32 {v(gad)}, {v(grow)} offset:{off}
                      s_add_u32 s67, s67, 1
                      s_cmp_gt_u32 s67, 100000
                      s_cbranch_scc1 K1_CNTE{k}
                      v_readfirstlane_b32 s3, {v(gad)}
                      s_cmp_lt_u32 s3, {4*n}
                      s_cbranch_scc1 K1_CNT{k}""")
                a.label(f"K1_CNTE{k}")
                a.waitlg()
            for ph in range(LB + 1, 19):
                for j in pre.get(ph, []) + post.get(ph, []): j()
                jw = ph - 13
                if ph == 17: genp.p2_pre(a, "F")
                if ph > LB + 1 and ph <= 17 and (jw < genp.NW2 or ph == 17): consumed(ph - LB - 1); few()
                for j in range(genp.NW2):
                    if j == jw or (ph == LB + 1 and j < jw): genp.w2_dma(a, j)
            st.mark()
        a("s_branch P2_LOADER")
        return st.n
    nl = loader(False)
    a.restore(snapL); st.n = stn
    a.label("K1_LD")
    loader(True)
    a.restore(snap0); V.n = Vbase; st.n = 1 if OPT["stamp"] else 0
    a.label("K1_COMPUTE")
    if OPT["est"]: st.mark()
    if OPT["prio"]: a(f"s_setprio {OPT['prio']}")
    ones = V.get(2); gq = V.get(4); gz = V.get()
    key = t4
    rw = 80
    a(f"""s_lshl_b32 s3, {s(sW)}, 2
          s_add_u32 s3, s3, {s(sLO)}
          s_lshl_b32 s3, s3, 1
          s_add_u32 s3, s3, {s(sHF)}
          s_lshl_b32 s3, s3, 3
          s_add_u32 s3, s3, {s(sCJ)}
          s_lshl_b32 s3, s3, 2
          s_add_u32 s3, s3, {s(sV)}
          s_lshl_b32 s3, s3, 11
          v_lshlrev_b32 {v(t0)}, 4, {v(lane)}
          s_mov_b32 {s(SX+2)}, 0x200000
          s_mov_b32 {s(SX+3)}, 0x20000""")
    a.waitlg()
    a(f"""s_mov_b64 {s(SX,2)}, s[24:25]
          buffer_load_dwordx4 {v(rw,4)}, {v(t0)}, {s(SX,4)}, s3 offen
          buffer_load_dwordx4 {v(rw+4,4)}, {v(t0)}, {s(SX,4)}, s3 offen offset:1024
          v_mov_b32 {v(gz)}, 0""")
    few()
    epoch_load()
    srd(a, SW, 90, 91, WS_END)
    assert G.F2B_OFF - G.F2A_OFF == 1 << 17
    a(f"""s_lshl_b32 s3, s2, 2
          s_add_u32 s3, s3, {s(sV)}
          s_lshl_b32 s3, s3, 7
          s_add_u32 s3, s3, {G.F2A_OFF}
          v_and_b32 {v(t1)}, 31, {v(lane)}
          v_lshlrev_b32 {v(t1)}, 2, {v(t1)}
          v_lshl_add_u32 {v(t1)}, {v(t3)}, 17, {v(t1)}
          buffer_store_dword {v(gz)}, {v(t1)}, {s(SW,4)}, s3 offen sc1""")
    a(f"""v_mov_b32 {v(ones)}, 0x3f803f80
          v_mov_b32 {v(ones+1)}, 0x3f803f80
          v_and_b32 {v(t1)}, 1, {v(lane)}
          v_cmp_eq_u32 s[58:59], 1, {v(t1)}
          v_bfe_u32 {v(key)}, {v(lane)}, 1, 3
          v_and_b32 {v(t0)}, 31, {v(lane)}
          v_lshlrev_b32 {v(t0)}, 7, {v(t0)}""")
    def produce():
        if OPT["est"]: st.mark(); a("s_waitcnt vmcnt(0)"); st.mark()
        for i in range(4):
            for r in range(2):
                c0 = "0" if i == 0 else None
                a(f"v_dot2_f32_bf16 {v(gq+2*r)}, {v(rw+4*r+i)}, {v(rw+4*r+i)}, {c0 or v(gq+2*r)}\nv_dot2_f32_bf16 {v(gq+2*r+1)}, {v(rw+4*r+i)}, {v(ones)}, {c0 or v(gq+2*r+1)}")
        a("s_nop 2")
        for m in ("row_shr:1 row_mask:0xf", "row_shr:2 row_mask:0xf", "row_shr:4 row_mask:0xf", "row_shr:8 row_mask:0xf", "row_bcast:15 row_mask:0xa", "row_bcast:31 row_mask:0xc"):
            for i in range(4): a(f"v_add_f32_dpp {v(gq+i)}, {v(gq+i)}, {v(gq+i)} {m} bank_mask:0xf bound_ctrl:0")
        for i in range(4): a(f"v_readlane_b32 s{16+i}, {v(gq+i)}, 63")
        a(f"""v_mov_b32 {v(gq)}, s16
              v_mov_b32 {v(gq+1)}, s17
              v_mov_b32 {v(gq+2)}, s18
              v_mov_b32 {v(gq+3)}, s19
              v_cndmask_b32 {v(gq)}, {v(gq)}, {v(gq+2)}, s[58:59]
              v_cndmask_b32 {v(gq+1)}, {v(gq+1)}, {v(gq+3)}, s[58:59]""")
        for r in finish_stats(gq, gq + 1, t4, t5): a(r)
        a(f"""s_lshl_b32 s3, {s(sV)}, 4
              s_add_u32 s3, s3, {PRS}
              v_lshl_add_u32 {v(t4)}, {v(lane)}, 3, s3
              s_mov_b64 exec, 3
              ds_write_b64 {v(t4)}, {v(gq,2)}
              s_mov_b64 exec, -1""")
        nonce()
        few()
    def bar():
        a.waitlg(); a("s_barrier")
    a(f"s_cmp_eq_u32 {s(sCJ)}, 7\ns_cbranch_scc1 K1_DFT")
    snap = a.snapshot(); V0 = V.n; stc = st.n
    xa = [V.get(4) for _ in range(3)]; wa = [[V.get(), V.get()] for _ in range(2)]
    l16 = V.get(); a12 = [V.get(2), V.get(2)]
    acc = [[V.get(16) for _ in range(2)] for _ in range(2)]
    xf = [V.get(4) for _ in range(3)]; wf = [[V.get(4) for _ in range(2)] for _ in range(3)]
    cv = [V.get(16), V.get(16)]; ee = V.get(16)
    cs = ee; ad1, ad2, ad4, ad5 = ee + 4, ee + 5, ee + 6, ee + 7
    a(f"""s_lshr_b32 {s(sWR_)}, {s(sV)}, 1
          s_and_b32 {s(sWC)}, {s(sV)}, 1
          s_lshl_b32 s3, {s(sWR_)}, 12
          v_add_u32 {v(t0)}, s3, {v(t0)}
          v_xor_b32 {v(t1)}, {v(t3)}, {v(key)}""")
    for i in range(4):
        a(f"v_xor_b32 {v(t2)}, {2*i}, {v(t1)}\nv_lshl_add_u32 {v(xa[0]+i)}, {v(t2)}, 4, {v(t0)}\nv_add_u32 {v(xa[1]+i)}, 65536, {v(xa[0]+i)}\nv_add_u32 {v(xa[2]+i)}, 131072, {v(xa[0]+i)}")
    a(f"""v_and_b32 {v(t1)}, 2, {v(lane)}
          v_cmp_eq_u32 s[62:63], 2, {v(t1)}
          v_bfe_u32 {v(t0)}, {v(lane)}, 2, 2
          v_lshl_add_u32 {v(t1)}, {v(t3)}, 3, {v(t0)}
          v_lshlrev_b32 {v(t1)}, 8, {v(t1)}
          s_lshl_b32 s3, {s(sWC)}, 1
          s_add_u32 s54, s3, {s(sWR_)}
          v_xor_b32 {v(t0)}, s54, {v(t0)}
          v_lshl_add_u32 {v(t1)}, {v(t0)}, 6, {v(t1)}
          v_bfe_u32 {v(t0)}, {v(lane)}, 4, 1
          v_lshl_add_u32 {v(t1)}, {v(t0)}, 5, {v(t1)}
          v_and_b32 {v(t0)}, 1, {v(lane)}
          v_lshl_add_u32 {v(t1)}, {v(t0)}, 4, {v(t1)}
          v_bfe_u32 {v(t0)}, {v(lane)}, 1, 1
          v_lshl_add_u32 {v(wa[0][0])}, {v(t0)}, 3, {v(t1)}
          v_xor_b32 {v(wa[0][1])}, 64, {v(wa[0][0])}
          v_add_u32 {v(wa[1][0])}, 65536, {v(wa[0][0])}
          v_add_u32 {v(wa[1][1])}, 65536, {v(wa[0][1])}
          v_and_b32 {v(t0)}, 31, {v(lane)}
          s_lshl_b32 s3, {s(sWR_)}, 8
          s_add_u32 s3, s3, {SCR}
          v_lshl_add_u32 {v(ad1)}, {v(t0)}, 3, s3
          s_lshl_b32 s3, s54, 7
          s_add_u32 s40, s3, {PCS}
          v_lshl_add_u32 {v(ad2)}, {v(t0)}, 2, s40
          s_add_u32 s3, s3, {CSF}
          v_lshl_add_u32 {v(ad4)}, {v(t3)}, 4, s3
          v_xor_b32 {v(ad5)}, 0x80, {v(ad4)}
          s_mov_b32 s60, {fbits(-LOG2E)}
          s_mov_b32 s61, {fbits(-LOG2E)}
          v_lshlrev_b32 {v(l16)}, 4, {v(lane)}
          s_lshl_b32 s3, {s(sW)}, 2
          s_add_u32 s3, s3, {s(sLO)}
          s_lshl_b32 s3, s3, 2
          s_add_u32 s40, s3, {s(sWR_)}
          s_mul_i32 s40, s40, {112*1024}
          s_mul_i32 s3, {s(sHF)}, 7
          s_add_u32 s3, s3, {s(sCJ)}
          s_lshl_b32 s3, s3, 13
          s_lshl_b32 s42, s54, 11
          s_add_u32 s42, s42, s3
          s_xor_b32 s43, s42, 0x800
          s_add_u32 s44, s40, s42
          s_add_u32 s45, s40, s43
          s_add_u32 s46, s44, {2*112*1024}
          s_add_u32 s47, s45, {2*112*1024}""")
    assert V.n <= genp.CST and acc[0][0] + 21 <= rw and rw + 8 <= acc[1][1] + 16
    genp.fft_consts(a, acc[0][0])
    def reads_ffn(n):
        if n >= 64: return []
        m, t = divmod(n, 4); i = m & 7; b = n % 3; off = (i & 3) * 16384 + t * 4096
        r = [f"ds_read_b128 {v(xf[b],4)}, {v(xa[XLOC[m] >> 16]+t)} offset:{XLOC[m] & 0xffff}"]
        for T in range(2): r += [f"ds_read_b64_tr_b16 {v(wf[b][T]+2*h,2)}, {v(wa[i >> 2][T])} offset:{off + 1024*h}" for h in range(2)]
        return r
    def silu_out(P):
        for F in range(2):
            A_ = acc[P][F]
            for i in range(0, 16, 2): a(f"v_pk_mul_f32 {v(ee+i,2)}, {v(cv[F]+i,2)}, {v(a12[P],2)} op_sel:[0,1] op_sel_hi:[1,1]")
            for i in range(0, 16, 2): a(f"v_pk_fma_f32 {v(A_+i,2)}, {v(A_+i,2)}, {v(a12[P],2)}, {v(ee+i,2)} op_sel:[0,0,0] op_sel_hi:[1,0,1]")
            for i in range(16): a(f"v_exp_f32 {v(ee+i)}, {v(A_+i)}")
            for i in range(0, 16, 2): a(f"v_pk_fma_f32 {v(ee+i,2)}, {v(ee+i,2)}, s[60:61], s[60:61]")
            for i in range(16): a(f"v_rcp_f32 {v(ee+i)}, {v(ee+i)}")
            for i in range(0, 16, 2): a(f"v_pk_mul_f32 {v(ee+i,2)}, {v(A_+i,2)}, {v(ee+i,2)}")
            for u in range(2):
                for i in range(4): a(f"v_cvt_pk_bf16_f32 {v(A_+4*u+i)}, {v(ee+8*u+2*i)}, {v(ee+8*u+2*i+1)}")
                a(f"buffer_store_dwordx4 {v(A_+4*u,4)}, {v(l16)}, {s(SW,4)}, s{44+2*P+F} offen offset:{1024*u} sc1")
    def pfc(k):
        lo, nb, share, off = ((26, 2048*514, 1024, 0), (22, 2048*514, 1024, 0), (30, 1792*1024, 1792, 0), (30, 1792*1024, 1792, 1024))[k]
        def go():
            srd(a, SB, lo, lo + 1, nb)
            a(f"s_mul_i32 s3, s33, {share}\nbuffer_load_dwordx4 {v(cv[0],4)}, {v(l16)}, {s(SB,4)}, s3 offen offset:{off}"); untracked(a)
        return go
    a(f"s_lshl_b32 s33, s2, 2\ns_add_u32 s33, s33, {s(sV)}")
    def signal():
        a.waitlg(); a(f"s_mov_b64 exec, 1\nds_add_u32 {v(gq)}, {v(gq+1)}\ns_mov_b64 exec, -1")
    def barv():
        a.waitvm(None, lg0=True); a("s_barrier")
    produce()
    bar(); st.mark()
    a(f"v_mov_b32 {v(gq)}, {CNT}\nv_mov_b32 {v(gq+1)}, 1")
    for r in reads_ffn(0) + reads_ffn(1): a(r)
    E = OPT["bE"]
    for n in range(64):
        b = n % 3; P = n >> 5; z = "0" if n % 32 == 0 else None
        mfs = [(lambda F=F: mf32(a, acc[P][F], wf[b][F], xf[b], z)) for F in range(2)]
        fill = reads_ffn(n + 2); per = [3, 2]
        if n % 4 == 2: fill = [signal if n // 4 + 1 > OPT["lastB"] else barv if n // 4 + 1 == OPT["bA"] else bar] + fill; per = [3, 3]
        if n == 4:
            fill += [f"v_cndmask_b32 {v(cs)}, {v(cs)}, {v(cs+1)}, s[58:59]", f"v_cndmask_b32 {v(cs+2)}, {v(cs+2)}, {v(cs+3)}, s[58:59]",
                     f"v_cndmask_b32 {v(cs+1)}, {v(cs)}, {v(cs+2)}, s[62:63]", f"v_cndmask_b32 {v(cs)}, {v(cs)}, {v(cs+2)}, s[62:63]"]
            per = [4, 5]
        if n == 5:
            fill += [f"v_permlane32_swap_b32 {v(cs)}, {v(cs+1)}", f"v_add_f32 {v(cs)}, {v(cs)}, {v(cs+1)}", f"ds_write_b32 {v(ad2)}, {v(cs)}"]
            per = [4, 4]
        for k, nn in enumerate(OPT["pfc"]):
            if nn == n: fill = fill + [pfc(k)]; per[1] += 1
        if n == 4 * E - 1:
            if OPT["pfc"]: fill += ["s_waitcnt vmcnt(0)"]
            fill += [f"ds_read_b64 {v(a12[p],2)}, {v(ad1)} offset:{512*p}" for p in range(2)] + \
                    [f"ds_read_b128 {v(cv[F]+4*jj,4)}, {v(ad)} offset:{32*jj}" for F, ad in ((0, ad4), (1, ad5)) for jj in range(4)]
            per = [7, 9]
        interleave(a, mfs, fill, per)
        if n < 4:
            for h in (0, 2): mf4(a, cs, ones, wf[b][0]+h, "0" if (n == 0 and h == 0) else None)
        if n == 31: st.mark()
        if n == max(4 * E - 1, 31) + OPT["eAlag"]: silu_out(0); few()
    st.mark()
    silu_out(1)
    st.mark()
    nc = st.n
    a("s_branch P2_COMPUTE")
    vmax = 256
    a.restore(snap); V.n = V0; st.n = stc
    a.label("K1_DFT")
    xa = [V.get(4), V.get(4)]; ta = [V.get(), V.get()]; ad2 = V.get(); wad = V.get()
    Vo = VAlloc(V.get(4))
    acc = [[V.get(16) for _ in range(2)] for _ in range(4)]
    sq = V.get(4); sm = [V.get(4) for _ in range(4)]; ad1 = V.get(); spa = V.get()
    xr = V.get(16); xe = [V.get(4) for _ in range(4)]; tf = [[V.get(4) for _ in range(2)] for _ in range(4)]
    assert V.n <= 256 and acc[0][0] <= rw and rw + 8 <= acc[3][1]
    def st4d(first):
        for i in range(8):
            r, h = i & 3, 2 * (i >> 2)
            mf4(a, sq, xe[r] + h, xe[r] + h, "0" if first and i == 0 else None)
            mf4(a, sm[r], ones, xe[r] + h, "0" if first and i < 4 else None)
            if i < 7: a("s_nop 0")
    a(f"v_add_u32 {v(t0)}, {s(sL)}, {v(t0)}\nv_lshlrev_b32 {v(t1)}, 2, {v(t3)}\nv_xor_b32 {v(t1)}, {v(t1)}, {v(key)}")
    for i in range(4):
        a(f"v_xor_b32 {v(t2)}, {i}, {v(t1)}\nv_lshl_add_u32 {v(xa[0]+i)}, {v(t2)}, 4, {v(t0)}\nv_add_u32 {v(xa[1]+i)}, 65536, {v(xa[0]+i)}")
    a(f"""v_lshlrev_b32 {v(ta[0])}, 4, {v(lane)}
          v_add_u32 {v(ta[0])}, 16384, {v(ta[0])}
          v_add_u32 {v(ta[1])}, 65536, {v(ta[0])}
          s_mov_b32 s62, 0x05040100
          s_mov_b32 s63, 0x07060302
          s_lshl_b32 s3, {s(sV)}, 7
          s_add_u32 s3, s3, {SCR}
          v_lshl_add_u32 {v(ad2)}, {v(t3)}, 4, s3
          v_and_b32 {v(t1)}, 2, {v(lane)}
          v_cmp_eq_u32 s[48:49], 2, {v(t1)}
          v_and_b32 {v(t1)}, 31, {v(lane)}
          v_lshl_add_u32 {v(ad1)}, {v(t1)}, 2, s3
          v_lshlrev_b32 {v(t5)}, 8, {v(t1)}
          v_and_b32 {v(t1)}, 7, {v(lane)}
          v_xor_b32 {v(t1)}, {v(t1)}, {v(t3)}
          s_lshl_b32 s3, {s(sV)}, 1
          v_xor_b32 {v(t1)}, s3, {v(t1)}
          v_lshl_add_u32 {v(wad)}, {v(t1)}, 4, {v(t5)}
          s_mov_b32 s60, 2.0
          s_mov_b32 s61, 2.0
          v_bfe_u32 {v(t1)}, {v(lane)}, 2, 1
          v_add_u32 {v(t1)}, s3, {v(t1)}
          v_xor_b32 {v(t1)}, 7, {v(t1)}
          v_bfe_u32 {v(t2)}, {v(lane)}, 3, 1
          v_lshl_add_u32 {v(t1)}, {v(t1)}, 1, {v(t2)}
          v_and_b32 {v(t2)}, 3, {v(lane)}
          v_lshl_add_u32 {v(t1)}, {v(t1)}, 2, {v(t2)}
          v_lshlrev_b32 {v(spa)}, 1, {v(t1)}""")
    class R2:
        def __init__(s_): s_.k = 0
        def get(s_, n=1):
            return acc[0][0] if n == 32 else Vo.get(n)
    x1pre, x1post = x1_out(R2(), 1)
    a(x1pre)
    def loc(sl): slot = sl % NS; return slot >> 1, (slot & 1) * 32768
    def rd_x(sl): se, off = loc(sl); return [f"ds_read_b128 {v(xr+4*b,4)}, {v(xa[se]+b)} offset:{off}" for b in range(4)]
    def rd_t(sl, r): se, off = loc(sl); return [f"ds_read_b128 {v(tf[r][c],4)}, {v(ta[se])} offset:{off + (2*r + c)*1024}" for c in range(2)]
    def perms(r): return [f"v_perm_b32 {v(xe[r]+i)}, {v(xr+4*i+2+(r>>1))}, {v(xr+4*i+(r>>1))}, s{62+(r&1)}" for i in range(4)]
    produce()
    bar(); st.mark()
    for r in rd_x(0) + sum((rd_t(0, r) for r in range(4)), []): a(r)
    for r in range(4):
        for p in perms(r): a(p)
    st4d(True)
    rs = xr
    for sl in range(8):
        z = "0" if sl == 0 else None
        mfs = [(lambda r=r, c=c: mf32(a, acc[r][c], xe[r], tf[r][c], z)) for r in range(4) for c in range(2)]
        if sl < 7:
            bar()
            fill = rd_x(sl + 1); per = [4]
            for r in range(4):
                nx = rd_t(sl + 1, r) + (perms(r - 1) if r else [])
                fill += nx; per += [len(nx), 0]
            fill += perms(3) + [lambda: st4d(False)]; per = per[:8]
        else:
            fill = []
            for q in [sq] + sm:
                fill += [f"v_cndmask_b32 {v(q)}, {v(q)}, {v(q+1)}, s[58:59]", f"v_cndmask_b32 {v(q+2)}, {v(q+2)}, {v(q+3)}, s[58:59]"]
            for q in [sq] + sm:
                fill += [f"v_cndmask_b32 {v(q+1)}, {v(q)}, {v(q+2)}, s[48:49]", f"v_cndmask_b32 {v(q)}, {v(q)}, {v(q+2)}, s[48:49]"]
            fill += [f"v_permlane32_swap_b32 {v(q)}, {v(q+1)}" for q in [sq] + sm]
            fill += [f"v_add_f32 {v(q)}, {v(q)}, {v(q+1)}" for q in sm] + [f"v_add_f32 {v(t0)}, {v(sq)}, {v(sq+1)}"]
            fill += [f"v_add_f32 {v(sq)}, {v(sm[0])}, {v(sm[2])}", f"v_add_f32 {v(sq+1)}, {v(sm[1])}, {v(sm[3])}", f"v_add_f32 {v(t1)}, {v(sq)}, {v(sq+1)}"]
            fill += finish_stats(t0, t1, t4, t5)
            fill += [f"ds_write_b32 {v(ad1)}, {v(t0)}", "s_waitcnt lgkmcnt(0)"] + [f"ds_read_b128 {v(rs+4*jj,4)}, {v(ad2)} offset:{32*jj}" for jj in range(4)]
            per = [6] * 8
        interleave(a, mfs, fill, per)
        if sl == 2: few()
    st.mark()
    tmp = xe[0]; pk = [tf[0][0], tf[0][1]]
    ng = lambda *n: f" neg_lo:[{n[0]},{n[1]},{n[2]}] neg_hi:[{n[0]},{n[1]},{n[2]}]"
    a(f"""v_sub_f32 {v(sq)}, {v(sq)}, {v(sq+1)}
          v_sub_f32 {v(sq+1)}, {v(sm[0])}, {v(sm[2])}
          v_sub_f32 {v(sq+2)}, {v(sm[3])}, {v(sm[1])}
          v_mul_f32 {v(sq)}, {v(sq)}, {v(t0)}
          v_mul_f32 {v(sq+1)}, {v(sq+1)}, {v(t0)}
          v_mul_f32 {v(sq+2)}, {v(sq+2)}, {v(t0)}
          v_cvt_pk_bf16_f32 {v(sq)}, {v(sq)}, 0
          v_cvt_pk_bf16_f32 {v(sq+1)}, {v(sq+1)}, {v(sq+2)}""")
    k = 0
    for u in range(2):
        for i in range(8*u, 8*u + 8, 2):
            r = v(rs+i, 2); P = lambda q, c: v(acc[q][c]+i, 2)
            for q in range(2):
                for c in range(2): a(f"v_pk_mul_f32 {v(tmp+4*q+2*c,2)}, {P(q,c)}, {r}")
            for q in range(2):
                for c in range(2):
                    a(f"v_pk_fma_f32 {P(q,c)}, {P(q+2,c)}, {r}, {v(tmp+4*q+2*c,2)}\nv_pk_fma_f32 {P(q+2,c)}, {P(q+2,c)}, {r}, {v(tmp+4*q+2*c,2)}{ng(1,0,0)}")
            a(f"""v_pk_add_f32 {P(0,0)}, {P(0,0)}, {P(1,0)}
                  v_pk_add_f32 {P(0,1)}, {P(0,1)}, {P(1,1)}
                  v_pk_add_f32 {P(2,0)}, {P(2,0)}, {P(3,1)}
                  v_pk_add_f32 {P(2,1)}, {P(2,1)}, {P(3,0)} neg_lo:[0,1] neg_hi:[0,1]
                  v_pk_fma_f32 {P(1,0)}, {P(1,0)}, s[60:61], {P(0,0)}{ng(1,0,0)}
                  v_pk_fma_f32 {P(1,1)}, {P(1,1)}, s[60:61], {P(0,1)}{ng(0,0,1)}
                  v_pk_fma_f32 {P(3,1)}, {P(3,1)}, s[60:61], {P(2,0)}{ng(1,0,0)}
                  v_pk_fma_f32 {P(3,0)}, {P(3,0)}, s[60:61], {P(2,1)}{ng(1,0,1)}""")
        for ty in range(4):
            for c in range(2):
                src = acc[ty][c if ty < 3 else 1 - c]; pp = pk[k & 1]; k += 1
                for i in range(4): a(f"v_cvt_pk_bf16_f32 {v(pp+i)}, {v(src+8*u+2*i)}, {v(src+8*u+2*i+1)}")
                a(f"ds_write_b128 {v(wad)}, {v(pp,4)} offset:{u*32768 + ty*8192 + c*128}")
        a(f"s_cmp_eq_u32 {s(sHF)}, 0\ns_cbranch_scc1 K1_NOSPEC{u}\ns_mov_b64 exec, {0xffff << (16*u)}")
        for ty in (2, 3):
            a(f"ds_write_b16 {v(spa)}, {v(sq+ty-2)} offset:{u*32768 + ty*8192 + 31*256}\nds_write_b16_d16_hi {v(spa)}, {v(sq+ty-2)} offset:{u*32768 + ty*8192 + 31*256 + 128}")
        a("s_mov_b64 exec, -1")
        a.label(f"K1_NOSPEC{u}")
        bar()
    x1post()
    a("s_barrier")
    st.mark()
    genp.fft_consts(a, acc[2][0])
    st.mark()
    st.n = nc
    a("s_waitcnt vmcnt(0)\ns_barrier")
    a.vm, a.lg, a.hist = [("?", set())], [], []
    vmax = max(vmax, genp.compute23(a, st))
    a.vm, a.lg, a.hist = [], [], []; st.n = nl
    vmax = max(vmax, genp.loader23(a, st))
    a.label("K1_END")
    a("s_endpgm")
    return a, max(vmax, V.hi), (163840, 512)
```

```python
from asmfw import Asm, VAlloc, v, s
import __main__ as M
G = M if hasattr(M, "dft_table") else __import__("gen2")
OPT = G.OPT; fbits = G.fbits; srd = G.srd; mf32 = G.mf32; mf16 = G.mf16
H_OFF, X1_OFF, WT_OFF, Y1_OFF, PART_OFF, WS_END = G.H_OFF, G.X1_OFF, G.WT_OFF, G.Y1_OFF, G.PART_OFF, G.WS_END
F1A_OFF, F1B_OFF, F2A_OFF, F2B_OFF, F3_OFF, FW_OFF, FX_OFF = G.F1A_OFF, G.F1B_OFF, G.F2A_OFF, G.F2B_OFF, G.F3_OFF, G.FW_OFF, G.FX_OFF
SW, S2, SX, SO = 12, 16, 4, 16
sN = 66
HR, XB, WB, EX = 114688, 139264, 147456, 155648
YB, OWN, RED = 49152, 98304, 0
HLOC = [HR, HR + 8192, HR + 16384, EX, HR, HR + 8192, HR + 16384, HR, HR + 8192, HR + 16384, XB, WB, EX, HR]
CST = 192
W2R = [3, 4, 5, 6, 0, 1, 2]
NW2 = OPT["nw2"]
L16, V2, FH, LV0 = 9, 10, 18, 20
tid, lane, t0, t1, t2, t3, t4, t5 = range(8)
sV, sQ, sRB, sNB, sRT, sL, sHo, s2o, sWR_, sWC, sR2 = 37, 32, 33, 64, 65, 51, 60, 61, 38, 39, 50

def put_flag(a, off, va, vd, per_wave=False):
    a(f"s_lshl_b32 s3, s2, 2\ns_add_u32 s3, s3, {s(sV)}\ns_lshl_b32 s3, s3, 7" if per_wave else "s_lshl_b32 s3, s2, 7")
    a(f"""s_add_u32 s3, s3, {off}
          v_lshlrev_b32 {v(va)}, 2, {v(lane)}
          v_mov_b32 {v(vd)}, {s(sN)}
          s_mov_b64 exec, 0xffffffff
          buffer_store_dword {v(vd)}, {v(va)}, {s(SW,4)}, s3 offen sc1
          s_mov_b64 exec, -1""")
def wait_flags(a, name, pairs, sleep=0, atomic=0, lanes=0, between=None, only=None):
    def rd(va, vd):
        if atomic: a(f"v_mov_b32 {v(vd)}, 0\nbuffer_atomic_or {v(vd)}, {v(va)}, {s(SW,4)}, 0 offen sc0 sc1"); a.vm[-1] = (None, {('v', vd)})
        else: a(f"buffer_load_dword {v(vd)}, {v(va)}, {s(SW,4)}, 0 offen sc1")
    if sleep and only != "check": a(f"s_sleep {sleep}")
    if atomic or lanes: a(f"s_mov_b64 exec, {(1 << (atomic or lanes)) - 1}")
    if only != "check":
        for va, vd in pairs: rd(va, vd)
    if only == "issue":
        a("s_mov_b64 exec, -1"); return
    if between:
        a("s_mov_b64 exec, -1"); between(); a(f"s_mov_b64 exec, {(1 << lanes) - 1}")
    for i, (va, vd) in enumerate(pairs):
        a(f"v_cmp_ne_u32 vcc, {s(sN)}, {v(vd)}\ns_cbranch_vccz {name}_END{i}\ns_mov_b32 s67, 0")
        keep = a.snapshot()
        a.label(f"{name}_SPIN{i}")
        a("s_mov_b64 exec, vcc")
        if OPT["slS"]: a(f"s_sleep {OPT['slS']}")
        rd(va, vd)
        a(f"""s_add_u32 s67, s67, 1
              s_cmp_gt_u32 s67, {OPT['spinf']}
              s_waitcnt vmcnt(0)
              s_cbranch_scc1 {name}_END{i}
              v_cmp_ne_u32 vcc, {s(sN)}, {v(vd)}
              s_cbranch_vccnz {name}_SPIN{i}""")
        a.label(f"{name}_END{i}")
        a.restore(keep); a.hist = []
        a("s_mov_b64 exec, -1")

C64 = [CST, CST + 4]; S64 = [CST + 8, CST + 12]; C32 = [CST + 16, CST + 20]; S32 = [CST + 24, CST + 28]
c1, s1, c2, s2_ = CST + 32, CST + 40, CST + 48, CST + 56

def wg_flag(a, w, name, off=None, wide=False):
    a(f"s_cmp_lg_u32 {s(sV)}, {w}\ns_cbranch_scc1 {name}")
    keep = a.snapshot()
    if wide:
        a(f"""s_lshl_b32 s3, s2, 9
              s_add_u32 s3, s3, {off}
              v_lshlrev_b32 {v(t0)}, 3, {v(lane)}
              v_mov_b32 {v(t2)}, {s(sN)}
              v_mov_b32 {v(t3)}, {s(sN)}
              buffer_store_dwordx2 {v(t2,2)}, {v(t0)}, {s(SW,4)}, s3 offen sc1""")
    else: put_flag(a, F3_OFF + 32768 * w, t0, t2)
    a.label(name); a.restore(keep)

def fft_consts(a, fr):
    fj, fg, fk, ang = fr, fr + 1, fr + 2, fr + 3; cb = fr + 4; sb = fr + 12; u3 = fr + 20
    a(f"""v_lshrrev_b32 {v(t1)}, 4, {v(lane)}
          v_and_b32 {v(t0)}, 15, {v(lane)}
          v_cvt_f32_u32 {v(fj)}, {v(t0)}
          v_cvt_f32_u32 {v(fg)}, {v(t1)}
          s_lshl_b32 s3, {s(sV)}, 4
          v_add_u32 {v(t0)}, s3, {v(t0)}
          v_cvt_f32_u32 {v(fk)}, {v(t0)}""")
    def frag(step, base, offs, Cd, Sd):
        for e in range(8):
            a(f"v_mov_b32 {v(t4)}, {fbits(float(offs[e]))}\nv_fma_f32 {v(ang)}, {v(t4)}, {v(step)}, {v(base)}" if offs[e] not in (0, 1, 2, 4) else
              (f"v_mov_b32 {v(ang)}, {v(base)}" if offs[e] == 0 else f"v_fma_f32 {v(ang)}, {float(offs[e])}, {v(step)}, {v(base)}"))
            a(f"v_cos_f32 {v(cb+e)}, {v(ang)}\nv_sin_f32 {v(sb+e)}, {v(ang)}")
        for i in range(4):
            a(f"v_cvt_pk_bf16_f32 {v(Cd+i)}, {v(cb+2*i)}, {v(cb+2*i+1)}\nv_cvt_pk_bf16_f32 {v(Sd+i)}, {v(sb+2*i)}, {v(sb+2*i+1)}")
    a(f"v_mul_f32 {v(t2)}, {fbits(1/64)}, {v(fk)}\nv_mul_f32 {v(u3)}, {fbits(8.0)}, {v(fg)}\nv_mul_f32 {v(t5)}, {v(u3)}, {v(t2)}")
    frag(t2, t5, list(range(8)), C64[0], S64[0])
    a(f"v_add_f32 {v(u3)}, {fbits(32.0)}, {v(u3)}\nv_mul_f32 {v(t5)}, {v(u3)}, {v(t2)}")
    frag(t2, t5, list(range(8)), C64[1], S64[1])
    o32 = [0, 1, 2, 3, 16, 17, 18, 19]
    a(f"v_mul_f32 {v(u3)}, 4.0, {v(fg)}")
    for m in range(2):
        a(f"v_mul_f32 {v(t2)}, {fbits(1/32)}, {v(fj)}")
        if m: a(f"v_add_f32 {v(t2)}, 0.5, {v(t2)}")
        a(f"v_mul_f32 {v(t5)}, {v(u3)}, {v(t2)}")
        frag(t2, t5, o32, C32[m], S32[m])
    a(f"v_mul_f32 {v(t2)}, {fbits(1/2048)}, {v(fk)}\nv_mul_f32 {v(t5)}, {v(u3)}, {v(t2)}")
    for e in range(8):
        a(f"v_mov_b32 {v(t4)}, {fbits(float(o32[e]))}\nv_fma_f32 {v(ang)}, {v(t4)}, {v(t2)}, {v(t5)}\nv_cos_f32 {v(c1+e)}, {v(ang)}\nv_sin_f32 {v(s1+e)}, {v(ang)}")
    a(f"v_cvt_f32_u32 {v(t4)}, s3\nv_add_f32 {v(u3)}, {v(u3)}, {v(t4)}")
    for m in range(2):
        a(f"v_mul_f32 {v(t2)}, {fbits(1/2048)}, {v(fj)}")
        if m: a(f"v_add_f32 {v(t2)}, {fbits(16/2048)}, {v(t2)}")
        a(f"v_mul_f32 {v(ang)}, {v(u3)}, {v(t2)}")
        for r in range(4):
            if r: a(f"v_add_f32 {v(ang)}, {v(ang)}, {v(t2)}")
            a(f"v_cos_f32 {v(c2+4*m+r)}, {v(ang)}\nv_sin_f32 {v(s2_+4*m+r)}, {v(ang)}")
    a(f"s_mov_b32 s16, {fbits(1/2048)}\ns_mov_b32 s17, {fbits(1/2048)}")
    for i in range(0, 8, 2): a(f"v_pk_mul_f32 {v(c2+i,2)}, {v(c2+i,2)}, s[16:17]\nv_pk_mul_f32 {v(s2_+i,2)}, {v(s2_+i,2)}, s[16:17]")

def decode2(a):
    a(f"""s_bfe_u32 {s(sQ)}, s2, 0x20001
          s_and_b32 s3, s2, 1
          s_lshl_b32 s3, s3, 3
          s_lshr_b32 {s(sRB)}, s2, 5
          s_add_u32 {s(sRB)}, {s(sRB)}, s3
          s_bfe_u32 {s(sNB)}, s2, 0x20003
          s_lshl_b32 {s(sRT)}, {s(sRB)}, 2
          s_add_u32 {s(sRT)}, {s(sRT)}, {s(sQ)}""")
def p2_setup(a):
    decode2(a)
    srd(a, S2, 30, 31, 1792 * 1024)
    a(f"""s_mul_i32 s3, {s(sQ)}, 448
          s_lshl_b32 s40, {s(sV)}, 4
          s_add_u32 s3, s3, s40
          s_lshl_b32 s3, s3, 3
          s_add_u32 s3, s3, {s(sNB)}
          s_lshl_b32 {s(s2o)}, s3, 7
          s_lshl_b32 s3, {s(sNB)}, 1
          s_lshr_b32 s40, s2, 5
          s_add_u32 s3, s3, s40
          s_mul_i32 s3, s3, {OPT["rot2"]}
          s_cmp_ge_u32 s3, 7
          s_cselect_b32 s40, 7, 0
          s_sub_u32 {s(sR2)}, s3, s40
          s_lshl_b32 s3, {s(sR2)}, 16
          s_add_u32 {s(s2o)}, {s(s2o)}, s3
          v_lshrrev_b32 {v(t1)}, 4, {v(lane)}
          v_and_b32 {v(t0)}, 15, {v(lane)}
          v_lshlrev_b32 {v(t2)}, 2, {v(t1)}
          v_xor_b32 {v(t0)}, {v(t0)}, {v(t2)}
          v_lshrrev_b32 {v(t2)}, 3, {v(t0)}
          v_and_b32 {v(t0)}, 7, {v(t0)}
          v_lshlrev_b32 {v(t0)}, 4, {v(t0)}
          v_lshl_add_u32 {v(t0)}, {v(t2)}, 9, {v(t0)}
          v_lshl_add_u32 {v(V2)}, {v(t1)}, 10, {v(t0)}
          v_add_u32 {v(V2+1)}, 3072, {v(V2)}
          v_add_u32 {v(V2+2)}, 6144, {v(V2)}
          v_add_u32 {v(V2+3)}, 9216, {v(V2)}""")
def step(a, reg, j, size, extra):
    if OPT["rot2"]: a(f"s_cmp_eq_u32 {s(sR2)}, {6 - j}\ns_mov_b32 s3, {size + extra}\ns_cselect_b32 s3, {(extra - 6*size) & 0xffffffff}, s3\ns_add_u32 {s(reg)}, {s(reg)}, s3")
    else: a(f"s_add_u32 {s(reg)}, {s(reg)}, {size + extra if j != 6 else extra - 6*size}")
def w2_dma(a, j):
    a(f"s_add_u32 m0, {s(sL)}, {W2R[j]*16384}")
    for i in range(4): a(f"buffer_load_dwordx4 {v(V2+i)}, {s(S2,4)}, {s(s2o)} offen offset:{1024*i} lds", tag=f"W{j}")
    step(a, s2o, j, 65536, 0)

def p2_pre(a, X):
    l16 = L16; fa, fd, fa2, fd2 = 14, 15, 16, 17
    fh = FH
    a(f"""s_and_b32 s3, {s(sRB)}, 3
          s_lshl_b32 s3, s3, 3
          s_lshr_b32 s43, {s(sRB)}, 2
          s_lshl_b32 s43, s43, 1
          s_add_u32 s3, s3, s43
          s_lshr_b32 s43, {s(sQ)}, 1
          s_add_u32 s3, s3, s43
          s_and_b32 s43, {s(sQ)}, 1
          s_mul_i32 s43, s43, 96
          s_add_u32 s3, s3, s43
          s_lshl_b32 s3, s3, 7
          s_add_u32 s3, s3, {F1A_OFF}
          v_and_b32 {v(t0)}, 3, {v(lane)}
          v_lshl_add_u32 {v(fh)}, {v(t0)}, 12, s3""")
    def setup():
        a(f"""s_lshl_b32 s3, {s(sRB)}, 2
              s_lshr_b32 s43, {s(sV)}, 1
              s_add_u32 s3, s3, s43
              s_mul_i32 s3, s3, 112
              s_mul_i32 s43, {s(sQ)}, 28
              s_add_u32 s3, s3, s43
              s_and_b32 s43, {s(sV)}, 1
              s_lshl_b32 s43, s43, 1
              s_add_u32 s3, s3, s43
              s_lshl_b32 s43, {s(sR2)}, 2
              s_add_u32 s3, s3, s43
              s_lshl_b32 {s(sHo)}, s3, 10
              s_lshl_b32 s44, {s(sV)}, 11
              s_lshl_b32 s43, s2, 13
              s_add_u32 s43, s43, s44
              s_add_u32 s47, s43, {X1_OFF}
              s_add_u32 s48, s43, {WT_OFF}""")
        a(f"""s_lshr_b32 s3, s2, 4
              s_lshl_b32 s43, {s(sV)}, 5
              s_add_u32 s3, s3, s43
              s_lshl_b32 s3, s3, 7
              s_add_u32 s3, s3, {FW_OFF}
              v_and_b32 {v(t0)}, 1, {v(lane)}
              v_lshl_add_u32 {v(fa)}, {v(t0)}, 11, s3
              v_bfe_u32 {v(t0)}, {v(lane)}, 1, 3
              v_lshl_add_u32 {v(fa)}, {v(t0)}, 14, {v(fa)}
              s_add_u32 s3, s2, 1
              s_and_b32 s3, s3, 127
              s_sub_u32 s43, 128, s3
              s_min_u32 s3, s3, s43
              s_sub_u32 s3, s3, 1
              s_bfe_u32 s3, s3, 0x10005
              s_and_b32 s43, {s(sV)}, 1
              s_lshl_b32 s43, s43, 4
              s_add_u32 s3, s3, s43
              s_add_u32 s3, s3, 224
              s_lshl_b32 s3, s3, 7
              s_add_u32 s3, s3, {FX_OFF}
              v_and_b32 {v(t0)}, 7, {v(lane)}
              v_lshl_add_u32 {v(fa2)}, {v(t0)}, 8, s3
              v_cmp_gt_u32 vcc, 16, {v(lane)}
              v_cndmask_b32 {v(fa)}, {v(fa2)}, {v(fa)}, vcc""")
    wait_flags(a, "P2_FA" + X, [(fh, fd)], OPT["slH"], lanes=4, between=setup)

def loader23(a, st):
    a.label("P2_LOADER")
    l16 = L16; fa, fd, fa2, fd2 = 14, 15, 16, 17; fh = FH
    V = VAlloc(LV0)
    def h_dma(m):
        a(f"s_add_u32 m0, s44, {HLOC[m]}")
        for j in range(2): a(f"buffer_load_dwordx4 {v(l16)}, {s(SW,4)}, {s(sHo)} offen offset:{1024*j} sc1 lds", tag=f"H{m}")
        step(a, sHo, m % 7, 4096, 2*112*1024 if m == 6 else 0)
    st.mark()
    def x_dma():
        wait_flags(a, "P2_FX", [(fa, fd2)], lanes=24, only="check")
        st.mark()
        for base, so in ((XB, 47), (WB, 48)):
            a(f"s_add_u32 m0, s44, {base}")
            for j in range(2): a(f"buffer_load_dwordx4 {v(l16)}, {s(SW,4)}, s{so} offen offset:{1024*j} sc1 lds", tag="X")
    LA = OPT["lastA"]
    for ph in range(LA + 2):
        if ph == OPT["bB"] + 1: wg_flag(a, 2, "P2_F1B")
        if ph == OPT["phP"]: wait_flags(a, "P2_FX", [(fa, fd2)], lanes=24, only="issue")
        for m in ([0, 1, 2, 3] if ph == 0 else [ph + 2] if 2 <= ph <= 4 else []): h_dma(m)
        for j in ([NW2, NW2 + 1][:OPT["w0"]] if ph == 0 else [ph + NW2 + OPT["w0"] - 1]):
            if j <= 6: w2_dma(a, j)
        if ph == OPT["phX"]: x_dma()
        if ph > LA: break
        a.waitvm(f"H{6 if ph == LA else ph}"); a.waitvm(f"W{6 if ph == LA else ph}")
        a("s_barrier")
        if ph == 0:
            st.mark()
            if not OPT["phF"]: put_flag(a, FW_OFF, t0, t2, True)
    assert OPT["bB"] <= LA and OPT["phP"] <= OPT["phX"] <= LA + 1 and LA >= 4 and LA + NW2 + OPT["w0"] - 1 >= 6
    a(f"v_add_u32 {v(fh)}, {F1B_OFF - F1A_OFF}, {v(fh)}")
    a.waitvm("X"); a("s_barrier")
    wait_flags(a, "P2_FB", [(fh, fd)], OPT["slB"], lanes=4)
    for m in (7, 8, 9): h_dma(m)
    a("s_barrier")
    vy = V.get(4); vxo = V.get(); vpo = V.get(); pt = V.get(24); xv = V.get(8); rr = V.get(2); sYo = 60
    h_dma(10); h_dma(11)
    LB = OPT["lastB2"]
    for ph in range(7, LB + 1):
        if ph in (8, 9): h_dma(ph + 4)
        if ph == LB:
            a(f"""s_lshl_b32 {s(sL)}, {s(sV)}, 13
                  s_add_u32 {s(sL)}, {s(sL)}, {YB}
                  v_and_b32 {v(t0)}, 3, {v(lane)}
                  v_lshlrev_b32 {v(t0)}, 4, {v(t0)}
                  v_bfe_u32 {v(t2)}, {v(lane)}, 2, 1
                  v_lshl_add_u32 {v(t0)}, {v(t2)}, 12, {v(t0)}
                  v_lshrrev_b32 {v(t1)}, 3, {v(lane)}
                  v_lshl_add_u32 {v(vy)}, {v(t1)}, 14, {v(t0)}
                  v_add_u32 {v(vy+1)}, 130048, {v(vy)}
                  v_add_u32 {v(vy+2)}, {2*130048}, {v(vy)}
                  v_add_u32 {v(vy+3)}, {3*130048}, {v(vy)}
                  s_and_b32 s3, {s(sV)}, 1
                  s_lshl_b32 s3, s3, 7
                  s_lshr_b32 s40, {s(sV)}, 1
                  s_add_u32 s3, s3, s40
                  s_lshl_b32 s41, s3, 7
                  s_add_u32 s41, s41, {F3_OFF}
                  v_lshl_add_u32 {v(fa)}, {v(lane)}, 8, s41
                  s_lshl_b32 s3, s3, 13
                  s_lshl_b32 s40, {s(sRT)}, 6
                  s_add_u32 s3, s3, s40
                  s_add_u32 {s(sYo)}, s3, {Y1_OFF}""")
        a.waitvm(f"H{13 if ph == LB else ph}")
        a("s_barrier")
        if ph == OPT["bY"]:
            wg_flag(a, 0, "P2_F3"); wg_flag(a, 1, "P2_F2A", F2A_OFF, True)
        if ph in (7, LB): st.mark()
    wait_flags(a, "P3_FY", [(fa, fd)], OPT["slY"])
    a("s_load_dwordx2 s[30:31], s[0:1], 48")
    def y_dma():
        for g in range(2):
            a(f"s_add_u32 m0, {s(sL)}, {g*4096}")
            for j in range(4): a(f"buffer_load_dwordx4 {v(vy+j)}, {s(SW,4)}, {s(sYo)} offen offset:{1024*j} sc1 lds", tag="Y")
            if g == 0: a(f"s_add_u32 {s(sYo)}, {s(sYo)}, 524288")
    if OPT["yfree"]: y_dma()
    srd(a, SX, 24, 25, 0x200000); srd(a, SO, 30, 31, 0x200000)
    a(f"""v_lshrrev_b32 {v(t3)}, 5, {v(lane)}
          v_bfe_u32 {v(t1)}, {v(lane)}, 3, 2
          v_lshl_add_u32 {v(t0)}, {v(t3)}, 4, {v(t1)}
          v_and_b32 {v(t2)}, 7, {v(lane)}
          v_lshlrev_b32 {v(t4)}, 4, {v(t2)}
          v_lshl_add_u32 {v(vxo)}, {v(t0)}, 10, {v(t4)}
          s_lshr_b32 s3, {s(sRB)}, 2
          s_lshl_b32 s3, s3, 2
          s_add_u32 s3, s3, {s(sQ)}
          s_lshl_b32 s3, s3, 2
          s_add_u32 s3, s3, {s(sV)}
          s_lshl_b32 s3, s3, 3
          s_and_b32 s40, {s(sRB)}, 3
          s_add_u32 s3, s3, s40
          s_lshl_b32 s3, s3, 5
          s_add_u32 s3, s3, {s(sNB)}
          s_lshl_b32 s45, s3, 7""")
    a(f"""s_lshl_b32 s3, {s(sRT)}, 3
          s_add_u32 s3, s3, {s(sNB)}
          s_lshl_b32 s3, s3, 3
          s_add_u32 s3, s3, {s(sV)}
          s_lshl_b32 s3, s3, 9
          s_add_u32 s43, s3, {PART_OFF}
          v_lshrrev_b32 {v(t0)}, 3, {v(lane)}
          v_and_b32 {v(t1)}, 3, {v(lane)}
          v_lshlrev_b32 {v(t4)}, 4, {v(t1)}
          v_lshl_add_u32 {v(t4)}, {v(t0)}, 6, {v(t4)}
          v_bfe_u32 {v(t5)}, {v(lane)}, 2, 1
          v_lshl_add_u32 {v(vpo)}, {v(t5)}, 11, {v(t4)}
          v_max_u32 {v(t1)}, 1, {v(t1)}
          v_add_u32 {v(t1)}, {s(sQ)}, {v(t1)}
          v_and_b32 {v(t1)}, 3, {v(t1)}
          s_andn2_b32 s3, s2, 6
          s_lshl_b32 s3, s3, 2
          s_and_b32 s40, {s(sQ)}, 1
          s_lshl_b32 s40, s40, 1
          s_add_u32 s3, s3, s40
          s_lshr_b32 s40, {s(sQ)}, 1
          s_lshl_b32 s40, s40, 10
          s_add_u32 s3, s3, s40
          s_lshl_b32 s3, s3, 7
          s_add_u32 s3, s3, {F2A_OFF}
          v_lshl_add_u32 {v(fa)}, {v(t1)}, 10, s3
          v_lshl_add_u32 {v(fa)}, {v(t5)}, 7, {v(fa)}
          s_lshl_b32 s3, {s(sV)}, 11
          v_lshl_add_u32 {v(t4)}, {v(t0)}, 8, s3
          v_lshlrev_b32 {v(t2)}, 1, {v(t2)}
          v_xor_b32 {v(t0)}, {v(t0)}, {v(t2)}
          v_lshl_add_u32 {v(rr)}, {v(t0)}, 4, {v(t4)}
          v_xor_b32 {v(rr+1)}, 16, {v(rr)}
          v_add_u32 {v(fa2)}, {OWN}, {v(rr)}
          v_add_u32 {v(fd2)}, {OWN}, {v(rr+1)}
          s_mov_b32 s46, 0xffff0000
          s_mov_b32 s48, {fbits(1/256)}
          s_mov_b32 s49, {fbits(1/256)}""")
    a("s_barrier")
    def epoch():
        a(f"s_or_b32 s3, s2, {s(sV)}\ns_cmp_lg_u32 s3, 0\ns_cbranch_scc1 P3_NOEPOCH")
        keep = a.snapshot()
        a(f"""v_mov_b32 {v(t0)}, {G.EPOCH_OFF}
              v_mov_b32 {v(t2)}, {s(sN)}
              s_mov_b64 exec, 1
              buffer_store_dword {v(t2)}, {v(t0)}, {s(SW,4)}, 0 offen sc1
              s_mov_b64 exec, -1""")
        a.label("P3_NOEPOCH"); a.restore(keep)
    if not OPT["yfree"]: y_dma()
    for lh in range(2): a(f"buffer_load_dwordx4 {v(xv+4*lh,4)}, {v(vxo)}, {s(SX,4)}, s45 offen offset:{512*lh}", tag="P")
    bs = [V.get(8), V.get(8)]; u0 = V.get(8); red = V.get(32); pk = V.get(8)
    def p_loads(between=None):
        wait_flags(a, "P3_FP", [(fa, fd)], OPT["slP"], lanes=8, between=between)
        st.mark()
        for q in range(3):
            a(f"s_add_u32 s3, {s(sQ)}, {q+1}\ns_and_b32 s3, s3, 3\ns_lshl_b32 s3, s3, 21\ns_add_u32 s40, s43, s3\ns_add_u32 s41, s40, 16384")
            for lh in range(2): a(f"buffer_load_dwordx4 {v(pt + 8*q + 4*lh,4)}, {v(vpo)}, {s(SW,4)}, s{40+lh} offen sc1", tag="P")
    def by():
        a.waitvm("Y"); a("s_barrier")
        st.mark()
    def own():
        for lh in range(2):
            for b in range(2): a(f"ds_read_b128 {v(bs[lh]+4*b,4)}, {v(fd2 if b else fa2)} offset:{8192*lh}")
        def add_bf16(src):
            for lh in range(2):
                for i in range(4): a(f"v_lshlrev_b32 {v(u0+2*i)}, 16, {v(src+4*lh+i)}\nv_and_b32 {v(u0+2*i+1)}, s46, {v(src+4*lh+i)}")
                for i in range(8): a(f"v_add_f32 {v(bs[lh]+i)}, {v(bs[lh]+i)}, {v(u0+i)}")
        add_bf16(xv)
    if OPT["pearly"]: p_loads(by); own()
    else: by(); own(); p_loads()
    a("s_barrier")
    for b in range(2):
        for w in range(4): a(f"ds_read_b128 {v(red+8*w+4*b,4)}, {v(rr+b)} offset:{RED + 8192*w}")
    for i in range(0, 8, 2):
        a(f"""v_pk_add_f32 {v(red+i,2)}, {v(red+i,2)}, {v(red+8+i,2)}
              v_pk_add_f32 {v(red+16+i,2)}, {v(red+16+i,2)}, {v(red+24+i,2)}
              v_pk_fma_f32 {v(bs[0]+i,2)}, {v(red+16+i,2)}, s[48:49], {v(bs[0]+i,2)}
              v_pk_fma_f32 {v(bs[1]+i,2)}, {v(red+16+i,2)}, s[48:49], {v(bs[1]+i,2)}
              v_pk_fma_f32 {v(bs[0]+i,2)}, {v(red+i,2)}, s[48:49], {v(bs[0]+i,2)}
              v_pk_fma_f32 {v(bs[1]+i,2)}, {v(red+i,2)}, s[48:49], {v(bs[1]+i,2)} neg_lo:[1,0,0] neg_hi:[1,0,0]""")
    st.mark()
    for q in range(3):
        for lh in range(2):
            for i in range(4): a(f"v_lshlrev_b32 {v(u0+2*i)}, 16, {v(pt+8*q+4*lh+i)}\nv_and_b32 {v(u0+2*i+1)}, s46, {v(pt+8*q+4*lh+i)}")
            for i in range(0, 8, 2): a(f"v_pk_add_f32 {v(bs[lh]+i,2)}, {v(bs[lh]+i,2)}, {v(u0+i,2)}")
            if q == 2:
                for i in range(4): a(f"v_cvt_pk_bf16_f32 {v(pk+4*lh+i)}, {v(bs[lh]+2*i)}, {v(bs[lh]+2*i+1)}")
                a(f"buffer_store_dwordx4 {v(pk+4*lh,4)}, {v(vxo)}, {s(SO,4)}, s45 offen offset:{512*lh} {OPT['stO']}")
    if OPT["ep"] == 1: epoch()
    st.mark()
    st.flush(SW, red, tid, 256, 1)
    a("s_endpgm")
    return V.hi

def compute23(a, st):
    a.label("P2_COMPUTE")
    V = VAlloc(8); l16, ha, xrd, exw, exr0, exr1, pad, wrd = [V.get() for _ in range(8)]
    wa = [[V.get(), V.get()] for _ in range(2)]; ow = V.get(4)
    acc = [[V.get(16) for _ in range(2)] for _ in range(2)]
    hf = [V.get(4) for _ in range(3)]; wf = [[V.get(4) for _ in range(2)] for _ in range(3)]
    fr = hf[0]; assert wf[2][1] + 4 == fr + 36
    ex = V.get(60); assert V.n <= CST
    xin = [[[fr + 4*((c*2 + m)*2 + t) for t in range(2)] for m in range(2)] for c in range(2)]
    D = [acc[1][0], acc[1][0] + 8]; E = [acc[1][1], acc[1][1] + 8]
    wr, wi, wd, P = ex, ex + 8, ex + 16, [ex + 24, ex + 28]; N64 = [ex + 32, ex + 36]; N32 = [ex + 40, ex + 44]; pk = ex
    a(f"""s_lshr_b32 {s(sWR_)}, {s(sV)}, 1
          s_and_b32 {s(sWC)}, {s(sV)}, 1
          v_lshlrev_b32 {v(l16)}, 4, {v(lane)}
          s_lshl_b32 s3, {s(sWR_)}, 12
          s_add_u32 s3, s3, {HR}
          v_add_u32 {v(ha)}, s3, {v(l16)}
          v_bfe_u32 {v(t0)}, {v(lane)}, 2, 2
          v_lshl_add_u32 {v(t1)}, {v(t3)}, 3, {v(t0)}
          v_lshlrev_b32 {v(t1)}, 8, {v(t1)}
          s_lshl_b32 s3, {s(sWC)}, 1
          v_xor_b32 {v(t0)}, s3, {v(t0)}
          v_lshl_add_u32 {v(t1)}, {v(t0)}, 6, {v(t1)}
          v_bfe_u32 {v(t0)}, {v(lane)}, 4, 1
          v_lshl_add_u32 {v(t1)}, {v(t0)}, 5, {v(t1)}
          v_and_b32 {v(t0)}, 1, {v(lane)}
          v_lshl_add_u32 {v(t1)}, {v(t0)}, 4, {v(t1)}
          v_bfe_u32 {v(t0)}, {v(lane)}, 1, 1
          v_lshl_add_u32 {v(wa[0][0])}, {v(t0)}, 3, {v(t1)}
          v_xor_b32 {v(wa[0][1])}, 64, {v(wa[0][0])}
          v_add_u32 {v(wa[1][0])}, 65536, {v(wa[0][0])}
          v_add_u32 {v(wa[1][1])}, 65536, {v(wa[0][1])}""")
    b = Asm(); real, a = a, b
    decode2(a)
    a(f"v_lshrrev_b32 {v(t1)}, 4, {v(lane)}")
    a(f"""v_and_b32 {v(t0)}, 15, {v(lane)}
          v_lshrrev_b32 {v(t2)}, 1, {v(t1)}
          v_and_b32 {v(pad)}, 1, {v(t1)}
          v_lshlrev_b32 {v(t4)}, 5, {v(t0)}
          v_lshl_add_u32 {v(t4)}, {v(t2)}, 9, {v(t4)}
          v_lshl_add_u32 {v(t4)}, {v(pad)}, 4, {v(t4)}
          v_add_u32 {v(xrd)}, {XB}, {v(t4)}
          v_lshrrev_b32 {v(t4)}, 1, {v(t0)}
          v_lshlrev_b32 {v(t0)}, 7, {v(t0)}
          v_add_u32 {v(t0)}, {EX}, {v(t0)}
          v_xor_b32 {v(t5)}, {v(t4)}, {v(t1)}
          v_lshl_add_u32 {v(exr0)}, {v(t5)}, 4, {v(t0)}
          v_xor_b32 {v(exr1)}, 64, {v(exr0)}
          s_lshl_b32 s3, {s(sV)}, 1
          v_add_u32 {v(t2)}, s3, {v(t2)}
          v_xor_b32 {v(t2)}, {v(t2)}, {v(t4)}
          v_lshl_add_u32 {v(t2)}, {v(t2)}, 4, {v(t0)}
          v_lshl_add_u32 {v(exw)}, {v(pad)}, 3, {v(t2)}""")
    a(f"s_lshl_b32 s3, {s(sV)}, 11\ns_add_u32 s3, s3, {WB}\nv_add_u32 {v(wrd)}, s3, {v(l16)}")
    a(f"""v_and_b32 {v(t0)}, 15, {v(lane)}
          v_lshlrev_b32 {v(t0)}, 6, {v(t0)}
          v_lshl_add_u32 {v(t0)}, {v(t3)}, 4, {v(t0)}
          v_bfe_u32 {v(t1)}, {v(lane)}, 4, 1
          v_lshl_add_u32 {v(pad)}, {v(t1)}, 5, {v(t0)}
          s_lshl_b32 s3, {s(sRB)}, 2
          s_add_u32 s3, s3, {s(sWR_)}
          s_lshl_b32 s3, s3, 1
          s_add_u32 s3, s3, {s(sWC)}
          s_lshl_b32 s3, s3, 2
          s_add_u32 s3, s3, {s(sNB)}
          s_lshl_b32 s3, s3, 12
          s_lshl_b32 s43, {s(sQ)}, 21
          s_add_u32 s3, s3, s43
          s_add_u32 s54, s3, {PART_OFF}
          s_add_u32 s55, s54, 65536
          s_sub_u32 s50, {s(sQ)}, {s(sWR_)}
          v_and_b32 {v(t0)}, 31, {v(lane)}
          s_lshl_b32 s3, {s(sWC)}, 13
          s_add_u32 s3, s3, {OWN}
          v_lshl_add_u32 {v(t0)}, {v(t0)}, 8, s3
          v_and_b32 {v(t2)}, 7, {v(lane)}
          v_lshlrev_b32 {v(t4)}, 1, {v(t3)}
          v_xor_b32 {v(t2)}, {v(t2)}, {v(t4)}""")
    for k in range(4): a(f"v_xor_b32 {v(t4)}, {(k >> 1)*4 + (k & 1)}, {v(t2)}\nv_lshl_add_u32 {v(ow+k)}, {v(t4)}, 4, {v(t0)}")
    a(f"""s_lshl_b32 s3, s2, 13
          s_lshl_b32 s43, {s(sV)}, 10
          s_add_u32 s3, s3, s43
          s_add_u32 s44, s3, {Y1_OFF}
          s_add_u32 s45, s44, 4096
          s_mov_b32 s47, 0x80008000""")
    for i in range(8): a(f"v_xor_b32 {v(N64[0]+i)}, s47, {v(S64[0]+i)}\nv_xor_b32 {v(N32[0]+i)}, s47, {v(S32[0]+i)}")
    late = [l.strip() for l in b.out]; a = real
    def reads(n):
        m, t = divmod(n, 4); j = W2R[m % 7]; bb = n % 3; off = (j & 3) * 16384 + t * 4096
        r = [f"ds_read_b128 {v(hf[bb],4)}, {v(ha)} offset:{HLOC[m] - HR + t*1024}"]
        for T in range(2): r += [f"ds_read_b64_tr_b16 {v(wf[bb][T]+2*h,2)}, {v(wa[j >> 2][T])} offset:{off + 1024*h}" for h in range(2)]
        return r
    def bar(): a.waitlg(); a("s_barrier")
    def barv(): a.waitvm(None, lg0=True); a("s_barrier")
    def gemm(Pn):
        nonlocal late
        a("s_barrier")
        st.mark()
        for r in reads(28*Pn) + reads(28*Pn + 1): a(r)
        for n in range(28*Pn, 28*Pn + 28):
            bb = n % 3; z = "0" if n % 28 == 0 else None
            mfs = [(lambda F=F: mf32(a, acc[Pn][F], wf[bb][F], hf[bb], z)) for F in range(2)]
            fill = reads(n + 2) if n % 28 < 26 else []; per = [3, 2]
            if n % 4 == 2 and n % 28 < 24 and n // 4 + 1 <= (OPT["lastB2"] if Pn else OPT["lastA"]): fill = [barv if n // 4 + 1 in (OPT["bB"], OPT["bY"]) else bar] + fill; per = [3, 3]
            elif late: fill = fill[:3] + late[:2] + fill[3:] + late[2:5]; late = late[5:]; per = [5, 5]
            G.interleave(a, mfs, fill, per)
        assert not late
        st.mark()
    def part(Pn, name):
        a(f"s_nop 9\ns_cmp_eq_u32 s50, {2*Pn}\ns_cbranch_scc1 {name}")
        for F in range(2):
            pp = pk + 8*F
            for i in range(8): a(f"v_cvt_pk_bf16_f32 {v(pp+i)}, {v(acc[Pn][F]+2*i)}, {v(acc[Pn][F]+2*i+1)}")
            for i in range(4): a(f"v_permlane16_swap_b32 {v(pp+i)}, {v(pp+4+i)}")
            for u in range(2): a(f"buffer_store_dwordx4 {v(pp+4*u,4)}, {v(pad)}, {s(SW,4)}, s{54+Pn} offen offset:{2048*F + 1024*u} sc1")
        a.label(name)
    gemm(0)
    part(0, "P2_KEEPA")
    a("s_barrier")
    st.mark()
    for m in range(2):
        for t in range(2):
            for c in range(2): a(f"ds_read_b128 {v(xin[c][m][t],4)}, {v(xrd)} offset:{c*4096 + m*2048 + t*1024}")
    for j in range(2): a(f"ds_read_b128 {v(wd+4*j,4)}, {v(wrd)} offset:{1024*j}")
    def big(src, Cc, Sre, Sim, fill=()):
        mfs = []
        for m in range(2):
            for t in range(2):
                z = "0" if t == 0 else None
                mfs += [lambda m=m, t=t, z=z: mf16(a, D[0]+4*m, src[0][m][t], Cc[t], z), lambda m=m, t=t, z=z: mf16(a, D[1]+4*m, src[0][m][t], Sim[t], z),
                        lambda m=m, t=t: mf16(a, D[0]+4*m, src[1][m][t], Sre[t]), lambda m=m, t=t: mf16(a, D[1]+4*m, src[1][m][t], Cc[t])]
        G.interleave(a, mfs, fill, [0] * 8 + [2] * 8)
    def cmul(cc, ss, nre, nim):
        ng = lambda n: " neg_lo:[0,1,0] neg_hi:[0,1,0]" if n < 0 else ""
        for i in range(0, 8, 2):
            a(f"""v_pk_mul_f32 {v(E[0]+i,2)}, {v(D[0]+i,2)}, {v(cc+i,2)}
                  v_pk_mul_f32 {v(E[1]+i,2)}, {v(D[1]+i,2)}, {v(cc+i,2)}
                  v_pk_fma_f32 {v(E[0]+i,2)}, {v(D[1]+i,2)}, {v(ss+i,2)}, {v(E[0]+i,2)}{ng(nre)}
                  v_pk_fma_f32 {v(E[1]+i,2)}, {v(D[0]+i,2)}, {v(ss+i,2)}, {v(E[1]+i,2)}{ng(nim)}""")
        for c in range(2):
            for i in range(4): a(f"v_cvt_pk_bf16_f32 {v(P[c]+i)}, {v(E[c]+2*i)}, {v(E[c]+2*i+1)}")
    a("s_mov_b32 s46, 0xffff0000")
    big(xin, C64, S64, N64, sum(([f"v_lshlrev_b32 {v(wr+i)}, 16, {v(wd+i)}", f"v_and_b32 {v(wi+i)}, s46, {v(wd+i)}"] for i in range(8)), []))
    cmul(c1, s1, +1, -1)
    for m in range(2):
        mf16(a, D[0]+4*m, C32[m], P[0], "0"); mf16(a, D[1]+4*m, N32[m], P[0], "0")
        mf16(a, D[0]+4*m, S32[m], P[1]); mf16(a, D[1]+4*m, C32[m], P[1])
    cmul(wr, wi, -1, +1)
    for m in range(2):
        mf16(a, D[0]+4*m, P[0], C32[m], "0"); mf16(a, D[1]+4*m, P[0], S32[m], "0")
        mf16(a, D[0]+4*m, P[1], N32[m]); mf16(a, D[1]+4*m, P[1], C32[m])
    cmul(c2, s2_, -1, +1)
    for c in range(2):
        for m in range(2): a(f"ds_write_b64 {v(exw)}, {v(P[c]+2*m,2)} offset:{c*4096 + m*2048}")
    a.waitlg(); a("s_barrier")
    for m in range(2):
        for t in range(2):
            for c in range(2): a(f"ds_read_b128 {v(xin[c][m][t],4)}, {v(exr1 if t else exr0)} offset:{c*4096 + m*2048}")
    big(xin, C64, N64, S64)
    for c in range(2):
        for i in range(4): a(f"v_cvt_pk_bf16_f32 {v(P[c]+i)}, {v(D[c]+2*i)}, {v(D[c]+2*i+1)}")
        a(f"buffer_store_dwordx4 {v(P[c],4)}, {v(l16)}, {s(SW,4)}, s{44+c} offen sc1", tag="st")
    gemm(1)
    part(1, "P2_KEEPB")
    for Pn in range(2):
        a(f"s_cmp_lg_u32 s50, {2*Pn}\ns_cbranch_scc1 P3_NOWN{Pn}")
        for F in range(2):
            for k in range(4): a(f"ds_write_b128 {v(ow+k)}, {v(acc[Pn][F]+4*k,4)} offset:{128*F}")
        a.label(f"P3_NOWN{Pn}")
    if not OPT["f2bar"]: a("s_barrier")
    V = VAlloc(ex + 16); fa, fd = V.get(), V.get()
    df = [CST, CST + 32]; cs_ = V.get(4); ang = [V.get(), V.get()]; dd = [V.get(), V.get()]; d5 = [V.get(), V.get()]; hf_ = V.get()
    vmax = 256
    gen = [f"v_and_b32 {v(t0)}, 31, {v(lane)}", f"s_lshl_b32 s3, {s(sNB)}, 6", f"v_add_u32 {v(t0)}, s3, {v(t0)}", f"v_cvt_f32_u32 {v(dd[0])}, {v(t0)}",
           f"s_and_b32 s3, {s(sV)}, 1", f"s_lshl_b32 s3, s3, 7", f"s_lshr_b32 s40, {s(sV)}, 1", f"s_add_u32 s3, s3, s40", f"s_add_u32 s3, s3, 1",
           f"v_lshl_add_u32 {v(t0)}, {v(t3)}, 3, s3", f"v_cvt_f32_u32 {v(t1)}, {v(t0)}", f"v_mul_f32 {v(dd[0])}, {fbits(1/256)}, {v(dd[0])}",
           f"v_mul_f32 {v(t1)}, 0.5, {v(t1)}", f"v_add_f32 {v(dd[1])}, {fbits(0.125)}, {v(dd[0])}",
           f"v_cmp_eq_u32 vcc, {256 - 118}, {v(t0)}", f"v_mov_b32 {v(hf_)}, 1.0"]
    for T in range(2): gen += [f"v_mul_f32 {v(ang[T])}, {v(t1)}, {v(dd[T])}", f"v_mul_f32 {v(d5[T])}, {fbits(5.0)}, {v(dd[T])}"]
    gen += [f"v_cndmask_b32 {v(hf_)}, {v(hf_)}, 0.5, vcc"]
    for t in range(8):
        for e in range(4):
            for T in range(2):
                c, s_ = cs_ + 2 * T, cs_ + 2 * T + 1
                gen += [f"v_cos_f32 {v(c)}, {v(ang[T])}", f"v_sin_f32 {v(s_)}, {v(ang[T])}"]
                if (t, e) == (7, 3): gen += [f"v_mul_f32 {v(c)}, {v(c)}, {v(hf_)}"]
                else: gen += [f"v_add_f32 {v(ang[T])}, {v(ang[T])}, {v(dd[T] if e < 3 else d5[T])}"]
                gen += [f"v_cvt_pk_bf16_f32 {v(df[T]+4*t+e)}, {v(c)}, -{v(s_)}"]
    half = OPT["ghalf"]
    for r in gen[:half]: a(r)
    a("s_waitcnt vmcnt(0)")
    put_flag(a, F2B_OFF, fa, fd, True)
    if OPT["f2bar"]: a("s_barrier")
    st.mark()
    for r in gen[half:]: a(r)
    IA = 160; assert V.n + 6 <= IA
    ya = V.get(); yf = [fr + 4*i for i in range(8)]; acc = [IA, IA + 16]
    rw = V.get(4)
    a(f"""v_bfe_u32 {v(t1)}, {v(lane)}, 2, 2
          v_lshl_add_u32 {v(t0)}, {v(t3)}, 3, {v(t1)}
          v_lshlrev_b32 {v(t0)}, 6, {v(t0)}
          v_bfe_u32 {v(t2)}, {v(lane)}, 4, 1
          v_lshl_add_u32 {v(t0)}, {v(t2)}, 5, {v(t0)}
          v_and_b32 {v(t2)}, 3, {v(lane)}
          v_lshl_add_u32 {v(t0)}, {v(t2)}, 3, {v(t0)}
          s_lshl_b32 s3, {s(sV)}, 13
          s_add_u32 s40, s3, {YB}
          v_add_u32 {v(ya)}, s40, {v(t0)}
          v_and_b32 {v(t0)}, 31, {v(lane)}
          s_add_u32 s3, s3, {RED}
          v_lshl_add_u32 {v(t0)}, {v(t0)}, 8, s3
          v_and_b32 {v(t2)}, 7, {v(lane)}
          v_xor_b32 {v(t2)}, {v(t2)}, {v(t3)}""")
    for jj in range(4): a(f"v_xor_b32 {v(t4)}, {2*jj}, {v(t2)}\nv_lshl_add_u32 {v(rw+jj)}, {v(t4)}, 4, {v(t0)}")
    a("s_waitcnt lgkmcnt(0)\ns_barrier")
    yr = lambda t: [f"ds_read_b64_tr_b16 {v(yf[t]+2*aa,2)}, {v(ya)} offset:{t*1024 + aa*256}" for aa in range(2)]
    for t in range(4):
        for r in yr(t): a(r)
    for t in range(8):
        for T in range(2):
            mf32(a, acc[T], df[T] + 4*t, yf[t], "0" if t == 0 else None)
            if t < 4: a(yr(t + 4)[T])
    for T in range(2):
        for jj in range(4): a(f"ds_write_b128 {v(rw+jj)}, {v(acc[T]+4*jj,4)} offset:{128*T}")
    a.waitlg(); a("s_barrier")
    st.mark()
    st.flush(SW, df[0], tid)
    a("s_endpgm")
    return max(vmax, V.hi)
```
